```python
import torch

def _softmax(x, axis=-1):
    return torch.softmax(x, dim=axis)
def _gelu(x):
    return torch.nn.functional.gelu(x, approximate="tanh")
def _silu(x):
    return torch.nn.functional.silu(x)
def _sigmoid(x):
    return torch.sigmoid(x)
def _layernorm(x, axis=-1, eps=1e-5):
    m = x.mean(dim=axis, keepdim=True)
    v = x.var(dim=axis, keepdim=True, unbiased=False)
    return (x - m) / torch.sqrt(v + eps)
def _scatter_add(tgt, idx, src, axis=0):
    return tgt.clone().index_add_(axis, idx, src)
def _segment_sum(src, seg, n):
    out = torch.zeros((n,) + src.shape[1:], dtype=src.dtype)
    return out.index_add_(0, seg, src)
def _pad(x, pw):
    flat = tuple(v for pair in reversed(pw) for v in pair)
    return torch.nn.functional.pad(x, flat)

kernel_name = 'standalone__modern_conv_block_replknet__vision'

def setup_inputs():

    _w = (lambda a: (lambda t: t.to(torch.bfloat16) if t.is_floating_point() else t)(torch.as_tensor(a)))
    H = W = 512
    C = 96
    K = 3
    return {
        "x": _w((lambda *s: torch.randn(*s, dtype=torch.bfloat16) * 0.05)(1, H, W, C)),
        "dw_large": _w((lambda *s: torch.randn(*s, dtype=torch.bfloat16) * 0.4)(K, K, C) * (1.0 / K)),
        "dw_small": _w((lambda *s: torch.randn(*s, dtype=torch.bfloat16) * 0.4)(5, 5, C) * 0.2),
        "w1": _w((lambda *s: torch.randn(*s, dtype=torch.bfloat16) * 0.4)(C, 4 * C) * (C ** -0.5)),
        "w2": _w((lambda *s: torch.randn(*s, dtype=torch.bfloat16) * 0.1)(4 * C, C) * ((4 * C) ** -0.5)),
    }

def reference(x, dw_large, dw_small, w1, w2):
    B, H, W, C = x.shape
    Kl = dw_large.shape[0]
    pl = (Kl - 1) // 2
    xpl = _pad(x, ((0,0),(pl,pl),(pl,pl),(0,0)))
    out = torch.zeros_like(x)
    for i in range(Kl):
        for j in range(Kl):
            out = out + xpl[:, i:i+H, j:j+W, :] * dw_large[i, j][None, None, None, :]
    Ks = dw_small.shape[0]
    ps = (Ks - 1) // 2
    xps = _pad(x, ((0,0),(ps,ps),(ps,ps),(0,0)))
    for i in range(Ks):
        for j in range(Ks):
            out = out + xps[:, i:i+H, j:j+W, :] * dw_small[i, j][None, None, None, :]
    h = _layernorm(out, axis=-1)
    h = _gelu(torch.einsum('bhwc,ce->bhwe', h, w1))
    h = torch.einsum('bhwe,ec->bhwc', h, w2)
    return x + h
```

```python
import re


def v(i, n=1):
    return f"v{i}" if n == 1 else f"v[{i}:{i + n - 1}]"


def s(i, n=1):
    return f"s{i}" if n == 1 else f"s[{i}:{i + n - 1}]"


_REG = re.compile(r"^(-|abs\()?([vsa])(\d+)\)?$")
_RNG = re.compile(r"^(-)?([vsa])\[(\d+):(\d+)\]$")


def regs_of(tok):
    tok = tok.strip()
    m = _REG.match(tok)
    if m:
        return {(m.group(2), int(m.group(3)))}
    m = _RNG.match(tok)
    if m:
        return {(m.group(2), i) for i in range(int(m.group(3)), int(m.group(4)) + 1)}
    if tok == "vcc":
        return {("s", "vcc")}
    if tok in ("exec", "exec_lo", "exec_hi"):
        return {("s", "exec")}
    return set()


TRANS = ("v_exp_", "v_log_", "v_rcp_", "v_rsq_", "v_sqrt_", "v_sin_", "v_cos_")


class Ins:
    __slots__ = ("text", "mn", "ops", "wr", "rd", "kind", "srcc", "passes", "states")

    def __init__(self, text):
        self.text = text
        t = text.split(";")[0].strip()
        self.kind = "other"
        self.wr, self.rd, self.srcc = set(), set(), set()
        self.passes = 0
        self.states = 1
        if not t or t.endswith(":") or t.startswith("."):
            self.mn = ""
            self.ops = []
            self.kind = "label" if t.endswith(":") else "none"
            self.states = 0
            return
        parts = t.split(None, 1)
        self.mn = mn = parts[0]
        ops = []
        if len(parts) > 1:
            for o in parts[1].split(","):
                o = o.strip()
                ops.append(o.split()[0] if o else o)
        self.ops = ops
        R = [regs_of(o) for o in ops]
        allr = lambda k: set().union(*R[k:]) if len(R) > k else set()
        if mn == "s_nop":
            self.states = int(ops[0], 0) + 1
            self.kind = "salu"
        elif mn.startswith("v_mfma"):
            self.kind = "mfma"
            self.wr = R[0]
            self.rd = R[1] | R[2] | R[3]
            self.srcc = R[3]
            self.passes = 8 if "32x32x16" in mn else 4
        elif mn.startswith(("v_permlane", "v_swap")):
            self.kind = "valu"
            self.wr = R[0] | R[1]
            self.rd = R[0] | R[1]
        elif mn.startswith("v_"):
            self.kind = "valu"
            self.wr = R[0]
            self.rd = allr(1)
            if mn.startswith(("v_fmac", "v_dot2c", "v_pk_fmac")) or "_dpp" in mn or "PRESERVE" in t or "mixlo" in mn or "mixhi" in mn:
                self.rd |= R[0]
            if mn.startswith("v_cmp") and not mn.startswith("v_cmpx"):
                pass
            if mn.startswith(("v_add_co", "v_sub_co", "v_addc_co")):
                self.wr |= R[1]
        elif mn.startswith(("ds_read", "ds_bpermute", "ds_swizzle")):
            self.kind = "lds"
            self.wr = R[0]
            self.rd = allr(1)
        elif mn.startswith("ds_"):
            self.kind = "lds"
            self.rd = allr(0)
        elif mn.startswith(("buffer_load", "global_load")):
            self.kind = "vmem"
            if " lds" in t:
                self.rd = allr(0)
            else:
                self.wr = R[0]
                self.rd = allr(1)
        elif mn.startswith(("buffer_store", "global_store")):
            self.kind = "vmem"
            self.rd = allr(0)
        elif mn.startswith("s_"):
            self.kind = "salu"
            if mn.startswith(("s_cmp", "s_cbranch", "s_branch", "s_waitcnt", "s_barrier", "s_sleep",
                              "s_setprio", "s_endpgm")):
                self.rd = allr(0)
            else:
                self.wr = R[0] if R else set()
                self.rd = allr(1)


class Asm:
    def __init__(self):
        self.lines = []

    def __call__(self, text):
        for ln in text.split("\n"):
            self.lines.append(ln)

    def text(self):
        out = []
        for ln in self.lines:
            t = ln.strip()
            if t.endswith(":") or t.startswith(".") or t.startswith(";") or not t:
                out.append(t)
            else:
                out.append("    " + t)
        return "\n".join(out) + "\n"


def check_hazards(lines, window=24, only_last=False):
    ins = [Ins(l) for l in lines]
    probs = []
    for i, c in enumerate(ins):
        if c.states == 0 or (only_last and i != len(ins) - 1):
            continue
        dist = 0
        j = i - 1
        while j >= 0 and dist < window:
            p = ins[j]
            if p.states == 0:
                j -= 1
                continue
            need = 0
            why = ""
            vw = {r for r in p.wr if r[0] == "v"}
            sw = {r for r in p.wr if r[0] == "s"}
            if p.kind == "valu":
                if c.kind == "mfma" and vw & c.rd:
                    need, why = 2, "VALU->MFMA operand"
                if c.mn.startswith("v_permlane") and vw & c.rd:
                    need, why = max(need, 2), "VALU->permlane"
                if c.mn.startswith(("v_readfirstlane", "v_readlane")) and vw & c.rd:
                    need, why = max(need, 1), "VALU->readlane"
                if p.mn.startswith(TRANS) and c.kind == "valu" and not c.mn.startswith(TRANS) and vw & c.rd:
                    need, why = max(need, 1), "trans->VALU"
                if p.mn.startswith("v_dot") and vw & (c.rd | c.wr) and c.kind in ("valu", "mfma", "lds", "vmem"):
                    need, why = max(need, 3), "DLop result"
                if "_dpp" in c.mn and vw & c.rd:
                    need, why = max(need, 2), "VALU->DPP"
                if sw and c.kind == "vmem" and sw & c.rd:
                    need, why = max(need, 5), "VALU sgpr->VMEM"
                if sw and c.kind == "valu" and sw & c.rd:
                    need, why = max(need, 2), "VALU sgpr->VALU"
                if ("sdwa" in p.mn or "op_sel" in p.text or "mixhi" in p.mn or "mixlo" in p.mn) and c.kind in ("valu",) and vw & (c.rd | c.wr):
                    need, why = max(need, 1), "opsel/sdwa->VALU"
            if p.kind == "mfma":
                tab_rd = {4: 8, 8: 12}[p.passes]
                if c.kind == "mfma":
                    ab = c.rd - c.srcc
                    if p.wr & ab:
                        need, why = max(need, tab_rd), "MFMA D->MFMA A/B"
                    if p.wr & c.srcc:
                        if p.wr == c.srcc and p.passes == c.passes:
                            pass
                        else:
                            need, why = max(need, {4: 6, 8: 10}[p.passes]), "MFMA D->MFMA C overlap"
                    elif p.wr & c.wr:
                        need, why = max(need, tab_rd), "MFMA D->MFMA D WAW"
                elif c.kind in ("valu", "lds", "vmem"):
                    if p.wr & (c.rd | c.wr):
                        need, why = max(need, tab_rd), "MFMA D->VALU/mem"
                    if c.kind == "valu" and p.srcc & c.wr:
                        need, why = max(need, {4: 3, 8: 7}[p.passes]), "MFMA SrcC WAR"
            if p.kind == "vmem" and p.mn.startswith(("buffer_store_dwordx4", "buffer_store_dwordx3",
                                                     "global_store_dwordx4")):
                data = regs_of(p.ops[0])
                if data & c.wr:
                    need, why = max(need, 2 if c.kind == "valu" else 1), "wide store WAR"
            if need > dist:
                probs.append(f"line {i}: '{c.text.strip()}' needs {need} states after line {j} "
                             f"'{p.text.strip()}' has {dist} ({why})")
            dist += p.states
            j -= 1
    return probs
```

```python
import math
import struct
import sys
import os

import numpy as np

sys.path.insert(0, os.path.dirname(os.path.abspath(__file__)))
from asmlib import Asm, Ins, v, s, check_hazards

NAME = "standalone__modern_conv_block_replknet__vision"
E = os.environ.get
DIAG = E("DIAG", "0") == "1"
STF = E("STF", " sc1")
TRAIL = int(E("TRAIL", "2"))
PKN = E("PKN", "0") == "1"
PKS = E("PKS", "0") == "1"
PRA, PRB = int(E("PRA", "0")), int(E("PRB", "1"))
sStamp = 64


def f32(x):
    return "0x%08x" % struct.unpack("<I", struct.pack("<f", x))[0]


def h2(x):
    b = int(np.float16(x).view(np.uint16))
    return "0x%08x" % (b | (b << 16))


KAPPA = 2.0 * math.sqrt(2.0 / math.pi) * math.log2(math.e)
BETA = float(np.float16(KAPPA / (KAPPA * 0.044715) ** (1.0 / 3.0)))
SC = KAPPA / BETA
BIG = 0x40000000
NBIN = 28
SEXP = 111

XBYTES = 512 * 512 * 96 * 2
ROWB = 512 * 192
WS_END = 256 * 8 * 12288
WS_STAMP = 0x2000000
TW = NBIN * 256
TABP, TABN = 0, 65536
E0 = TW
DZ = 65544
E1 = E0 + DZ + 19 * 3072
DZ1 = 5 * 3072 + 8
L_FLAG = E1 + DZ1 + 5 * 3072
LDS_BYTES = L_FLAG + 256
assert L_FLAG % 16 == 0 and LDS_BYTES <= 163840 and E0 + 19 * 3072 <= 65536
OS = 584
RS = 7104
SS = 14336
RL = E0
RU = TABN + TW + 128
TL = RL + 3 * SS
TU = RU + 2 * SS + RS + 12 * OS
assert TL + 15360 <= 65536 and TU % 16 == 0 and TU + 15360 <= E1 and RL % 256 == 0 and RU % 256 == 128
NQ = 3
F_STG = L_FLAG
F_DONE = L_FLAG + 48
F_TRDY = L_FLAG + 160
F_ISS = L_FLAG + 164
F_RDY = L_FLAG + 168
F_INIT = L_FLAG + 172


def kap(ch, q):
    return 32 * (q >> 4) + 16 * ch + (q & 15)


def coff(c):
    return (c // 8) * OS + (c % 8) * 72


STEPS = {u: [(tp, n) for i in range(3) for tp, n in ((1, 3 * (u + 1) + i), (2, 3 * (u - 3) + i)) if 0 <= n < 72]
         for u in range(-1, 27)}
FRAGS = [f for u in range(-1, 27) for f in STEPS[u]]
PIECES = []
for tp_, n_ in FRAGS:
    if (tp_, n_ // 6) not in PIECES:
        PIECES.append((tp_, n_ // 6))
assert len(PIECES) == 24 and len(FRAGS) == 144


def piece_addr(tp, c):
    i = PIECES.index((tp, c))
    if i < 5:
        return 1, E1 + 3072 * i, DZ1
    return 0, E0 + 3072 * (i - 5), DZ


SB = 48
TS = 192
DS = 212
TMP = 232
vL16, vT0, vT1 = 253, 254, 255
vFl, vTa, vCA, vLdA, vLdB, vSt, vCv, vK = 240, 241, 244, 247, 248, 249, 250, 251
H = 0
X = 48
G = 144
ACC = 176
WS = 224
NWS = 5
XR = 244
vXoff = 252
vA = {1: 254, 2: 255}

NE = 4
NSL = 5

sX, sO, sW = 4, 8, 12
sWave, sTile, sPair, sRdy = 16, 17, 18, 19
sSelLo, sSelHi = 20, 21
sX0, sY0 = 22, 23
sTB, sTB2 = 24, 25
sA, sB, sC, sD = 26, 27, 28, 29
sR = 30
sHb = 36
sRot = 39
sI1, sI2 = 40, 44
sDL, sDS = 48, 52
sEL, sER, sE1 = 80, 81, 82
cNB, cS, cLo, cHi = 84, 85, 86, 87


def stamp(a, k):
    if DIAG:
        a(f"s_waitcnt lgkmcnt(0)\ns_memtime s[60:61]\ns_waitcnt lgkmcnt(0)\ns_mov_b32 {s(sStamp + k)}, s60")


def stamp_rt(a, k):
    if DIAG:
        a(f"s_waitcnt lgkmcnt(0)\ns_memrealtime s[60:61]\ns_waitcnt lgkmcnt(0)\ns_mov_b32 {s(sStamp + k)}, s60")


def stamp_flush(a, n, rec, vT0=vT0, vT1=vT1):
    if DIAG:
        a(f"s_mov_b32 {s(sStamp + 12)}, {s(sWave)}")
        a(f"v_mov_b32 {v(vT0)}, 0")
        for k in range(n):
            a(f"v_writelane_b32 {v(vT0)}, {s(sStamp + k)}, {k}")
        a(f"""s_lshl_b32 s60, s2, 4
s_add_u32 s60, s60, s62
s_lshl_b32 s60, s60, 7
s_add_u32 s60, s60, {WS_STAMP + 64 * rec}
v_lshrrev_b32 {v(vT1)}, 2, {v(vL16)}
s_mov_b32 exec_lo, 0xffff
s_mov_b32 exec_hi, 0
buffer_store_dword {v(vT0)}, {v(vT1)}, {s(sW, 4)}, s60 offen
s_mov_b64 exec, -1
s_waitcnt vmcnt(0)""")


def srd(a, d, lo, nbytes):
    a(f"""s_mov_b32 {s(d)}, {s(lo)}
s_and_b32 {s(d + 1)}, {s(lo + 1)}, 0xffff
s_mov_b32 {s(d + 2)}, {nbytes}
s_mov_b32 {s(d + 3)}, 0x20000""")


def spin(a, label, cmp, t0=vT0, t1=vT1):
    a(f"""
s_mov_b32 {s(sD)}, 200000
{label}:
ds_read_b32 {v(t1)}, {v(t0)}
s_waitcnt lgkmcnt(0)
{cmp}
s_cmp_eq_u64 vcc, exec
s_cbranch_scc1 {label}_ok
s_sleep 2
s_sub_u32 {s(sD)}, {s(sD)}, 1
s_cmp_lg_u32 {s(sD)}, 0
s_cbranch_scc1 {label}
{label}_ok:
""")


def wait_flags(a, label, addr):
    a(f"v_add_u32 {v(vT0)}, {addr}, {v(vFl)}")
    spin(a, label, f"v_cmp_ne_u32 vcc, 0, {v(vT1)}")


def wait_count(a, label, addr, n, op="eq"):
    a(f"v_mov_b32 {v(vT0)}, {addr}")
    spin(a, label, f"v_cmp_{op}_u32 vcc, {n}, {v(vT1)}")


def count(a, addr):
    a(f"""
v_mov_b32 {v(vT0)}, {addr}
v_mov_b32 {v(vT1)}, 1
s_waitcnt lgkmcnt(0)
s_mov_b64 exec, 1
ds_add_u32 {v(vT0)}, {v(vT1)}
s_mov_b64 exec, -1
""")


def issue_loads(a):
    a(f"""
s_lshl_b32 {s(sA)}, {s(sPair)}, 2
s_add_u32 {s(sA)}, {s(sA)}, {s(sY0)}
s_lshl_b32 {s(sB)}, {s(sA)}, 9
s_add_u32 {s(sB)}, {s(sB)}, {s(sX0)}
s_mul_i32 {s(sB)}, {s(sB)}, 192
s_cmp_lt_u32 {s(sA)}, 2
s_cselect_b64 vcc, s[58:59], 0
v_mov_b32 {v(vLdB)}, {BIG}
s_sub_u32 {s(sC)}, {s(sB)}, {2 * ROWB}
v_add_u32 {v(vT1)}, {s(sC)}, {v(vLdA)}
v_cndmask_b32 {v(vLdB)}, {v(vT1)}, {v(vLdB)}, vcc
v_add_u32 {v(vT1)}, -384, {v(vLdB)}
""")
    for xq in range(9):
        for i in range(4):
            off = 768 * xq + 192 * i - 384
            if xq == 0 and i < 2:
                a(f"buffer_load_dwordx4 {v(SB + 4 * i, 4)}, {v(vT1)}, {s(sX, 4)}, {s(sEL)} offen offset:{192 * i}")
                continue
            elif xq == 8 and i >= 2:
                so, im = sER, off - 3840
            elif off < 3840:
                so, im = "0", off
            else:
                so, im = sE1, off - 3840
            so = so if isinstance(so, str) else s(so)
            a(f"buffer_load_dwordx4 {v(SB + 16 * xq + 4 * i, 4)}, {v(vLdB)}, {s(sX, 4)}, {so} offen offset:{im}")


def dma_consts(a, r):
    a(f"""
v_lshrrev_b32 {v(r)}, 9, {v(vL16)}             ; l>>5
v_mul_u32_u24 {v(r + 1)}, 1536, {v(r)}
v_add_u32 {v(r + 1)}, {v(r + 1)}, {v(vL16)}
v_bfe_u32 {v(vT0)}, {v(vL16)}, 6, 3            ; (l>>2)&7
v_lshl_add_u32 {v(r)}, {v(r)}, 4, {v(vT0)}
v_mul_u32_u24 {v(r)}, 768, {v(r)}
v_and_b32 {v(vT0)}, 48, {v(vL16)}
v_add_u32 {v(r)}, {v(r)}, {v(vT0)}             ; w1
""")


def dma_piece(a, tp, c, r):
    _, ad, dz = piece_addr(tp, c)
    a(f"""
s_add_u32 {s(sA)}, {s(sRot)}, {c}
s_cmp_ge_u32 {s(sA)}, 12
s_cselect_b32 {s(sB)}, 12, 0
s_sub_u32 {s(sA)}, {s(sA)}, {s(sB)}
s_mul_i32 {s(sA)}, {s(sA)}, {64 if tp == 1 else 6144}
""")
    for par in range(2):
        a(f"s_mov_b32 m0, {ad + par * dz}")
        if tp == 1:
            for ks in range(3):
                a(f"s_add_u32 {s(sR + ks)}, {s(sA)}, {(32 * ks + 8 * par) * 768 - 1024 * ks}")
            for ks in range(3):
                a(f"buffer_load_dwordx4 {v(r)}, {s(sI1, 4)}, {s(sR + ks)} offen offset:{1024 * ks} lds")
        else:
            a(f"s_add_u32 {s(sR)}, {s(sA)}, {1536 * par}")
            a(f"s_add_u32 {s(sR + 1)}, {s(sA)}, {1536 * par + 1536}")
            a(f"buffer_load_dwordx4 {v(vL16)}, {s(sI2, 4)}, {s(sR)} offen lds")
            a(f"buffer_load_dwordx4 {v(r + 1)}, {s(sI2, 4)}, {s(sR)} offen offset:1024 lds")
            a(f"buffer_load_dwordx4 {v(vL16)}, {s(sI2, 4)}, {s(sR + 1)} offen offset:2048 lds")


def prologue(a):
    k = NAME + "_kernel"
    a(f"""
.globl {k}
.p2align 8
.type {k},@function
{k}:
s_cmp_ge_u32 s2, 256
s_cbranch_scc1 L_end
s_load_dwordx8 s[64:71], s[0:1], 0
s_load_dwordx4 s[72:75], s[0:1], 32
s_load_dwordx2 s[76:77], s[0:1], 56
v_mov_b32 v99, v0                ; tid
v_lshrrev_b32 v1, 6, v0
v_and_b32 v0, 63, v0
s_nop 0
v_readfirstlane_b32 {s(sWave)}, v1
s_and_b32 {s(sA)}, s2, 3
s_lshl_b32 {s(sA)}, {s(sA)}, 2
s_bfe_u32 {s(sB)}, s2, 0x20003
s_add_u32 {s(sA)}, {s(sA)}, {s(sB)}
s_lshl_b32 {s(sX0)}, {s(sA)}, 5
s_bfe_u32 {s(sA)}, s2, 0x10002
s_lshl_b32 {s(sA)}, {s(sA)}, 3
s_lshr_b32 {s(sB)}, s2, 5
s_add_u32 {s(sA)}, {s(sA)}, {s(sB)}
s_lshl_b32 {s(sY0)}, {s(sA)}, 5
s_mov_b32 {s(sSelLo)}, 0x05040100
s_mov_b32 {s(sSelHi)}, 0x07060302
s_lshr_b32 {s(sA)}, s2, 3
s_mul_i32 {s(sB)}, {s(sA)}, 43
s_lshr_b32 {s(sB)}, {s(sB)}, 9
s_mul_i32 {s(sB)}, {s(sB)}, 12
s_sub_u32 {s(sRot)}, {s(sA)}, {s(sB)}       ; (wg>>3) % 12
v_mov_b32 v10, {BIG}
v_lshlrev_b32 {v(vL16)}, 4, v0
v_min_u32 {v(vFl)}, 1, v0
v_lshlrev_b32 {v(vFl)}, 2, {v(vFl)}
v_lshlrev_b32 v2, 2, v0
v_add_u32 v2, {L_FLAG}, v2
v_add_u32 v3, -12, v0
v_cmp_gt_u32 vcc, 8, v3
v_cmp_eq_u32 s[56:57], 36, v0
s_or_b64 vcc, vcc, s[56:57]
v_cndmask_b32 v3, 0, 1, vcc
ds_write_b32 v2, v3
v_bfe_u32 v1, v0, 3, 1
v_lshrrev_b32 v2, 5, v0          ; ch'
v_bfe_u32 v3, v0, 4, 1           ; dyp
v_bfe_u32 v4, v0, 2, 1           ; oy
v_sub_u32 v3, v3, v4             ; dyp-oy
v_and_b32 v4, 3, v0
v_mul_u32_u24 v5, {TU - TL}, v1
v_lshl_add_u32 v5, v4, 4, v5
v_add_u32 v5, {TL}, v5
v_cmp_eq_u32 s[56:57], v1, v2
v_add_u32 v6, 0, v3
v_cmp_gt_u32 vcc, 5, v6
v_lshl_add_u32 v7, v6, 6, v5
s_and_b64 vcc, vcc, s[56:57]
v_cndmask_b32 {v(vTa)}, v10, v7, vcc
v_add_u32 v6, 2, v3
v_lshl_add_u32 v7, v6, 6, v5
v_cndmask_b32 {v(vTa + 1)}, v10, v7, s[56:57]
v_add_u32 v6, 4, v3
v_cmp_gt_u32 vcc, 5, v6
v_lshl_add_u32 v7, v6, 6, v5
s_and_b64 vcc, vcc, s[56:57]
v_cndmask_b32 {v(vTa + 2)}, v10, v7, vcc
v_mul_u32_u24 v2, {2 * OS}, v2
v_and_b32 v3, 7, v0
v_lshl_add_u32 {v(vCv)}, v3, 3, v2
v_bfe_u32 v3, v0, 4, 1
v_mul_u32_u24 v3, {RS}, v3
v_add_u32 {v(vCv)}, {v(vCv)}, v3
v_cmp_eq_u32 s[56:57], 1, v1
; staging lane map: row = l/12, o = l%12 (lanes < 48)
v_mul_u32_u24 v1, 43, v0
v_lshrrev_b32 v1, 9, v1          ; row
v_mul_u32_u24 v2, 12, v1
v_sub_u32 v2, v0, v2             ; o
v_and_b32 v5, 1, v1
v_mul_u32_u24 v5, {RS}, v5
v_lshrrev_b32 v6, 1, v1
v_mul_u32_u24 v6, {RU - RL}, v6
v_add_u32 v5, v5, v6
v_mul_u32_u24 v6, {OS}, v2
v_add_u32 {v(vSt)}, v5, v6
v_mul_u32_u24 v5, {ROWB}, v1
v_lshl_add_u32 v5, v2, 4, v5
v_cmp_gt_u32 vcc, 48, v0
v_cmp_gt_u32 s[58:59], 24, v0    ; rows 0,1
s_nop 0
v_cndmask_b32 {v(vLdA)}, v10, v5, vcc
s_cmp_eq_u32 {s(sX0)}, 0
s_cselect_b32 {s(sEL)}, {BIG}, 0
s_mov_b32 {s(sE1)}, 3840
s_cmp_eq_u32 {s(sX0)}, 480
s_cselect_b32 {s(sER)}, {BIG}, {s(sE1)}
s_mov_b32 {s(sPair)}, {s(sWave)}
s_waitcnt lgkmcnt(0)
""")
    srd(a, sX, 64, XBYTES)
    srd(a, sDL, 66, 9 * 96 * 2)
    srd(a, sDS, 68, 25 * 96 * 2)
    srd(a, sI1, 70, 96 * 384 * 2)
    srd(a, sI2, 72, 96 * 384 * 2)
    srd(a, sO, 74, XBYTES)
    srd(a, sW, 76, WS_STAMP + 0x100000 if DIAG else WS_END)
    stamp(a, 0)
    stamp_rt(a, 10)
    a(f"""
s_sub_u32 {s(sA)}, {s(sWave)}, 2
s_cmp_lt_u32 {s(sA)}, 4
s_cbranch_scc1 L_tb
s_barrier
s_cmp_lt_u32 {s(sWave)}, 2
s_cbranch_scc1 L_xload
""")
    a(f"""
s_cmp_eq_u32 {s(sWave)}, 7
s_cbranch_scc1 L_tab
""")
    dma_consts(a, 20)
    wait_count(a, "L_wed", F_ISS, 2, "le")
    for tp, c in PIECES[:5]:
        dma_piece(a, tp, c, 20)
    a(f"""
L_tab:
v_add_u32 v1, -384, v99
v_lshlrev_b32 v2, 2, v1
v_add_u32 v3, {TABN}, v2
v_lshlrev_b32 v4, 17, v1              ; code 2i << 16
v_or_b32 v4, 0x8000, v4
v_cmp_gt_u32 vcc, 64, v1
v_mov_b32 v5, {SEXP << 23}
v_mov_b32 v6, {(SEXP + 1) << 23}
v_cndmask_b32 v5, v5, v6, vcc
v_cndmask_b32 v6, 0, v6, vcc
v_add_u32 v4, v4, v5
s_mov_b32 {s(sA)}, {f32(KAPPA * 0.044715)}
v_mov_b32 v7, {f32(KAPPA)}
s_mov_b32 {s(sB)}, {NBIN // 2}
L_tabl:
v_add_u32 v9, 0x10000, v4
v_sub_f32 v8, v4, v6
v_sub_f32 v9, v9, v6
v_mul_f32 v10, v8, v8
v_mul_f32 v11, v9, v9
v_fma_f32 v10, v10, {s(sA)}, v7
v_fma_f32 v11, v11, {s(sA)}, v7
v_mul_f32 v10, v10, v8
v_mul_f32 v11, v11, v9
v_exp_f32 v10, -v10
v_exp_f32 v11, -v11
s_nop 0
v_add_f32 v12, 1.0, v10
v_add_f32 v13, 1.0, v11
v_rcp_f32 v12, v12
v_rcp_f32 v13, v13
s_nop 0
v_mul_f32 v8, v8, v12
v_mul_f32 v9, v9, v13
v_mul_f32 v10, -v8, v10
v_mul_f32 v11, -v9, v11
v_cvt_pk_bf16_f32 v12, v8, v9
v_cvt_pk_bf16_f32 v13, v10, v11
ds_write_b32 v2, v12
ds_write_b32 v3, v13
v_sub_u32 v4, v4, v5
v_mov_b32 v5, {SEXP << 23}
v_mov_b32 v6, 0
v_add_u32 v4, v4, v5
v_add_u32 v4, 0x1000000, v4
v_add_u32 v2, 512, v2
v_add_u32 v3, 512, v3
s_sub_u32 {s(sB)}, {s(sB)}, 1
s_cmp_lg_u32 {s(sB)}, 0
s_cbranch_scc1 L_tabl
s_waitcnt vmcnt(0)
""")
    count(a, F_INIT)
    a(f"""
s_branch L_xload
L_tb:
v_add_u32 v99, -128, v99             ; 0..255
""")
    for r in range(2):
        b = 128 + 16 * r
        a(f"""
v_add_u32 v1, {256 * r}, v99         ; task
v_mul_u32_u24 v{b}, 683, v1
v_lshrrev_b32 v{b}, 16, v{b}         ; dy
v_mul_u32_u24 v{b + 1}, 96, v{b}
v_sub_u32 v{b + 1}, v1, v{b + 1}     ; c
v_mul_u32_u24 v2, 960, v{b}
v_lshl_add_u32 v2, v{b + 1}, 1, v2
v_add_u32 v1, -1, v{b}
v_mul_u32_u24 v3, 576, v1
v_lshl_add_u32 v3, v{b + 1}, 1, v3
v_cmp_gt_u32 vcc, 3, v1
s_nop 1
v_cndmask_b32 v3, v10, v3, vcc
""")
        for jx in range(5):
            a(f"buffer_load_ushort v{b + 4 + jx}, v2, {s(sDS, 4)}, 0 offen offset:{192 * jx}")
        for jx in range(3):
            a(f"buffer_load_ushort v{b + 9 + jx}, v3, {s(sDL, 4)}, 0 offen offset:{192 * jx}")
    a("s_barrier")
    a("s_waitcnt vmcnt(0)")
    for r in range(2):
        b = 128 + 16 * r
        w = b + 4
        o = 160 + 16 * r
        for jx in range(8):
            a(f"v_lshlrev_b32 v{w + jx}, 16, v{w + jx}")
        a(f"""
v_add_f32 v{w + 1}, v{w + 1}, v{w + 5}
v_add_f32 v{w + 2}, v{w + 2}, v{w + 6}
v_add_f32 v{w + 3}, v{w + 3}, v{w + 7}
v_mov_b32 v1, 0
v_cvt_pk_bf16_f32 v{o}, v{w}, v{w + 1}
v_cvt_pk_bf16_f32 v{o + 1}, v{w + 2}, v{w + 3}
v_cvt_pk_bf16_f32 v{o + 2}, v{w + 4}, v1
v_mov_b32 v{o + 3}, 0
v_cvt_pk_bf16_f32 v{o + 4}, v1, v{w}
v_cvt_pk_bf16_f32 v{o + 5}, v{w + 1}, v{w + 2}
v_cvt_pk_bf16_f32 v{o + 6}, v{w + 3}, v{w + 4}
v_mov_b32 v{o + 7}, 0
v_mov_b32 v{o + 8}, 0
v_mov_b32 v{o + 9}, v{o}
v_mov_b32 v{o + 10}, v{o + 1}
v_mov_b32 v{o + 11}, v{o + 2}
v_mov_b32 v{o + 12}, 0
v_mov_b32 v{o + 13}, v{o + 4}
v_mov_b32 v{o + 14}, v{o + 5}
v_mov_b32 v{o + 15}, v{o + 6}
v_lshrrev_b32 v2, 5, v{b + 1}
v_and_b32 v3, 15, v{b + 1}
v_lshl_add_u32 v2, v2, 4, v3
v_mul_u32_u24 v2, 320, v2
v_bfe_u32 v3, v{b + 1}, 4, 1
v_mul_u32_u24 v3, {TU - TL}, v3
v_add_u32 v2, v2, v3
v_lshl_add_u32 v2, v{b}, 6, v2
v_add_u32 v2, {TL}, v2
v_cmp_gt_u32 vcc, 5, v{b}
s_nop 1
v_cndmask_b32 v2, v10, v2, vcc
ds_write_b128 v2, v[{o}:{o + 3}]
ds_write_b128 v2, v[{o + 4}:{o + 7}] offset:16
ds_write_b128 v2, v[{o + 8}:{o + 11}] offset:32
ds_write_b128 v2, v[{o + 12}:{o + 15}] offset:48
""")
    count(a, F_TRDY)
    a("L_xload:")
    wait_count(a, "L_wiss", F_ISS, s(sPair))
    issue_loads(a)
    a(f"""
s_add_u32 {s(sA)}, {s(sPair)}, 1
v_mov_b32 {v(vT1)}, {s(sA)}
ds_write_b32 {v(vT0)}, {v(vT1)}
""")


def slot_of(a, dst, src):
    a(f"""
s_mul_i32 {s(dst)}, {src}, 11
s_lshr_b32 {s(dst)}, {s(dst)}, 5
s_mul_i32 {s(dst)}, {s(dst)}, 3
s_sub_u32 {s(dst)}, {src}, {s(dst)}
s_mul_i32 {s(dst)}, {s(dst)}, {SS}
""")


def phase1(a):
    a("s_mov_b32 exec_hi, 0x0000ffff")

    def oreg(rnd):
        return SB + (144 if rnd == 0 else 16 * (rnd - 1))

    for rnd in range(9):
        a(f"s_waitcnt vmcnt({32 - 4 * rnd})")
        L = SB + 16 * rnd
        O = oreg(rnd)
        for d in range(4):
            a(f"v_perm_b32 {v(O + 4 * d)}, {v(L + 4 + d)}, {v(L + d)}, {s(sSelLo)}")
            a(f"v_perm_b32 {v(O + 4 * d + 1)}, {v(L + 12 + d)}, {v(L + 8 + d)}, {s(sSelLo)}")
            a(f"v_perm_b32 {v(O + 4 * d + 2)}, {v(L + 4 + d)}, {v(L + d)}, {s(sSelHi)}")
            a(f"v_perm_b32 {v(O + 4 * d + 3)}, {v(L + 12 + d)}, {v(L + 8 + d)}, {s(sSelHi)}")
    a("s_mov_b32 exec_hi, -1")
    stamp(a, 1)
    a(f"""
s_lshl_b32 {s(sA)}, {s(sPair)}, 3
s_add_u32 {s(sA)}, {s(sA)}, {F_DONE + 4}
""")
    wait_flags(a, "L_wslot", s(sA))
    stamp(a, 2)
    a("s_setprio 3")
    slot_of(a, sR, s(sPair))
    a(f"""
s_add_u32 {s(sA)}, {s(sR)}, {RL}
v_add_u32 {v(vT0)}, {s(sA)}, {v(vSt)}
s_mov_b32 exec_hi, 0x0000ffff
""")
    for rnd in range(9):
        O = oreg(rnd)
        for d in range(4):
            a(f"ds_write_b64 {v(vT0)}, {v(O + 4 * d, 2)} offset:{8 * rnd + 2 * d * 72}")
            a(f"ds_write_b64 {v(vT0)}, {v(O + 4 * d + 2, 2)} offset:{8 * rnd + (2 * d + 1) * 72}")
    a(f"""
s_mov_b32 exec_hi, -1
s_lshl_b32 {s(sA)}, {s(sPair)}, 2
s_add_u32 {s(sA)}, {s(sA)}, {F_STG}
v_mov_b32 {v(vT0)}, {s(sA)}
v_mov_b32 {v(vT1)}, 1
s_waitcnt lgkmcnt(0)
ds_write_b32 {v(vT0)}, {v(vT1)}
s_cmp_eq_u32 {s(sPair)}, 8
s_cbranch_scc1 L_loader
""")
    stamp(a, 4)
    a(f"s_add_u32 {s(sB)}, {s(sPair)}, 1")
    slot_of(a, sR + 2, s(sB))
    a(f"""
s_add_u32 {s(sR + 1)}, {s(sR)}, {RU}
s_add_u32 {s(sR)}, {s(sR)}, {RL}
s_add_u32 {s(sR + 3)}, {s(sR + 2)}, {RU}
s_add_u32 {s(sR + 2)}, {s(sR + 2)}, {RL}
""")
    for z in range(4):
        a(f"v_add_u32 {v(TMP + z)}, {s(sR + z)}, {v(vCv)}")
    for z in range(3):
        a(f"v_cndmask_b32 {v(vCA + z)}, {v(TMP + z)}, {v(TMP + z + 1)}, s[56:57]")
    wait_count(a, "L_wt", F_TRDY, 4)
    stamp(a, 5)

    NST = 144

    def cread(i):
        z, q = divmod(i, 48)
        r = DS + 4 * (i % NSL)
        return (f"ds_read_b128 {v(TS + 4 * (i % NSL), 4)}, {v(vTa + z)} offset:{320 * q}\n"
                f"ds_read_b64 {v(r, 2)}, {v(vCA + z)} offset:{coff(kap(0, q))}\n"
                f"ds_read_b64 {v(r + 2, 2)}, {v(vCA + z)} offset:{coff(kap(0, q)) + 8}")

    def stats_pk(q):
        out = []
        for r in (0, 2):
            acc = 4 * q + r
            if q == 0:
                out.append(f"v_pk_add_f32 {v(TMP + r, 2)}, {v(acc, 2)}, {v(acc + 4, 2)}")
                out.append(f"v_pk_mul_f32 {v(TMP + 4 + r, 2)}, {v(acc, 2)}, {v(acc, 2)}")
            else:
                if q > 1:
                    out.append(f"v_pk_add_f32 {v(TMP + r, 2)}, {v(TMP + r, 2)}, {v(acc, 2)}")
                out.append(f"v_pk_fma_f32 {v(TMP + 4 + r, 2)}, {v(acc, 2)}, {v(acc, 2)}, {v(TMP + 4 + r, 2)}")
        return out

    def stats(q):
        out = []
        for r in range(4):
            acc = 4 * q + r
            if q == 0:
                out.append(f"v_mov_b32 {v(TMP + r)}, {v(acc)}")
                out.append(f"v_mul_f32 {v(TMP + 4 + r)}, {v(acc)}, {v(acc)}")
            else:
                out.append(f"v_add_f32 {v(TMP + r)}, {v(TMP + r)}, {v(acc)}")
                out.append(f"v_fmac_f32 {v(TMP + 4 + r)}, {v(acc)}, {v(acc)}")
        return out

    SLAG = 3
    for i in range(NE + 1):
        a(cread(i))
    for i in range(NST):
        z, q = divmod(i, 48)
        left = min(i + NE + 1, NST) - (i + 1)
        if i % 2 == 0:
            a(f"s_waitcnt lgkmcnt({3 * max(left - 1, 0)})")
        if i == 96:
            a(f"ds_write_b32 {v(vT0)}, {v(vT1)}")
        c = "0" if z == 0 else v(4 * q, 4)
        a(f"v_mfma_f32_16x16x32_bf16 {v(4 * q, 4)}, {v(TS + 4 * (i % NSL), 4)}, {v(DS + 4 * (i % NSL), 4)}, {c}")
        if i + NE + 1 < NST:
            if i == 97:
                a("s_waitcnt lgkmcnt(12)")
            if i == 43:
                a("s_setprio 0")
                wait_flags(a, "L_wrdy", s(sA))
                stamp(a, 3)
                a(f"""
s_setprio 3
s_lshl_b32 {s(sA)}, {s(sWave)}, 3
s_add_u32 {s(sA)}, {s(sA)}, {F_DONE + 32}
v_mov_b32 {v(vT0)}, {s(sA)}
v_mov_b32 {v(vT1)}, 1
""")
            a(cread(i + NE + 1))
        if i == NST - 2:
            a(f"ds_write_b32 {v(vT0)}, {v(vT1)} offset:4")
        if not PKS and i >= 96 + SLAG:
            for tx in stats(i - 96 - SLAG):
                a(tx)
    a("s_setprio 2")
    stamp(a, 8)
    if PKS:
        for q in range(48):
            for tx in stats_pk(q):
                a(tx)
    else:
        for q in range(48 - SLAG, 48):
            for tx in stats(q):
                a(tx)
    stamp(a, 6)
    s1, s2 = TMP, TMP + 4
    a(f"""
s_nop 1
v_permlane32_swap_b32 {v(s1)}, {v(s1 + 1)}
v_permlane32_swap_b32 {v(s1 + 2)}, {v(s1 + 3)}
v_permlane32_swap_b32 {v(s2)}, {v(s2 + 1)}
v_permlane32_swap_b32 {v(s2 + 2)}, {v(s2 + 3)}
""")
    for e in (0, 2):
        m, w_ = s1 + e, s2 + e
        a(f"""
v_add_f32 {v(m)}, {v(m)}, {v(m + 1)}
v_add_f32 {v(w_)}, {v(w_)}, {v(w_ + 1)}
v_mul_f32 {v(m)}, {f32(1.0 / 96)}, {v(m)}
v_mul_f32 {v(w_)}, {f32(1.0 / 96)}, {v(w_)}
v_fma_f32 {v(w_)}, -{v(m)}, {v(m)}, {v(w_)}
v_max_f32 {v(w_)}, 0, {v(w_)}
v_add_f32 {v(w_)}, {f32(1e-5)}, {v(w_)}
v_rsq_f32 {v(w_)}, {v(w_)}
s_nop 0
v_mul_f32 {v(m)}, {v(m)}, {v(w_)}
v_mul_f32 {v(w_)}, {f32(2.0 ** -SEXP)}, {v(w_)}
v_mul_f32 {v(m)}, {f32(-2.0 ** -SEXP)}, {v(m)}
v_mov_b32 {v(w_ + 1)}, {v(w_)}
v_mov_b32 {v(m + 1)}, {v(m)}
""")
    a(f"""
s_nop 1
v_permlane32_swap_b32 {v(s1)}, {v(s1 + 1)}
v_permlane32_swap_b32 {v(s1 + 2)}, {v(s1 + 3)}
v_permlane32_swap_b32 {v(s2)}, {v(s2 + 1)}
v_permlane32_swap_b32 {v(s2 + 2)}, {v(s2 + 3)}
s_lshl_b32 {s(sA)}, s2, 3
s_add_u32 {s(sA)}, {s(sA)}, {s(sWave)}
s_mul_i32 {s(sHb)}, {s(sA)}, 12288
s_add_u32 {s(sHb + 1)}, {s(sHb)}, 4096
s_add_u32 {s(sHb + 2)}, {s(sHb)}, 8192
""")
    for ks in range(3):
        for q in range(16 * ks, 16 * ks + 16):
            if PKN:
                for r in (0, 2):
                    acc = 4 * q + r
                    a(f"v_pk_fma_f32 {v(acc, 2)}, {v(acc, 2)}, {v(s2 + r, 2)}, {v(s1 + r, 2)}")
            else:
                for r in range(4):
                    acc = 4 * q + r
                    a(f"v_fma_f32 {v(acc)}, {v(acc)}, {v(s2 + r)}, {v(s1 + r)}")
        ta = 192 + 16 * (ks % 2)
        tb = 208 if ks == 0 else 16 * ks
        for r in range(4):
            base = ta if r < 2 else tb
            for sel in range(2):
                for d in range(4):
                    qp = 8 * ks + 4 * sel + d
                    a(f"v_cvt_pk_bf16_f32 {v(base + 8 * sel + 4 * (r & 1) + d)}, {v(8 * qp + r)}, {v(8 * qp + 4 + r)}")
        a("s_nop 0")
        for base in (ta, tb):
            for i in range(8):
                a(f"v_permlane16_swap_b32 {v(base + i)}, {v(base + 8 + i)}")
        for Q in range(4):
            a(f"buffer_store_dwordx4 {v(ta + 4 * Q, 4)}, {v(vL16)}, {s(sW, 4)}, {s(sHb + ks)} offen offset:{1024 * Q}")
        if ks == 0:
            for i in range(16):
                a(f"v_mov_b32 {v(i)}, {v(208 + i)}")
    stamp(a, 7)
    if DIAG:
        a(f"s_mov_b32 s62, {s(sWave)}")
    stamp_flush(a, 13, 0)
    a(f"""
s_mov_b32 {s(sPair)}, 8
s_cmp_eq_u32 {s(sWave)}, 0
s_cbranch_scc1 L_xload
s_branch L_p2
L_loader:
""")
    dma_consts(a, 60)
    a("s_setprio 0")
    n0 = 0
    for gi, n in enumerate((4, 5, 10)):
        wait_flags(a, f"L_wg{gi}", F_DONE + 4 + 8 * (9 + gi))
        a("s_setprio 3")
        for tp, c in PIECES[5 + n0:5 + n0 + n]:
            dma_piece(a, tp, c, 60)
        a(f"v_mov_b32 {v(vT0)}, {F_RDY}")
        for i in range(n):
            a(f"v_mov_b32 {v(64 + n0 + i)}, {n0 + i + 1}")
            a(f"s_waitcnt vmcnt({6 * (n - 1 - i)})")
            a(f"ds_write_b32 {v(vT0)}, {v(64 + n0 + i)}")
        a("s_setprio 0")
        n0 += n


class Stream:
    def __init__(self, a):
        self.a = a
        self.out = []

    def __call__(self, tx):
        for ln in tx.split("\n"):
            i = Ins(ln)
            if i.states == 0:
                self.a(ln)
                continue
            touch = (i.rd | i.wr) if i.kind != "lds" else set(i.rd)
            need = -1
            for k, d in enumerate(self.out):
                if d & touch:
                    need = k
            if need >= 0:
                n = min(len(self.out) - 1 - need, 14)
                self.a(f"s_waitcnt lgkmcnt({n})")
                self.out = self.out[len(self.out) - n:] if n else []
            self.a(ln)
            if i.kind == "lds":
                self.out.append(set(i.wr))


def phase2(a):
    SH = "dst_sel:DWORD dst_unused:UNUSED_PAD src0_sel:DWORD src1_sel:WORD_1"
    t0, t1 = ACC, ACC + 1
    a("L_p2:\ns_setprio 0")
    wait_count(a, "L_wi", F_INIT, 2)
    a(f"""
v_bfe_u32 {v(t0)}, {v(vL16)}, 6, 2            ; r
v_and_b32 {v(t1)}, 48, {v(vL16)}              ; 16c'
v_lshrrev_b32 {v(vXoff)}, 9, {v(vL16)}         ; g>>1
v_lshl_add_u32 {v(t0)}, {v(vXoff)}, 3, {v(t0)}   ; row = 8(g>>1) + r
v_lshl_add_u32 {v(vA[1])}, {v(t0)}, 6, {v(t1)}
v_mul_u32_u24 {v(t0)}, 192, {v(t0)}
v_add_u32 {v(vA[2])}, {v(t0)}, {v(t1)}
v_bfe_u32 {v(t0)}, {v(vL16)}, 8, 1            ; g&1
v_mul_u32_u24 {v(t1)}, {DZ}, {v(t0)}
v_add_u32 {v(vA[1])}, {v(vA[1])}, {v(t1)}
v_add_u32 {v(vA[2])}, {v(vA[2])}, {v(t1)}
v_bfe_u32 {v(t0)}, {v(vL16)}, 7, 1
v_mul_u32_u24 {v(t0)}, {2 * ROWB}, {v(t0)}
v_bfe_u32 {v(t1)}, {v(vL16)}, 4, 3
v_mul_u32_u24 {v(t1)}, 768, {v(t1)}
v_add_u32 {v(t0)}, {v(t0)}, {v(t1)}
v_lshrrev_b32 {v(t1)}, 8, {v(vL16)}
v_lshl_add_u32 {v(vXoff)}, {v(t1)}, 4, {v(t0)}
s_mov_b32 {s(cLo)}, 0x00003f80
s_mov_b32 {s(cHi)}, 0x3f800000
s_lshl_b32 {s(sA)}, {s(sWave)}, 2
s_add_u32 {s(sA)}, {s(sA)}, {s(sY0)}
s_lshl_b32 {s(sA)}, {s(sA)}, 9
s_add_u32 {s(sA)}, {s(sA)}, {s(sX0)}
s_mul_i32 {s(sTB)}, {s(sA)}, 192
s_add_u32 {s(sTB)}, {s(sTB)}, 384
s_add_u32 {s(sTB2)}, {s(sTB)}, {ROWB}
s_mov_b32 {s(sTile)}, 0
s_mov_b32 {s(sRdy)}, 0
s_setprio {PRA}
s_cmp_lt_u32 {s(sWave)}, 4
s_cbranch_scc1 L_mtile
s_setprio {PRB}
L_mtile:
""")
    stamp(a, 2)
    stamp_rt(a, 13)
    st = Stream(a)
    zone_now = {1: 0, 2: 0}
    seen = set()

    def slot(f):
        return WS + 4 * (FRAGS.index(f) % NWS)

    def rd(f):
        tp, n = f
        c, k = divmod(n, 6)
        zone, ad, _ = piece_addr(tp, c)
        base = slot(f)
        if zone != zone_now[tp]:
            zone_now[tp] = zone
            st(f"v_bfe_u32 {v(base)}, {v(vL16)}, 8, 1")
            st(f"v_mul_u32_u24 {v(base)}, {DZ - DZ1}, {v(base)}")
            st(f"v_subrev_u32 {v(base)}, {E1}, {v(base)}")
            st(f"v_{'sub' if zone else 'add'}_u32 {v(vA[tp])}, {v(vA[tp])}, {v(base)}")
        if (tp, c) not in seen:
            seen.add((tp, c))
            need = PIECES.index((tp, c)) - 4
            if need > 0:
                lb = f"L_rd{need}"
                a(f"""
s_cmp_ge_u32 {s(sRdy)}, {need}
s_cbranch_scc1 {lb}_go
v_mov_b32 {v(base)}, {F_RDY}
""")
                spin(a, lb, f"v_cmp_le_u32 vcc, {need}, {v(base + 1)}", base, base + 1)
                a(f"""
v_readfirstlane_b32 {s(sRdy)}, {v(base + 1)}
{lb}_go:
""")
                if need == 1:
                    stamp(a, 3)
        off = ad - (E1 if zone else 0)
        for hf in range(2):
            if tp == 1:
                ht, ks = divmod(k, 3)
                o = off + 1024 * ks + 256 * hf + 8 * ht
            else:
                o = off + 768 * hf + 64 * (k // 2) + 8 * (k % 2)
            assert o < 65536
            st(f"ds_read_b64_tr_b16 {v(base + 2 * hf, 2)}, {v(vA[tp])} offset:{o}")

    def xreg(T, Q):
        return X + 8 * (3 * Q + T // 2) + 4 * (T % 2)

    def mf(f, Q):
        tp, n = f
        c, k = divmod(n, 6)
        if tp == 1:
            ks = n % 3
            d = ACC + 16 * ((n // 3) % 3) + 4 * Q
            return (f"v_mfma_f32_16x16x32_bf16 {v(d, 4)}, {v(slot(f), 4)}, "
                    f"{v(H + 16 * ks + 4 * Q, 4)}, {'0' if ks == 0 else v(d, 4)}")
        d = xreg(k, Q)
        return (f"v_mfma_f32_16x16x32_bf16 {v(d, 4)}, {v(slot(f), 4)}, "
                f"{v(G + 16 * (c % 2) + 4 * Q, 4)}, {'0' if c == 0 else v(d, 4)}")

    def look(u, i):
        a0 = ACC + 16 * (u % 3) + 2 * i
        return [(4, f"v_lshlrev_b32_sdwa {v(a0)}, 1, {v(a0)} {SH}"),
                (4, f"v_lshlrev_b32_sdwa {v(a0 + 1)}, 1, {v(a0 + 1)} {SH}"),
                (0, f"ds_read_u16_d16 {v(a0)}, {v(a0)}"),
                (0, f"ds_read_u16_d16_hi {v(a0 + 1)}, {v(a0 + 1)}")]

    def comb(u, i):
        c, ht = divmod(u, 2)
        a0 = ACC + 16 * (u % 3) + 2 * i
        return [(4, f"v_or_b32 {v(G + 16 * (c % 2) + 4 * (i // 2) + 2 * ht + i % 2)}, {v(a0)}, {v(a0 + 1)}")]

    RB = []
    ev, od = [(Q, 0) for Q in range(4)] + [(0, 1), (1, 1)], [(Q, 2) for Q in range(4)] + [(2, 1), (3, 1)]
    for e_, o_ in zip(ev, od):
        RB += [e_, o_]
    RU0 = 10

    def xload(j):
        Q, tp = RB[j]
        return (f"buffer_load_dwordx4 {v(XR + 4 * (j % 2), 4)}, {v(vXoff)}, {s(sX, 4)}, {s(sTB2 if Q >> 1 else sTB)} "
                f"offen offset:{192 * (Q & 1) + 64 * tp}")

    extra = {}
    extra[(RU0 - 3, 12)] = [xload(0)]
    extra[(RU0 - 2, 12)] = [xload(1)]
    for j, (Q, tp) in enumerate(RB):
        u = RU0 + j
        pos = 6 if (tp != 1 or u % 2) else 14
        for e in range(8):
            d = xreg(2 * tp, Q) + e
            ins = [f"v_dot2_f32_bf16 {v(d)}, {v(XR + 4 * (j % 2) + e // 2)}, {s(cHi if e % 2 else cLo)}, {v(d)}"]
            if e == 0:
                ins = [f"s_waitcnt vmcnt({1 if j < 11 else 0})"] + ins
            if e == 7 and j + 2 < 12:
                ins.append(xload(j + 2))
            extra[(u, pos + e)] = ins
    for j in range(12):
        extra[(23, j)] = [f"buffer_load_dwordx4 {v(H + 4 * j, 4)}, {v(vL16)}, {s(sW, 4)}, {s(sHb + j // 4)} offen "
                          f"offset:{1024 * (j % 4)}"]

    for f in FRAGS[:NWS]:
        rd(f)
    a("s_waitcnt vmcnt(12)")
    for u in range(-1, 27):
        seq = []
        for i in range(8):
            if 0 <= u - 1 < 24:
                seq += comb(u - 1, i)
            if 0 <= u < 24:
                seq += look(u, i)
        lead = 4 if 0 <= u < 4 else 0
        tot = sum(t[0] for t in seq)
        mfs = [(f, Q) for f in STEPS[u] for Q in range(4)]
        nm = len(mfs)
        k = cyc = 0
        for m, (f, Q) in enumerate(mfs):
            st(mf(f, Q))
            if Q == 3 and FRAGS.index(f) + NWS < len(FRAGS):
                rd(FRAGS[FRAGS.index(f) + NWS])
            if m >= lead:
                tgt = tot * (m - lead + 1) / max(nm - lead - TRAIL, 1)
                while k < len(seq) and (cyc < tgt or seq[k][0] == 0):
                    st(seq[k][1])
                    cyc += seq[k][0]
                    k += 1
            for tx in extra.pop((u, m), []):
                st(tx)
            if u >= 25:
                g = (f[1] - 66) * 4 + Q - 12
                if g >= 0 and (g // 4) % 2 == 0:
                    epi(st, g // 8, g % 4, xreg)
        assert k == len(seq)
    assert not extra and not st.out and zone_now == {1: 0, 2: 0}
    stamp(a, 8)
    a("s_nop 3")
    for Q in range(4):
        epi(st, 2, Q, xreg)
    if DIAG:
        stamp(a, 9)
        stamp_rt(a, 11)
        a(f"s_lshl_b32 s62, {s(sTile)}, 3\ns_xor_b32 s62, s62, 8\ns_add_u32 s62, s62, {s(sWave)}")
        stamp_flush(a, 14, 1, t0, t1)
    a(f"""
s_cmp_lg_u32 {s(sTile)}, 0
s_cbranch_scc1 L_end
s_mov_b32 {s(sTile)}, 1
s_sub_u32 {s(sTB)}, {s(sTB)}, 384
s_sub_u32 {s(sTB2)}, {s(sTB2)}, 384
s_mov_b32 {s(sHb)}, {BIG}
s_mov_b32 {s(sHb + 1)}, {BIG}
s_mov_b32 {s(sHb + 2)}, {BIG}
s_branch L_mtile
L_end:
s_endpgm
""")


def epi(st, tp, Q, xreg):
    b = xreg(2 * tp, Q)
    for d in range(4):
        st(f"v_cvt_pk_bf16_f32 {v(b + d)}, {v(b + 2 * d)}, {v(b + 2 * d + 1)}")
    st(f"buffer_store_dwordx4 {v(b, 4)}, {v(vXoff)}, {s(sO, 4)}, {s(sTB2 if Q >> 1 else sTB)} offen "
       f"offset:{192 * (Q & 1) + 64 * tp}{STF}")


def descriptor(a, name, nv, ns):
    a(f"""
.p2align 6
.amdhsa_kernel {name}
  .amdhsa_next_free_vgpr {nv}
  .amdhsa_next_free_sgpr {ns}
  .amdhsa_accum_offset {(nv + 3) // 4 * 4}
  .amdhsa_group_segment_fixed_size 0
  .amdhsa_kernarg_size 64
  .amdhsa_user_sgpr_count 2
  .amdhsa_user_sgpr_kernarg_segment_ptr 1
  .amdhsa_system_sgpr_workgroup_id_x 1
  .amdhsa_float_denorm_mode_32 3
.end_amdhsa_kernel
""")


def main():
    here = os.path.dirname(os.path.abspath(__file__))
    ref = open(os.path.join(here, "..", NAME + ".s.ref")).read().split("\n")
    head = [l for l in ref if l.startswith(";") and "@launch" not in l]
    a = Asm()
    for l in head:
        a(l)
    a(f"; @launch grid=(256,1,1) block=(512,1,1) lds={LDS_BYTES}")
    a('.amdgcn_target "amdgcn-amd-amdhsa--gfx950"')
    a(".text")
    prologue(a)
    phase1(a)
    phase2(a)
    probs = check_hazards(a.lines)
    fast, skip = [], None
    for ln in a.lines:
        t = ln.strip()
        if skip:
            if t == skip + ":":
                skip = None
            continue
        fast.append(ln)
        if t.startswith("s_cbranch_scc1 L_rd") and t.endswith("_go"):
            skip = t.split()[1]
    probs += check_hazards(fast)
    for p in probs:
        print("HAZARD:", p)
    a('.section .rodata,"a"')
    descriptor(a, NAME + "_kernel", 256, 100)
    out = sys.argv[1] if len(sys.argv) > 1 else os.path.join(here, "..", NAME + ".s")
    open(out, "w").write(a.text())
    print("wrote", out, "lines", len(a.lines), "hazards", len(probs), "lds", LDS_BYTES)


if __name__ == "__main__":
    main()
```

```python
import math
import struct
import sys
import os

import numpy as np

sys.path.insert(0, os.path.dirname(os.path.abspath(__file__)))
from asmlib import Asm, Ins, v, s, check_hazards

NAME = "standalone__modern_conv_block_replknet__vision"
E = os.environ.get
DIAG = E("DIAG", "0") == "1"
STF = E("STF", " sc1")
XLF, PKF, HLF, XFF = E("XLF", ""), E("PKF", ""), E("HLF", ""), E("XFF", "")
TRAIL = int(E("TRAIL", "2"))
PKN = E("PKN", "1") == "1"
PKS = E("PKS", "1") == "1"
PCV, PLN = int(E("PCV", "2")), int(E("PLN", "2"))
PM = [int(c) for c in E("PM", "110")]
STF2 = E("STF2")
DEFER = int(E("DEFER", "1"))
NPRE = 1
WDMA = int(E("WDMA", "4"))
NOX, NOPARK, NOST = E("NOX"), E("NOPARK"), E("NOST")
UH = 2
RU0 = 7
PRA, PRB = int(E("PRA", "0")), int(E("PRB", "1"))
sStamp = 64


def f32(x):
    return "0x%08x" % struct.unpack("<I", struct.pack("<f", x))[0]


def h2(x):
    b = int(np.float16(x).view(np.uint16))
    return "0x%08x" % (b | (b << 16))


KAPPA = 2.0 * math.sqrt(2.0 / math.pi) * math.log2(math.e)
BETA = float(np.float16(KAPPA / (KAPPA * 0.044715) ** (1.0 / 3.0)))
SC = KAPPA / BETA
BIG = 0x40000000
NBIN = 28
SEXP = 111

XBYTES = 512 * 512 * 96 * 2
ROWB = 512 * 192
WS_END = 256 * 8 * 12288
WS_STAMP = 0x2000000
TW = NBIN * 256
TABP, TABN = 0, 65536
E0 = TW
DZ = 65544
E1 = E0 + DZ + 19 * 3072
DZ1 = 5 * 3072 + 8
L_FLAG = E1 + DZ1 + 5 * 3072
LDS_BYTES = L_FLAG + 256
assert L_FLAG % 16 == 0 and LDS_BYTES <= 163840 and E0 + 19 * 3072 <= 65536
OS = 584
RS = 7104
SS = 14336
RL = E0
RU = TABN + TW + 128
TL = RL + 3 * SS
TU = RU + 2 * SS + RS + 12 * OS
assert TL + 15360 <= 65536 and TU % 16 == 0 and TU + 15360 <= E1 and RL % 256 == 0 and RU % 256 == 128
NQ = 3
F_STG = L_FLAG
F_DONE = L_FLAG + 48
F_TRDY = L_FLAG + 160
F_ISS = L_FLAG + 164
F_RDY = L_FLAG + 168
F_INIT = L_FLAG + 172
F_WRAW = L_FLAG + 176
WTMP = RL + 2 * SS


def kap(ch, q):
    return 32 * (q >> 4) + 16 * ch + (q & 15)


def coff(c):
    return (c // 8) * OS + (c % 8) * 72


STEPS = {u: [(tp, n) for i in range(3) for tp, n in ((1, 3 * (u + 1) + i), (2, 3 * (u - 3) + i)) if 0 <= n < 72]
         for u in range(-1, 27)}
FRAGS = [f for u in range(-1, 27) for f in STEPS[u]]
PIECES = []
for tp_, n_ in FRAGS:
    if (tp_, n_ // 6) not in PIECES:
        PIECES.append((tp_, n_ // 6))
assert len(PIECES) == 24 and len(FRAGS) == 144


def piece_addr(tp, c):
    i = PIECES.index((tp, c))
    if i < 5:
        return 1, E1 + 3072 * i, DZ1
    return 0, E0 + 3072 * (i - 5), DZ


SB = 48
TS = 192
DS = 212
TMP = 232
vL16, vT0, vT1 = 253, 254, 255
vFl, vTa, vCA, vLdA, vLdB, vSt, vCv, vK = 240, 241, 244, 247, 248, 249, 250, 251
H = 0
X = 48
G = 144
ACC = 176
WS = 224
NWS = 5
XR = 244
vXoff = 252
vA = {1: 254, 2: 255}

NE = 4
NSL = 5

sX, sO, sW = 4, 8, 12
sWave, sTile, sPair, sRdy = 16, 17, 18, 19
sSelLo, sSelHi = 20, 21
sX0, sY0 = 22, 23
sTB = 24
sA, sB, sC, sD = 26, 27, 28, 29
sR = 30
sNB = 36
sMode = 38
sRot = 39
sI1, sI2 = 40, 44
sDL, sDS = 48, 52
sEL, sER, sE1 = 80, 81, 82
cNB, cS, cLo, cHi = 84, 85, 86, 87


def stamp(a, k):
    if DIAG:
        a(f"s_waitcnt lgkmcnt(0)\ns_memtime s[60:61]\ns_waitcnt lgkmcnt(0)\ns_mov_b32 {s(sStamp + k)}, s60")


def stamp_rt(a, k):
    if DIAG:
        a(f"s_waitcnt lgkmcnt(0)\ns_memrealtime s[60:61]\ns_waitcnt lgkmcnt(0)\ns_mov_b32 {s(sStamp + k)}, s60")


def stamp_flush(a, n, rec, vT0=vT0, vT1=vT1):
    if DIAG:
        a(f"s_mov_b32 {s(sStamp + 12)}, {s(sWave)}")
        a(f"v_mov_b32 {v(vT0)}, 0")
        for k in range(n):
            a(f"v_writelane_b32 {v(vT0)}, {s(sStamp + k)}, {k}")
        a(f"""s_lshl_b32 s60, s2, 4
s_add_u32 s60, s60, s62
s_lshl_b32 s60, s60, 7
s_add_u32 s60, s60, {WS_STAMP + 64 * rec}
v_lshrrev_b32 {v(vT1)}, 2, {v(vL16)}
s_mov_b32 exec_lo, 0xffff
s_mov_b32 exec_hi, 0
buffer_store_dword {v(vT0)}, {v(vT1)}, {s(sW, 4)}, s60 offen
s_mov_b64 exec, -1
s_nop 1""")


def srd(a, d, lo, nbytes):
    a(f"""s_mov_b32 {s(d)}, {s(lo)}
s_and_b32 {s(d + 1)}, {s(lo + 1)}, 0xffff
s_mov_b32 {s(d + 2)}, {nbytes}
s_mov_b32 {s(d + 3)}, 0x20000""")


def spin(a, label, cmp, t0=vT0, t1=vT1):
    a(f"""
s_mov_b32 {s(sD)}, 200000
{label}:
ds_read_b32 {v(t1)}, {v(t0)}
s_waitcnt lgkmcnt(0)
{cmp}
s_cmp_eq_u64 vcc, exec
s_cbranch_scc1 {label}_ok
s_sleep 2
s_sub_u32 {s(sD)}, {s(sD)}, 1
s_cmp_lg_u32 {s(sD)}, 0
s_cbranch_scc1 {label}
{label}_ok:
""")


def wait_flags(a, label, addr):
    a(f"v_add_u32 {v(vT0)}, {addr}, {v(vFl)}")
    spin(a, label, f"v_cmp_ne_u32 vcc, 0, {v(vT1)}")


def wait_count(a, label, addr, n, op="eq"):
    a(f"v_mov_b32 {v(vT0)}, {addr}")
    spin(a, label, f"v_cmp_{op}_u32 vcc, {n}, {v(vT1)}")


def count(a, addr):
    a(f"""
v_mov_b32 {v(vT0)}, {addr}
v_mov_b32 {v(vT1)}, 1
s_waitcnt lgkmcnt(0)
s_mov_b64 exec, 1
ds_add_u32 {v(vT0)}, {v(vT1)}
s_mov_b64 exec, -1
""")


def issue_loads(a):
    a(f"""
s_lshl_b32 {s(sA)}, {s(sPair)}, 2
s_add_u32 {s(sA)}, {s(sA)}, {s(sY0)}
s_lshl_b32 {s(sB)}, {s(sA)}, 9
s_add_u32 {s(sB)}, {s(sB)}, {s(sX0)}
s_mul_i32 {s(sB)}, {s(sB)}, 192
s_cmp_lt_u32 {s(sA)}, 2
s_cselect_b64 vcc, s[58:59], 0
v_mov_b32 {v(vLdB)}, {BIG}
s_sub_u32 {s(sC)}, {s(sB)}, {2 * ROWB}
v_add_u32 {v(vT1)}, {s(sC)}, {v(vLdA)}
v_cndmask_b32 {v(vLdB)}, {v(vT1)}, {v(vLdB)}, vcc
v_add_u32 {v(vT1)}, -384, {v(vLdB)}
""")
    for xq in range(9):
        for i in range(4):
            off = 768 * xq + 192 * i - 384
            if xq == 0 and i < 2:
                a(f"buffer_load_dwordx4 {v(SB + 4 * i, 4)}, {v(vT1)}, {s(sX, 4)}, {s(sEL)} offen offset:{192 * i}{XLF}")
                continue
            elif xq == 8 and i >= 2:
                so, im = sER, off - 3840
            elif off < 3840:
                so, im = "0", off
            else:
                so, im = sE1, off - 3840
            so = so if isinstance(so, str) else s(so)
            a(f"buffer_load_dwordx4 {v(SB + 16 * xq + 4 * i, 4)}, {v(vLdB)}, {s(sX, 4)}, {so} offen offset:{im}{XLF}")


def dma_consts(a, r):
    a(f"""
v_lshrrev_b32 {v(r)}, 9, {v(vL16)}             ; l>>5
v_mul_u32_u24 {v(r + 1)}, 1536, {v(r)}
v_add_u32 {v(r + 1)}, {v(r + 1)}, {v(vL16)}
v_bfe_u32 {v(vT0)}, {v(vL16)}, 6, 3            ; (l>>2)&7
v_lshl_add_u32 {v(r)}, {v(r)}, 4, {v(vT0)}
v_mul_u32_u24 {v(r)}, 768, {v(r)}
v_and_b32 {v(vT0)}, 48, {v(vL16)}
v_add_u32 {v(r)}, {v(r)}, {v(vT0)}             ; w1
""")


def dma_piece(a, tp, c, r):
    _, ad, dz = piece_addr(tp, c)
    a(f"""
s_add_u32 {s(sA)}, {s(sRot)}, {c}
s_cmp_ge_u32 {s(sA)}, 12
s_cselect_b32 {s(sB)}, 12, 0
s_sub_u32 {s(sA)}, {s(sA)}, {s(sB)}
s_mul_i32 {s(sA)}, {s(sA)}, {64 if tp == 1 else 6144}
""")
    for par in range(2):
        a(f"s_mov_b32 m0, {ad + par * dz}")
        if tp == 1:
            for ks in range(3):
                a(f"s_add_u32 {s(sR + ks)}, {s(sA)}, {(32 * ks + 8 * par) * 768 - 1024 * ks}")
            for ks in range(3):
                a(f"buffer_load_dwordx4 {v(r)}, {s(sI1, 4)}, {s(sR + ks)} offen offset:{1024 * ks} lds")
        else:
            a(f"s_add_u32 {s(sR)}, {s(sA)}, {1536 * par}")
            a(f"s_add_u32 {s(sR + 1)}, {s(sA)}, {1536 * par + 1536}")
            a(f"buffer_load_dwordx4 {v(vL16)}, {s(sI2, 4)}, {s(sR)} offen lds")
            a(f"buffer_load_dwordx4 {v(r + 1)}, {s(sI2, 4)}, {s(sR)} offen offset:1024 lds")
            a(f"buffer_load_dwordx4 {v(vL16)}, {s(sI2, 4)}, {s(sR + 1)} offen offset:2048 lds")


XADJ = f"""v_lshrrev_b32 v3, 5, v0
v_mul_u32_u24 v3, {2 * ROWB}, v3
v_bfe_u32 v4, v0, 2, 3
v_mul_u32_u24 v4, 768, v4
v_add_u32 v3, v3, v4
v_and_b32 v4, 3, v0
v_lshl_add_u32 {v(vXoff)}, v4, 4, v3""" if E("XADJ") else ""


def prologue(a):
    k = NAME + "_kernel"
    a(f"""
.globl {k}
.p2align 8
.type {k},@function
{k}:
s_cmp_ge_u32 s2, 256
s_cbranch_scc1 L_end
s_load_dwordx8 s[64:71], s[0:1], 0
s_load_dwordx4 s[72:75], s[0:1], 32
{"s_load_dwordx2 s[76:77], s[0:1], 56" if DIAG else ""}
s_setprio 3
v_mov_b32 v14, v0                ; tid
v_lshrrev_b32 v1, 6, v0
v_and_b32 v0, 63, v0
v_mov_b32 v10, {BIG}
v_readfirstlane_b32 {s(sWave)}, v1
v_lshlrev_b32 v2, 2, v0
v_add_u32 v2, {L_FLAG}, v2
v_add_u32 v3, -12, v0
v_cmp_gt_u32 vcc, 8, v3
v_cmp_eq_u32 s[56:57], 36, v0
s_or_b64 vcc, vcc, s[56:57]
v_cndmask_b32 v3, 0, 1, vcc
v_cmp_eq_u32 vcc, {(F_ISS - L_FLAG) // 4}, v0
v_lshlrev_b32 {v(vL16)}, 4, v0
v_min_u32 {v(vFl)}, 1, v0
v_cndmask_b32 v3, v3, 0, vcc
ds_write_b32 v2, v3
v_lshlrev_b32 {v(vFl)}, 2, {v(vFl)}
s_and_b32 {s(sA)}, s2, 3
s_lshl_b32 {s(sA)}, {s(sA)}, 2
s_bfe_u32 {s(sB)}, s2, 0x20003
s_add_u32 {s(sA)}, {s(sA)}, {s(sB)}
s_lshl_b32 {s(sX0)}, {s(sA)}, 5
s_bfe_u32 {s(sA)}, s2, 0x10002
s_lshl_b32 {s(sA)}, {s(sA)}, 3
s_lshr_b32 {s(sB)}, s2, 5
s_add_u32 {s(sA)}, {s(sA)}, {s(sB)}
s_lshl_b32 {s(sY0)}, {s(sA)}, 5
; staging lane map: row = l/12, o = l%12 (lanes < 48)
v_mul_u32_u24 v12, 43, v0
v_lshrrev_b32 v12, 9, v12          ; row
v_mul_u32_u24 v13, 12, v12
v_sub_u32 v13, v0, v13             ; o
v_mul_u32_u24 v5, {ROWB}, v12
v_lshl_add_u32 v5, v13, 4, v5
v_cmp_gt_u32 vcc, 48, v0
v_cmp_gt_u32 s[58:59], 24, v0    ; rows 0,1
s_cmp_eq_u32 {s(sX0)}, 0
s_cselect_b32 {s(sEL)}, {BIG}, 0
v_cndmask_b32 {v(vLdA)}, v10, v5, vcc
s_mov_b32 {s(sE1)}, 3840
s_cmp_eq_u32 {s(sX0)}, 480
s_cselect_b32 {s(sER)}, {BIG}, {s(sE1)}
s_mov_b32 {s(sPair)}, {s(sWave)}
v_add_u32 v15, -256, v14             ; waves 4..7: 0..255
s_waitcnt lgkmcnt(0)
s_barrier
""")
    srd(a, sX, 64, XBYTES)
    srd(a, sDL, 66, 9 * 96 * 2)
    srd(a, sDS, 68, 25 * 96 * 2)
    srd(a, sI1, 70, 96 * 384 * 2)
    srd(a, sI2, 72, 96 * 384 * 2)
    srd(a, sO, 74, XBYTES)
    if DIAG:
        srd(a, sW, 76, WS_STAMP + 0x100000)
    stamp(a, 0)
    stamp_rt(a, 10)
    a(f"""
s_cmp_lg_u32 {s(sWave)}, 0
s_cbranch_scc1 L_pb
s_mov_b32 m0, {WTMP}
s_mov_b32 {s(sA)}, 4096
""")
    for i in range(4):
        a(f"buffer_load_dwordx4 {v(vL16)}, {s(sDS, 4)}, 0 offen offset:{1024 * i} lds")
    a(f"s_mov_b32 m0, {WTMP + 4096}\ns_nop 0\nbuffer_load_dwordx4 {v(vL16)}, {s(sDS, 4)}, {s(sA)} offen lds")
    a(f"s_mov_b32 m0, {WTMP + 5120}\ns_nop 0")
    for i in range(2):
        a(f"buffer_load_dwordx4 {v(vL16)}, {s(sDL, 4)}, 0 offen offset:{1024 * i} lds")
    stamp(a, 9)
    issue_loads(a)
    a(f"""
v_mov_b32 {v(vT0)}, {F_ISS}
v_mov_b32 {v(vT1)}, 1
ds_write_b32 {v(vT0)}, {v(vT1)}
s_waitcnt vmcnt(36)
ds_write_b32 {v(vT0)}, {v(vT1)} offset:{F_WRAW - F_ISS}
""")
    stamp(a, 11)
    a(f"""
L_pb:
s_mov_b32 {s(sSelLo)}, 0x05040100
s_mov_b32 {s(sSelHi)}, 0x07060302
s_lshr_b32 {s(sA)}, s2, 3
s_mul_i32 {s(sB)}, {s(sA)}, 43
s_lshr_b32 {s(sB)}, {s(sB)}, 9
s_mul_i32 {s(sB)}, {s(sB)}, 12
s_sub_u32 {s(sRot)}, {s(sA)}, {s(sB)}       ; (wg>>3) % 12
v_bfe_u32 v1, v0, 3, 1
v_lshrrev_b32 v2, 5, v0          ; ch'
v_bfe_u32 v3, v0, 4, 1           ; dyp
v_bfe_u32 v4, v0, 2, 1           ; oy
v_sub_u32 v3, v3, v4             ; dyp-oy
v_and_b32 v4, 3, v0
v_mul_u32_u24 v5, {TU - TL}, v1
v_lshl_add_u32 v5, v4, 4, v5
v_add_u32 v5, {TL}, v5
v_cmp_eq_u32 s[56:57], v1, v2
v_add_u32 v6, 0, v3
v_cmp_gt_u32 vcc, 5, v6
v_lshl_add_u32 v7, v6, 6, v5
s_and_b64 vcc, vcc, s[56:57]
v_cndmask_b32 {v(vTa)}, v10, v7, vcc
v_add_u32 v6, 2, v3
v_lshl_add_u32 v7, v6, 6, v5
v_cndmask_b32 {v(vTa + 1)}, v10, v7, s[56:57]
v_add_u32 v6, 4, v3
v_cmp_gt_u32 vcc, 5, v6
v_lshl_add_u32 v7, v6, 6, v5
s_and_b64 vcc, vcc, s[56:57]
v_cndmask_b32 {v(vTa + 2)}, v10, v7, vcc
v_mul_u32_u24 v2, {2 * OS}, v2
v_and_b32 v3, 7, v0
v_lshl_add_u32 {v(vCv)}, v3, 3, v2
v_mul_u32_u24 v3, 768, v3
v_mul_u32_u24 v4, {2 * ROWB}, v1
v_add_u32 v3, v3, v4
v_lshrrev_b32 v4, 4, v0
v_lshl_add_u32 {v(vXoff)}, v4, 4, v3
{XADJ}
v_bfe_u32 v3, v0, 4, 1
v_mul_u32_u24 v3, {RS}, v3
v_add_u32 {v(vCv)}, {v(vCv)}, v3
v_cmp_eq_u32 s[56:57], 1, v1
v_and_b32 v5, 1, v12
v_mul_u32_u24 v5, {RS}, v5
v_lshrrev_b32 v6, 1, v12
v_mul_u32_u24 v6, {RU - RL}, v6
v_add_u32 v5, v5, v6
v_mul_u32_u24 v6, {OS}, v13
v_add_u32 {v(vSt)}, v5, v6
s_lshl_b32 {s(sA)}, {s(sWave)}, 2
s_add_u32 {s(sA)}, {s(sA)}, {s(sY0)}
s_lshl_b32 {s(sA)}, {s(sA)}, 9
s_add_u32 {s(sA)}, {s(sA)}, {s(sX0)}
s_mul_i32 {s(sNB)}, {s(sA)}, 192
s_add_u32 {s(sNB + 1)}, {s(sNB)}, {ROWB}
s_add_u32 {s(sTB)}, {s(sNB)}, 384
s_add_u32 {s(sTB + 1)}, {s(sTB)}, {ROWB}
s_cmp_lt_u32 {s(sWave)}, {NPRE}
s_cbranch_scc1 L_perm
s_cmp_lt_u32 {s(sWave)}, 4
s_cbranch_scc1 L_xload
""")
    wait_count(a, "L_wraw", F_WRAW, 1)
    for r in range(2):
        b = 128 + 16 * r
        a(f"""
v_add_u32 v1, {256 * r}, v15         ; task
v_mul_u32_u24 v{b}, 683, v1
v_lshrrev_b32 v{b}, 16, v{b}         ; dy
v_mul_u32_u24 v{b + 1}, 96, v{b}
v_sub_u32 v{b + 1}, v1, v{b + 1}     ; c
v_mul_u32_u24 v2, 960, v{b}
v_lshl_add_u32 v2, v{b + 1}, 1, v2
v_add_u32 v1, -1, v{b}
v_mul_u32_u24 v3, 576, v1
v_lshl_add_u32 v3, v{b + 1}, 1, v3
v_cmp_gt_u32 vcc, 3, v1
s_nop 1
v_cndmask_b32 v3, v10, v3, vcc
""")
        for jx in range(5):
            a(f"ds_read_u16 v{b + 4 + jx}, v2 offset:{WTMP + 192 * jx}")
        for jx in range(3):
            a(f"ds_read_u16 v{b + 9 + jx}, v3 offset:{WTMP + 5120 + 192 * jx}")
    a("s_waitcnt lgkmcnt(0)")
    for r in range(2):
        b = 128 + 16 * r
        w = b + 4
        o = 160 + 16 * r
        for jx in range(8):
            a(f"v_lshlrev_b32 v{w + jx}, 16, v{w + jx}")
        a(f"""
v_add_f32 v{w + 1}, v{w + 1}, v{w + 5}
v_add_f32 v{w + 2}, v{w + 2}, v{w + 6}
v_add_f32 v{w + 3}, v{w + 3}, v{w + 7}
v_mov_b32 v1, 0
v_cvt_pk_bf16_f32 v{o}, v{w}, v{w + 1}
v_cvt_pk_bf16_f32 v{o + 1}, v{w + 2}, v{w + 3}
v_cvt_pk_bf16_f32 v{o + 2}, v{w + 4}, v1
v_mov_b32 v{o + 3}, 0
v_cvt_pk_bf16_f32 v{o + 4}, v1, v{w}
v_cvt_pk_bf16_f32 v{o + 5}, v{w + 1}, v{w + 2}
v_cvt_pk_bf16_f32 v{o + 6}, v{w + 3}, v{w + 4}
v_mov_b32 v{o + 7}, 0
v_mov_b32 v{o + 8}, 0
v_mov_b32 v{o + 9}, v{o}
v_mov_b32 v{o + 10}, v{o + 1}
v_mov_b32 v{o + 11}, v{o + 2}
v_mov_b32 v{o + 12}, 0
v_mov_b32 v{o + 13}, v{o + 4}
v_mov_b32 v{o + 14}, v{o + 5}
v_mov_b32 v{o + 15}, v{o + 6}
v_lshrrev_b32 v2, 5, v{b + 1}
v_and_b32 v3, 15, v{b + 1}
v_lshl_add_u32 v2, v2, 4, v3
v_mul_u32_u24 v2, 320, v2
v_bfe_u32 v3, v{b + 1}, 4, 1
v_mul_u32_u24 v3, {TU - TL}, v3
v_add_u32 v2, v2, v3
v_lshl_add_u32 v2, v{b}, 6, v2
v_add_u32 v2, {TL}, v2
v_cmp_gt_u32 vcc, 5, v{b}
s_nop 1
v_cndmask_b32 v2, v10, v2, vcc
ds_write_b128 v2, v[{o}:{o + 3}]
ds_write_b128 v2, v[{o + 4}:{o + 7}] offset:16
ds_write_b128 v2, v[{o + 8}:{o + 11}] offset:32
ds_write_b128 v2, v[{o + 12}:{o + 15}] offset:48
""")
    count(a, F_TRDY)
    a(f"""
s_cmp_lt_u32 {s(sWave)}, 6
s_cbranch_scc1 L_xload
L_tab:
v_add_u32 v1, -384, v14
v_lshlrev_b32 v2, 2, v1
v_add_u32 v3, {TABN}, v2
v_lshlrev_b32 v4, 17, v1              ; code 2i << 16
v_or_b32 v4, 0x8000, v4
v_cmp_gt_u32 vcc, 64, v1
v_mov_b32 v5, {SEXP << 23}
v_mov_b32 v6, {(SEXP + 1) << 23}
v_cndmask_b32 v5, v5, v6, vcc
v_cndmask_b32 v6, 0, v6, vcc
v_add_u32 v4, v4, v5
s_mov_b32 {s(sA)}, {f32(KAPPA * 0.044715)}
v_mov_b32 v7, {f32(KAPPA)}
s_mov_b32 {s(sB)}, {NBIN // 2}
L_tabl:
v_add_u32 v9, 0x10000, v4
v_sub_f32 v8, v4, v6
v_sub_f32 v9, v9, v6
v_mul_f32 v10, v8, v8
v_mul_f32 v11, v9, v9
v_fma_f32 v10, v10, {s(sA)}, v7
v_fma_f32 v11, v11, {s(sA)}, v7
v_mul_f32 v10, v10, v8
v_mul_f32 v11, v11, v9
v_exp_f32 v10, -v10
v_exp_f32 v11, -v11
s_nop 0
v_add_f32 v12, 1.0, v10
v_add_f32 v13, 1.0, v11
v_rcp_f32 v12, v12
v_rcp_f32 v13, v13
s_nop 0
v_mul_f32 v8, v8, v12
v_mul_f32 v9, v9, v13
v_mul_f32 v10, -v8, v10
v_mul_f32 v11, -v9, v11
v_cvt_pk_bf16_f32 v12, v8, v9
v_cvt_pk_bf16_f32 v13, v10, v11
ds_write_b32 v2, v12
ds_write_b32 v3, v13
v_sub_u32 v4, v4, v5
v_mov_b32 v5, {SEXP << 23}
v_mov_b32 v6, 0
v_add_u32 v4, v4, v5
v_add_u32 v4, 0x1000000, v4
v_add_u32 v2, 512, v2
v_add_u32 v3, 512, v3
s_sub_u32 {s(sB)}, {s(sB)}, 1
s_cmp_lg_u32 {s(sB)}, 0
s_cbranch_scc1 L_tabl
""")
    count(a, F_INIT)
    a("L_xload:")
    stamp(a, 13)
    wait_count(a, "L_wiss", F_ISS, s(sPair))
    stamp(a, 9)
    a(f"s_cmp_lg_u32 {s(sPair)}, {WDMA}\ns_cbranch_scc1 L_nodma")
    dma_consts(a, 20)
    for tp, c in PIECES[:5]:
        dma_piece(a, tp, c, 20)
    a(f"v_mov_b32 {v(vT0)}, {F_ISS}\nL_nodma:")
    issue_loads(a)
    a(f"""
s_add_u32 {s(sA)}, {s(sPair)}, 1
v_mov_b32 {v(vT1)}, {s(sA)}
ds_write_b32 {v(vT0)}, {v(vT1)}
""")
    stamp(a, 11)
    a(f"""
s_cmp_lg_u32 {s(sPair)}, {WDMA}
s_cbranch_scc1 L_perm
s_waitcnt vmcnt(36)
""")
    count(a, F_INIT)
    a("L_perm:")


def slot_of(a, dst, src):
    a(f"""
s_mul_i32 {s(dst)}, {src}, 11
s_lshr_b32 {s(dst)}, {s(dst)}, 5
s_mul_i32 {s(dst)}, {s(dst)}, 3
s_sub_u32 {s(dst)}, {src}, {s(dst)}
s_mul_i32 {s(dst)}, {s(dst)}, {SS}
""")


def goff(g, base):
    tp, Q = divmod(g, 4)
    return f"{s(base + (Q >> 1))} offen offset:{192 * (Q & 1) + 64 * tp}"


def poff(t):
    return [f"v_lshrrev_b32 {v(t)}, 7, {v(vL16)}",
            f"v_mul_u32_u24 {v(t)}, 640, {v(t)}",
            f"v_add_u32 {v(t)}, {v(t)}, {v(vL16)}",
            f"v_add_u32 {v(t + 1)}, {2 * ROWB}, {v(t)}"]


def poffn(t):
    return [f"v_bfe_u32 {v(t)}, {v(vL16)}, 4, 3",
            f"v_mul_u32_u24 {v(t)}, 768, {v(t)}",
            f"v_bfe_u32 {v(t + 1)}, {v(vL16)}, 7, 1",
            f"v_lshl_add_u32 {v(t)}, {v(t + 1)}, 6, {v(t)}",
            f"v_lshrrev_b32 {v(t + 1)}, 8, {v(vL16)}",
            f"v_lshl_add_u32 {v(t)}, {v(t + 1)}, 4, {v(t)}",
            f"v_add_u32 {v(t + 1)}, {2 * ROWB}, {v(t)}"]


def paddr(g, t):
    r, ln = divmod(g, 3)
    return f"{v(t + (r >> 1))}, {s(sO, 4)}, {s(sNB + (r & 1))} offen offset:{128 * ln}"


def park(a, t):
    for tx in poff(t):
        a(tx)
    for g in range(0 if NOPARK else 12):
        a(f"buffer_store_dwordx4 {v(X + 4 * g, 4)}, {paddr(g, t)}{PKF}")


def phase1(a):
    a("s_mov_b32 exec_hi, 0x0000ffff")

    def oreg(rnd):
        return SB + (144 if rnd == 0 else 16 * (rnd - 1))

    for rnd in range(9):
        a(f"s_waitcnt vmcnt({32 - 4 * rnd})")
        L = SB + 16 * rnd
        O = oreg(rnd)
        for d in range(4):
            a(f"v_perm_b32 {v(O + 4 * d)}, {v(L + 4 + d)}, {v(L + d)}, {s(sSelLo)}")
            a(f"v_perm_b32 {v(O + 4 * d + 1)}, {v(L + 12 + d)}, {v(L + 8 + d)}, {s(sSelLo)}")
            a(f"v_perm_b32 {v(O + 4 * d + 2)}, {v(L + 4 + d)}, {v(L + d)}, {s(sSelHi)}")
            a(f"v_perm_b32 {v(O + 4 * d + 3)}, {v(L + 12 + d)}, {v(L + 8 + d)}, {s(sSelHi)}")
    a("s_mov_b32 exec_hi, -1")
    stamp(a, 1)
    wait_count(a, "L_wt", F_TRDY, 4)
    stamp(a, 5)
    a(f"""
s_lshl_b32 {s(sA)}, {s(sPair)}, 3
s_add_u32 {s(sA)}, {s(sA)}, {F_DONE + 4}
""")
    wait_flags(a, "L_wslot", s(sA))
    stamp(a, 2)
    slot_of(a, sR, s(sPair))
    a(f"""
s_add_u32 {s(sA)}, {s(sR)}, {RL}
v_add_u32 {v(vT0)}, {s(sA)}, {v(vSt)}
s_mov_b32 exec_hi, 0x0000ffff
""")
    for rnd in range(9):
        O = oreg(rnd)
        for d in range(4):
            a(f"ds_write_b64 {v(vT0)}, {v(O + 4 * d, 2)} offset:{8 * rnd + 2 * d * 72}")
            a(f"ds_write_b64 {v(vT0)}, {v(O + 4 * d + 2, 2)} offset:{8 * rnd + (2 * d + 1) * 72}")
    a(f"""
s_mov_b32 exec_hi, -1
s_lshl_b32 {s(sA)}, {s(sPair)}, 2
s_add_u32 {s(sA)}, {s(sA)}, {F_STG}
v_mov_b32 {v(vT0)}, {s(sA)}
v_mov_b32 {v(vT1)}, 1
s_waitcnt lgkmcnt(0)
ds_write_b32 {v(vT0)}, {v(vT1)}
s_cmp_eq_u32 {s(sPair)}, 8
s_cbranch_scc1 L_loader
""")
    stamp(a, 4)
    a(f"s_setprio {PCV}")
    a(f"s_add_u32 {s(sB)}, {s(sPair)}, 1")
    slot_of(a, sR + 2, s(sB))
    a(f"""
s_add_u32 {s(sR + 1)}, {s(sR)}, {RU}
s_add_u32 {s(sR)}, {s(sR)}, {RL}
s_add_u32 {s(sR + 3)}, {s(sR + 2)}, {RU}
s_add_u32 {s(sR + 2)}, {s(sR + 2)}, {RL}
""")
    for z in range(4):
        a(f"v_add_u32 {v(TMP + z)}, {s(sR + z)}, {v(vCv)}")
    for z in range(3):
        a(f"v_cndmask_b32 {v(vCA + z)}, {v(TMP + z)}, {v(TMP + z + 1)}, s[56:57]")

    NST = 144

    def cread(i):
        z, q = divmod(i, 48)
        r = DS + 4 * (i % NSL)
        return (f"ds_read_b128 {v(TS + 4 * (i % NSL), 4)}, {v(vTa + z)} offset:{320 * q}\n"
                f"ds_read_b64 {v(r, 2)}, {v(vCA + z)} offset:{coff(kap(0, q))}\n"
                f"ds_read_b64 {v(r + 2, 2)}, {v(vCA + z)} offset:{coff(kap(0, q)) + 8}")

    def stats_pk(q):
        out = []
        for r in (0, 2):
            acc = 4 * q + r
            if q == 0:
                out.append(f"v_pk_add_f32 {v(TMP + r, 2)}, {v(acc, 2)}, {v(acc + 4, 2)}")
                out.append(f"v_pk_mul_f32 {v(TMP + 4 + r, 2)}, {v(acc, 2)}, {v(acc, 2)}")
            else:
                if q > 1:
                    out.append(f"v_pk_add_f32 {v(TMP + r, 2)}, {v(TMP + r, 2)}, {v(acc, 2)}")
                out.append(f"v_pk_fma_f32 {v(TMP + 4 + r, 2)}, {v(acc, 2)}, {v(acc, 2)}, {v(TMP + 4 + r, 2)}")
        return out

    def stats(q):
        out = []
        for r in range(4):
            acc = 4 * q + r
            if q == 0:
                out.append(f"v_mov_b32 {v(TMP + r)}, {v(acc)}")
                out.append(f"v_mul_f32 {v(TMP + 4 + r)}, {v(acc)}, {v(acc)}")
            else:
                out.append(f"v_add_f32 {v(TMP + r)}, {v(TMP + r)}, {v(acc)}")
                out.append(f"v_fmac_f32 {v(TMP + 4 + r)}, {v(acc)}, {v(acc)}")
        return out

    SLAG = 3
    for i in range(NE + 1):
        a(cread(i))
    for i in range(NST):
        z, q = divmod(i, 48)
        left = min(i + NE + 1, NST) - (i + 1)
        if i % 2 == 0:
            a(f"s_waitcnt lgkmcnt({3 * max(left - 1, 0)})")
        if i == 96:
            a(f"ds_write_b32 {v(vT0)}, {v(vT1)}")
        c = "0" if z == 0 else v(4 * q, 4)
        a(f"v_mfma_f32_16x16x32_bf16 {v(4 * q, 4)}, {v(TS + 4 * (i % NSL), 4)}, {v(DS + 4 * (i % NSL), 4)}, {c}")
        if i + NE + 1 < NST:
            if i == 97:
                a("s_waitcnt lgkmcnt(12)")
            if i == 43:
                wait_flags(a, "L_wrdy", s(sA))
                stamp(a, 3)
                a(f"""
s_lshl_b32 {s(sA)}, {s(sWave)}, 3
s_add_u32 {s(sA)}, {s(sA)}, {F_DONE + 32}
v_mov_b32 {v(vT0)}, {s(sA)}
v_mov_b32 {v(vT1)}, 1
""")
            a(cread(i + NE + 1))
        if i == NST - 2:
            a(f"ds_write_b32 {v(vT0)}, {v(vT1)} offset:4")
        if not PKS and i >= 96 + SLAG:
            for tx in stats(i - 96 - SLAG):
                a(tx)
    a(f"s_setprio {PLN}")
    stamp(a, 8)
    if PKS:
        for q in range(48):
            for tx in stats_pk(q):
                a(tx)
    else:
        for q in range(48 - SLAG, 48):
            for tx in stats(q):
                a(tx)
    stamp(a, 6)
    s1, s2 = TMP, TMP + 4
    a(f"""
s_nop 1
v_permlane32_swap_b32 {v(s1)}, {v(s1 + 1)}
v_permlane32_swap_b32 {v(s1 + 2)}, {v(s1 + 3)}
v_permlane32_swap_b32 {v(s2)}, {v(s2 + 1)}
v_permlane32_swap_b32 {v(s2 + 2)}, {v(s2 + 3)}
""")
    for e in (0, 2):
        m, w_ = s1 + e, s2 + e
        a(f"""
v_add_f32 {v(m)}, {v(m)}, {v(m + 1)}
v_add_f32 {v(w_)}, {v(w_)}, {v(w_ + 1)}
v_mul_f32 {v(m)}, {f32(1.0 / 96)}, {v(m)}
v_mul_f32 {v(w_)}, {f32(1.0 / 96)}, {v(w_)}
v_fma_f32 {v(w_)}, -{v(m)}, {v(m)}, {v(w_)}
v_max_f32 {v(w_)}, 0, {v(w_)}
v_add_f32 {v(w_)}, {f32(1e-5)}, {v(w_)}
v_rsq_f32 {v(w_)}, {v(w_)}
s_nop 0
v_mul_f32 {v(m)}, {v(m)}, {v(w_)}
v_mul_f32 {v(w_)}, {f32(2.0 ** -SEXP)}, {v(w_)}
v_mul_f32 {v(m)}, {f32(-2.0 ** -SEXP)}, {v(m)}
v_mov_b32 {v(w_ + 1)}, {v(w_)}
v_mov_b32 {v(m + 1)}, {v(m)}
""")
    a(f"""
s_nop 1
v_permlane32_swap_b32 {v(s1)}, {v(s1 + 1)}
v_permlane32_swap_b32 {v(s1 + 2)}, {v(s1 + 3)}
v_permlane32_swap_b32 {v(s2)}, {v(s2 + 1)}
v_permlane32_swap_b32 {v(s2 + 2)}, {v(s2 + 3)}
""")
    for ks in range(3):
        for q in range(16 * ks, 16 * ks + 16):
            if PKN:
                for r in (0, 2):
                    acc = 4 * q + r
                    a(f"v_pk_fma_f32 {v(acc, 2)}, {v(acc, 2)}, {v(s2 + r, 2)}, {v(s1 + r, 2)}")
            else:
                for r in range(4):
                    acc = 4 * q + r
                    a(f"v_fma_f32 {v(acc)}, {v(acc)}, {v(s2 + r)}, {v(s1 + r)}")
        ta = (192, X, X + 16)[ks]
        tb = 208 if ks == 0 else 16 * ks
        for r in range(4):
            base = ta if r < 2 else tb
            for sel in range(2):
                for d in range(4):
                    qp = 8 * ks + 4 * sel + d
                    a(f"v_cvt_pk_bf16_f32 {v(base + 8 * sel + 4 * (r & 1) + d)}, {v(8 * qp + r)}, {v(8 * qp + 4 + r)}")
        a("s_nop 0")
        for base in (ta, tb):
            for i in range(8):
                a(f"v_permlane16_swap_b32 {v(base + i)}, {v(base + 8 + i)}")
        if ks == 0:
            for i in range(16):
                a(f"v_mov_b32 {v(i)}, {v(208 + i)}")
        if ks == 1:
            for i in range(16):
                a(f"v_mov_b32 {v(X + 32 + i)}, {v(192 + i)}")
    stamp(a, 7)
    if DIAG:
        a(f"s_mov_b32 s62, {s(sWave)}")
    stamp_flush(a, 14, 0)
    a(f"""
s_mov_b32 {s(sPair)}, 8
s_mov_b32 {s(sMode)}, 1
s_sub_u32 {s(sA)}, {s(sWave)}, 1
s_cmp_lt_u32 {s(sA)}, {DEFER - 1}
s_cbranch_scc1 L_p2
s_mov_b32 {s(sMode)}, 0
""")
    park(a, TMP)
    a(f"""
s_cmp_lg_u32 {s(sWave)}, 0
s_cbranch_scc1 L_p2
s_setprio 3
s_branch L_xload
L_loader:
""")
    dma_consts(a, 60)
    n0 = 0
    for gi, n in enumerate((4, 5, 10)):
        wait_flags(a, f"L_wg{gi}", F_DONE + 4 + 8 * (9 + gi))
        for tp, c in PIECES[5 + n0:5 + n0 + n]:
            dma_piece(a, tp, c, 60)
        a(f"v_mov_b32 {v(vT0)}, {F_RDY}")
        for i in range(n):
            a(f"v_mov_b32 {v(64 + n0 + i)}, {n0 + i + 1}")
            a(f"s_waitcnt vmcnt({6 * (n - 1 - i)})")
            a(f"ds_write_b32 {v(vT0)}, {v(64 + n0 + i)}")
        n0 += n


class Stream:
    def __init__(self, a):
        self.a = a
        self.out = []

    def __call__(self, tx):
        for ln in tx.split("\n"):
            i = Ins(ln)
            if i.states == 0:
                self.a(ln)
                continue
            touch = (i.rd | i.wr) if i.kind != "lds" else set(i.rd)
            need = -1
            for k, d in enumerate(self.out):
                if d & touch:
                    need = k
            if need >= 0:
                n = min(len(self.out) - 1 - need, 14)
                self.a(f"s_waitcnt lgkmcnt({n})")
                self.out = self.out[len(self.out) - n:] if n else []
            self.a(ln)
            if i.kind == "lds":
                self.out.append(set(i.wr))


PSCH = E("PSCH", "prog")
PU = int(E("PU", "12"))


def prio_init():
    if PSCH == "prog":
        return f"s_setprio {PM[0]}"
    return f"""s_setprio {PRA}
s_cmp_lt_u32 {s(sWave)}, 4
s_cbranch_scc1 L_mtile
s_setprio {PRB}"""


def phase2(a):
    SH = "dst_sel:DWORD dst_unused:UNUSED_PAD src0_sel:DWORD src1_sel:WORD_1"
    t0, t1 = ACC, ACC + 1
    a("L_p2:")
    wait_count(a, "L_wi", F_INIT, 3)
    a(f"""
v_bfe_u32 {v(t0)}, {v(vL16)}, 6, 2            ; r
v_and_b32 {v(t1)}, 48, {v(vL16)}              ; 16c'
v_lshrrev_b32 {v(t1 + 1)}, 9, {v(vL16)}         ; g>>1
v_lshl_add_u32 {v(t0)}, {v(t1 + 1)}, 3, {v(t0)}   ; row = 8(g>>1) + r
v_lshl_add_u32 {v(vA[1])}, {v(t0)}, 6, {v(t1)}
v_mul_u32_u24 {v(t0)}, 192, {v(t0)}
v_add_u32 {v(vA[2])}, {v(t0)}, {v(t1)}
v_bfe_u32 {v(t0)}, {v(vL16)}, 8, 1            ; g&1
v_mul_u32_u24 {v(t1)}, {DZ}, {v(t0)}
v_add_u32 {v(vA[1])}, {v(vA[1])}, {v(t1)}
v_add_u32 {v(vA[2])}, {v(vA[2])}, {v(t1)}
s_mov_b32 {s(cLo)}, 0x00003f80
s_mov_b32 {s(cHi)}, 0x3f800000
s_mov_b32 {s(sTile)}, 0
s_mov_b32 {s(sRdy)}, 0
{prio_init()}
L_mtile:
""")
    stamp(a, 2)
    stamp_rt(a, 13)
    if E("XL128"):
        for tx in (poff if E("XL128") == "1" else poffn)(XR):
            a(tx)
        a(f"v_mov_b32 {v(vXoff)}, {v(XR)}\ns_mov_b32 s88, {s(sTB)}\ns_mov_b32 s89, {s(sTB + 1)}\ns_add_u32 s90, s88, {2 * ROWB}\ns_add_u32 s91, s89, {2 * ROWB}")
    st = Stream(a)
    zone_now = {1: 0, 2: 0}
    seen = set()

    def slot(f):
        return WS + 4 * (FRAGS.index(f) % NWS)

    def rd(f):
        tp, n = f
        c, k = divmod(n, 6)
        zone, ad, _ = piece_addr(tp, c)
        base = slot(f)
        if zone != zone_now[tp]:
            zone_now[tp] = zone
            st(f"v_bfe_u32 {v(base)}, {v(vL16)}, 8, 1")
            st(f"v_mul_u32_u24 {v(base)}, {DZ - DZ1}, {v(base)}")
            st(f"v_subrev_u32 {v(base)}, {E1}, {v(base)}")
            st(f"v_{'sub' if zone else 'add'}_u32 {v(vA[tp])}, {v(vA[tp])}, {v(base)}")
        if (tp, c) not in seen:
            seen.add((tp, c))
            need = PIECES.index((tp, c)) - 4
            if need > 0:
                lb = f"L_rd{need}"
                a(f"""
s_cmp_ge_u32 {s(sRdy)}, {need}
s_cbranch_scc1 {lb}_go
v_mov_b32 {v(base)}, {F_RDY}
""")
                spin(a, lb, f"v_cmp_le_u32 vcc, {need}, {v(base + 1)}", base, base + 1)
                a(f"""
v_readfirstlane_b32 {s(sRdy)}, {v(base + 1)}
{lb}_go:
""")
                if need == 1:
                    stamp(a, 3)
        off = ad - (E1 if zone else 0)
        for hf in range(2):
            if tp == 1:
                ht, ks = divmod(k, 3)
                o = off + 1024 * ks + 256 * hf + 8 * ht
            else:
                o = off + 768 * hf + 64 * (k // 2) + 8 * (k % 2)
            assert o < 65536
            st(f"ds_read_b64_tr_b16 {v(base + 2 * hf, 2)}, {v(vA[tp])} offset:{o}")

    def xreg(T, Q):
        return X + 8 * (4 * (T // 2) + Q) + 4 * (T % 2)

    def mf(f, Q):
        tp, n = f
        c, k = divmod(n, 6)
        if tp == 1:
            ks = n % 3
            d = ACC + 16 * ((n // 3) % 3) + 4 * Q
            return (f"v_mfma_f32_16x16x32_bf16 {v(d, 4)}, {v(slot(f), 4)}, "
                    f"{v(H + 16 * ks + 4 * Q, 4)}, {'0' if ks == 0 else v(d, 4)}")
        d = xreg(k, Q)
        return (f"v_mfma_f32_16x16x32_bf16 {v(d, 4)}, {v(slot(f), 4)}, "
                f"{v(G + 16 * (c % 2) + 4 * Q, 4)}, {'0' if c == 0 else v(d, 4)}")

    def look(u, i):
        a0 = ACC + 16 * (u % 3) + 2 * i
        return [(4, f"v_lshlrev_b32_sdwa {v(a0)}, 1, {v(a0)} {SH}"),
                (4, f"v_lshlrev_b32_sdwa {v(a0 + 1)}, 1, {v(a0 + 1)} {SH}"),
                (0, f"ds_read_u16_d16 {v(a0)}, {v(a0)}"),
                (0, f"ds_read_u16_d16_hi {v(a0 + 1)}, {v(a0 + 1)}")]

    def comb(u, i):
        c, ht = divmod(u, 2)
        a0 = ACC + 16 * (u % 3) + 2 * i
        return [(4, f"v_or_b32 {v(G + 16 * (c % 2) + 4 * (i // 2) + 2 * ht + i % 2)}, {v(a0)}, {v(a0 + 1)}")]

    extra = {}

    def put(u, m, tx):
        extra.setdefault((u, m), []).append(tx)

    put(23, 0, "s_waitcnt vmcnt(0)")
    for tx in poff(XR):
        put(23, 0, tx)
    for g in range(0 if NOPARK else 12):
        ks = (1, 2, 0)[g // 4]
        put(23, g, f"buffer_load_dwordx4 {v(H + 16 * ks + 4 * (g % 4), 4)}, {paddr(g, XR)}{HLF}")

    for tx in poffn(XR):
        put(24, 2, tx)
    def rgroups(rho):
        oy, ln = divmod(rho, 3)
        return [4 * (p % 3) + 2 * oy + p // 3 for p in (2 * ln, 2 * ln + 1)]

    def xload(rho):
        if E("XL128"):
            return [f"buffer_load_dwordx4 {v(XR + 4 * e, 4)}, {v(vXoff)}, {s(sX, 4)}, {s(88 + (2 * rho + e) // 3)} offen offset:{128 * ((2 * rho + e) % 3)}{XFF}" for e in range(2)]
        return [f"buffer_load_dwordx4 {v(XR + 4 * e, 4)}, {v(vXoff)}, {s(sX, 4)}, {goff(g, sTB)}{XFF}"
                for e, g in enumerate(rgroups(rho)) if not NOX]

    for tx in xload(0):
        put(RU0 - 3, 22, tx)
    for rho in range(6):
        u = RU0 + 3 * rho
        act = {f[1] % 6: 4 * i for i, f in enumerate(STEPS[u]) if f[0] == 2}
        used = []
        for e, g in enumerate(rgroups(rho)):
            tp, Q = divmod(g, 4)
            for tl in range(2):
                T = 2 * tp + tl
                m = 5
                while any(abs(m - x) < 2 for x in used) or (T in act and act[T] + Q - 4 < m < act[T] + Q + 5):
                    m += 1
                assert m < 21
                used.append(m)
                for r in range(4):
                    d = xreg(T, Q) + r
                    put(u, m + r // 2, "s_nop 0" if NOX else f"v_dot2_f32_bf16 {v(d)}, {v(XR + 4 * e + 2 * tl + r // 2)}, "
                                       f"{s(cHi if r % 2 else cLo)}, {v(d)}")
        if not E("NOXW"):
            extra[(u, min(used))].insert(0, "s_waitcnt vmcnt(0)")
        if rho < 5:
            for tx in xload(rho + 1):
                put(u, max(used) + 1, tx)

    def hook():
        a(f"""
s_cmp_eq_u32 {s(sMode)}, 0
s_cbranch_scc1 L_rdh_go
v_mov_b32 {v(XR)}, {F_ISS}
""")
        spin(a, "L_wi9", f"v_cmp_eq_u32 vcc, 9, {v(XR + 1)}", XR, XR + 1)
        park(a, XR)
        a(f"s_mov_b32 {s(sMode)}, 0\nL_rdh_go:")
        stamp(a, 1)

    for f in FRAGS[:NWS]:
        rd(f)
    a(f"s_waitcnt vmcnt({13 if DIAG else 12})")
    def steps(u0, u1, fl):
      for u in range(u0, u1):
        if PSCH == "prog" and u == PU:
            a(f"s_cmp_eq_u32 {s(sTile)}, 0\ns_cbranch_scc1 L_pu\ns_setprio {PM[2]}\nL_pu:")
        seq = []
        for i in range(8):
            if 0 <= u - 1 < 24:
                seq += comb(u - 1, i)
            if 0 <= u < 24:
                seq += look(u, i)
        if u == UH:
            seq += [(0, hook)]
        lead = 4 if 0 <= u < 4 else 0
        tot = sum(t[0] for t in seq)
        mfs = [(f, Q) for f in STEPS[u] for Q in range(4)]
        nm = len(mfs)
        k = cyc = 0
        for m, (f, Q) in enumerate(mfs):
            st(mf(f, Q))
            if Q == 3 and FRAGS.index(f) + NWS < len(FRAGS):
                rd(FRAGS[FRAGS.index(f) + NWS])
            if m >= lead:
                tgt = tot * (m - lead + 1) / max(nm - lead - TRAIL, 1)
                while k < len(seq) and (cyc < tgt or seq[k][0] == 0):
                    st(seq[k][1]) if isinstance(seq[k][1], str) else seq[k][1]()
                    cyc += seq[k][0]
                    k += 1
            for tx in extra.pop((u, m), []):
                st(tx)
            if u >= 25:
                g = (f[1] - 66) * 4 + Q - 12
                if g >= 0 and (g // 4) % 2 == 0:
                    epi(st, 4 * (g // 8) + g % 4)
        assert k == len(seq)

    def finish(fl):
        steps(25, 27, fl)
        assert not extra and not st.out and zone_now == {1: 0, 2: 0}
        stamp(a, 8)
        for oy in range(2):
            line_out(st, oy, 0, fl)
        for oy in range(2):
            epi(st, 8 + 2 * oy)
            epi(st, 9 + 2 * oy)
            line_out(st, oy, 1, fl)
            line_out(st, oy, 2, fl)

    steps(-1, 25, None)
    if STF2 is not None:
        a(f"s_cmp_eq_u32 {s(sTile)}, 0\ns_cbranch_scc1 L_fin1")
        keep = list(st.out)
        finish(STF2)
        a("s_branch L_fin2\nL_fin1:\ns_nop 7")
        st.out = keep
    finish(STF)
    a("L_fin2:")
    if DIAG:
        stamp(a, 9)
        stamp_rt(a, 11)
        a(f"s_lshl_b32 s62, {s(sTile)}, 3\ns_xor_b32 s62, s62, 8\ns_add_u32 s62, s62, {s(sWave)}")
        stamp_flush(a, 14, 1, t0, t1)
    a(f"""
s_cmp_lg_u32 {s(sTile)}, 0
s_cbranch_scc1 L_end
s_mov_b32 {s(sTile)}, 1
s_mov_b32 {s(sTB)}, {s(sNB)}
s_mov_b32 {s(sTB + 1)}, {s(sNB + 1)}
s_mov_b32 {s(sNB)}, {BIG}
s_mov_b32 {s(sNB + 1)}, {BIG}
{f"s_setprio {PM[1]}" if PSCH == "prog" else ""}
s_branch L_mtile
L_end:
s_endpgm
""")


def epi(st, g):
    b = X + 8 * g
    for d in range(4):
        st(f"v_cvt_pk_bf16_f32 {v(b + d)}, {v(b + 2 * d)}, {v(b + 2 * d + 1)}")


def line_out(st, oy, ln, fl):
    ga, gb = [4 * (p % 3) + 2 * oy + p // 3 for p in (2 * ln, 2 * ln + 1)]
    A, B = X + 8 * ga, X + 8 * gb
    for d in range(4):
        st(f"v_mov_b32 {v(A + 4 + d)}, {v(A + d)}")
    for d in range(4):
        st(f"v_mov_b32_dpp {v(A + d)}, {v(B + d)} row_ror:8 row_mask:0xf bank_mask:0xc")
    for d in range(4):
        st(f"v_mov_b32_dpp {v(B + d)}, {v(A + 4 + d)} row_ror:8 row_mask:0xf bank_mask:0x3")
    for e, r in enumerate((A, B)):
        st(f"buffer_store_dwordx4 {v(r, 4)}, {v(XR + e)}, {s(sO, 4)}, {s(sTB + oy)} offen offset:{128 * ln}{fl}")


def descriptor(a, name, nv, ns):
    a(f"""
.p2align 6
.amdhsa_kernel {name}
  .amdhsa_next_free_vgpr {nv}
  .amdhsa_next_free_sgpr {ns}
  .amdhsa_accum_offset {(nv + 3) // 4 * 4}
  .amdhsa_group_segment_fixed_size 0
  .amdhsa_kernarg_size 64
  .amdhsa_user_sgpr_count 2
  .amdhsa_user_sgpr_kernarg_segment_ptr 1
  .amdhsa_system_sgpr_workgroup_id_x 1
  .amdhsa_float_denorm_mode_32 3
.end_amdhsa_kernel
""")


def main():
    here = os.path.dirname(os.path.abspath(__file__))
    ref = open(os.path.join(here, "..", NAME + ".s.ref")).read().split("\n")
    head = [l for l in ref if l.startswith(";") and "@launch" not in l]
    a = Asm()
    for l in head:
        a(l)
    a(f"; @launch grid=(256,1,1) block=(512,1,1) lds={LDS_BYTES}")
    a('.amdgcn_target "amdgcn-amd-amdhsa--gfx950"')
    a(".text")
    prologue(a)
    phase1(a)
    phase2(a)
    probs = check_hazards(a.lines)
    fast, skip = [], None
    for ln in a.lines:
        t = ln.strip()
        if skip:
            if t == skip + ":":
                skip = None
            continue
        fast.append(ln)
        if t.startswith("s_cbranch_scc1 L_rd") and t.endswith("_go"):
            skip = t.split()[1]
    probs += check_hazards(fast)
    for p in probs:
        print("HAZARD:", p)
    a('.section .rodata,"a"')
    descriptor(a, NAME + "_kernel", 256, 100)
    out = sys.argv[1] if len(sys.argv) > 1 else os.path.join(here, "..", NAME + ".s")
    open(out, "w").write(a.text())
    print("wrote", out, "lines", len(a.lines), "hazards", len(probs), "lds", LDS_BYTES)


if __name__ == "__main__":
    main()
```

```python
import math
import struct
import sys
import os

import numpy as np

sys.path.insert(0, os.path.dirname(os.path.abspath(__file__)))
from asmlib import Asm, Ins, v, s, check_hazards

NAME = "standalone__modern_conv_block_replknet__vision"
E = os.environ.get
DIAG = E("DIAG", "0") == "1"
STF = E("STF", " sc1")
XLF, PKF, HLF, XFF = E("XLF", " sc1"), E("PKF", " sc1"), E("HLF", ""), E("XFF", " sc1")
EXPK = [int(c) for c in E("EXPK", "0")]
TRAIL = int(E("TRAIL", "2"))
PKN = E("PKN", "1") == "1"
PKS = E("PKS", "1") == "1"
PCV, PLN = int(E("PCV", "2")), int(E("PLN", "2"))
PM = [int(c) for c in E("PM", "110")]
STF2 = E("STF2")
DEFER = int(E("DEFER", "1"))
NPRE = 1
ILV = E("ILV", "0") == "1"
NLW = int(E("NLW", "1"))
WPF = int(E("WPF", "-1"))
NOX, NOPARK, NOST = E("NOX"), E("NOPARK"), E("NOST")
UH = 2
RU0 = 7
PRA, PRB = int(E("PRA", "0")), int(E("PRB", "1"))
sStamp = 64


def f32(x):
    return "0x%08x" % struct.unpack("<I", struct.pack("<f", x))[0]


def h2(x):
    b = int(np.float16(x).view(np.uint16))
    return "0x%08x" % (b | (b << 16))


KAPPA = 2.0 * math.sqrt(2.0 / math.pi) * math.log2(math.e)
BETA = float(np.float16(KAPPA / (KAPPA * 0.044715) ** (1.0 / 3.0)))
SC = KAPPA / BETA
BIG = 0x40000000
NBIN = 28
SEXP = 111

XBYTES = 512 * 512 * 96 * 2
ROWB = 512 * 192
WS_END = 256 * 8 * 12288
WS_STAMP = 0x2000000
TW = NBIN * 256
TABP, TABN = 0, 65536
E0 = TW
DZ = 65544
E1 = E0 + DZ + 19 * 3072
DZ1 = 5 * 3072 + 8
L_FLAG = E1 + DZ1 + 5 * 3072
LDS_BYTES = L_FLAG + 256
assert L_FLAG % 16 == 0 and LDS_BYTES <= 163840 and E0 + 19 * 3072 <= 65536
OS = 584
RS = 7104
SS = 14336
RL = E0
RU = TABN + TW + 128
TL = RL + 3 * SS
TU = RU + 2 * SS + RS + 12 * OS
assert TL + 15360 <= 65536 and TU % 16 == 0 and TU + 15360 <= E1 and RL % 256 == 0 and RU % 256 == 128
R3L = (E1 + 255) // 256 * 256
R3U = R3L + 2 * RS
assert R3U % 256 == 128 and R3U + RS + 12 * OS <= L_FLAG
F_STG = L_FLAG
F_DONE = L_FLAG + 40
F_TRDY = L_FLAG + 160
F_ISS = L_FLAG + 164
F_RDY = L_FLAG + 168
F_INIT = L_FLAG + 172
F_WRAW = L_FLAG + 176
WTMP = RL + SS


def kap(ch, q):
    return 32 * (q >> 4) + 16 * ch + (q & 15)


def coff(c):
    return (c // 8) * OS + (c % 8) * 72


STEPS = {u: [(tp, n) for i in range(3) for tp, n in ((1, 3 * (u + 1) + i), (2, 3 * (u - 3) + i)) if 0 <= n < 72]
         for u in range(-1, 27)}
FRAGS = [f for u in range(-1, 27) for f in STEPS[u]]
PIECES = []
for tp_, n_ in FRAGS:
    if (tp_, n_ // 6) not in PIECES:
        PIECES.append((tp_, n_ // 6))
assert len(PIECES) == 24 and len(FRAGS) == 144


def piece_addr(tp, c):
    i = PIECES.index((tp, c))
    if i < 5:
        return 1, E1 + 3072 * i, DZ1
    return 0, E0 + 3072 * (i - 5), DZ


SB = 48
TS = 192
DS = 212
TMP = 232
vL16, vT0, vT1 = 253, 254, 255
vFl, vTa, vCA, vLdA, vLdB, vSt, vCv, vK = 240, 241, 244, 247, 248, 249, 250, 251
H = 0
X = 48
G = 144
ACC = 176
WS = 224
NWS = 5
XR = 244
vXoff = 252
vA = {1: 254, 2: 255}

NE = 4
NSL = 5

sX, sO, sW = 4, 8, 12
sWave, sTile, sPair, sRdy = 16, 17, 18, 19
sSelLo, sSelHi = 20, 21
sX0, sY0 = 22, 23
sTB = 24
sA, sB, sC, sD = 26, 27, 28, 29
sR = 30
sNB = 36
sMode = 38
sRot = 39
sI1, sI2 = 40, 44
sDL, sDS = 48, 52
sEL, sER, sE1 = 80, 81, 82
cNB, cS, cLo, cHi, cK = 84, 85, 86, 87, 83


def stamp(a, k):
    if DIAG:
        a(f"s_waitcnt lgkmcnt(0)\ns_memtime s[60:61]\ns_waitcnt lgkmcnt(0)\ns_mov_b32 {s(sStamp + k)}, s60")


def stamp_rt(a, k):
    if DIAG:
        a(f"s_waitcnt lgkmcnt(0)\ns_memrealtime s[60:61]\ns_waitcnt lgkmcnt(0)\ns_mov_b32 {s(sStamp + k)}, s60")


def stamp_flush(a, n, rec, vT0=vT0, vT1=vT1):
    if DIAG:
        a(f"s_mov_b32 {s(sStamp + 12)}, {s(sWave)}")
        a(f"v_mov_b32 {v(vT0)}, 0")
        for k in range(n):
            a(f"v_writelane_b32 {v(vT0)}, {s(sStamp + k)}, {k}")
        a(f"""s_lshl_b32 s60, s2, 4
s_add_u32 s60, s60, s62
s_lshl_b32 s60, s60, 7
s_add_u32 s60, s60, {WS_STAMP + 64 * rec}
v_lshrrev_b32 {v(vT1)}, 2, {v(vL16)}
s_mov_b32 exec_lo, 0xffff
s_mov_b32 exec_hi, 0
buffer_store_dword {v(vT0)}, {v(vT1)}, {s(sW, 4)}, s60 offen
s_mov_b64 exec, -1
s_nop 1""")


def srd(a, d, lo, nbytes):
    a(f"""s_mov_b32 {s(d)}, {s(lo)}
s_and_b32 {s(d + 1)}, {s(lo + 1)}, 0xffff
s_mov_b32 {s(d + 2)}, {nbytes}
s_mov_b32 {s(d + 3)}, 0x20000""")


def spin(a, label, cmp, t0=vT0, t1=vT1):
    a(f"""
s_mov_b32 {s(sD)}, 200000
{label}:
ds_read_b32 {v(t1)}, {v(t0)}
s_waitcnt lgkmcnt(0)
{cmp}
s_cmp_eq_u64 vcc, exec
s_cbranch_scc1 {label}_ok
s_sleep 2
s_sub_u32 {s(sD)}, {s(sD)}, 1
s_cmp_lg_u32 {s(sD)}, 0
s_cbranch_scc1 {label}
{label}_ok:
""")


def wait_flags(a, label, addr):
    a(f"v_add_u32 {v(vT0)}, {addr}, {v(vFl)}")
    spin(a, label, f"v_cmp_ne_u32 vcc, 0, {v(vT1)}")


def wait_count(a, label, addr, n, op="eq"):
    a(f"v_mov_b32 {v(vT0)}, {addr}")
    spin(a, label, f"v_cmp_{op}_u32 vcc, {n}, {v(vT1)}")


def count(a, addr):
    a(f"""
v_mov_b32 {v(vT0)}, {addr}
v_mov_b32 {v(vT1)}, 1
s_waitcnt lgkmcnt(0)
s_mov_b64 exec, 1
ds_add_u32 {v(vT0)}, {v(vT1)}
s_mov_b64 exec, -1
""")


def issue_loads(a):
    a(f"""
s_lshl_b32 {s(sA)}, {s(sPair)}, 2
s_add_u32 {s(sA)}, {s(sA)}, {s(sY0)}
s_lshl_b32 {s(sB)}, {s(sA)}, 9
s_add_u32 {s(sB)}, {s(sB)}, {s(sX0)}
s_mul_i32 {s(sB)}, {s(sB)}, 192
s_cmp_lt_u32 {s(sA)}, 2
s_cselect_b64 vcc, s[58:59], 0
v_mov_b32 {v(vLdB)}, {BIG}
s_sub_u32 {s(sC)}, {s(sB)}, {2 * ROWB}
v_add_u32 {v(vT1)}, {s(sC)}, {v(vLdA)}
v_cndmask_b32 {v(vLdB)}, {v(vT1)}, {v(vLdB)}, vcc
v_add_u32 {v(vT1)}, -384, {v(vLdB)}
""")
    for xq in range(9):
        for i in range(4):
            off = 768 * xq + 192 * i - 384
            if xq == 0 and i < 2:
                a(f"buffer_load_dwordx4 {v(SB + 4 * i, 4)}, {v(vT1)}, {s(sX, 4)}, {s(sEL)} offen offset:{192 * i}{XLF}")
                continue
            elif xq == 8 and i >= 2:
                so, im = sER, off - 3840
            elif off < 3840:
                so, im = "0", off
            else:
                so, im = sE1, off - 3840
            so = so if isinstance(so, str) else s(so)
            a(f"buffer_load_dwordx4 {v(SB + 16 * xq + 4 * i, 4)}, {v(vLdB)}, {s(sX, 4)}, {so} offen offset:{im}{XLF}")


def dma_consts(a, r):
    a(f"""
v_lshrrev_b32 {v(r)}, 9, {v(vL16)}             ; l>>5
v_mul_u32_u24 {v(r + 1)}, 1536, {v(r)}
v_add_u32 {v(r + 1)}, {v(r + 1)}, {v(vL16)}
v_bfe_u32 {v(vT0)}, {v(vL16)}, 6, 3            ; (l>>2)&7
v_lshl_add_u32 {v(r)}, {v(r)}, 4, {v(vT0)}
v_mul_u32_u24 {v(r)}, 768, {v(r)}
v_and_b32 {v(vT0)}, 48, {v(vL16)}
v_add_u32 {v(r)}, {v(r)}, {v(vT0)}             ; w1
""")


def dma_piece(a, tp, c, r):
    _, ad, dz = piece_addr(tp, c)
    a(f"""
s_add_u32 {s(sA)}, {s(sRot)}, {c}
s_cmp_ge_u32 {s(sA)}, 12
s_cselect_b32 {s(sB)}, 12, 0
s_sub_u32 {s(sA)}, {s(sA)}, {s(sB)}
s_mul_i32 {s(sA)}, {s(sA)}, {64 if tp == 1 else 6144}
""")
    for par in range(2):
        a(f"s_mov_b32 m0, {ad + par * dz}")
        if tp == 1:
            for ks in range(3):
                a(f"s_add_u32 {s(sR + ks)}, {s(sA)}, {(32 * ks + 8 * par) * 768 - 1024 * ks}")
            for ks in range(3):
                a(f"buffer_load_dwordx4 {v(r)}, {s(sI1, 4)}, {s(sR + ks)} offen offset:{1024 * ks} lds")
        else:
            a(f"s_add_u32 {s(sR)}, {s(sA)}, {1536 * par}")
            a(f"s_add_u32 {s(sR + 1)}, {s(sA)}, {1536 * par + 1536}")
            a(f"buffer_load_dwordx4 {v(vL16)}, {s(sI2, 4)}, {s(sR)} offen lds")
            a(f"buffer_load_dwordx4 {v(r + 1)}, {s(sI2, 4)}, {s(sR)} offen offset:1024 lds")
            a(f"buffer_load_dwordx4 {v(vL16)}, {s(sI2, 4)}, {s(sR + 1)} offen offset:2048 lds")


XADJ = f"""v_lshrrev_b32 v3, 5, v0
v_mul_u32_u24 v3, {2 * ROWB}, v3
v_bfe_u32 v4, v0, 2, 3
v_mul_u32_u24 v4, 768, v4
v_add_u32 v3, v3, v4
v_and_b32 v4, 3, v0
v_lshl_add_u32 {v(vXoff)}, v4, 4, v3""" if E("XADJ") else ""


def prologue(a):
    k = NAME + "_kernel"
    a(f"""
.globl {k}
.p2align 8
.type {k},@function
{k}:
s_cmp_ge_u32 s2, 256
s_cbranch_scc1 L_end
s_load_dwordx8 s[64:71], s[0:1], 0
s_load_dwordx4 s[72:75], s[0:1], 32
{"s_load_dwordx2 s[76:77], s[0:1], 56" if DIAG else ""}
s_setprio 3
v_mov_b32 v14, v0                ; tid
v_lshrrev_b32 v1, 6, v0
v_and_b32 v0, 63, v0
v_mov_b32 v10, {BIG}
v_readfirstlane_b32 {s(sWave)}, v1
v_lshlrev_b32 v2, 2, v0
v_add_u32 v2, {L_FLAG}, v2
v_add_u32 v3, -10, v0
v_cmp_gt_u32 vcc, 10, v3
v_cmp_eq_u32 s[56:57], 36, v0
s_or_b64 vcc, vcc, s[56:57]
v_cndmask_b32 v3, 0, 1, vcc
v_lshlrev_b32 {v(vL16)}, 4, v0
v_min_u32 {v(vFl)}, 1, v0
ds_write_b32 v2, v3
v_lshlrev_b32 {v(vFl)}, 2, {v(vFl)}
s_and_b32 {s(sA)}, s2, 3
s_lshl_b32 {s(sA)}, {s(sA)}, 2
s_bfe_u32 {s(sB)}, s2, 0x20003
s_add_u32 {s(sA)}, {s(sA)}, {s(sB)}
s_lshl_b32 {s(sX0)}, {s(sA)}, 5
s_bfe_u32 {s(sA)}, s2, 0x10002
s_lshl_b32 {s(sA)}, {s(sA)}, 3
s_lshr_b32 {s(sB)}, s2, 5
s_add_u32 {s(sA)}, {s(sA)}, {s(sB)}
s_lshl_b32 {s(sY0)}, {s(sA)}, 5
; staging lane map: row = l/12, o = l%12 (lanes < 48)
v_mul_u32_u24 v12, 43, v0
v_lshrrev_b32 v12, 9, v12          ; row
v_mul_u32_u24 v13, 12, v12
v_sub_u32 v13, v0, v13             ; o
v_mul_u32_u24 v5, {ROWB}, v12
v_lshl_add_u32 v5, v13, 4, v5
v_cmp_gt_u32 vcc, 48, v0
v_cmp_gt_u32 s[58:59], 24, v0    ; rows 0,1
s_cmp_eq_u32 {s(sX0)}, 0
s_cselect_b32 {s(sEL)}, {BIG}, 0
v_cndmask_b32 {v(vLdA)}, v10, v5, vcc
s_mov_b32 {s(sE1)}, 3840
s_cmp_eq_u32 {s(sX0)}, 480
s_cselect_b32 {s(sER)}, {BIG}, {s(sE1)}
s_mov_b32 {s(sPair)}, {s(sWave)}
v_add_u32 v15, -256, v14             ; waves 4..7: 0..255
s_waitcnt lgkmcnt(0)
s_barrier
""")
    srd(a, sX, 64, XBYTES)
    srd(a, sDL, 66, 9 * 96 * 2)
    srd(a, sDS, 68, 25 * 96 * 2)
    srd(a, sI1, 70, 96 * 384 * 2)
    srd(a, sI2, 72, 96 * 384 * 2)
    srd(a, sO, 74, XBYTES)
    if DIAG:
        srd(a, sW, 76, WS_STAMP + 0x100000)
    stamp(a, 0)
    stamp_rt(a, 10)
    a(f"""
s_cmp_lg_u32 {s(sWave)}, 0
s_cbranch_scc1 L_pb
s_mov_b32 m0, {WTMP}
s_mov_b32 {s(sA)}, 4096
""")
    for i in range(4):
        a(f"buffer_load_dwordx4 {v(vL16)}, {s(sDS, 4)}, 0 offen offset:{1024 * i} lds")
    a(f"s_mov_b32 m0, {WTMP + 4096}\ns_nop 0\nbuffer_load_dwordx4 {v(vL16)}, {s(sDS, 4)}, {s(sA)} offen lds")
    a(f"s_mov_b32 m0, {WTMP + 5120}\ns_nop 0")
    for i in range(2):
        a(f"buffer_load_dwordx4 {v(vL16)}, {s(sDL, 4)}, 0 offen offset:{1024 * i} lds")
    stamp(a, 9)
    issue_loads(a)
    a(f"""
v_mov_b32 {v(vT0)}, {F_ISS}
v_mov_b32 {v(vT1)}, 1
ds_write_b32 {v(vT0)}, {v(vT1)}
s_waitcnt vmcnt(36)
ds_write_b32 {v(vT0)}, {v(vT1)} offset:{F_WRAW - F_ISS}
""")
    stamp(a, 11)
    a(f"""
L_pb:
s_mov_b32 {s(sSelLo)}, 0x05040100
s_mov_b32 {s(sSelHi)}, 0x07060302
s_lshr_b32 {s(sA)}, s2, 3
s_mul_i32 {s(sB)}, {s(sA)}, 43
s_lshr_b32 {s(sB)}, {s(sB)}, 9
s_mul_i32 {s(sB)}, {s(sB)}, 12
s_sub_u32 {s(sRot)}, {s(sA)}, {s(sB)}       ; (wg>>3) % 12
v_bfe_u32 v1, v0, 3, 1
v_lshrrev_b32 v2, 5, v0          ; ch'
v_bfe_u32 v3, v0, 4, 1           ; dyp
v_bfe_u32 v4, v0, 2, 1           ; oy
v_sub_u32 v3, v3, v4             ; dyp-oy
v_and_b32 v4, 3, v0
v_mul_u32_u24 v5, {TU - TL}, v1
v_lshl_add_u32 v5, v4, 4, v5
v_add_u32 v5, {TL}, v5
v_cmp_eq_u32 s[56:57], v1, v2
v_add_u32 v6, 0, v3
v_cmp_gt_u32 vcc, 5, v6
v_lshl_add_u32 v7, v6, 6, v5
s_and_b64 vcc, vcc, s[56:57]
v_cndmask_b32 {v(vTa)}, v10, v7, vcc
v_add_u32 v6, 2, v3
v_lshl_add_u32 v7, v6, 6, v5
v_cndmask_b32 {v(vTa + 1)}, v10, v7, s[56:57]
v_add_u32 v6, 4, v3
v_cmp_gt_u32 vcc, 5, v6
v_lshl_add_u32 v7, v6, 6, v5
s_and_b64 vcc, vcc, s[56:57]
v_cndmask_b32 {v(vTa + 2)}, v10, v7, vcc
v_mul_u32_u24 v2, {2 * OS}, v2
v_and_b32 v3, 7, v0
v_lshl_add_u32 {v(vCv)}, v3, 3, v2
v_mul_u32_u24 v3, 768, v3
v_mul_u32_u24 v4, {2 * ROWB}, v1
v_add_u32 v3, v3, v4
v_lshrrev_b32 v4, 4, v0
v_lshl_add_u32 {v(vXoff)}, v4, 4, v3
{XADJ}
v_bfe_u32 v3, v0, 4, 1
v_mul_u32_u24 v3, {RS}, v3
v_add_u32 {v(vCv)}, {v(vCv)}, v3
v_cmp_eq_u32 s[56:57], 1, v1
v_and_b32 v5, 1, v12
v_mul_u32_u24 v5, {RS}, v5
v_mul_u32_u24 v6, {OS}, v13
v_add_u32 {v(vSt)}, v5, v6
s_lshl_b32 {s(sA)}, {s(sWave)}, 2
s_add_u32 {s(sA)}, {s(sA)}, {s(sY0)}
s_lshl_b32 {s(sA)}, {s(sA)}, 9
s_add_u32 {s(sA)}, {s(sA)}, {s(sX0)}
s_mul_i32 {s(sNB)}, {s(sA)}, 192
s_add_u32 {s(sNB + 1)}, {s(sNB)}, {ROWB}
s_add_u32 {s(sTB)}, {s(sNB)}, 384
s_add_u32 {s(sTB + 1)}, {s(sTB)}, {ROWB}
s_cmp_lt_u32 {s(sWave)}, {NPRE}
s_cbranch_scc1 L_perm
s_cmp_lt_u32 {s(sWave)}, 4
s_cbranch_scc1 L_xload
""")
    wait_count(a, "L_wraw", F_WRAW, 1)
    for r in range(2):
        b = 128 + 16 * r
        a(f"""
v_add_u32 v1, {256 * r}, v15         ; task
v_mul_u32_u24 v{b}, 683, v1
v_lshrrev_b32 v{b}, 16, v{b}         ; dy
v_mul_u32_u24 v{b + 1}, 96, v{b}
v_sub_u32 v{b + 1}, v1, v{b + 1}     ; c
v_mul_u32_u24 v2, 960, v{b}
v_lshl_add_u32 v2, v{b + 1}, 1, v2
v_add_u32 v1, -1, v{b}
v_mul_u32_u24 v3, 576, v1
v_lshl_add_u32 v3, v{b + 1}, 1, v3
v_cmp_gt_u32 vcc, 3, v1
s_nop 1
v_cndmask_b32 v3, v10, v3, vcc
""")
        for jx in range(5):
            a(f"ds_read_u16 v{b + 4 + jx}, v2 offset:{WTMP + 192 * jx}")
        for jx in range(3):
            a(f"ds_read_u16 v{b + 9 + jx}, v3 offset:{WTMP + 5120 + 192 * jx}")
    a("s_waitcnt lgkmcnt(0)")
    for r in range(2):
        b = 128 + 16 * r
        w = b + 4
        o = 160 + 16 * r
        for jx in range(8):
            a(f"v_lshlrev_b32 v{w + jx}, 16, v{w + jx}")
        a(f"""
v_add_f32 v{w + 1}, v{w + 1}, v{w + 5}
v_add_f32 v{w + 2}, v{w + 2}, v{w + 6}
v_add_f32 v{w + 3}, v{w + 3}, v{w + 7}
v_mov_b32 v1, 0
v_cvt_pk_bf16_f32 v{o}, v{w}, v{w + 1}
v_cvt_pk_bf16_f32 v{o + 1}, v{w + 2}, v{w + 3}
v_cvt_pk_bf16_f32 v{o + 2}, v{w + 4}, v1
v_mov_b32 v{o + 3}, 0
v_cvt_pk_bf16_f32 v{o + 4}, v1, v{w}
v_cvt_pk_bf16_f32 v{o + 5}, v{w + 1}, v{w + 2}
v_cvt_pk_bf16_f32 v{o + 6}, v{w + 3}, v{w + 4}
v_mov_b32 v{o + 7}, 0
v_mov_b32 v{o + 8}, 0
v_mov_b32 v{o + 9}, v{o}
v_mov_b32 v{o + 10}, v{o + 1}
v_mov_b32 v{o + 11}, v{o + 2}
v_mov_b32 v{o + 12}, 0
v_mov_b32 v{o + 13}, v{o + 4}
v_mov_b32 v{o + 14}, v{o + 5}
v_mov_b32 v{o + 15}, v{o + 6}
v_lshrrev_b32 v2, 5, v{b + 1}
v_and_b32 v3, 15, v{b + 1}
v_lshl_add_u32 v2, v2, 4, v3
v_mul_u32_u24 v2, 320, v2
v_bfe_u32 v3, v{b + 1}, 4, 1
v_mul_u32_u24 v3, {TU - TL}, v3
v_add_u32 v2, v2, v3
v_lshl_add_u32 v2, v{b}, 6, v2
v_add_u32 v2, {TL}, v2
v_cmp_gt_u32 vcc, 5, v{b}
s_nop 1
v_cndmask_b32 v2, v10, v2, vcc
ds_write_b128 v2, v[{o}:{o + 3}]
ds_write_b128 v2, v[{o + 4}:{o + 7}] offset:16
ds_write_b128 v2, v[{o + 8}:{o + 11}] offset:32
ds_write_b128 v2, v[{o + 12}:{o + 15}] offset:48
""")
    count(a, F_TRDY)
    a(f"""
s_cmp_lt_u32 {s(sWave)}, 6
s_cbranch_scc1 L_xload
L_tab:
v_add_u32 v1, -384, v14
v_lshlrev_b32 v2, 2, v1
v_add_u32 v3, {TABN}, v2
v_lshlrev_b32 v4, 17, v1              ; code 2i << 16
v_or_b32 v4, 0x8000, v4
v_cmp_gt_u32 vcc, 64, v1
v_mov_b32 v5, {SEXP << 23}
v_mov_b32 v6, {(SEXP + 1) << 23}
v_cndmask_b32 v5, v5, v6, vcc
v_cndmask_b32 v6, 0, v6, vcc
v_add_u32 v4, v4, v5
s_mov_b32 {s(sA)}, {f32(KAPPA * 0.044715)}
v_mov_b32 v7, {f32(KAPPA)}
s_mov_b32 {s(sB)}, {NBIN // 2}
L_tabl:
v_add_u32 v9, 0x10000, v4
v_sub_f32 v8, v4, v6
v_sub_f32 v9, v9, v6
v_mul_f32 v10, v8, v8
v_mul_f32 v11, v9, v9
v_fma_f32 v10, v10, {s(sA)}, v7
v_fma_f32 v11, v11, {s(sA)}, v7
v_mul_f32 v10, v10, v8
v_mul_f32 v11, v11, v9
v_exp_f32 v10, -v10
v_exp_f32 v11, -v11
s_nop 0
v_add_f32 v12, 1.0, v10
v_add_f32 v13, 1.0, v11
v_rcp_f32 v12, v12
v_rcp_f32 v13, v13
s_nop 0
v_mul_f32 v8, v8, v12
v_mul_f32 v9, v9, v13
v_mul_f32 v10, -v8, v10
v_mul_f32 v11, -v9, v11
v_cvt_pk_bf16_f32 v12, v8, v9
v_cvt_pk_bf16_f32 v13, v10, v11
ds_write_b32 v2, v12
ds_write_b32 v3, v13
v_sub_u32 v4, v4, v5
v_mov_b32 v5, {SEXP << 23}
v_mov_b32 v6, 0
v_add_u32 v4, v4, v5
v_add_u32 v4, 0x1000000, v4
v_add_u32 v2, 512, v2
v_add_u32 v3, 512, v3
s_sub_u32 {s(sB)}, {s(sB)}, 1
s_cmp_lg_u32 {s(sB)}, 0
s_cbranch_scc1 L_tabl
""")
    count(a, F_INIT)
    a("L_xload:")
    stamp(a, 13)
    wait_count(a, "L_wiss", F_ISS, s(sPair))
    stamp(a, 9)
    issue_loads(a)
    a(f"""
s_add_u32 {s(sA)}, {s(sPair)}, 1
v_mov_b32 {v(vT1)}, {s(sA)}
ds_write_b32 {v(vT0)}, {v(vT1)}
""")
    stamp(a, 11)
    a("L_perm:")


def slot_of(a, dst, src):
    a(f"""
s_add_u32 {s(dst)}, {src}, 2
s_and_b32 {s(dst)}, {s(dst)}, 3
s_cmp_eq_u32 {s(dst)}, 3
s_mul_i32 {s(dst)}, {s(dst)}, {SS}
s_cselect_b32 {s(dst + 1)}, {R3U - RU}, {s(dst)}
s_cselect_b32 {s(dst)}, {R3L - RL}, {s(dst)}
s_add_u32 {s(dst)}, {s(dst)}, {RL}
s_add_u32 {s(dst + 1)}, {s(dst + 1)}, {RU}
""")


def goff(g, base):
    tp, Q = divmod(g, 4)
    return f"{s(base + (Q >> 1))} offen offset:{192 * (Q & 1) + 64 * tp}"


def poff(t):
    return [f"v_lshrrev_b32 {v(t)}, 7, {v(vL16)}",
            f"v_mul_u32_u24 {v(t)}, 640, {v(t)}",
            f"v_add_u32 {v(t)}, {v(t)}, {v(vL16)}",
            f"v_add_u32 {v(t + 1)}, {2 * ROWB}, {v(t)}"]


def poffn(t):
    return [f"v_bfe_u32 {v(t)}, {v(vL16)}, 4, 3",
            f"v_mul_u32_u24 {v(t)}, 768, {v(t)}",
            f"v_bfe_u32 {v(t + 1)}, {v(vL16)}, 7, 1",
            f"v_lshl_add_u32 {v(t)}, {v(t + 1)}, 6, {v(t)}",
            f"v_lshrrev_b32 {v(t + 1)}, 8, {v(vL16)}",
            f"v_lshl_add_u32 {v(t)}, {v(t + 1)}, 4, {v(t)}",
            f"v_add_u32 {v(t + 1)}, {2 * ROWB}, {v(t)}"]


def paddr(g, t):
    r, ln = divmod(g, 3)
    return f"{v(t + (r >> 1))}, {s(sO, 4)}, {s(sNB + (r & 1))} offen offset:{128 * ln}"


def park(a, t):
    for tx in poff(t):
        a(tx)
    for g in range(0 if NOPARK else 12):
        a(f"buffer_store_dwordx4 {v(X + 4 * g, 4)}, {paddr(g, t)}{PKF}")


def phase1(a):
    def oreg(rnd):
        return SB + (144 if rnd == 0 else 16 * (rnd - 1))

    def perms(rnd):
        a(f"s_waitcnt vmcnt({32 - 4 * rnd})")
        L = SB + 16 * rnd
        O = oreg(rnd)
        for d in range(4):
            a(f"v_perm_b32 {v(O + 4 * d)}, {v(L + 4 + d)}, {v(L + d)}, {s(sSelLo)}")
            a(f"v_perm_b32 {v(O + 4 * d + 1)}, {v(L + 12 + d)}, {v(L + 8 + d)}, {s(sSelLo)}")
            a(f"v_perm_b32 {v(O + 4 * d + 2)}, {v(L + 4 + d)}, {v(L + d)}, {s(sSelHi)}")
            a(f"v_perm_b32 {v(O + 4 * d + 3)}, {v(L + 12 + d)}, {v(L + 8 + d)}, {s(sSelHi)}")
            if ILV:
                writes(rnd, d)

    def writes(rnd, d):
        O = oreg(rnd)
        a(f"ds_write_b64 {v(vT0)}, {v(O + 4 * d, 2)} offset:{8 * rnd + 2 * d * 72}")
        a(f"ds_write_b64 {v(vT0)}, {v(O + 4 * d + 2, 2)} offset:{8 * rnd + (2 * d + 1) * 72}")

    if not ILV:
        a("s_mov_b32 exec_hi, 0x0000ffff")
        for rnd in range(9):
            perms(rnd)
        a("s_mov_b32 exec_hi, -1")
    stamp(a, 1)
    a(f"s_cmp_lg_u32 {s(sPair)}, 3\ns_cbranch_scc1 L_wt3_ok")
    wait_count(a, "L_wt3", F_TRDY, 4)
    a(f"""
s_lshl_b32 {s(sA)}, {s(sPair)}, 3
s_add_u32 {s(sA)}, {s(sA)}, {F_DONE + 4}
""")
    wait_flags(a, "L_wslot", s(sA))
    stamp(a, 2)
    slot_of(a, sR, s(sPair))
    a(f"""
v_add_u32 {v(vT0)}, {s(sR)}, {v(vSt)}
v_add_u32 {v(vT1)}, {s(sR + 1)}, {v(vSt)}
v_cndmask_b32 {v(vT0)}, {v(vT1)}, {v(vT0)}, s[58:59]
s_mov_b32 exec_hi, 0x0000ffff
""")
    for rnd in range(9):
        if ILV:
            perms(rnd)
        else:
            for d in range(4):
                writes(rnd, d)
    a(f"""
s_mov_b32 exec_hi, -1
s_lshl_b32 {s(sA)}, {s(sPair)}, 2
s_add_u32 {s(sA)}, {s(sA)}, {F_STG}
v_mov_b32 {v(vT0)}, {s(sA)}
v_mov_b32 {v(vT1)}, 1
s_waitcnt lgkmcnt(0)
ds_write_b32 {v(vT0)}, {v(vT1)}
s_cmp_eq_u32 {s(sPair)}, 8
s_cbranch_scc1 L_loader
""")
    stamp(a, 4)
    a(f"s_setprio {PCV}")
    a(f"s_add_u32 {s(sB)}, {s(sPair)}, 1")
    slot_of(a, sR + 2, s(sB))
    for z in range(4):
        a(f"v_add_u32 {v(TMP + z)}, {s(sR + z)}, {v(vCv)}")
    for z in range(3):
        a(f"v_cndmask_b32 {v(vCA + z)}, {v(TMP + z)}, {v(TMP + z + 1)}, s[56:57]")
    wait_count(a, "L_wt", F_TRDY, 4)
    stamp(a, 5)

    NST = 144

    def cread(i):
        z, q = divmod(i, 48)
        r = DS + 4 * (i % NSL)
        return (f"ds_read_b128 {v(TS + 4 * (i % NSL), 4)}, {v(vTa + z)} offset:{320 * q}\n"
                f"ds_read_b64 {v(r, 2)}, {v(vCA + z)} offset:{coff(kap(0, q))}\n"
                f"ds_read_b64 {v(r + 2, 2)}, {v(vCA + z)} offset:{coff(kap(0, q)) + 8}")

    def stats_pk(q):
        out = []
        for r in (0, 2):
            acc = 4 * q + r
            if q == 0:
                out.append(f"v_pk_add_f32 {v(TMP + r, 2)}, {v(acc, 2)}, {v(acc + 4, 2)}")
                out.append(f"v_pk_mul_f32 {v(TMP + 4 + r, 2)}, {v(acc, 2)}, {v(acc, 2)}")
            else:
                if q > 1:
                    out.append(f"v_pk_add_f32 {v(TMP + r, 2)}, {v(TMP + r, 2)}, {v(acc, 2)}")
                out.append(f"v_pk_fma_f32 {v(TMP + 4 + r, 2)}, {v(acc, 2)}, {v(acc, 2)}, {v(TMP + 4 + r, 2)}")
        return out

    def stats(q):
        out = []
        for r in range(4):
            acc = 4 * q + r
            if q == 0:
                out.append(f"v_mov_b32 {v(TMP + r)}, {v(acc)}")
                out.append(f"v_mul_f32 {v(TMP + 4 + r)}, {v(acc)}, {v(acc)}")
            else:
                out.append(f"v_add_f32 {v(TMP + r)}, {v(TMP + r)}, {v(acc)}")
                out.append(f"v_fmac_f32 {v(TMP + 4 + r)}, {v(acc)}, {v(acc)}")
        return out

    SLAG = 3
    for i in range(NE + 1):
        a(cread(i))
    for i in range(NST):
        z, q = divmod(i, 48)
        left = min(i + NE + 1, NST) - (i + 1)
        if i % 2 == 0:
            a(f"s_waitcnt lgkmcnt({3 * max(left - 1, 0)})")
        if i == 96:
            a(f"ds_write_b32 {v(vT0)}, {v(vT1)}")
        c = "0" if z == 0 else v(4 * q, 4)
        a(f"v_mfma_f32_16x16x32_bf16 {v(4 * q, 4)}, {v(TS + 4 * (i % NSL), 4)}, {v(DS + 4 * (i % NSL), 4)}, {c}")
        if i + NE + 1 < NST:
            if i == 97:
                a("s_waitcnt lgkmcnt(12)")
            if i == 43:
                wait_flags(a, "L_wrdy", s(sA))
                stamp(a, 3)
                a(f"""
s_lshl_b32 {s(sA)}, {s(sWave)}, 3
s_add_u32 {s(sA)}, {s(sA)}, {F_DONE + 40}
v_mov_b32 {v(vT0)}, {s(sA)}
v_mov_b32 {v(vT1)}, 1
""")
            a(cread(i + NE + 1))
        if i == NST - 2:
            a(f"ds_write_b32 {v(vT0)}, {v(vT1)} offset:4")
        if not PKS and i >= 96 + SLAG:
            for tx in stats(i - 96 - SLAG):
                a(tx)
    a(f"s_setprio {PLN}")
    if WPF >= 0:
        a(f"""
s_cmp_lg_u32 {s(sWave)}, {WPF}
s_cbranch_scc1 L_nopf
s_lshr_b32 {s(sA)}, s2, 3
s_mul_i32 {s(sA)}, {s(sA)}, 2304
v_lshlrev_b32 v230, 2, {v(vL16)}
buffer_load_dword v231, v230, {s(sI1, 4)}, {s(sA)} offen
buffer_load_dword v231, v230, {s(sI2, 4)}, {s(sA)} offen
L_nopf:
""")
    stamp(a, 8)
    if PKS:
        for q in range(48):
            for tx in stats_pk(q):
                a(tx)
    else:
        for q in range(48 - SLAG, 48):
            for tx in stats(q):
                a(tx)
    stamp(a, 6)
    s1, s2 = TMP, TMP + 4
    a(f"""
s_nop 1
v_permlane32_swap_b32 {v(s1)}, {v(s1 + 1)}
v_permlane32_swap_b32 {v(s1 + 2)}, {v(s1 + 3)}
v_permlane32_swap_b32 {v(s2)}, {v(s2 + 1)}
v_permlane32_swap_b32 {v(s2 + 2)}, {v(s2 + 3)}
""")
    for e in (0, 2):
        m, w_ = s1 + e, s2 + e
        a(f"""
v_add_f32 {v(m)}, {v(m)}, {v(m + 1)}
v_add_f32 {v(w_)}, {v(w_)}, {v(w_ + 1)}
v_mul_f32 {v(m)}, {f32(1.0 / 96)}, {v(m)}
v_mul_f32 {v(w_)}, {f32(1.0 / 96)}, {v(w_)}
v_fma_f32 {v(w_)}, -{v(m)}, {v(m)}, {v(w_)}
v_max_f32 {v(w_)}, 0, {v(w_)}
v_add_f32 {v(w_)}, {f32(1e-5)}, {v(w_)}
v_rsq_f32 {v(w_)}, {v(w_)}
s_nop 0
v_mul_f32 {v(m)}, {v(m)}, {v(w_)}
v_mul_f32 {v(w_)}, {f32(2.0 ** -SEXP)}, {v(w_)}
v_mul_f32 {v(m)}, {f32(-2.0 ** -SEXP)}, {v(m)}
v_mov_b32 {v(w_ + 1)}, {v(w_)}
v_mov_b32 {v(m + 1)}, {v(m)}
""")
    a(f"""
s_nop 1
v_permlane32_swap_b32 {v(s1)}, {v(s1 + 1)}
v_permlane32_swap_b32 {v(s1 + 2)}, {v(s1 + 3)}
v_permlane32_swap_b32 {v(s2)}, {v(s2 + 1)}
v_permlane32_swap_b32 {v(s2 + 2)}, {v(s2 + 3)}
""")
    for ks in range(3):
        for q in range(16 * ks, 16 * ks + 16):
            if PKN:
                for r in (0, 2):
                    acc = 4 * q + r
                    a(f"v_pk_fma_f32 {v(acc, 2)}, {v(acc, 2)}, {v(s2 + r, 2)}, {v(s1 + r, 2)}")
            else:
                for r in range(4):
                    acc = 4 * q + r
                    a(f"v_fma_f32 {v(acc)}, {v(acc)}, {v(s2 + r)}, {v(s1 + r)}")
        ta = (192, X, X + 16)[ks]
        tb = 208 if ks == 0 else 16 * ks
        for r in range(4):
            base = ta if r < 2 else tb
            for sel in range(2):
                for d in range(4):
                    qp = 8 * ks + 4 * sel + d
                    a(f"v_cvt_pk_bf16_f32 {v(base + 8 * sel + 4 * (r & 1) + d)}, {v(8 * qp + r)}, {v(8 * qp + 4 + r)}")
        a("s_nop 0")
        for base in (ta, tb):
            for i in range(8):
                a(f"v_permlane16_swap_b32 {v(base + i)}, {v(base + 8 + i)}")
        if ks == 0:
            for i in range(16):
                a(f"v_mov_b32 {v(i)}, {v(208 + i)}")
        if ks == 1:
            for i in range(16):
                a(f"v_mov_b32 {v(X + 32 + i)}, {v(192 + i)}")
    stamp(a, 7)
    if DIAG:
        a(f"s_mov_b32 s62, {s(sWave)}")
    stamp_flush(a, 14, 0)
    a(f"""
s_mov_b32 {s(sPair)}, 8
s_mov_b32 {s(sMode)}, 1
s_sub_u32 {s(sA)}, {s(sWave)}, 1
s_cmp_lt_u32 {s(sA)}, {DEFER - 1}
s_cbranch_scc1 L_p2
s_mov_b32 {s(sMode)}, 0
""")
    park(a, TMP)
    a(f"""
s_cmp_lg_u32 {s(sWave)}, 0
s_cbranch_scc1 L_p2
s_setprio 3
s_branch L_xload
L_loader:
""")
    load_groups(a, tuple(range(NLW, 4)), 60)


GROUPS = [(0, 5), (5, 4), (9, 5), (14, 10)]


def load_groups(a, gs, r):
    dma_consts(a, r)
    for gi in gs:
        n0, n = GROUPS[gi]
        wait_flags(a, f"L_wg{gi}", F_DONE + 4 + 8 * (9 + gi))
        for tp, c in PIECES[n0:n0 + n]:
            dma_piece(a, tp, c, r)
        if gi == gs[0] and gi:
            wait_count(a, f"L_wo{gi}", F_RDY, n0)
        a(f"v_mov_b32 {v(vT0)}, {F_RDY}")
        for i in range(n):
            a(f"v_mov_b32 {v(r + 4 + i)}, {n0 + i + 1}")
            a(f"s_waitcnt vmcnt({6 * (n - 1 - i)})")
            a(f"ds_write_b32 {v(vT0)}, {v(r + 4 + i)}")


class Stream:
    def __init__(self, a):
        self.a = a
        self.out = []

    def __call__(self, tx):
        for ln in tx.split("\n"):
            i = Ins(ln)
            if i.states == 0:
                self.a(ln)
                continue
            touch = (i.rd | i.wr) if i.kind != "lds" else set(i.rd)
            need = -1
            for k, d in enumerate(self.out):
                if d & touch:
                    need = k
            if need >= 0:
                n = min(len(self.out) - 1 - need, 14)
                self.a(f"s_waitcnt lgkmcnt({n})")
                self.out = self.out[len(self.out) - n:] if n else []
            self.a(ln)
            if i.kind == "lds":
                self.out.append(set(i.wr))


PSCH = E("PSCH", "prog")
PU = int(E("PU", "12"))


def prio_init():
    if PSCH == "prog":
        return f"s_setprio {PM[0]}"
    return f"""s_setprio {PRA}
s_cmp_lt_u32 {s(sWave)}, 4
s_cbranch_scc1 L_mtile
s_setprio {PRB}"""


def phase2(a):
    SH = "dst_sel:DWORD dst_unused:UNUSED_PAD src0_sel:DWORD src1_sel:WORD_1"
    t0, t1 = ACC, ACC + 1
    a("L_p2:")
    for g in range(NLW):
        a(f"s_cmp_lg_u32 {s(sWave)}, {g + 1}\ns_cbranch_scc1 L_nodma{g}\ns_setprio 3")
        load_groups(a, (g,), ACC)
        a(f"L_nodma{g}:")
    wait_count(a, "L_wi", F_INIT, 2)
    a(f"""
v_bfe_u32 {v(t0)}, {v(vL16)}, 6, 2            ; r
v_and_b32 {v(t1)}, 48, {v(vL16)}              ; 16c'
v_lshrrev_b32 {v(t1 + 1)}, 9, {v(vL16)}         ; g>>1
v_lshl_add_u32 {v(t0)}, {v(t1 + 1)}, 3, {v(t0)}   ; row = 8(g>>1) + r
v_lshl_add_u32 {v(vA[1])}, {v(t0)}, 6, {v(t1)}
v_mul_u32_u24 {v(t0)}, 192, {v(t0)}
v_add_u32 {v(vA[2])}, {v(t0)}, {v(t1)}
v_bfe_u32 {v(t0)}, {v(vL16)}, 8, 1            ; g&1
v_mul_u32_u24 {v(t1)}, {DZ}, {v(t0)}
v_add_u32 {v(vA[1])}, {v(vA[1])}, {v(t1)}
v_add_u32 {v(vA[2])}, {v(vA[2])}, {v(t1)}
s_mov_b32 {s(cNB)}, {h2(-BETA)}
s_mov_b32 {s(cS)}, {h2(SC)}
s_mov_b32 {s(cK)}, {f32(SC * 2.0 ** SEXP)}
s_mov_b32 {s(cLo)}, 0x00003f80
s_mov_b32 {s(cHi)}, 0x3f800000
s_mov_b32 {s(sTile)}, 0
s_mov_b32 {s(sRdy)}, 0
{prio_init()}
L_mtile:
""")
    stamp(a, 2)
    stamp_rt(a, 13)
    if E("XL128"):
        for tx in (poff if E("XL128") == "1" else poffn)(XR):
            a(tx)
        a(f"v_mov_b32 {v(vXoff)}, {v(XR)}\ns_mov_b32 s88, {s(sTB)}\ns_mov_b32 s89, {s(sTB + 1)}\ns_add_u32 s90, s88, {2 * ROWB}\ns_add_u32 s91, s89, {2 * ROWB}")
    st = Stream(a)
    zone_now = {1: 0, 2: 0}
    seen = set()

    def slot(f):
        return WS + 4 * (FRAGS.index(f) % NWS)

    def rd(f):
        tp, n = f
        c, k = divmod(n, 6)
        zone, ad, _ = piece_addr(tp, c)
        base = slot(f)
        if zone != zone_now[tp]:
            zone_now[tp] = zone
            st(f"v_bfe_u32 {v(base)}, {v(vL16)}, 8, 1")
            st(f"v_mul_u32_u24 {v(base)}, {DZ - DZ1}, {v(base)}")
            st(f"v_subrev_u32 {v(base)}, {E1}, {v(base)}")
            st(f"v_{'sub' if zone else 'add'}_u32 {v(vA[tp])}, {v(vA[tp])}, {v(base)}")
        if (tp, c) not in seen:
            seen.add((tp, c))
            need = PIECES.index((tp, c)) + 1
            if need > 0:
                lb = f"L_rd{need}"
                a(f"""
s_cmp_ge_u32 {s(sRdy)}, {need}
s_cbranch_scc1 {lb}_go
v_mov_b32 {v(base)}, {F_RDY}
""")
                spin(a, lb, f"v_cmp_le_u32 vcc, {need}, {v(base + 1)}", base, base + 1)
                a(f"""
v_readfirstlane_b32 {s(sRdy)}, {v(base + 1)}
{lb}_go:
""")
                if need == 1:
                    stamp(a, 3)
        off = ad - (E1 if zone else 0)
        for hf in range(2):
            if tp == 1:
                ht, ks = divmod(k, 3)
                o = off + 1024 * ks + 256 * hf + 8 * ht
            else:
                o = off + 768 * hf + 64 * (k // 2) + 8 * (k % 2)
            assert o < 65536
            st(f"ds_read_b64_tr_b16 {v(base + 2 * hf, 2)}, {v(vA[tp])} offset:{o}")

    def xreg(T, Q):
        return X + 8 * (4 * (T // 2) + Q) + 4 * (T % 2)

    def mf(f, Q):
        tp, n = f
        c, k = divmod(n, 6)
        if tp == 1:
            ks = n % 3
            d = ACC + 16 * ((n // 3) % 3) + 4 * Q
            return (f"v_mfma_f32_16x16x32_bf16 {v(d, 4)}, {v(slot(f), 4)}, "
                    f"{v(H + 16 * ks + 4 * Q, 4)}, {'0' if ks == 0 else v(d, 4)}")
        d = xreg(k, Q)
        return (f"v_mfma_f32_16x16x32_bf16 {v(d, 4)}, {v(slot(f), 4)}, "
                f"{v(G + 16 * (c % 2) + 4 * Q, 4)}, {'0' if c == 0 else v(d, 4)}")

    def look(u, i):
        a0 = ACC + 16 * (u % 3) + 2 * i
        return [(4, f"v_lshlrev_b32_sdwa {v(a0)}, 1, {v(a0)} {SH}"),
                (4, f"v_lshlrev_b32_sdwa {v(a0 + 1)}, 1, {v(a0 + 1)} {SH}"),
                (0, f"ds_read_u16_d16 {v(a0)}, {v(a0)}"),
                (0, f"ds_read_u16_d16_hi {v(a0 + 1)}, {v(a0 + 1)}")]

    def greg(u, i):
        c, ht = divmod(u, 2)
        return G + 16 * (c % 2) + 4 * (i // 2) + 2 * ht + i % 2

    def nexp(u):
        return EXPK[u % len(EXPK)]

    def comb(u, i):
        a0 = ACC + 16 * (u % 3) + 2 * i
        return [(4, f"v_or_b32 {v(greg(u, i))}, {v(a0)}, {v(a0 + 1)}")]

    def expo(u):
        LO = "dst_sel:WORD_0 dst_unused:UNUSED_PRESERVE src0_sel:WORD_0"
        HI = "dst_sel:WORD_1 dst_unused:UNUSED_PRESERVE src0_sel:WORD_1"
        ch1, ch2 = [], []
        for i in range(8 - nexp(u), 8):
            b, t, r = v(ACC + 16 * (u % 3) + 2 * i), v(ACC + 16 * (u % 3) + 2 * i + 1), v(greg(u, i))
            ch1.append([(4, f"v_fma_mixlo_f16 {b}, {b}, {s(cK)}, 0"),
                        (4, f"v_fma_mixhi_f16 {b}, {t}, {s(cK)}, 0"),
                        (4, f"v_pk_fma_f16 {t}, {b}, {b}, {s(cNB)} neg_lo:[0,1,0] neg_hi:[0,1,0]"),
                        (4, f"v_pk_mul_f16 {t}, {t}, {b}"),
                        (8, f"v_exp_f16_sdwa {t}, {t} {LO}"),
                        (8, f"v_exp_f16_sdwa {t}, {t} {HI}"),
                        (4, f"v_pk_fma_f16 {t}, {t}, {s(cS)}, {s(cS)}")])
            ch2.append([(8, f"v_rcp_f16_sdwa {t}, {t} {LO}"),
                        (8, f"v_rcp_f16_sdwa {t}, {t} {HI}"),
                        (4, f"v_fma_mix_f32 {r}, {b}, {t}, 0 op_sel_hi:[1,1,0]"),
                        (4, f"v_fma_mix_f32 {t}, {b}, {t}, 0 op_sel:[1,1,0] op_sel_hi:[1,1,0]"),
                        (4, f"v_cvt_pk_bf16_f32 {r}, {r}, {t}")])
        return ch1, ch2

    def weave(chains):
        out = []
        n = max([len(c) for c in chains], default=0)
        for k in range(n):
            need_pad = sum(1 for c in chains if k < len(c)) == 1
            out += [c[k] + (need_pad,) for c in chains if k < len(c)]
        return out

    extra = {}

    def put(u, m, tx):
        extra.setdefault((u, m), []).append(tx)

    put(23, 0, "s_waitcnt vmcnt(0)")
    for tx in poff(XR):
        put(23, 0, tx)
    for g in range(0 if NOPARK else 12):
        ks = (1, 2, 0)[g // 4]
        put(23, g, f"buffer_load_dwordx4 {v(H + 16 * ks + 4 * (g % 4), 4)}, {paddr(g, XR)}{HLF}")

    for tx in poffn(XR):
        put(24, 2, tx)
    def rgroups(rho):
        oy, ln = divmod(rho, 3)
        return [4 * (p % 3) + 2 * oy + p // 3 for p in (2 * ln, 2 * ln + 1)]

    def xload(rho):
        if E("XL128"):
            return [f"buffer_load_dwordx4 {v(XR + 4 * e, 4)}, {v(vXoff)}, {s(sX, 4)}, {s(88 + (2 * rho + e) // 3)} offen offset:{128 * ((2 * rho + e) % 3)}{XFF}" for e in range(2)]
        return [f"buffer_load_dwordx4 {v(XR + 4 * e, 4)}, {v(vXoff)}, {s(sX, 4)}, {goff(g, sTB)}{XFF}"
                for e, g in enumerate(rgroups(rho)) if not NOX]

    for tx in xload(0):
        put(RU0 - 3, 22, tx)
    for rho in range(6):
        u = RU0 + 3 * rho
        act = {f[1] % 6: 4 * i for i, f in enumerate(STEPS[u]) if f[0] == 2}
        used = []
        for e, g in enumerate(rgroups(rho)):
            tp, Q = divmod(g, 4)
            for tl in range(2):
                T = 2 * tp + tl
                m = 5
                while any(abs(m - x) < 2 for x in used) or (T in act and act[T] + Q - 4 < m < act[T] + Q + 5):
                    m += 1
                assert m < 21
                used.append(m)
                for r in range(4):
                    d = xreg(T, Q) + r
                    put(u, m + r // 2, "s_nop 0" if NOX else f"v_dot2_f32_bf16 {v(d)}, {v(XR + 4 * e + 2 * tl + r // 2)}, "
                                       f"{s(cHi if r % 2 else cLo)}, {v(d)}")
        if not E("NOXW"):
            extra[(u, min(used))].insert(0, "s_waitcnt vmcnt(0)")
        if rho < 5:
            for tx in xload(rho + 1):
                put(u, max(used) + 1, tx)

    def hook():
        a(f"""
s_cmp_eq_u32 {s(sMode)}, 0
s_cbranch_scc1 L_rdh_go
v_mov_b32 {v(XR)}, {F_ISS}
""")
        spin(a, "L_wi9", f"v_cmp_eq_u32 vcc, 9, {v(XR + 1)}", XR, XR + 1)
        park(a, XR)
        a(f"s_mov_b32 {s(sMode)}, 0\nL_rdh_go:")
        stamp(a, 1)

    for f in FRAGS[:NWS]:
        rd(f)
    a(f"s_waitcnt vmcnt({13 if DIAG else 12})")
    def steps(u0, u1, fl):
      for u in range(u0, u1):
        if PSCH == "prog" and u == PU:
            a(f"s_cmp_eq_u32 {s(sTile)}, 0\ns_cbranch_scc1 L_pu\ns_setprio {PM[2]}\nL_pu:")
        grp = []
        for i in range(8):
            g = []
            if 0 <= u - 1 < 24 and i < 8 - nexp(u - 1):
                g += comb(u - 1, i)
            if 0 <= u < 24 and i < 8 - nexp(u):
                g += look(u, i)
            if g:
                grp.append(g)
        ex = weave((expo(u - 1)[1] if 0 <= u - 1 < 24 else []) + (expo(u)[0] if 0 <= u < 24 else []))
        flat = [t for g in grp for t in g]
        seq = []
        tl, te = sum(t[0] for t in flat), sum(t[0] for t in ex)
        cl = ce = il = ie = 0
        lastpad = False
        while il < len(flat) or ie < len(ex):
            take_ex = ie < len(ex) and (il >= len(flat) or (flat[il][0] and ce * max(tl, 1) < cl * max(te, 1)))
            if take_ex and lastpad and il < len(flat):
                take_ex = False
            if take_ex:
                if lastpad:
                    seq.append((4, "s_nop 0"))
                seq.append(ex[ie][:2])
                lastpad = ex[ie][2]
                ce += ex[ie][0]
                ie += 1
            else:
                seq.append(flat[il])
                lastpad = False
                cl += flat[il][0]
                il += 1
        if u == UH:
            seq += [(0, hook)]
        lead = 4 if 0 <= u < 4 else 0
        tot = sum(t[0] for t in seq)
        mfs = [(f, Q) for f in STEPS[u] for Q in range(4)]
        nm = len(mfs)
        k = cyc = 0
        for m, (f, Q) in enumerate(mfs):
            st(mf(f, Q))
            if Q == 3 and FRAGS.index(f) + NWS < len(FRAGS):
                rd(FRAGS[FRAGS.index(f) + NWS])
            if m >= lead:
                tgt = tot * (m - lead + 1) / max(nm - lead - TRAIL, 1)
                while k < len(seq) and (cyc < tgt or seq[k][0] == 0):
                    st(seq[k][1]) if isinstance(seq[k][1], str) else seq[k][1]()
                    cyc += seq[k][0]
                    k += 1
            for tx in extra.pop((u, m), []):
                st(tx)
            if u >= 25:
                g = (f[1] - 66) * 4 + Q - 12
                if g >= 0 and (g // 4) % 2 == 0:
                    epi(st, 4 * (g // 8) + g % 4)
        assert k == len(seq)

    def finish(fl):
        steps(25, 27, fl)
        assert not extra and not st.out and zone_now == {1: 0, 2: 0}
        stamp(a, 8)
        for oy in range(2):
            line_out(st, oy, 0, fl)
        for oy in range(2):
            epi(st, 8 + 2 * oy)
            epi(st, 9 + 2 * oy)
            line_out(st, oy, 1, fl)
            line_out(st, oy, 2, fl)

    steps(-1, 25, None)
    if STF2 is not None:
        a(f"s_cmp_eq_u32 {s(sTile)}, 0\ns_cbranch_scc1 L_fin1")
        keep = list(st.out)
        finish(STF2)
        a("s_branch L_fin2\nL_fin1:\ns_nop 7")
        st.out = keep
    finish(STF)
    a("L_fin2:")
    if DIAG:
        stamp(a, 9)
        stamp_rt(a, 11)
        a(f"s_lshl_b32 s62, {s(sTile)}, 3\ns_xor_b32 s62, s62, 8\ns_add_u32 s62, s62, {s(sWave)}")
        stamp_flush(a, 14, 1, t0, t1)
    a(f"""
s_cmp_lg_u32 {s(sTile)}, 0
s_cbranch_scc1 L_end
s_mov_b32 {s(sTile)}, 1
s_mov_b32 {s(sTB)}, {s(sNB)}
s_mov_b32 {s(sTB + 1)}, {s(sNB + 1)}
s_mov_b32 {s(sNB)}, {BIG}
s_mov_b32 {s(sNB + 1)}, {BIG}
{f"s_setprio {PM[1]}" if PSCH == "prog" else ""}
s_branch L_mtile
L_end:
s_endpgm
""")


def epi(st, g):
    b = X + 8 * g
    for d in range(4):
        st(f"v_cvt_pk_bf16_f32 {v(b + d)}, {v(b + 2 * d)}, {v(b + 2 * d + 1)}")


def line_out(st, oy, ln, fl):
    ga, gb = [4 * (p % 3) + 2 * oy + p // 3 for p in (2 * ln, 2 * ln + 1)]
    A, B = X + 8 * ga, X + 8 * gb
    for d in range(4):
        st(f"v_mov_b32 {v(A + 4 + d)}, {v(A + d)}")
    for d in range(4):
        st(f"v_mov_b32_dpp {v(A + d)}, {v(B + d)} row_ror:8 row_mask:0xf bank_mask:0xc")
    for d in range(4):
        st(f"v_mov_b32_dpp {v(B + d)}, {v(A + 4 + d)} row_ror:8 row_mask:0xf bank_mask:0x3")
    for e, r in enumerate((A, B)):
        st(f"buffer_store_dwordx4 {v(r, 4)}, {v(XR + e)}, {s(sO, 4)}, {s(sTB + oy)} offen offset:{128 * ln}{fl}")


def descriptor(a, name, nv, ns):
    a(f"""
.p2align 6
.amdhsa_kernel {name}
  .amdhsa_next_free_vgpr {nv}
  .amdhsa_next_free_sgpr {ns}
  .amdhsa_accum_offset {(nv + 3) // 4 * 4}
  .amdhsa_group_segment_fixed_size 0
  .amdhsa_kernarg_size 64
  .amdhsa_user_sgpr_count 2
  .amdhsa_user_sgpr_kernarg_segment_ptr 1
  .amdhsa_system_sgpr_workgroup_id_x 1
  .amdhsa_float_denorm_mode_32 3
.end_amdhsa_kernel
""")


def main():
    here = os.path.dirname(os.path.abspath(__file__))
    ref = open(os.path.join(here, "..", NAME + ".s.ref")).read().split("\n")
    head = [l for l in ref if l.startswith(";") and "@launch" not in l]
    a = Asm()
    for l in head:
        a(l)
    a(f"; @launch grid=(256,1,1) block=(512,1,1) lds={LDS_BYTES}")
    a('.amdgcn_target "amdgcn-amd-amdhsa--gfx950"')
    a(".text")
    prologue(a)
    phase1(a)
    phase2(a)
    probs = check_hazards(a.lines)
    fast, skip = [], None
    for ln in a.lines:
        t = ln.strip()
        if skip:
            if t == skip + ":":
                skip = None
            continue
        fast.append(ln)
        if t.startswith("s_cbranch_scc1 L_rd") and t.endswith("_go"):
            skip = t.split()[1]
    probs += check_hazards(fast)
    for p in probs:
        print("HAZARD:", p)
    a('.section .rodata,"a"')
    descriptor(a, NAME + "_kernel", 256, 100)
    out = sys.argv[1] if len(sys.argv) > 1 else os.path.join(here, "..", NAME + ".s")
    open(out, "w").write(a.text())
    print("wrote", out, "lines", len(a.lines), "hazards", len(probs), "lds", LDS_BYTES)


if __name__ == "__main__":
    main()
```

```python
import math
import struct
import sys
import os

import numpy as np

sys.path.insert(0, os.path.dirname(os.path.abspath(__file__)))
from asmlib import Asm, Ins, v, s, check_hazards

NAME = "standalone__modern_conv_block_replknet__vision"
E = os.environ.get
DIAG = E("DIAG", "0") == "1"
STF = E("STF", " sc1")
XLF, PKF, HLF, XFF = E("XLF", " sc1"), E("PKF", " sc1"), E("HLF", ""), E("XFF", " sc1")
EXPK = [int(c) for c in E("EXPK", "0")]
TRAIL = int(E("TRAIL", "2"))
PKN = E("PKN", "1") == "1"
PKS = E("PKS", "1") == "1"
PCV, PLN = int(E("PCV", "2")), int(E("PLN", "2"))
PM = [int(c) for c in E("PM", "110")]
STF2 = E("STF2")
DEFER = int(E("DEFER", "1"))
NPRE = 1
ILV = E("ILV", "0") == "1"
NLW = int(E("NLW", "1"))
WPF = int(E("WPF", "-1"))
NOX, NOPARK, NOST = E("NOX"), E("NOPARK"), E("NOST")
UH = 2
RU0 = 7
PRA, PRB = int(E("PRA", "0")), int(E("PRB", "1"))
sStamp = 64


def f32(x):
    return "0x%08x" % struct.unpack("<I", struct.pack("<f", x))[0]


def h2(x):
    b = int(np.float16(x).view(np.uint16))
    return "0x%08x" % (b | (b << 16))


KAPPA = 2.0 * math.sqrt(2.0 / math.pi) * math.log2(math.e)
BETA = float(np.float16(KAPPA / (KAPPA * 0.044715) ** (1.0 / 3.0)))
SC = KAPPA / BETA
BIG = 0x40000000
NBIN = 28
SEXP = 111

XBYTES = 512 * 512 * 96 * 2
ROWB = 512 * 192
WS_END = 256 * 8 * 12288
WS_STAMP = 0x2000000
TW = NBIN * 256
TABP, TABN = 0, 65536
E0 = TW
DZ = 65544
E1 = E0 + DZ + 19 * 3072
DZ1 = 5 * 3072 + 8
L_FLAG = E1 + DZ1 + 5 * 3072
LDS_BYTES = L_FLAG + 256
assert L_FLAG % 16 == 0 and LDS_BYTES <= 163840 and E0 + 19 * 3072 <= 65536
OS = 584
RS = 7104
SS = 14336
RL = E0
RU = TABN + TW + 128
TL = RL + 3 * SS
TU = RU + 2 * SS + RS + 12 * OS
assert TL + 15360 <= 65536 and TU % 16 == 0 and TU + 15360 <= E1 and RL % 256 == 0 and RU % 256 == 128
R3L = (E1 + 255) // 256 * 256
R3U = R3L + 2 * RS
assert R3U % 256 == 128 and R3U + RS + 12 * OS <= L_FLAG
F_STG = L_FLAG
F_DONE = L_FLAG + 40
F_TRDY = L_FLAG + 160
F_ISS = L_FLAG + 164
F_RDY = L_FLAG + 168
F_INIT = L_FLAG + 172
F_WRAW = L_FLAG + 176
WTMP = RL + SS


def kap(ch, q):
    return 32 * (q >> 4) + 16 * ch + (q & 15)


def coff(c):
    return (c // 8) * OS + (c % 8) * 72


STEPS = {u: [(tp, n) for i in range(3) for tp, n in ((1, 3 * (u + 1) + i), (2, 3 * (u - 3) + i)) if 0 <= n < 72]
         for u in range(-1, 27)}
FRAGS = [f for u in range(-1, 27) for f in STEPS[u]]
PIECES = []
for tp_, n_ in FRAGS:
    if (tp_, n_ // 6) not in PIECES:
        PIECES.append((tp_, n_ // 6))
assert len(PIECES) == 24 and len(FRAGS) == 144


def piece_addr(tp, c):
    i = PIECES.index((tp, c))
    if i < 5:
        return 1, E1 + 3072 * i, DZ1
    return 0, E0 + 3072 * (i - 5), DZ


SB = 48
TS = 192
DS = 212
TMP = 232
vL16, vT0, vT1 = 253, 254, 255
vFl, vTa, vCA, vLdA, vLdB, vSt, vCv, vK = 240, 241, 244, 247, 248, 249, 250, 251
H = 0
X = 48
G = 144
ACC = 176
WS = 224
NWS = 5
XR = 244
vXoff = 252
vA = {1: 254, 2: 255}

NE = 4
NSL = 5

sX, sO, sW = 4, 8, 12
sWave, sTile, sPair, sRdy = 16, 17, 18, 19
sSelLo, sSelHi = 20, 21
sX0, sY0 = 22, 23
sTB = 24
sA, sB, sC, sD = 26, 27, 28, 29
sR = 30
sNB = 36
sMode = 38
sRot = 39
sI1, sI2 = 40, 44
sDL, sDS = 48, 52
sEL, sER, sE1 = 80, 81, 82
cNB, cS, cLo, cHi, cK = 84, 85, 86, 87, 83


def stamp(a, k):
    if DIAG:
        a(f"s_waitcnt lgkmcnt(0)\ns_memtime s[60:61]\ns_waitcnt lgkmcnt(0)\ns_mov_b32 {s(sStamp + k)}, s60")


def stamp_rt(a, k):
    if DIAG:
        a(f"s_waitcnt lgkmcnt(0)\ns_memrealtime s[60:61]\ns_waitcnt lgkmcnt(0)\ns_mov_b32 {s(sStamp + k)}, s60")


def stamp_flush(a, n, rec, vT0=vT0, vT1=vT1):
    if DIAG:
        a(f"s_mov_b32 {s(sStamp + 12)}, {s(sWave)}")
        a(f"v_mov_b32 {v(vT0)}, 0")
        for k in range(n):
            a(f"v_writelane_b32 {v(vT0)}, {s(sStamp + k)}, {k}")
        a(f"""s_lshl_b32 s60, s2, 4
s_add_u32 s60, s60, s62
s_lshl_b32 s60, s60, 7
s_add_u32 s60, s60, {WS_STAMP + 64 * rec}
v_lshrrev_b32 {v(vT1)}, 2, {v(vL16)}
s_mov_b32 exec_lo, 0xffff
s_mov_b32 exec_hi, 0
buffer_store_dword {v(vT0)}, {v(vT1)}, {s(sW, 4)}, s60 offen
s_mov_b64 exec, -1
s_nop 1""")


def srd(a, d, lo, nbytes):
    a(f"""s_mov_b32 {s(d)}, {s(lo)}
s_and_b32 {s(d + 1)}, {s(lo + 1)}, 0xffff
s_mov_b32 {s(d + 2)}, {nbytes}
s_mov_b32 {s(d + 3)}, 0x20000""")


def spin(a, label, cmp, t0=vT0, t1=vT1):
    a(f"""
s_mov_b32 {s(sD)}, 200000
{label}:
ds_read_b32 {v(t1)}, {v(t0)}
s_waitcnt lgkmcnt(0)
{cmp}
s_cmp_eq_u64 vcc, exec
s_cbranch_scc1 {label}_ok
s_sleep 2
s_sub_u32 {s(sD)}, {s(sD)}, 1
s_cmp_lg_u32 {s(sD)}, 0
s_cbranch_scc1 {label}
{label}_ok:
""")


def wait_flags(a, label, addr):
    a(f"v_add_u32 {v(vT0)}, {addr}, {v(vFl)}")
    spin(a, label, f"v_cmp_ne_u32 vcc, 0, {v(vT1)}")


def wait_count(a, label, addr, n, op="eq"):
    a(f"v_mov_b32 {v(vT0)}, {addr}")
    spin(a, label, f"v_cmp_{op}_u32 vcc, {n}, {v(vT1)}")


def count(a, addr):
    a(f"""
v_mov_b32 {v(vT0)}, {addr}
v_mov_b32 {v(vT1)}, 1
s_waitcnt lgkmcnt(0)
s_mov_b64 exec, 1
ds_add_u32 {v(vT0)}, {v(vT1)}
s_mov_b64 exec, -1
""")


def issue_loads(a):
    a(f"""
s_lshl_b32 {s(sA)}, {s(sPair)}, 2
s_add_u32 {s(sA)}, {s(sA)}, {s(sY0)}
s_lshl_b32 {s(sB)}, {s(sA)}, 9
s_add_u32 {s(sB)}, {s(sB)}, {s(sX0)}
s_mul_i32 {s(sB)}, {s(sB)}, 192
s_cmp_lt_u32 {s(sA)}, 2
s_cselect_b64 vcc, s[58:59], 0
v_mov_b32 {v(vLdB)}, {BIG}
s_sub_u32 {s(sC)}, {s(sB)}, {2 * ROWB}
v_add_u32 {v(vT1)}, {s(sC)}, {v(vLdA)}
v_cndmask_b32 {v(vLdB)}, {v(vT1)}, {v(vLdB)}, vcc
v_add_u32 {v(vT1)}, -384, {v(vLdB)}
""")
    for xq in range(9):
        for i in range(4):
            off = 768 * xq + 192 * i - 384
            if xq == 0 and i < 2:
                a(f"buffer_load_dwordx4 {v(SB + 4 * i, 4)}, {v(vT1)}, {s(sX, 4)}, {s(sEL)} offen offset:{192 * i}{XLF}")
                continue
            elif xq == 8 and i >= 2:
                so, im = sER, off - 3840
            elif off < 3840:
                so, im = "0", off
            else:
                so, im = sE1, off - 3840
            so = so if isinstance(so, str) else s(so)
            a(f"buffer_load_dwordx4 {v(SB + 16 * xq + 4 * i, 4)}, {v(vLdB)}, {s(sX, 4)}, {so} offen offset:{im}{XLF}")


def dma_consts(a, r):
    a(f"""
v_lshrrev_b32 {v(r)}, 9, {v(vL16)}             ; l>>5
v_mul_u32_u24 {v(r + 1)}, 1536, {v(r)}
v_add_u32 {v(r + 1)}, {v(r + 1)}, {v(vL16)}
v_bfe_u32 {v(vT0)}, {v(vL16)}, 6, 3            ; (l>>2)&7
v_lshl_add_u32 {v(r)}, {v(r)}, 4, {v(vT0)}
v_mul_u32_u24 {v(r)}, 768, {v(r)}
v_and_b32 {v(vT0)}, 48, {v(vL16)}
v_add_u32 {v(r)}, {v(r)}, {v(vT0)}             ; w1
""")


def dma_piece(a, tp, c, r):
    _, ad, dz = piece_addr(tp, c)
    a(f"""
s_add_u32 {s(sA)}, {s(sRot)}, {c}
s_cmp_ge_u32 {s(sA)}, 12
s_cselect_b32 {s(sB)}, 12, 0
s_sub_u32 {s(sA)}, {s(sA)}, {s(sB)}
s_mul_i32 {s(sA)}, {s(sA)}, {64 if tp == 1 else 6144}
""")
    for par in range(2):
        a(f"s_mov_b32 m0, {ad + par * dz}")
        if tp == 1:
            for ks in range(3):
                a(f"s_add_u32 {s(sR + ks)}, {s(sA)}, {(32 * ks + 8 * par) * 768 - 1024 * ks}")
            for ks in range(3):
                a(f"buffer_load_dwordx4 {v(r)}, {s(sI1, 4)}, {s(sR + ks)} offen offset:{1024 * ks} lds")
        else:
            a(f"s_add_u32 {s(sR)}, {s(sA)}, {1536 * par}")
            a(f"s_add_u32 {s(sR + 1)}, {s(sA)}, {1536 * par + 1536}")
            a(f"buffer_load_dwordx4 {v(vL16)}, {s(sI2, 4)}, {s(sR)} offen lds")
            a(f"buffer_load_dwordx4 {v(r + 1)}, {s(sI2, 4)}, {s(sR)} offen offset:1024 lds")
            a(f"buffer_load_dwordx4 {v(vL16)}, {s(sI2, 4)}, {s(sR + 1)} offen offset:2048 lds")


XADJ = f"""v_lshrrev_b32 v3, 5, v0
v_mul_u32_u24 v3, {2 * ROWB}, v3
v_bfe_u32 v4, v0, 2, 3
v_mul_u32_u24 v4, 768, v4
v_add_u32 v3, v3, v4
v_and_b32 v4, 3, v0
v_lshl_add_u32 {v(vXoff)}, v4, 4, v3""" if E("XADJ") else ""


def prologue(a):
    k = NAME + "_kernel"
    a(f"""
.globl {k}
.p2align 8
.type {k},@function
{k}:
s_cmp_ge_u32 s2, 256
s_cbranch_scc1 L_end
s_load_dwordx8 s[64:71], s[0:1], 0
s_load_dwordx4 s[72:75], s[0:1], 32
{"s_load_dwordx2 s[76:77], s[0:1], 56" if DIAG else ""}
{"s_memrealtime s[92:93]" if E("PADT") else ""}
s_setprio 3
v_mov_b32 v14, v0                ; tid
v_lshrrev_b32 v1, 6, v0
v_and_b32 v0, 63, v0
v_mov_b32 v10, {BIG}
v_readfirstlane_b32 {s(sWave)}, v1
v_lshlrev_b32 v2, 2, v0
v_add_u32 v2, {L_FLAG}, v2
v_add_u32 v3, -10, v0
v_cmp_gt_u32 vcc, 10, v3
v_cmp_eq_u32 s[56:57], 36, v0
s_or_b64 vcc, vcc, s[56:57]
v_cndmask_b32 v3, 0, 1, vcc
v_lshlrev_b32 {v(vL16)}, 4, v0
v_min_u32 {v(vFl)}, 1, v0
ds_write_b32 v2, v3
v_lshlrev_b32 {v(vFl)}, 2, {v(vFl)}
s_and_b32 {s(sA)}, s2, 3
s_lshl_b32 {s(sA)}, {s(sA)}, 2
s_bfe_u32 {s(sB)}, s2, 0x20003
s_add_u32 {s(sA)}, {s(sA)}, {s(sB)}
s_lshl_b32 {s(sX0)}, {s(sA)}, 5
s_bfe_u32 {s(sA)}, s2, 0x10002
s_lshl_b32 {s(sA)}, {s(sA)}, 3
s_lshr_b32 {s(sB)}, s2, 5
s_add_u32 {s(sA)}, {s(sA)}, {s(sB)}
s_lshl_b32 {s(sY0)}, {s(sA)}, 5
; staging lane map: row = l/12, o = l%12 (lanes < 48)
v_mul_u32_u24 v12, 43, v0
v_lshrrev_b32 v12, 9, v12          ; row
v_mul_u32_u24 v13, 12, v12
v_sub_u32 v13, v0, v13             ; o
v_mul_u32_u24 v5, {ROWB}, v12
v_lshl_add_u32 v5, v13, 4, v5
v_cmp_gt_u32 vcc, 48, v0
v_cmp_gt_u32 s[58:59], 24, v0    ; rows 0,1
s_cmp_eq_u32 {s(sX0)}, 0
s_cselect_b32 {s(sEL)}, {BIG}, 0
v_cndmask_b32 {v(vLdA)}, v10, v5, vcc
s_mov_b32 {s(sE1)}, 3840
s_cmp_eq_u32 {s(sX0)}, 480
s_cselect_b32 {s(sER)}, {BIG}, {s(sE1)}
s_mov_b32 {s(sPair)}, {s(sWave)}
v_add_u32 v15, -256, v14             ; waves 4..7: 0..255
s_waitcnt lgkmcnt(0)
s_barrier
""")
    srd(a, sX, 64, XBYTES)
    srd(a, sDL, 66, 9 * 96 * 2)
    srd(a, sDS, 68, 25 * 96 * 2)
    srd(a, sI1, 70, 96 * 384 * 2)
    srd(a, sI2, 72, 96 * 384 * 2)
    srd(a, sO, 74, XBYTES)
    if DIAG:
        srd(a, sW, 76, WS_STAMP + 0x100000)
    stamp(a, 0)
    stamp_rt(a, 10)
    a(f"""
s_cmp_lg_u32 {s(sWave)}, 0
s_cbranch_scc1 L_pb
s_mov_b32 m0, {WTMP}
s_mov_b32 {s(sA)}, 4096
""")
    for i in range(4):
        a(f"buffer_load_dwordx4 {v(vL16)}, {s(sDS, 4)}, 0 offen offset:{1024 * i} lds")
    a(f"s_mov_b32 m0, {WTMP + 4096}\ns_nop 0\nbuffer_load_dwordx4 {v(vL16)}, {s(sDS, 4)}, {s(sA)} offen lds")
    a(f"s_mov_b32 m0, {WTMP + 5120}\ns_nop 0")
    for i in range(2):
        a(f"buffer_load_dwordx4 {v(vL16)}, {s(sDL, 4)}, 0 offen offset:{1024 * i} lds")
    stamp(a, 9)
    issue_loads(a)
    a(f"""
v_mov_b32 {v(vT0)}, {F_ISS}
v_mov_b32 {v(vT1)}, 1
ds_write_b32 {v(vT0)}, {v(vT1)}
s_waitcnt vmcnt(36)
ds_write_b32 {v(vT0)}, {v(vT1)} offset:{F_WRAW - F_ISS}
""")
    stamp(a, 11)
    a(f"""
L_pb:
s_mov_b32 {s(sSelLo)}, 0x05040100
s_mov_b32 {s(sSelHi)}, 0x07060302
s_lshr_b32 {s(sA)}, s2, 3
s_mul_i32 {s(sB)}, {s(sA)}, 43
s_lshr_b32 {s(sB)}, {s(sB)}, 9
s_mul_i32 {s(sB)}, {s(sB)}, 12
s_sub_u32 {s(sRot)}, {s(sA)}, {s(sB)}       ; (wg>>3) % 12
v_bfe_u32 v1, v0, 3, 1
v_lshrrev_b32 v2, 5, v0          ; ch'
v_bfe_u32 v3, v0, 4, 1           ; dyp
v_bfe_u32 v4, v0, 2, 1           ; oy
v_sub_u32 v3, v3, v4             ; dyp-oy
v_and_b32 v4, 3, v0
v_mul_u32_u24 v5, {TU - TL}, v1
v_lshl_add_u32 v5, v4, 4, v5
v_add_u32 v5, {TL}, v5
v_cmp_eq_u32 s[56:57], v1, v2
v_add_u32 v6, 0, v3
v_cmp_gt_u32 vcc, 5, v6
v_lshl_add_u32 v7, v6, 6, v5
s_and_b64 vcc, vcc, s[56:57]
v_cndmask_b32 {v(vTa)}, v10, v7, vcc
v_add_u32 v6, 2, v3
v_lshl_add_u32 v7, v6, 6, v5
v_cndmask_b32 {v(vTa + 1)}, v10, v7, s[56:57]
v_add_u32 v6, 4, v3
v_cmp_gt_u32 vcc, 5, v6
v_lshl_add_u32 v7, v6, 6, v5
s_and_b64 vcc, vcc, s[56:57]
v_cndmask_b32 {v(vTa + 2)}, v10, v7, vcc
v_mul_u32_u24 v2, {2 * OS}, v2
v_and_b32 v3, 7, v0
v_lshl_add_u32 {v(vCv)}, v3, 3, v2
v_mul_u32_u24 v3, 768, v3
v_mul_u32_u24 v4, {2 * ROWB}, v1
v_add_u32 v3, v3, v4
v_lshrrev_b32 v4, 4, v0
v_lshl_add_u32 {v(vXoff)}, v4, 4, v3
{XADJ}
v_bfe_u32 v3, v0, 4, 1
v_mul_u32_u24 v3, {RS}, v3
v_add_u32 {v(vCv)}, {v(vCv)}, v3
v_cmp_eq_u32 s[56:57], 1, v1
v_and_b32 v5, 1, v12
v_mul_u32_u24 v5, {RS}, v5
v_mul_u32_u24 v6, {OS}, v13
v_add_u32 {v(vSt)}, v5, v6
s_lshl_b32 {s(sA)}, {s(sWave)}, 2
s_add_u32 {s(sA)}, {s(sA)}, {s(sY0)}
s_lshl_b32 {s(sA)}, {s(sA)}, 9
s_add_u32 {s(sA)}, {s(sA)}, {s(sX0)}
s_mul_i32 {s(sNB)}, {s(sA)}, 192
s_add_u32 {s(sNB + 1)}, {s(sNB)}, {ROWB}
s_add_u32 {s(sTB)}, {s(sNB)}, 384
s_add_u32 {s(sTB + 1)}, {s(sTB)}, {ROWB}
s_cmp_lt_u32 {s(sWave)}, {NPRE}
s_cbranch_scc1 L_perm
s_cmp_lt_u32 {s(sWave)}, 4
s_cbranch_scc1 L_xload
""")
    wait_count(a, "L_wraw", F_WRAW, 1)
    for r in range(2):
        b = 128 + 16 * r
        a(f"""
v_add_u32 v1, {256 * r}, v15         ; task
v_mul_u32_u24 v{b}, 683, v1
v_lshrrev_b32 v{b}, 16, v{b}         ; dy
v_mul_u32_u24 v{b + 1}, 96, v{b}
v_sub_u32 v{b + 1}, v1, v{b + 1}     ; c
v_mul_u32_u24 v2, 960, v{b}
v_lshl_add_u32 v2, v{b + 1}, 1, v2
v_add_u32 v1, -1, v{b}
v_mul_u32_u24 v3, 576, v1
v_lshl_add_u32 v3, v{b + 1}, 1, v3
v_cmp_gt_u32 vcc, 3, v1
s_nop 1
v_cndmask_b32 v3, v10, v3, vcc
""")
        for jx in range(5):
            a(f"ds_read_u16 v{b + 4 + jx}, v2 offset:{WTMP + 192 * jx}")
        for jx in range(3):
            a(f"ds_read_u16 v{b + 9 + jx}, v3 offset:{WTMP + 5120 + 192 * jx}")
    a("s_waitcnt lgkmcnt(0)")
    for r in range(2):
        b = 128 + 16 * r
        w = b + 4
        o = 160 + 16 * r
        for jx in range(8):
            a(f"v_lshlrev_b32 v{w + jx}, 16, v{w + jx}")
        a(f"""
v_add_f32 v{w + 1}, v{w + 1}, v{w + 5}
v_add_f32 v{w + 2}, v{w + 2}, v{w + 6}
v_add_f32 v{w + 3}, v{w + 3}, v{w + 7}
v_mov_b32 v1, 0
v_cvt_pk_bf16_f32 v{o}, v{w}, v{w + 1}
v_cvt_pk_bf16_f32 v{o + 1}, v{w + 2}, v{w + 3}
v_cvt_pk_bf16_f32 v{o + 2}, v{w + 4}, v1
v_mov_b32 v{o + 3}, 0
v_cvt_pk_bf16_f32 v{o + 4}, v1, v{w}
v_cvt_pk_bf16_f32 v{o + 5}, v{w + 1}, v{w + 2}
v_cvt_pk_bf16_f32 v{o + 6}, v{w + 3}, v{w + 4}
v_mov_b32 v{o + 7}, 0
v_mov_b32 v{o + 8}, 0
v_mov_b32 v{o + 9}, v{o}
v_mov_b32 v{o + 10}, v{o + 1}
v_mov_b32 v{o + 11}, v{o + 2}
v_mov_b32 v{o + 12}, 0
v_mov_b32 v{o + 13}, v{o + 4}
v_mov_b32 v{o + 14}, v{o + 5}
v_mov_b32 v{o + 15}, v{o + 6}
v_lshrrev_b32 v2, 5, v{b + 1}
v_and_b32 v3, 15, v{b + 1}
v_lshl_add_u32 v2, v2, 4, v3
v_mul_u32_u24 v2, 320, v2
v_bfe_u32 v3, v{b + 1}, 4, 1
v_mul_u32_u24 v3, {TU - TL}, v3
v_add_u32 v2, v2, v3
v_lshl_add_u32 v2, v{b}, 6, v2
v_add_u32 v2, {TL}, v2
v_cmp_gt_u32 vcc, 5, v{b}
s_nop 1
v_cndmask_b32 v2, v10, v2, vcc
ds_write_b128 v2, v[{o}:{o + 3}]
ds_write_b128 v2, v[{o + 4}:{o + 7}] offset:16
ds_write_b128 v2, v[{o + 8}:{o + 11}] offset:32
ds_write_b128 v2, v[{o + 12}:{o + 15}] offset:48
""")
    count(a, F_TRDY)
    a(f"""
s_cmp_lt_u32 {s(sWave)}, 6
s_cbranch_scc1 L_xload
L_tab:
v_add_u32 v1, -384, v14
v_lshlrev_b32 v2, 2, v1
v_add_u32 v3, {TABN}, v2
v_lshlrev_b32 v4, 17, v1              ; code 2i << 16
v_or_b32 v4, 0x8000, v4
v_cmp_gt_u32 vcc, 64, v1
v_mov_b32 v5, {SEXP << 23}
v_mov_b32 v6, {(SEXP + 1) << 23}
v_cndmask_b32 v5, v5, v6, vcc
v_cndmask_b32 v6, 0, v6, vcc
v_add_u32 v4, v4, v5
s_mov_b32 {s(sA)}, {f32(KAPPA * 0.044715)}
v_mov_b32 v7, {f32(KAPPA)}
s_mov_b32 {s(sB)}, {NBIN // 2}
L_tabl:
v_add_u32 v9, 0x10000, v4
v_sub_f32 v8, v4, v6
v_sub_f32 v9, v9, v6
v_mul_f32 v10, v8, v8
v_mul_f32 v11, v9, v9
v_fma_f32 v10, v10, {s(sA)}, v7
v_fma_f32 v11, v11, {s(sA)}, v7
v_mul_f32 v10, v10, v8
v_mul_f32 v11, v11, v9
v_exp_f32 v10, -v10
v_exp_f32 v11, -v11
s_nop 0
v_add_f32 v12, 1.0, v10
v_add_f32 v13, 1.0, v11
v_rcp_f32 v12, v12
v_rcp_f32 v13, v13
s_nop 0
v_mul_f32 v8, v8, v12
v_mul_f32 v9, v9, v13
v_mul_f32 v10, -v8, v10
v_mul_f32 v11, -v9, v11
v_cvt_pk_bf16_f32 v12, v8, v9
v_cvt_pk_bf16_f32 v13, v10, v11
ds_write_b32 v2, v12
ds_write_b32 v3, v13
v_sub_u32 v4, v4, v5
v_mov_b32 v5, {SEXP << 23}
v_mov_b32 v6, 0
v_add_u32 v4, v4, v5
v_add_u32 v4, 0x1000000, v4
v_add_u32 v2, 512, v2
v_add_u32 v3, 512, v3
s_sub_u32 {s(sB)}, {s(sB)}, 1
s_cmp_lg_u32 {s(sB)}, 0
s_cbranch_scc1 L_tabl
""")
    count(a, F_INIT)
    a("L_xload:")
    stamp(a, 13)
    wait_count(a, "L_wiss", F_ISS, s(sPair))
    stamp(a, 9)
    issue_loads(a)
    a(f"""
s_add_u32 {s(sA)}, {s(sPair)}, 1
v_mov_b32 {v(vT1)}, {s(sA)}
ds_write_b32 {v(vT0)}, {v(vT1)}
""")
    stamp(a, 11)
    a("L_perm:")


def slot_of(a, dst, src):
    a(f"""
s_add_u32 {s(dst)}, {src}, 2
s_and_b32 {s(dst)}, {s(dst)}, 3
s_cmp_eq_u32 {s(dst)}, 3
s_mul_i32 {s(dst)}, {s(dst)}, {SS}
s_cselect_b32 {s(dst + 1)}, {R3U - RU}, {s(dst)}
s_cselect_b32 {s(dst)}, {R3L - RL}, {s(dst)}
s_add_u32 {s(dst)}, {s(dst)}, {RL}
s_add_u32 {s(dst + 1)}, {s(dst + 1)}, {RU}
""")


def goff(g, base):
    tp, Q = divmod(g, 4)
    return f"{s(base + (Q >> 1))} offen offset:{192 * (Q & 1) + 64 * tp}"


def poff(t):
    return [f"v_lshrrev_b32 {v(t)}, 7, {v(vL16)}",
            f"v_mul_u32_u24 {v(t)}, 640, {v(t)}",
            f"v_add_u32 {v(t)}, {v(t)}, {v(vL16)}",
            f"v_add_u32 {v(t + 1)}, {2 * ROWB}, {v(t)}"]


def poffn(t):
    return [f"v_bfe_u32 {v(t)}, {v(vL16)}, 4, 3",
            f"v_mul_u32_u24 {v(t)}, 768, {v(t)}",
            f"v_bfe_u32 {v(t + 1)}, {v(vL16)}, 7, 1",
            f"v_lshl_add_u32 {v(t)}, {v(t + 1)}, 6, {v(t)}",
            f"v_lshrrev_b32 {v(t + 1)}, 8, {v(vL16)}",
            f"v_lshl_add_u32 {v(t)}, {v(t + 1)}, 4, {v(t)}",
            f"v_add_u32 {v(t + 1)}, {2 * ROWB}, {v(t)}"]


def paddr(g, t):
    r, ln = divmod(g, 3)
    return f"{v(t + (r >> 1))}, {s(sO, 4)}, {s(sNB + (r & 1))} offen offset:{128 * ln}"


def park(a, t):
    for tx in poff(t):
        a(tx)
    for g in range(0 if NOPARK else 12):
        a(f"buffer_store_dwordx4 {v(X + 4 * g, 4)}, {paddr(g, t)}{PKF}")


def phase1(a):
    def oreg(rnd):
        return SB + (144 if rnd == 0 else 16 * (rnd - 1))

    def perms(rnd):
        a(f"s_waitcnt vmcnt({32 - 4 * rnd})")
        L = SB + 16 * rnd
        O = oreg(rnd)
        for d in range(4):
            a(f"v_perm_b32 {v(O + 4 * d)}, {v(L + 4 + d)}, {v(L + d)}, {s(sSelLo)}")
            a(f"v_perm_b32 {v(O + 4 * d + 1)}, {v(L + 12 + d)}, {v(L + 8 + d)}, {s(sSelLo)}")
            a(f"v_perm_b32 {v(O + 4 * d + 2)}, {v(L + 4 + d)}, {v(L + d)}, {s(sSelHi)}")
            a(f"v_perm_b32 {v(O + 4 * d + 3)}, {v(L + 12 + d)}, {v(L + 8 + d)}, {s(sSelHi)}")
            if ILV:
                writes(rnd, d)

    def writes(rnd, d):
        O = oreg(rnd)
        a(f"ds_write_b64 {v(vT0)}, {v(O + 4 * d, 2)} offset:{8 * rnd + 2 * d * 72}")
        a(f"ds_write_b64 {v(vT0)}, {v(O + 4 * d + 2, 2)} offset:{8 * rnd + (2 * d + 1) * 72}")

    if not ILV:
        a("s_mov_b32 exec_hi, 0x0000ffff")
        for rnd in range(9):
            perms(rnd)
        a("s_mov_b32 exec_hi, -1")
    stamp(a, 1)
    a(f"s_cmp_lg_u32 {s(sPair)}, 3\ns_cbranch_scc1 L_wt3_ok")
    wait_count(a, "L_wt3", F_TRDY, 4)
    a(f"""
s_lshl_b32 {s(sA)}, {s(sPair)}, 3
s_add_u32 {s(sA)}, {s(sA)}, {F_DONE + 4}
""")
    wait_flags(a, "L_wslot", s(sA))
    stamp(a, 2)
    slot_of(a, sR, s(sPair))
    a(f"""
v_add_u32 {v(vT0)}, {s(sR)}, {v(vSt)}
v_add_u32 {v(vT1)}, {s(sR + 1)}, {v(vSt)}
v_cndmask_b32 {v(vT0)}, {v(vT1)}, {v(vT0)}, s[58:59]
s_mov_b32 exec_hi, 0x0000ffff
""")
    for rnd in range(9):
        if ILV:
            perms(rnd)
        else:
            for d in range(4):
                writes(rnd, d)
    a(f"""
s_mov_b32 exec_hi, -1
s_lshl_b32 {s(sA)}, {s(sPair)}, 2
s_add_u32 {s(sA)}, {s(sA)}, {F_STG}
v_mov_b32 {v(vT0)}, {s(sA)}
v_mov_b32 {v(vT1)}, 1
s_waitcnt lgkmcnt(0)
ds_write_b32 {v(vT0)}, {v(vT1)}
s_cmp_eq_u32 {s(sPair)}, 8
s_cbranch_scc1 L_loader
""")
    stamp(a, 4)
    a(f"s_setprio {PCV}")
    a(f"s_add_u32 {s(sB)}, {s(sPair)}, 1")
    slot_of(a, sR + 2, s(sB))
    for z in range(4):
        a(f"v_add_u32 {v(TMP + z)}, {s(sR + z)}, {v(vCv)}")
    for z in range(3):
        a(f"v_cndmask_b32 {v(vCA + z)}, {v(TMP + z)}, {v(TMP + z + 1)}, s[56:57]")
    wait_count(a, "L_wt", F_TRDY, 4)
    stamp(a, 5)

    NST = 144

    def cread(i):
        z, q = divmod(i, 48)
        r = DS + 4 * (i % NSL)
        return (f"ds_read_b128 {v(TS + 4 * (i % NSL), 4)}, {v(vTa + z)} offset:{320 * q}\n"
                f"ds_read_b64 {v(r, 2)}, {v(vCA + z)} offset:{coff(kap(0, q))}\n"
                f"ds_read_b64 {v(r + 2, 2)}, {v(vCA + z)} offset:{coff(kap(0, q)) + 8}")

    def stats_pk(q):
        out = []
        for r in (0, 2):
            acc = 4 * q + r
            if q == 0:
                out.append(f"v_pk_add_f32 {v(TMP + r, 2)}, {v(acc, 2)}, {v(acc + 4, 2)}")
                out.append(f"v_pk_mul_f32 {v(TMP + 4 + r, 2)}, {v(acc, 2)}, {v(acc, 2)}")
            else:
                if q > 1:
                    out.append(f"v_pk_add_f32 {v(TMP + r, 2)}, {v(TMP + r, 2)}, {v(acc, 2)}")
                out.append(f"v_pk_fma_f32 {v(TMP + 4 + r, 2)}, {v(acc, 2)}, {v(acc, 2)}, {v(TMP + 4 + r, 2)}")
        return out

    def stats(q):
        out = []
        for r in range(4):
            acc = 4 * q + r
            if q == 0:
                out.append(f"v_mov_b32 {v(TMP + r)}, {v(acc)}")
                out.append(f"v_mul_f32 {v(TMP + 4 + r)}, {v(acc)}, {v(acc)}")
            else:
                out.append(f"v_add_f32 {v(TMP + r)}, {v(TMP + r)}, {v(acc)}")
                out.append(f"v_fmac_f32 {v(TMP + 4 + r)}, {v(acc)}, {v(acc)}")
        return out

    SLAG = 3
    for i in range(NE + 1):
        a(cread(i))
    for i in range(NST):
        z, q = divmod(i, 48)
        left = min(i + NE + 1, NST) - (i + 1)
        if i % 2 == 0:
            a(f"s_waitcnt lgkmcnt({3 * max(left - 1, 0)})")
        if i == 96:
            a(f"ds_write_b32 {v(vT0)}, {v(vT1)}")
        c = "0" if z == 0 else v(4 * q, 4)
        a(f"v_mfma_f32_16x16x32_bf16 {v(4 * q, 4)}, {v(TS + 4 * (i % NSL), 4)}, {v(DS + 4 * (i % NSL), 4)}, {c}")
        if i + NE + 1 < NST:
            if i == 97:
                a("s_waitcnt lgkmcnt(12)")
            if i == 43:
                wait_flags(a, "L_wrdy", s(sA))
                stamp(a, 3)
                a(f"""
s_lshl_b32 {s(sA)}, {s(sWave)}, 3
s_add_u32 {s(sA)}, {s(sA)}, {F_DONE + 40}
v_mov_b32 {v(vT0)}, {s(sA)}
v_mov_b32 {v(vT1)}, 1
""")
            a(cread(i + NE + 1))
        if i == NST - 2:
            a(f"ds_write_b32 {v(vT0)}, {v(vT1)} offset:4")
        if not PKS and i >= 96 + SLAG:
            for tx in stats(i - 96 - SLAG):
                a(tx)
    a(f"s_setprio {PLN}")
    if WPF >= 0:
        a(f"""
s_cmp_lg_u32 {s(sWave)}, {WPF}
s_cbranch_scc1 L_nopf
s_lshr_b32 {s(sA)}, s2, 3
s_mul_i32 {s(sA)}, {s(sA)}, 2304
v_lshlrev_b32 v230, 2, {v(vL16)}
buffer_load_dword v231, v230, {s(sI1, 4)}, {s(sA)} offen
buffer_load_dword v231, v230, {s(sI2, 4)}, {s(sA)} offen
L_nopf:
""")
    stamp(a, 8)
    if PKS:
        for q in range(48):
            for tx in stats_pk(q):
                a(tx)
    else:
        for q in range(48 - SLAG, 48):
            for tx in stats(q):
                a(tx)
    stamp(a, 6)
    s1, s2 = TMP, TMP + 4
    a(f"""
s_nop 1
v_permlane32_swap_b32 {v(s1)}, {v(s1 + 1)}
v_permlane32_swap_b32 {v(s1 + 2)}, {v(s1 + 3)}
v_permlane32_swap_b32 {v(s2)}, {v(s2 + 1)}
v_permlane32_swap_b32 {v(s2 + 2)}, {v(s2 + 3)}
""")
    for e in (0, 2):
        m, w_ = s1 + e, s2 + e
        a(f"""
v_add_f32 {v(m)}, {v(m)}, {v(m + 1)}
v_add_f32 {v(w_)}, {v(w_)}, {v(w_ + 1)}
v_mul_f32 {v(m)}, {f32(1.0 / 96)}, {v(m)}
v_mul_f32 {v(w_)}, {f32(1.0 / 96)}, {v(w_)}
v_fma_f32 {v(w_)}, -{v(m)}, {v(m)}, {v(w_)}
v_max_f32 {v(w_)}, 0, {v(w_)}
v_add_f32 {v(w_)}, {f32(1e-5)}, {v(w_)}
v_rsq_f32 {v(w_)}, {v(w_)}
s_nop 0
v_mul_f32 {v(m)}, {v(m)}, {v(w_)}
v_mul_f32 {v(w_)}, {f32(2.0 ** -SEXP)}, {v(w_)}
v_mul_f32 {v(m)}, {f32(-2.0 ** -SEXP)}, {v(m)}
v_mov_b32 {v(w_ + 1)}, {v(w_)}
v_mov_b32 {v(m + 1)}, {v(m)}
""")
    a(f"""
s_nop 1
v_permlane32_swap_b32 {v(s1)}, {v(s1 + 1)}
v_permlane32_swap_b32 {v(s1 + 2)}, {v(s1 + 3)}
v_permlane32_swap_b32 {v(s2)}, {v(s2 + 1)}
v_permlane32_swap_b32 {v(s2 + 2)}, {v(s2 + 3)}
""")
    for ks in range(3):
        for q in range(16 * ks, 16 * ks + 16):
            if PKN:
                for r in (0, 2):
                    acc = 4 * q + r
                    a(f"v_pk_fma_f32 {v(acc, 2)}, {v(acc, 2)}, {v(s2 + r, 2)}, {v(s1 + r, 2)}")
            else:
                for r in range(4):
                    acc = 4 * q + r
                    a(f"v_fma_f32 {v(acc)}, {v(acc)}, {v(s2 + r)}, {v(s1 + r)}")
        ta = (192, X, X + 16)[ks]
        tb = 208 if ks == 0 else 16 * ks
        for r in range(4):
            base = ta if r < 2 else tb
            for sel in range(2):
                for d in range(4):
                    qp = 8 * ks + 4 * sel + d
                    a(f"v_cvt_pk_bf16_f32 {v(base + 8 * sel + 4 * (r & 1) + d)}, {v(8 * qp + r)}, {v(8 * qp + 4 + r)}")
        a("s_nop 0")
        for base in (ta, tb):
            for i in range(8):
                a(f"v_permlane16_swap_b32 {v(base + i)}, {v(base + 8 + i)}")
        if ks == 0:
            for i in range(16):
                a(f"v_mov_b32 {v(i)}, {v(208 + i)}")
        if ks == 1:
            for i in range(16):
                a(f"v_mov_b32 {v(X + 32 + i)}, {v(192 + i)}")
    stamp(a, 7)
    if DIAG:
        a(f"s_mov_b32 s62, {s(sWave)}")
    stamp_flush(a, 14, 0)
    a(f"""
s_mov_b32 {s(sPair)}, 8
s_mov_b32 {s(sMode)}, 1
s_sub_u32 {s(sA)}, {s(sWave)}, 1
s_cmp_lt_u32 {s(sA)}, {DEFER - 1}
s_cbranch_scc1 L_p2
s_mov_b32 {s(sMode)}, 0
""")
    park(a, TMP)
    a(f"""
s_cmp_lg_u32 {s(sWave)}, 0
s_cbranch_scc1 L_p2
s_setprio 3
s_branch L_xload
L_loader:
""")
    load_groups(a, tuple(range(NLW, 4)), 60)


GROUPS = [(0, 5), (5, 4), (9, 5), (14, 10)]


def load_groups(a, gs, r):
    dma_consts(a, r)
    for gi in gs:
        n0, n = GROUPS[gi]
        wait_flags(a, f"L_wg{gi}", F_DONE + 4 + 8 * (9 + gi))
        for tp, c in PIECES[n0:n0 + n]:
            dma_piece(a, tp, c, r)
        if gi == gs[0] and gi:
            wait_count(a, f"L_wo{gi}", F_RDY, n0)
        a(f"v_mov_b32 {v(vT0)}, {F_RDY}")
        for i in range(n):
            a(f"v_mov_b32 {v(r + 4 + i)}, {n0 + i + 1}")
            a(f"s_waitcnt vmcnt({6 * (n - 1 - i)})")
            a(f"ds_write_b32 {v(vT0)}, {v(r + 4 + i)}")


class Stream:
    def __init__(self, a):
        self.a = a
        self.out = []

    def __call__(self, tx):
        for ln in tx.split("\n"):
            i = Ins(ln)
            if i.states == 0:
                self.a(ln)
                continue
            touch = (i.rd | i.wr) if i.kind != "lds" else set(i.rd)
            need = -1
            for k, d in enumerate(self.out):
                if d & touch:
                    need = k
            if need >= 0:
                n = min(len(self.out) - 1 - need, 14)
                self.a(f"s_waitcnt lgkmcnt({n})")
                self.out = self.out[len(self.out) - n:] if n else []
            self.a(ln)
            if i.kind == "lds":
                self.out.append(set(i.wr))


PSCH = E("PSCH", "prog")
PU = int(E("PU", "12"))


PAD = f"""L_pad:
s_sleep 4
s_memrealtime s[94:95]
s_waitcnt lgkmcnt(0)
s_sub_u32 s94, s94, s92
s_cmp_lt_u32 s94, {int(float(E("PADT", "0")) * 100)}
s_cbranch_scc1 L_pad""" if E("PADT") else ""


def prio_init():
    if PSCH == "prog":
        return f"s_setprio {PM[0]}"
    return f"""s_setprio {PRA}
s_cmp_lt_u32 {s(sWave)}, 4
s_cbranch_scc1 L_mtile
s_setprio {PRB}"""


def phase2(a):
    SH = "dst_sel:DWORD dst_unused:UNUSED_PAD src0_sel:DWORD src1_sel:WORD_1"
    t0, t1 = ACC, ACC + 1
    a("L_p2:")
    for g in range(NLW):
        a(f"s_cmp_lg_u32 {s(sWave)}, {g + 1}\ns_cbranch_scc1 L_nodma{g}\ns_setprio 3")
        load_groups(a, (g,), ACC)
        a(f"L_nodma{g}:")
    wait_count(a, "L_wi", F_INIT, 2)
    a(f"""
v_bfe_u32 {v(t0)}, {v(vL16)}, 6, 2            ; r
v_and_b32 {v(t1)}, 48, {v(vL16)}              ; 16c'
v_lshrrev_b32 {v(t1 + 1)}, 9, {v(vL16)}         ; g>>1
v_lshl_add_u32 {v(t0)}, {v(t1 + 1)}, 3, {v(t0)}   ; row = 8(g>>1) + r
v_lshl_add_u32 {v(vA[1])}, {v(t0)}, 6, {v(t1)}
v_mul_u32_u24 {v(t0)}, 192, {v(t0)}
v_add_u32 {v(vA[2])}, {v(t0)}, {v(t1)}
v_bfe_u32 {v(t0)}, {v(vL16)}, 8, 1            ; g&1
v_mul_u32_u24 {v(t1)}, {DZ}, {v(t0)}
v_add_u32 {v(vA[1])}, {v(vA[1])}, {v(t1)}
v_add_u32 {v(vA[2])}, {v(vA[2])}, {v(t1)}
s_mov_b32 {s(cNB)}, {h2(-BETA)}
s_mov_b32 {s(cS)}, {h2(SC)}
s_mov_b32 {s(cK)}, {f32(SC * 2.0 ** SEXP)}
s_mov_b32 {s(cLo)}, 0x00003f80
s_mov_b32 {s(cHi)}, 0x3f800000
s_mov_b32 {s(sTile)}, 0
s_mov_b32 {s(sRdy)}, 0
{prio_init()}
L_mtile:
""")
    stamp(a, 2)
    stamp_rt(a, 13)
    if E("XL128"):
        for tx in (poff if E("XL128") == "1" else poffn)(XR):
            a(tx)
        a(f"v_mov_b32 {v(vXoff)}, {v(XR)}\ns_mov_b32 s88, {s(sTB)}\ns_mov_b32 s89, {s(sTB + 1)}\ns_add_u32 s90, s88, {2 * ROWB}\ns_add_u32 s91, s89, {2 * ROWB}")
    st = Stream(a)
    zone_now = {1: 0, 2: 0}
    seen = set()

    def slot(f):
        return WS + 4 * (FRAGS.index(f) % NWS)

    def rd(f):
        tp, n = f
        c, k = divmod(n, 6)
        zone, ad, _ = piece_addr(tp, c)
        base = slot(f)
        if zone != zone_now[tp]:
            zone_now[tp] = zone
            st(f"v_bfe_u32 {v(base)}, {v(vL16)}, 8, 1")
            st(f"v_mul_u32_u24 {v(base)}, {DZ - DZ1}, {v(base)}")
            st(f"v_subrev_u32 {v(base)}, {E1}, {v(base)}")
            st(f"v_{'sub' if zone else 'add'}_u32 {v(vA[tp])}, {v(vA[tp])}, {v(base)}")
        if (tp, c) not in seen:
            seen.add((tp, c))
            need = PIECES.index((tp, c)) + 1
            if need > 0:
                lb = f"L_rd{need}"
                a(f"""
s_cmp_ge_u32 {s(sRdy)}, {need}
s_cbranch_scc1 {lb}_go
v_mov_b32 {v(base)}, {F_RDY}
""")
                spin(a, lb, f"v_cmp_le_u32 vcc, {need}, {v(base + 1)}", base, base + 1)
                a(f"""
v_readfirstlane_b32 {s(sRdy)}, {v(base + 1)}
{lb}_go:
""")
                if need == 1:
                    stamp(a, 3)
        off = ad - (E1 if zone else 0)
        for hf in range(2):
            if tp == 1:
                ht, ks = divmod(k, 3)
                o = off + 1024 * ks + 256 * hf + 8 * ht
            else:
                o = off + 768 * hf + 64 * (k // 2) + 8 * (k % 2)
            assert o < 65536
            st(f"ds_read_b64_tr_b16 {v(base + 2 * hf, 2)}, {v(vA[tp])} offset:{o}")

    def xreg(T, Q):
        return X + 8 * (4 * (T // 2) + Q) + 4 * (T % 2)

    def mf(f, Q):
        tp, n = f
        c, k = divmod(n, 6)
        if tp == 1:
            ks = n % 3
            d = ACC + 16 * ((n // 3) % 3) + 4 * Q
            return (f"v_mfma_f32_16x16x32_bf16 {v(d, 4)}, {v(slot(f), 4)}, "
                    f"{v(H + 16 * ks + 4 * Q, 4)}, {'0' if ks == 0 else v(d, 4)}")
        d = xreg(k, Q)
        return (f"v_mfma_f32_16x16x32_bf16 {v(d, 4)}, {v(slot(f), 4)}, "
                f"{v(G + 16 * (c % 2) + 4 * Q, 4)}, {'0' if c == 0 else v(d, 4)}")

    def look(u, i):
        a0 = ACC + 16 * (u % 3) + 2 * i
        return [(4, f"v_lshlrev_b32_sdwa {v(a0)}, 1, {v(a0)} {SH}"),
                (4, f"v_lshlrev_b32_sdwa {v(a0 + 1)}, 1, {v(a0 + 1)} {SH}"),
                (0, f"ds_read_u16_d16 {v(a0)}, {v(a0)}"),
                (0, f"ds_read_u16_d16_hi {v(a0 + 1)}, {v(a0 + 1)}")]

    def greg(u, i):
        c, ht = divmod(u, 2)
        return G + 16 * (c % 2) + 4 * (i // 2) + 2 * ht + i % 2

    def nexp(u):
        return EXPK[u % len(EXPK)]

    def comb(u, i):
        a0 = ACC + 16 * (u % 3) + 2 * i
        return [(4, f"v_or_b32 {v(greg(u, i))}, {v(a0)}, {v(a0 + 1)}")]

    def expo(u):
        LO = "dst_sel:WORD_0 dst_unused:UNUSED_PRESERVE src0_sel:WORD_0"
        HI = "dst_sel:WORD_1 dst_unused:UNUSED_PRESERVE src0_sel:WORD_1"
        ch1, ch2 = [], []
        for i in range(8 - nexp(u), 8):
            b, t, r = v(ACC + 16 * (u % 3) + 2 * i), v(ACC + 16 * (u % 3) + 2 * i + 1), v(greg(u, i))
            ch1.append([(4, f"v_fma_mixlo_f16 {b}, {b}, {s(cK)}, 0"),
                        (4, f"v_fma_mixhi_f16 {b}, {t}, {s(cK)}, 0"),
                        (4, f"v_pk_fma_f16 {t}, {b}, {b}, {s(cNB)} neg_lo:[0,1,0] neg_hi:[0,1,0]"),
                        (4, f"v_pk_mul_f16 {t}, {t}, {b}"),
                        (8, f"v_exp_f16_sdwa {t}, {t} {LO}"),
                        (8, f"v_exp_f16_sdwa {t}, {t} {HI}"),
                        (4, f"v_pk_fma_f16 {t}, {t}, {s(cS)}, {s(cS)}")])
            ch2.append([(8, f"v_rcp_f16_sdwa {t}, {t} {LO}"),
                        (8, f"v_rcp_f16_sdwa {t}, {t} {HI}"),
                        (4, f"v_fma_mix_f32 {r}, {b}, {t}, 0 op_sel_hi:[1,1,0]"),
                        (4, f"v_fma_mix_f32 {t}, {b}, {t}, 0 op_sel:[1,1,0] op_sel_hi:[1,1,0]"),
                        (4, f"v_cvt_pk_bf16_f32 {r}, {r}, {t}")])
        return ch1, ch2

    def weave(chains):
        out = []
        n = max([len(c) for c in chains], default=0)
        for k in range(n):
            need_pad = sum(1 for c in chains if k < len(c)) == 1
            out += [c[k] + (need_pad,) for c in chains if k < len(c)]
        return out

    extra = {}

    def put(u, m, tx):
        extra.setdefault((u, m), []).append(tx)

    put(23, 0, "s_waitcnt vmcnt(0)")
    for tx in poff(XR):
        put(23, 0, tx)
    for g in range(0 if NOPARK else 12):
        ks = (1, 2, 0)[g // 4]
        put(23, g, f"buffer_load_dwordx4 {v(H + 16 * ks + 4 * (g % 4), 4)}, {paddr(g, XR)}{HLF}")

    for tx in poffn(XR):
        put(24, 2, tx)
    def rgroups(rho):
        oy, ln = divmod(rho, 3)
        return [4 * (p % 3) + 2 * oy + p // 3 for p in (2 * ln, 2 * ln + 1)]

    def xload(rho):
        if E("XL128"):
            return [f"buffer_load_dwordx4 {v(XR + 4 * e, 4)}, {v(vXoff)}, {s(sX, 4)}, {s(88 + (2 * rho + e) // 3)} offen offset:{128 * ((2 * rho + e) % 3)}{XFF}" for e in range(2)]
        return [f"buffer_load_dwordx4 {v(XR + 4 * e, 4)}, {v(vXoff)}, {s(sX, 4)}, {goff(g, sTB)}{XFF}"
                for e, g in enumerate(rgroups(rho)) if not NOX]

    for tx in xload(0):
        put(RU0 - 3, 22, tx)
    for rho in range(6):
        u = RU0 + 3 * rho
        act = {f[1] % 6: 4 * i for i, f in enumerate(STEPS[u]) if f[0] == 2}
        used = []
        for e, g in enumerate(rgroups(rho)):
            tp, Q = divmod(g, 4)
            for tl in range(2):
                T = 2 * tp + tl
                m = 5
                while any(abs(m - x) < 2 for x in used) or (T in act and act[T] + Q - 4 < m < act[T] + Q + 5):
                    m += 1
                assert m < 21
                used.append(m)
                for r in range(4):
                    d = xreg(T, Q) + r
                    put(u, m + r // 2, "s_nop 0" if NOX else f"v_dot2_f32_bf16 {v(d)}, {v(XR + 4 * e + 2 * tl + r // 2)}, "
                                       f"{s(cHi if r % 2 else cLo)}, {v(d)}")
        if not E("NOXW"):
            extra[(u, min(used))].insert(0, "s_waitcnt vmcnt(0)")
        if rho < 5:
            for tx in xload(rho + 1):
                put(u, max(used) + 1, tx)

    def hook():
        a(f"""
s_cmp_eq_u32 {s(sMode)}, 0
s_cbranch_scc1 L_rdh_go
v_mov_b32 {v(XR)}, {F_ISS}
""")
        spin(a, "L_wi9", f"v_cmp_eq_u32 vcc, 9, {v(XR + 1)}", XR, XR + 1)
        park(a, XR)
        a(f"s_mov_b32 {s(sMode)}, 0\nL_rdh_go:")
        stamp(a, 1)

    for f in FRAGS[:NWS]:
        rd(f)
    a(f"s_waitcnt vmcnt({13 if DIAG else 12})")
    def steps(u0, u1, fl):
      for u in range(u0, u1):
        if PSCH == "prog" and u == PU:
            a(f"s_cmp_eq_u32 {s(sTile)}, 0\ns_cbranch_scc1 L_pu\ns_setprio {PM[2]}\nL_pu:")
        grp = []
        for i in range(8):
            g = []
            if 0 <= u - 1 < 24 and i < 8 - nexp(u - 1):
                g += comb(u - 1, i)
            if 0 <= u < 24 and i < 8 - nexp(u):
                g += look(u, i)
            if g:
                grp.append(g)
        ex = weave((expo(u - 1)[1] if 0 <= u - 1 < 24 else []) + (expo(u)[0] if 0 <= u < 24 else []))
        flat = [t for g in grp for t in g]
        seq = []
        tl, te = sum(t[0] for t in flat), sum(t[0] for t in ex)
        cl = ce = il = ie = 0
        lastpad = False
        while il < len(flat) or ie < len(ex):
            take_ex = ie < len(ex) and (il >= len(flat) or (flat[il][0] and ce * max(tl, 1) < cl * max(te, 1)))
            if take_ex and lastpad and il < len(flat):
                take_ex = False
            if take_ex:
                if lastpad:
                    seq.append((4, "s_nop 0"))
                seq.append(ex[ie][:2])
                lastpad = ex[ie][2]
                ce += ex[ie][0]
                ie += 1
            else:
                seq.append(flat[il])
                lastpad = False
                cl += flat[il][0]
                il += 1
        if u == UH:
            seq += [(0, hook)]
        lead = 4 if 0 <= u < 4 else 0
        tot = sum(t[0] for t in seq)
        mfs = [(f, Q) for f in STEPS[u] for Q in range(4)]
        nm = len(mfs)
        k = cyc = 0
        for m, (f, Q) in enumerate(mfs):
            st(mf(f, Q))
            if Q == 3 and FRAGS.index(f) + NWS < len(FRAGS):
                rd(FRAGS[FRAGS.index(f) + NWS])
            if m >= lead:
                tgt = tot * (m - lead + 1) / max(nm - lead - TRAIL, 1)
                while k < len(seq) and (cyc < tgt or seq[k][0] == 0):
                    st(seq[k][1]) if isinstance(seq[k][1], str) else seq[k][1]()
                    cyc += seq[k][0]
                    k += 1
            for tx in extra.pop((u, m), []):
                st(tx)
            if u >= 25:
                g = (f[1] - 66) * 4 + Q - 12
                if g >= 0 and (g // 4) % 2 == 0:
                    epi(st, 4 * (g // 8) + g % 4)
        assert k == len(seq)

    def finish(fl):
        steps(25, 27, fl)
        assert not extra and not st.out and zone_now == {1: 0, 2: 0}
        stamp(a, 8)
        for oy in range(2):
            line_out(st, oy, 0, fl)
        for oy in range(2):
            epi(st, 8 + 2 * oy)
            epi(st, 9 + 2 * oy)
            line_out(st, oy, 1, fl)
            line_out(st, oy, 2, fl)

    steps(-1, 25, None)
    if STF2 is not None:
        a(f"s_cmp_eq_u32 {s(sTile)}, 0\ns_cbranch_scc1 L_fin1")
        keep = list(st.out)
        finish(STF2)
        a("s_branch L_fin2\nL_fin1:\ns_nop 7")
        st.out = keep
    finish(STF)
    a("L_fin2:")
    if DIAG:
        stamp(a, 9)
        stamp_rt(a, 11)
        a(f"s_lshl_b32 s62, {s(sTile)}, 3\ns_xor_b32 s62, s62, 8\ns_add_u32 s62, s62, {s(sWave)}")
        stamp_flush(a, 14, 1, t0, t1)
    a(f"""
s_cmp_lg_u32 {s(sTile)}, 0
s_cbranch_scc1 {"L_pad" if E("PADT") else "L_end"}
s_mov_b32 {s(sTile)}, 1
s_mov_b32 {s(sTB)}, {s(sNB)}
s_mov_b32 {s(sTB + 1)}, {s(sNB + 1)}
s_mov_b32 {s(sNB)}, {BIG}
s_mov_b32 {s(sNB + 1)}, {BIG}
{f"s_setprio {PM[1]}" if PSCH == "prog" else ""}
s_branch L_mtile
{PAD}
L_end:
s_endpgm
""")


def epi(st, g):
    b = X + 8 * g
    for d in range(4):
        st(f"v_cvt_pk_bf16_f32 {v(b + d)}, {v(b + 2 * d)}, {v(b + 2 * d + 1)}")


def line_out(st, oy, ln, fl):
    ga, gb = [4 * (p % 3) + 2 * oy + p // 3 for p in (2 * ln, 2 * ln + 1)]
    A, B = X + 8 * ga, X + 8 * gb
    for d in range(4):
        st(f"v_mov_b32 {v(A + 4 + d)}, {v(A + d)}")
    for d in range(4):
        st(f"v_mov_b32_dpp {v(A + d)}, {v(B + d)} row_ror:8 row_mask:0xf bank_mask:0xc")
    for d in range(4):
        st(f"v_mov_b32_dpp {v(B + d)}, {v(A + 4 + d)} row_ror:8 row_mask:0xf bank_mask:0x3")
    for e, r in enumerate((A, B)):
        st(f"buffer_store_dwordx4 {v(r, 4)}, {v(XR + e)}, {s(sO, 4)}, {s(sTB + oy)} offen offset:{128 * ln}{fl}")


def descriptor(a, name, nv, ns):
    a(f"""
.p2align 6
.amdhsa_kernel {name}
  .amdhsa_next_free_vgpr {nv}
  .amdhsa_next_free_sgpr {ns}
  .amdhsa_accum_offset {(nv + 3) // 4 * 4}
  .amdhsa_group_segment_fixed_size 0
  .amdhsa_kernarg_size 64
  .amdhsa_user_sgpr_count 2
  .amdhsa_user_sgpr_kernarg_segment_ptr 1
  .amdhsa_system_sgpr_workgroup_id_x 1
  .amdhsa_float_denorm_mode_32 3
.end_amdhsa_kernel
""")


def main():
    here = os.path.dirname(os.path.abspath(__file__))
    ref = open(os.path.join(here, "..", NAME + ".s.ref")).read().split("\n")
    head = [l for l in ref if l.startswith(";") and "@launch" not in l]
    a = Asm()
    for l in head:
        a(l)
    a(f"; @launch grid=(256,1,1) block=(512,1,1) lds={LDS_BYTES}")
    a('.amdgcn_target "amdgcn-amd-amdhsa--gfx950"')
    a(".text")
    prologue(a)
    phase1(a)
    phase2(a)
    probs = check_hazards(a.lines)
    fast, skip = [], None
    for ln in a.lines:
        t = ln.strip()
        if skip:
            if t == skip + ":":
                skip = None
            continue
        fast.append(ln)
        if t.startswith("s_cbranch_scc1 L_rd") and t.endswith("_go"):
            skip = t.split()[1]
    probs += check_hazards(fast)
    for p in probs:
        print("HAZARD:", p)
    a('.section .rodata,"a"')
    descriptor(a, NAME + "_kernel", 256, 100)
    out = sys.argv[1] if len(sys.argv) > 1 else os.path.join(here, "..", NAME + ".s")
    open(out, "w").write(a.text())
    print("wrote", out, "lines", len(a.lines), "hazards", len(probs), "lds", LDS_BYTES)


if __name__ == "__main__":
    main()
```

```python
import math
import struct
import sys
import os

import numpy as np

sys.path.insert(0, os.path.dirname(os.path.abspath(__file__)))
from asmlib import Asm, Ins, v, s, check_hazards

NAME = "standalone__modern_conv_block_replknet__vision"
E = os.environ.get
DIAG = E("DIAG", "0") == "1"
STF = E("STF", " sc1")
XLF, PKF, HLF, XFF = E("XLF", " sc1"), E("PKF", " sc1"), E("HLF", ""), E("XFF", " sc1")
EXPK = [int(c) for c in E("EXPK", "0")]
TRAIL = int(E("TRAIL", "2"))
PKN = E("PKN", "1") == "1"
PKS = E("PKS", "1") == "1"
PCV, PLN = int(E("PCV", "2")), int(E("PLN", "2"))
PM = [int(c) for c in E("PM", "110")]
STF2 = E("STF2")
DEFER = int(E("DEFER", "1"))
NPRE = 1
ILV = E("ILV", "0") == "1"
NLW = int(E("NLW", "1"))
WPF = int(E("WPF", "-1"))
NOX, NOPARK, NOST = E("NOX"), E("NOPARK"), E("NOST")
UH = 2
RU0 = 7
PRA, PRB = int(E("PRA", "0")), int(E("PRB", "1"))
sStamp = 64


def f32(x):
    return "0x%08x" % struct.unpack("<I", struct.pack("<f", x))[0]


def h2(x):
    b = int(np.float16(x).view(np.uint16))
    return "0x%08x" % (b | (b << 16))


KAPPA = 2.0 * math.sqrt(2.0 / math.pi) * math.log2(math.e)
BETA = float(np.float16(KAPPA / (KAPPA * 0.044715) ** (1.0 / 3.0)))
SC = KAPPA / BETA
BIG = 0x40000000
NBIN = 28
SEXP = 111

XBYTES = 512 * 512 * 96 * 2
ROWB = 512 * 192
WS_END = 256 * 8 * 12288
WS_STAMP = 0x2000000
TW = NBIN * 256
TABP, TABN = 0, 65536
E0 = TW
DZ = 65544
E1 = E0 + DZ + 19 * 3072
DZ1 = 5 * 3072 + 8
L_FLAG = E1 + DZ1 + 5 * 3072
LDS_BYTES = L_FLAG + 256
assert L_FLAG % 16 == 0 and LDS_BYTES <= 163840 and E0 + 19 * 3072 <= 65536
OS = 584
RS = 7104
SS = 14336
RL = E0
RU = TABN + TW + 128
TL = RL + 3 * SS
TU = RU + 2 * SS + RS + 12 * OS
assert TL + 15360 <= 65536 and TU % 16 == 0 and TU + 15360 <= E1 and RL % 256 == 0 and RU % 256 == 128
R3L = (E1 + 255) // 256 * 256
R3U = R3L + 2 * RS
assert R3U % 256 == 128 and R3U + RS + 12 * OS <= L_FLAG
F_STG = L_FLAG
F_DONE = L_FLAG + 40
F_TRDY = L_FLAG + 160
F_ISS = L_FLAG + 164
F_RDY = L_FLAG + 168
F_INIT = L_FLAG + 172
F_WRAW = L_FLAG + 176
WTMP = RL + SS


def kap(ch, q):
    return 32 * (q >> 4) + 16 * ch + (q & 15)


def coff(c):
    return (c // 8) * OS + (c % 8) * 72


STEPS = {u: [(tp, n) for i in range(3) for tp, n in ((1, 3 * (u + 1) + i), (2, 3 * (u - 3) + i)) if 0 <= n < 72]
         for u in range(-1, 27)}
FRAGS = [f for u in range(-1, 27) for f in STEPS[u]]
PIECES = []
for tp_, n_ in FRAGS:
    if (tp_, n_ // 6) not in PIECES:
        PIECES.append((tp_, n_ // 6))
assert len(PIECES) == 24 and len(FRAGS) == 144


def piece_addr(tp, c):
    i = PIECES.index((tp, c))
    if i < 5:
        return 1, E1 + 3072 * i, DZ1
    return 0, E0 + 3072 * (i - 5), DZ


SB = 48
TS = 192
DS = 212
TMP = 232
vL16, vT0, vT1 = 253, 254, 255
vFl, vTa, vCA, vLdA, vLdB, vSt, vCv, vK = 240, 241, 244, 247, 248, 249, 250, 251
H = 0
X = 48
G = 144
ACC = 176
WS = 224
NWS = 5
XR = 244
vXoff = 252
vA = {1: 254, 2: 255}

NE = 4
NSL = 5

sX, sO, sW = 4, 8, 12
sWave, sTile, sPair, sRdy = 16, 17, 18, 19
sSelLo, sSelHi = 20, 21
sX0, sY0 = 22, 23
sTB = 24
sA, sB, sC, sD = 26, 27, 28, 29
sR = 30
sNB = 36
sMode = 38
sRot = 39
sI1, sI2 = 40, 44
sDL, sDS = 48, 52
sEL, sER, sE1 = 80, 81, 82
cNB, cS, cLo, cHi, cK = 84, 85, 86, 87, 83


def stamp(a, k):
    if DIAG:
        a(f"s_waitcnt lgkmcnt(0)\ns_memtime s[60:61]\ns_waitcnt lgkmcnt(0)\ns_mov_b32 {s(sStamp + k)}, s60")


def stamp_rt(a, k):
    if DIAG:
        a(f"s_waitcnt lgkmcnt(0)\ns_memrealtime s[60:61]\ns_waitcnt lgkmcnt(0)\ns_mov_b32 {s(sStamp + k)}, s60")


def stamp_flush(a, n, rec, vT0=vT0, vT1=vT1):
    if DIAG:
        a(f"s_mov_b32 {s(sStamp + 12)}, {s(sWave)}")
        a(f"v_mov_b32 {v(vT0)}, 0")
        for k in range(n):
            a(f"v_writelane_b32 {v(vT0)}, {s(sStamp + k)}, {k}")
        a(f"""s_lshl_b32 s60, s2, 4
s_add_u32 s60, s60, s62
s_lshl_b32 s60, s60, 7
s_add_u32 s60, s60, {WS_STAMP + 64 * rec}
v_lshrrev_b32 {v(vT1)}, 2, {v(vL16)}
s_mov_b32 exec_lo, 0xffff
s_mov_b32 exec_hi, 0
buffer_store_dword {v(vT0)}, {v(vT1)}, {s(sW, 4)}, s60 offen
s_mov_b64 exec, -1
s_nop 1""")


def srd(a, d, lo, nbytes):
    a(f"""s_mov_b32 {s(d)}, {s(lo)}
s_and_b32 {s(d + 1)}, {s(lo + 1)}, 0xffff
s_mov_b32 {s(d + 2)}, {nbytes}
s_mov_b32 {s(d + 3)}, 0x20000""")


def spin(a, label, cmp, t0=vT0, t1=vT1):
    a(f"""
s_mov_b32 {s(sD)}, 200000
{label}:
ds_read_b32 {v(t1)}, {v(t0)}
s_waitcnt lgkmcnt(0)
{cmp}
s_cmp_eq_u64 vcc, exec
s_cbranch_scc1 {label}_ok
s_sleep 2
s_sub_u32 {s(sD)}, {s(sD)}, 1
s_cmp_lg_u32 {s(sD)}, 0
s_cbranch_scc1 {label}
{label}_ok:
""")


def wait_flags(a, label, addr):
    a(f"v_add_u32 {v(vT0)}, {addr}, {v(vFl)}")
    spin(a, label, f"v_cmp_ne_u32 vcc, 0, {v(vT1)}")


def wait_count(a, label, addr, n, op="eq"):
    a(f"v_mov_b32 {v(vT0)}, {addr}")
    spin(a, label, f"v_cmp_{op}_u32 vcc, {n}, {v(vT1)}")


def count(a, addr):
    a(f"""
v_mov_b32 {v(vT0)}, {addr}
v_mov_b32 {v(vT1)}, 1
s_waitcnt lgkmcnt(0)
s_mov_b64 exec, 1
ds_add_u32 {v(vT0)}, {v(vT1)}
s_mov_b64 exec, -1
""")


def issue_loads(a):
    a(f"""
s_lshl_b32 {s(sA)}, {s(sPair)}, 2
s_add_u32 {s(sA)}, {s(sA)}, {s(sY0)}
s_lshl_b32 {s(sB)}, {s(sA)}, 9
s_add_u32 {s(sB)}, {s(sB)}, {s(sX0)}
s_mul_i32 {s(sB)}, {s(sB)}, 192
s_cmp_lt_u32 {s(sA)}, 2
s_cselect_b64 vcc, s[58:59], 0
v_mov_b32 {v(vLdB)}, {BIG}
s_sub_u32 {s(sC)}, {s(sB)}, {2 * ROWB}
v_add_u32 {v(vT1)}, {s(sC)}, {v(vLdA)}
v_cndmask_b32 {v(vLdB)}, {v(vT1)}, {v(vLdB)}, vcc
v_add_u32 {v(vT1)}, -384, {v(vLdB)}
""")
    for xq in range(9):
        for i in range(4):
            off = 768 * xq + 192 * i - 384
            if xq == 0 and i < 2:
                a(f"buffer_load_dwordx4 {v(SB + 4 * i, 4)}, {v(vT1)}, {s(sX, 4)}, {s(sEL)} offen offset:{192 * i}{XLF}")
                continue
            elif xq == 8 and i >= 2:
                so, im = sER, off - 3840
            elif off < 3840:
                so, im = "0", off
            else:
                so, im = sE1, off - 3840
            so = so if isinstance(so, str) else s(so)
            a(f"buffer_load_dwordx4 {v(SB + 16 * xq + 4 * i, 4)}, {v(vLdB)}, {s(sX, 4)}, {so} offen offset:{im}{XLF}")


def dma_consts(a, r):
    a(f"""
v_lshrrev_b32 {v(r)}, 9, {v(vL16)}             ; l>>5
v_mul_u32_u24 {v(r + 1)}, 1536, {v(r)}
v_add_u32 {v(r + 1)}, {v(r + 1)}, {v(vL16)}
v_bfe_u32 {v(vT0)}, {v(vL16)}, 6, 3            ; (l>>2)&7
v_lshl_add_u32 {v(r)}, {v(r)}, 4, {v(vT0)}
v_mul_u32_u24 {v(r)}, 768, {v(r)}
v_and_b32 {v(vT0)}, 48, {v(vL16)}
v_add_u32 {v(r)}, {v(r)}, {v(vT0)}             ; w1
""")


def dma_piece(a, tp, c, r):
    _, ad, dz = piece_addr(tp, c)
    a(f"""
s_add_u32 {s(sA)}, {s(sRot)}, {c}
s_cmp_ge_u32 {s(sA)}, 12
s_cselect_b32 {s(sB)}, 12, 0
s_sub_u32 {s(sA)}, {s(sA)}, {s(sB)}
s_mul_i32 {s(sA)}, {s(sA)}, {64 if tp == 1 else 6144}
""")
    for par in range(2):
        a(f"s_mov_b32 m0, {ad + par * dz}")
        if tp == 1:
            for ks in range(3):
                a(f"s_add_u32 {s(sR + ks)}, {s(sA)}, {(32 * ks + 8 * par) * 768 - 1024 * ks}")
            for ks in range(3):
                a(f"buffer_load_dwordx4 {v(r)}, {s(sI1, 4)}, {s(sR + ks)} offen offset:{1024 * ks} lds")
        else:
            a(f"s_add_u32 {s(sR)}, {s(sA)}, {1536 * par}")
            a(f"s_add_u32 {s(sR + 1)}, {s(sA)}, {1536 * par + 1536}")
            a(f"buffer_load_dwordx4 {v(vL16)}, {s(sI2, 4)}, {s(sR)} offen lds")
            a(f"buffer_load_dwordx4 {v(r + 1)}, {s(sI2, 4)}, {s(sR)} offen offset:1024 lds")
            a(f"buffer_load_dwordx4 {v(vL16)}, {s(sI2, 4)}, {s(sR + 1)} offen offset:2048 lds")


XADJ = f"""v_lshrrev_b32 v3, 5, v0
v_mul_u32_u24 v3, {2 * ROWB}, v3
v_bfe_u32 v4, v0, 2, 3
v_mul_u32_u24 v4, 768, v4
v_add_u32 v3, v3, v4
v_and_b32 v4, 3, v0
v_lshl_add_u32 {v(vXoff)}, v4, 4, v3""" if E("XADJ") else ""


def prologue(a):
    k = NAME + "_kernel"
    a(f"""
.globl {k}
.p2align 8
.type {k},@function
{k}:
s_cmp_ge_u32 s2, 256
s_cbranch_scc1 L_end
s_load_dwordx8 s[64:71], s[0:1], 0
s_load_dwordx4 s[72:75], s[0:1], 32
{"s_load_dwordx2 s[76:77], s[0:1], 56" if DIAG else ""}
{"s_memrealtime s[92:93]" if E("PADT") else ""}
s_setprio 3
v_mov_b32 v14, v0                ; tid
v_lshrrev_b32 v1, 6, v0
v_and_b32 v0, 63, v0
v_mov_b32 v10, {BIG}
v_readfirstlane_b32 {s(sWave)}, v1
v_lshlrev_b32 v2, 2, v0
v_add_u32 v2, {L_FLAG}, v2
v_add_u32 v3, -10, v0
v_cmp_gt_u32 vcc, 10, v3
v_cmp_eq_u32 s[56:57], 36, v0
s_or_b64 vcc, vcc, s[56:57]
v_cndmask_b32 v3, 0, 1, vcc
v_lshlrev_b32 {v(vL16)}, 4, v0
v_min_u32 {v(vFl)}, 1, v0
ds_write_b32 v2, v3
v_lshlrev_b32 {v(vFl)}, 2, {v(vFl)}
s_and_b32 {s(sA)}, s2, 3
s_lshl_b32 {s(sA)}, {s(sA)}, 2
s_bfe_u32 {s(sB)}, s2, 0x20003
s_add_u32 {s(sA)}, {s(sA)}, {s(sB)}
s_lshl_b32 {s(sX0)}, {s(sA)}, 5
s_bfe_u32 {s(sA)}, s2, 0x10002
s_lshl_b32 {s(sA)}, {s(sA)}, 3
s_lshr_b32 {s(sB)}, s2, 5
s_add_u32 {s(sA)}, {s(sA)}, {s(sB)}
s_lshl_b32 {s(sY0)}, {s(sA)}, 5
; staging lane map: row = l/12, o = l%12 (lanes < 48)
v_mul_u32_u24 v12, 43, v0
v_lshrrev_b32 v12, 9, v12          ; row
v_mul_u32_u24 v13, 12, v12
v_sub_u32 v13, v0, v13             ; o
v_mul_u32_u24 v5, {ROWB}, v12
v_lshl_add_u32 v5, v13, 4, v5
v_cmp_gt_u32 vcc, 48, v0
v_cmp_gt_u32 s[58:59], 24, v0    ; rows 0,1
s_cmp_eq_u32 {s(sX0)}, 0
s_cselect_b32 {s(sEL)}, {BIG}, 0
v_cndmask_b32 {v(vLdA)}, v10, v5, vcc
s_mov_b32 {s(sE1)}, 3840
s_cmp_eq_u32 {s(sX0)}, 480
s_cselect_b32 {s(sER)}, {BIG}, {s(sE1)}
s_mov_b32 {s(sPair)}, {s(sWave)}
v_add_u32 v15, -256, v14             ; waves 4..7: 0..255
s_waitcnt lgkmcnt(0)
s_barrier
""")
    srd(a, sX, 64, XBYTES)
    srd(a, sDL, 66, 9 * 96 * 2)
    srd(a, sDS, 68, 25 * 96 * 2)
    srd(a, sI1, 70, 96 * 384 * 2)
    srd(a, sI2, 72, 96 * 384 * 2)
    srd(a, sO, 74, XBYTES)
    if DIAG:
        srd(a, sW, 76, WS_STAMP + 0x100000)
    if E("PADG"):
        a("""s_load_dwordx2 s[88:89], s[0:1], 48
s_waitcnt lgkmcnt(0)
s_and_b32 s89, s89, 0xffff
s_mov_b32 s90, 256
s_mov_b32 s91, 0x20000
s_not_b32 s94, s92
v_mov_b32 v20, s94
v_mov_b32 v21, 0
s_mov_b64 exec, 1
buffer_atomic_umax v20, v21, s[88:91], 0 offen
s_mov_b64 exec, -1
s_waitcnt vmcnt(0)""")
    stamp(a, 0)
    stamp_rt(a, 10)
    a(f"""
s_cmp_lg_u32 {s(sWave)}, 0
s_cbranch_scc1 L_pb
s_mov_b32 m0, {WTMP}
s_mov_b32 {s(sA)}, 4096
""")
    for i in range(4):
        a(f"buffer_load_dwordx4 {v(vL16)}, {s(sDS, 4)}, 0 offen offset:{1024 * i} lds")
    a(f"s_mov_b32 m0, {WTMP + 4096}\ns_nop 0\nbuffer_load_dwordx4 {v(vL16)}, {s(sDS, 4)}, {s(sA)} offen lds")
    a(f"s_mov_b32 m0, {WTMP + 5120}\ns_nop 0")
    for i in range(2):
        a(f"buffer_load_dwordx4 {v(vL16)}, {s(sDL, 4)}, 0 offen offset:{1024 * i} lds")
    stamp(a, 9)
    issue_loads(a)
    a(f"""
v_mov_b32 {v(vT0)}, {F_ISS}
v_mov_b32 {v(vT1)}, 1
ds_write_b32 {v(vT0)}, {v(vT1)}
s_waitcnt vmcnt(36)
ds_write_b32 {v(vT0)}, {v(vT1)} offset:{F_WRAW - F_ISS}
""")
    stamp(a, 11)
    a(f"""
L_pb:
s_mov_b32 {s(sSelLo)}, 0x05040100
s_mov_b32 {s(sSelHi)}, 0x07060302
s_lshr_b32 {s(sA)}, s2, 3
s_mul_i32 {s(sB)}, {s(sA)}, 43
s_lshr_b32 {s(sB)}, {s(sB)}, 9
s_mul_i32 {s(sB)}, {s(sB)}, 12
s_sub_u32 {s(sRot)}, {s(sA)}, {s(sB)}       ; (wg>>3) % 12
v_bfe_u32 v1, v0, 3, 1
v_lshrrev_b32 v2, 5, v0          ; ch'
v_bfe_u32 v3, v0, 4, 1           ; dyp
v_bfe_u32 v4, v0, 2, 1           ; oy
v_sub_u32 v3, v3, v4             ; dyp-oy
v_and_b32 v4, 3, v0
v_mul_u32_u24 v5, {TU - TL}, v1
v_lshl_add_u32 v5, v4, 4, v5
v_add_u32 v5, {TL}, v5
v_cmp_eq_u32 s[56:57], v1, v2
v_add_u32 v6, 0, v3
v_cmp_gt_u32 vcc, 5, v6
v_lshl_add_u32 v7, v6, 6, v5
s_and_b64 vcc, vcc, s[56:57]
v_cndmask_b32 {v(vTa)}, v10, v7, vcc
v_add_u32 v6, 2, v3
v_lshl_add_u32 v7, v6, 6, v5
v_cndmask_b32 {v(vTa + 1)}, v10, v7, s[56:57]
v_add_u32 v6, 4, v3
v_cmp_gt_u32 vcc, 5, v6
v_lshl_add_u32 v7, v6, 6, v5
s_and_b64 vcc, vcc, s[56:57]
v_cndmask_b32 {v(vTa + 2)}, v10, v7, vcc
v_mul_u32_u24 v2, {2 * OS}, v2
v_and_b32 v3, 7, v0
v_lshl_add_u32 {v(vCv)}, v3, 3, v2
v_mul_u32_u24 v3, 768, v3
v_mul_u32_u24 v4, {2 * ROWB}, v1
v_add_u32 v3, v3, v4
v_lshrrev_b32 v4, 4, v0
v_lshl_add_u32 {v(vXoff)}, v4, 4, v3
{XADJ}
v_bfe_u32 v3, v0, 4, 1
v_mul_u32_u24 v3, {RS}, v3
v_add_u32 {v(vCv)}, {v(vCv)}, v3
v_cmp_eq_u32 s[56:57], 1, v1
v_and_b32 v5, 1, v12
v_mul_u32_u24 v5, {RS}, v5
v_mul_u32_u24 v6, {OS}, v13
v_add_u32 {v(vSt)}, v5, v6
s_lshl_b32 {s(sA)}, {s(sWave)}, 2
s_add_u32 {s(sA)}, {s(sA)}, {s(sY0)}
s_lshl_b32 {s(sA)}, {s(sA)}, 9
s_add_u32 {s(sA)}, {s(sA)}, {s(sX0)}
s_mul_i32 {s(sNB)}, {s(sA)}, 192
s_add_u32 {s(sNB + 1)}, {s(sNB)}, {ROWB}
s_add_u32 {s(sTB)}, {s(sNB)}, 384
s_add_u32 {s(sTB + 1)}, {s(sTB)}, {ROWB}
s_cmp_lt_u32 {s(sWave)}, {NPRE}
s_cbranch_scc1 L_perm
s_cmp_lt_u32 {s(sWave)}, 4
s_cbranch_scc1 L_xload
""")
    wait_count(a, "L_wraw", F_WRAW, 1)
    for r in range(2):
        b = 128 + 16 * r
        a(f"""
v_add_u32 v1, {256 * r}, v15         ; task
v_mul_u32_u24 v{b}, 683, v1
v_lshrrev_b32 v{b}, 16, v{b}         ; dy
v_mul_u32_u24 v{b + 1}, 96, v{b}
v_sub_u32 v{b + 1}, v1, v{b + 1}     ; c
v_mul_u32_u24 v2, 960, v{b}
v_lshl_add_u32 v2, v{b + 1}, 1, v2
v_add_u32 v1, -1, v{b}
v_mul_u32_u24 v3, 576, v1
v_lshl_add_u32 v3, v{b + 1}, 1, v3
v_cmp_gt_u32 vcc, 3, v1
s_nop 1
v_cndmask_b32 v3, v10, v3, vcc
""")
        for jx in range(5):
            a(f"ds_read_u16 v{b + 4 + jx}, v2 offset:{WTMP + 192 * jx}")
        for jx in range(3):
            a(f"ds_read_u16 v{b + 9 + jx}, v3 offset:{WTMP + 5120 + 192 * jx}")
    a("s_waitcnt lgkmcnt(0)")
    for r in range(2):
        b = 128 + 16 * r
        w = b + 4
        o = 160 + 16 * r
        for jx in range(8):
            a(f"v_lshlrev_b32 v{w + jx}, 16, v{w + jx}")
        a(f"""
v_add_f32 v{w + 1}, v{w + 1}, v{w + 5}
v_add_f32 v{w + 2}, v{w + 2}, v{w + 6}
v_add_f32 v{w + 3}, v{w + 3}, v{w + 7}
v_mov_b32 v1, 0
v_cvt_pk_bf16_f32 v{o}, v{w}, v{w + 1}
v_cvt_pk_bf16_f32 v{o + 1}, v{w + 2}, v{w + 3}
v_cvt_pk_bf16_f32 v{o + 2}, v{w + 4}, v1
v_mov_b32 v{o + 3}, 0
v_cvt_pk_bf16_f32 v{o + 4}, v1, v{w}
v_cvt_pk_bf16_f32 v{o + 5}, v{w + 1}, v{w + 2}
v_cvt_pk_bf16_f32 v{o + 6}, v{w + 3}, v{w + 4}
v_mov_b32 v{o + 7}, 0
v_mov_b32 v{o + 8}, 0
v_mov_b32 v{o + 9}, v{o}
v_mov_b32 v{o + 10}, v{o + 1}
v_mov_b32 v{o + 11}, v{o + 2}
v_mov_b32 v{o + 12}, 0
v_mov_b32 v{o + 13}, v{o + 4}
v_mov_b32 v{o + 14}, v{o + 5}
v_mov_b32 v{o + 15}, v{o + 6}
v_lshrrev_b32 v2, 5, v{b + 1}
v_and_b32 v3, 15, v{b + 1}
v_lshl_add_u32 v2, v2, 4, v3
v_mul_u32_u24 v2, 320, v2
v_bfe_u32 v3, v{b + 1}, 4, 1
v_mul_u32_u24 v3, {TU - TL}, v3
v_add_u32 v2, v2, v3
v_lshl_add_u32 v2, v{b}, 6, v2
v_add_u32 v2, {TL}, v2
v_cmp_gt_u32 vcc, 5, v{b}
s_nop 1
v_cndmask_b32 v2, v10, v2, vcc
ds_write_b128 v2, v[{o}:{o + 3}]
ds_write_b128 v2, v[{o + 4}:{o + 7}] offset:16
ds_write_b128 v2, v[{o + 8}:{o + 11}] offset:32
ds_write_b128 v2, v[{o + 12}:{o + 15}] offset:48
""")
    count(a, F_TRDY)
    a(f"""
s_cmp_lt_u32 {s(sWave)}, 6
s_cbranch_scc1 L_xload
L_tab:
v_add_u32 v1, -384, v14
v_lshlrev_b32 v2, 2, v1
v_add_u32 v3, {TABN}, v2
v_lshlrev_b32 v4, 17, v1              ; code 2i << 16
v_or_b32 v4, 0x8000, v4
v_cmp_gt_u32 vcc, 64, v1
v_mov_b32 v5, {SEXP << 23}
v_mov_b32 v6, {(SEXP + 1) << 23}
v_cndmask_b32 v5, v5, v6, vcc
v_cndmask_b32 v6, 0, v6, vcc
v_add_u32 v4, v4, v5
s_mov_b32 {s(sA)}, {f32(KAPPA * 0.044715)}
v_mov_b32 v7, {f32(KAPPA)}
s_mov_b32 {s(sB)}, {NBIN // 2}
L_tabl:
v_add_u32 v9, 0x10000, v4
v_sub_f32 v8, v4, v6
v_sub_f32 v9, v9, v6
v_mul_f32 v10, v8, v8
v_mul_f32 v11, v9, v9
v_fma_f32 v10, v10, {s(sA)}, v7
v_fma_f32 v11, v11, {s(sA)}, v7
v_mul_f32 v10, v10, v8
v_mul_f32 v11, v11, v9
v_exp_f32 v10, -v10
v_exp_f32 v11, -v11
s_nop 0
v_add_f32 v12, 1.0, v10
v_add_f32 v13, 1.0, v11
v_rcp_f32 v12, v12
v_rcp_f32 v13, v13
s_nop 0
v_mul_f32 v8, v8, v12
v_mul_f32 v9, v9, v13
v_mul_f32 v10, -v8, v10
v_mul_f32 v11, -v9, v11
v_cvt_pk_bf16_f32 v12, v8, v9
v_cvt_pk_bf16_f32 v13, v10, v11
ds_write_b32 v2, v12
ds_write_b32 v3, v13
v_sub_u32 v4, v4, v5
v_mov_b32 v5, {SEXP << 23}
v_mov_b32 v6, 0
v_add_u32 v4, v4, v5
v_add_u32 v4, 0x1000000, v4
v_add_u32 v2, 512, v2
v_add_u32 v3, 512, v3
s_sub_u32 {s(sB)}, {s(sB)}, 1
s_cmp_lg_u32 {s(sB)}, 0
s_cbranch_scc1 L_tabl
""")
    count(a, F_INIT)
    a("L_xload:")
    stamp(a, 13)
    wait_count(a, "L_wiss", F_ISS, s(sPair))
    stamp(a, 9)
    issue_loads(a)
    a(f"""
s_add_u32 {s(sA)}, {s(sPair)}, 1
v_mov_b32 {v(vT1)}, {s(sA)}
ds_write_b32 {v(vT0)}, {v(vT1)}
""")
    stamp(a, 11)
    a("L_perm:")


def slot_of(a, dst, src):
    a(f"""
s_add_u32 {s(dst)}, {src}, 2
s_and_b32 {s(dst)}, {s(dst)}, 3
s_cmp_eq_u32 {s(dst)}, 3
s_mul_i32 {s(dst)}, {s(dst)}, {SS}
s_cselect_b32 {s(dst + 1)}, {R3U - RU}, {s(dst)}
s_cselect_b32 {s(dst)}, {R3L - RL}, {s(dst)}
s_add_u32 {s(dst)}, {s(dst)}, {RL}
s_add_u32 {s(dst + 1)}, {s(dst + 1)}, {RU}
""")


def goff(g, base):
    tp, Q = divmod(g, 4)
    return f"{s(base + (Q >> 1))} offen offset:{192 * (Q & 1) + 64 * tp}"


def poff(t):
    return [f"v_lshrrev_b32 {v(t)}, 7, {v(vL16)}",
            f"v_mul_u32_u24 {v(t)}, 640, {v(t)}",
            f"v_add_u32 {v(t)}, {v(t)}, {v(vL16)}",
            f"v_add_u32 {v(t + 1)}, {2 * ROWB}, {v(t)}"]


def poffn(t):
    return [f"v_bfe_u32 {v(t)}, {v(vL16)}, 4, 3",
            f"v_mul_u32_u24 {v(t)}, 768, {v(t)}",
            f"v_bfe_u32 {v(t + 1)}, {v(vL16)}, 7, 1",
            f"v_lshl_add_u32 {v(t)}, {v(t + 1)}, 6, {v(t)}",
            f"v_lshrrev_b32 {v(t + 1)}, 8, {v(vL16)}",
            f"v_lshl_add_u32 {v(t)}, {v(t + 1)}, 4, {v(t)}",
            f"v_add_u32 {v(t + 1)}, {2 * ROWB}, {v(t)}"]


def paddr(g, t):
    r, ln = divmod(g, 3)
    return f"{v(t + (r >> 1))}, {s(sO, 4)}, {s(sNB + (r & 1))} offen offset:{128 * ln}"


def park(a, t):
    for tx in poff(t):
        a(tx)
    for g in range(0 if NOPARK else 12):
        a(f"buffer_store_dwordx4 {v(X + 4 * g, 4)}, {paddr(g, t)}{PKF}")


def phase1(a):
    def oreg(rnd):
        return SB + (144 if rnd == 0 else 16 * (rnd - 1))

    def perms(rnd):
        a(f"s_waitcnt vmcnt({32 - 4 * rnd})")
        L = SB + 16 * rnd
        O = oreg(rnd)
        for d in range(4):
            a(f"v_perm_b32 {v(O + 4 * d)}, {v(L + 4 + d)}, {v(L + d)}, {s(sSelLo)}")
            a(f"v_perm_b32 {v(O + 4 * d + 1)}, {v(L + 12 + d)}, {v(L + 8 + d)}, {s(sSelLo)}")
            a(f"v_perm_b32 {v(O + 4 * d + 2)}, {v(L + 4 + d)}, {v(L + d)}, {s(sSelHi)}")
            a(f"v_perm_b32 {v(O + 4 * d + 3)}, {v(L + 12 + d)}, {v(L + 8 + d)}, {s(sSelHi)}")
            if ILV:
                writes(rnd, d)

    def writes(rnd, d):
        O = oreg(rnd)
        a(f"ds_write_b64 {v(vT0)}, {v(O + 4 * d, 2)} offset:{8 * rnd + 2 * d * 72}")
        a(f"ds_write_b64 {v(vT0)}, {v(O + 4 * d + 2, 2)} offset:{8 * rnd + (2 * d + 1) * 72}")

    if not ILV:
        a("s_mov_b32 exec_hi, 0x0000ffff")
        for rnd in range(9):
            perms(rnd)
        a("s_mov_b32 exec_hi, -1")
    stamp(a, 1)
    a(f"s_cmp_lg_u32 {s(sPair)}, 3\ns_cbranch_scc1 L_wt3_ok")
    wait_count(a, "L_wt3", F_TRDY, 4)
    a(f"""
s_lshl_b32 {s(sA)}, {s(sPair)}, 3
s_add_u32 {s(sA)}, {s(sA)}, {F_DONE + 4}
""")
    wait_flags(a, "L_wslot", s(sA))
    stamp(a, 2)
    slot_of(a, sR, s(sPair))
    a(f"""
v_add_u32 {v(vT0)}, {s(sR)}, {v(vSt)}
v_add_u32 {v(vT1)}, {s(sR + 1)}, {v(vSt)}
v_cndmask_b32 {v(vT0)}, {v(vT1)}, {v(vT0)}, s[58:59]
s_mov_b32 exec_hi, 0x0000ffff
""")
    for rnd in range(9):
        if ILV:
            perms(rnd)
        else:
            for d in range(4):
                writes(rnd, d)
    a(f"""
s_mov_b32 exec_hi, -1
s_lshl_b32 {s(sA)}, {s(sPair)}, 2
s_add_u32 {s(sA)}, {s(sA)}, {F_STG}
v_mov_b32 {v(vT0)}, {s(sA)}
v_mov_b32 {v(vT1)}, 1
s_waitcnt lgkmcnt(0)
ds_write_b32 {v(vT0)}, {v(vT1)}
s_cmp_eq_u32 {s(sPair)}, 8
s_cbranch_scc1 L_loader
""")
    stamp(a, 4)
    a(f"s_setprio {PCV}")
    a(f"s_add_u32 {s(sB)}, {s(sPair)}, 1")
    slot_of(a, sR + 2, s(sB))
    for z in range(4):
        a(f"v_add_u32 {v(TMP + z)}, {s(sR + z)}, {v(vCv)}")
    for z in range(3):
        a(f"v_cndmask_b32 {v(vCA + z)}, {v(TMP + z)}, {v(TMP + z + 1)}, s[56:57]")
    wait_count(a, "L_wt", F_TRDY, 4)
    stamp(a, 5)

    NST = 144

    def cread(i):
        z, q = divmod(i, 48)
        r = DS + 4 * (i % NSL)
        return (f"ds_read_b128 {v(TS + 4 * (i % NSL), 4)}, {v(vTa + z)} offset:{320 * q}\n"
                f"ds_read_b64 {v(r, 2)}, {v(vCA + z)} offset:{coff(kap(0, q))}\n"
                f"ds_read_b64 {v(r + 2, 2)}, {v(vCA + z)} offset:{coff(kap(0, q)) + 8}")

    def stats_pk(q):
        out = []
        for r in (0, 2):
            acc = 4 * q + r
            if q == 0:
                out.append(f"v_pk_add_f32 {v(TMP + r, 2)}, {v(acc, 2)}, {v(acc + 4, 2)}")
                out.append(f"v_pk_mul_f32 {v(TMP + 4 + r, 2)}, {v(acc, 2)}, {v(acc, 2)}")
            else:
                if q > 1:
                    out.append(f"v_pk_add_f32 {v(TMP + r, 2)}, {v(TMP + r, 2)}, {v(acc, 2)}")
                out.append(f"v_pk_fma_f32 {v(TMP + 4 + r, 2)}, {v(acc, 2)}, {v(acc, 2)}, {v(TMP + 4 + r, 2)}")
        return out

    def stats(q):
        out = []
        for r in range(4):
            acc = 4 * q + r
            if q == 0:
                out.append(f"v_mov_b32 {v(TMP + r)}, {v(acc)}")
                out.append(f"v_mul_f32 {v(TMP + 4 + r)}, {v(acc)}, {v(acc)}")
            else:
                out.append(f"v_add_f32 {v(TMP + r)}, {v(TMP + r)}, {v(acc)}")
                out.append(f"v_fmac_f32 {v(TMP + 4 + r)}, {v(acc)}, {v(acc)}")
        return out

    SLAG = 3
    for i in range(NE + 1):
        a(cread(i))
    for i in range(NST):
        z, q = divmod(i, 48)
        left = min(i + NE + 1, NST) - (i + 1)
        if i % 2 == 0:
            a(f"s_waitcnt lgkmcnt({3 * max(left - 1, 0)})")
        if i == 96:
            a(f"ds_write_b32 {v(vT0)}, {v(vT1)}")
        c = "0" if z == 0 else v(4 * q, 4)
        a(f"v_mfma_f32_16x16x32_bf16 {v(4 * q, 4)}, {v(TS + 4 * (i % NSL), 4)}, {v(DS + 4 * (i % NSL), 4)}, {c}")
        if i + NE + 1 < NST:
            if i == 97:
                a("s_waitcnt lgkmcnt(12)")
            if i == 43:
                wait_flags(a, "L_wrdy", s(sA))
                stamp(a, 3)
                a(f"""
s_lshl_b32 {s(sA)}, {s(sWave)}, 3
s_add_u32 {s(sA)}, {s(sA)}, {F_DONE + 40}
v_mov_b32 {v(vT0)}, {s(sA)}
v_mov_b32 {v(vT1)}, 1
""")
            a(cread(i + NE + 1))
        if i == NST - 2:
            a(f"ds_write_b32 {v(vT0)}, {v(vT1)} offset:4")
        if not PKS and i >= 96 + SLAG:
            for tx in stats(i - 96 - SLAG):
                a(tx)
    a(f"s_setprio {PLN}")
    if WPF >= 0:
        a(f"""
s_cmp_lg_u32 {s(sWave)}, {WPF}
s_cbranch_scc1 L_nopf
s_lshr_b32 {s(sA)}, s2, 3
s_mul_i32 {s(sA)}, {s(sA)}, 2304
v_lshlrev_b32 v230, 2, {v(vL16)}
buffer_load_dword v231, v230, {s(sI1, 4)}, {s(sA)} offen
buffer_load_dword v231, v230, {s(sI2, 4)}, {s(sA)} offen
L_nopf:
""")
    stamp(a, 8)
    if PKS:
        for q in range(48):
            for tx in stats_pk(q):
                a(tx)
    else:
        for q in range(48 - SLAG, 48):
            for tx in stats(q):
                a(tx)
    stamp(a, 6)
    s1, s2 = TMP, TMP + 4
    a(f"""
s_nop 1
v_permlane32_swap_b32 {v(s1)}, {v(s1 + 1)}
v_permlane32_swap_b32 {v(s1 + 2)}, {v(s1 + 3)}
v_permlane32_swap_b32 {v(s2)}, {v(s2 + 1)}
v_permlane32_swap_b32 {v(s2 + 2)}, {v(s2 + 3)}
""")
    for e in (0, 2):
        m, w_ = s1 + e, s2 + e
        a(f"""
v_add_f32 {v(m)}, {v(m)}, {v(m + 1)}
v_add_f32 {v(w_)}, {v(w_)}, {v(w_ + 1)}
v_mul_f32 {v(m)}, {f32(1.0 / 96)}, {v(m)}
v_mul_f32 {v(w_)}, {f32(1.0 / 96)}, {v(w_)}
v_fma_f32 {v(w_)}, -{v(m)}, {v(m)}, {v(w_)}
v_max_f32 {v(w_)}, 0, {v(w_)}
v_add_f32 {v(w_)}, {f32(1e-5)}, {v(w_)}
v_rsq_f32 {v(w_)}, {v(w_)}
s_nop 0
v_mul_f32 {v(m)}, {v(m)}, {v(w_)}
v_mul_f32 {v(w_)}, {f32(2.0 ** -SEXP)}, {v(w_)}
v_mul_f32 {v(m)}, {f32(-2.0 ** -SEXP)}, {v(m)}
v_mov_b32 {v(w_ + 1)}, {v(w_)}
v_mov_b32 {v(m + 1)}, {v(m)}
""")
    a(f"""
s_nop 1
v_permlane32_swap_b32 {v(s1)}, {v(s1 + 1)}
v_permlane32_swap_b32 {v(s1 + 2)}, {v(s1 + 3)}
v_permlane32_swap_b32 {v(s2)}, {v(s2 + 1)}
v_permlane32_swap_b32 {v(s2 + 2)}, {v(s2 + 3)}
""")
    for ks in range(3):
        for q in range(16 * ks, 16 * ks + 16):
            if PKN:
                for r in (0, 2):
                    acc = 4 * q + r
                    a(f"v_pk_fma_f32 {v(acc, 2)}, {v(acc, 2)}, {v(s2 + r, 2)}, {v(s1 + r, 2)}")
            else:
                for r in range(4):
                    acc = 4 * q + r
                    a(f"v_fma_f32 {v(acc)}, {v(acc)}, {v(s2 + r)}, {v(s1 + r)}")
        ta = (192, X, X + 16)[ks]
        tb = 208 if ks == 0 else 16 * ks
        for r in range(4):
            base = ta if r < 2 else tb
            for sel in range(2):
                for d in range(4):
                    qp = 8 * ks + 4 * sel + d
                    a(f"v_cvt_pk_bf16_f32 {v(base + 8 * sel + 4 * (r & 1) + d)}, {v(8 * qp + r)}, {v(8 * qp + 4 + r)}")
        a("s_nop 0")
        for base in (ta, tb):
            for i in range(8):
                a(f"v_permlane16_swap_b32 {v(base + i)}, {v(base + 8 + i)}")
        if ks == 0:
            for i in range(16):
                a(f"v_mov_b32 {v(i)}, {v(208 + i)}")
        if ks == 1:
            for i in range(16):
                a(f"v_mov_b32 {v(X + 32 + i)}, {v(192 + i)}")
    stamp(a, 7)
    if DIAG:
        a(f"s_mov_b32 s62, {s(sWave)}")
    stamp_flush(a, 14, 0)
    a(f"""
s_mov_b32 {s(sPair)}, 8
s_mov_b32 {s(sMode)}, 1
s_sub_u32 {s(sA)}, {s(sWave)}, 1
s_cmp_lt_u32 {s(sA)}, {DEFER - 1}
s_cbranch_scc1 L_p2
s_mov_b32 {s(sMode)}, 0
""")
    park(a, TMP)
    a(f"""
s_cmp_lg_u32 {s(sWave)}, 0
s_cbranch_scc1 L_p2
s_setprio 3
s_branch L_xload
L_loader:
""")
    load_groups(a, tuple(range(NLW, 4)), 60)


GROUPS = [(0, 5), (5, 4), (9, 5), (14, 10)]


def load_groups(a, gs, r):
    dma_consts(a, r)
    for gi in gs:
        n0, n = GROUPS[gi]
        wait_flags(a, f"L_wg{gi}", F_DONE + 4 + 8 * (9 + gi))
        for tp, c in PIECES[n0:n0 + n]:
            dma_piece(a, tp, c, r)
        if gi == gs[0] and gi:
            wait_count(a, f"L_wo{gi}", F_RDY, n0)
        a(f"v_mov_b32 {v(vT0)}, {F_RDY}")
        for i in range(n):
            a(f"v_mov_b32 {v(r + 4 + i)}, {n0 + i + 1}")
            a(f"s_waitcnt vmcnt({6 * (n - 1 - i)})")
            a(f"ds_write_b32 {v(vT0)}, {v(r + 4 + i)}")


class Stream:
    def __init__(self, a):
        self.a = a
        self.out = []

    def __call__(self, tx):
        for ln in tx.split("\n"):
            i = Ins(ln)
            if i.states == 0:
                self.a(ln)
                continue
            touch = (i.rd | i.wr) if i.kind != "lds" else set(i.rd)
            need = -1
            for k, d in enumerate(self.out):
                if d & touch:
                    need = k
            if need >= 0:
                n = min(len(self.out) - 1 - need, 14)
                self.a(f"s_waitcnt lgkmcnt({n})")
                self.out = self.out[len(self.out) - n:] if n else []
            self.a(ln)
            if i.kind == "lds":
                self.out.append(set(i.wr))


PSCH = E("PSCH", "prog")
PU = int(E("PU", "12"))


PADG = """v_mov_b32 v20, 0
v_mov_b32 v21, 0
s_mov_b64 exec, 1
buffer_atomic_or v20, v21, s[88:91], 0 offen sc0
s_waitcnt vmcnt(0)
v_readfirstlane_b32 s92, v20
s_not_b32 s92, s92""" if E("PADG") else ""
PAD = f"""L_pad:
{PADG}
L_pad2:
s_sleep 4
s_memrealtime s[94:95]
s_waitcnt lgkmcnt(0)
s_sub_u32 s94, s94, s92
s_cmp_lt_u32 s94, {int(float(E("PADT", "0")) * 100)}
s_cbranch_scc1 L_pad2""" if E("PADT") else ""


def prio_init():
    if PSCH == "prog":
        return f"s_setprio {PM[0]}"
    return f"""s_setprio {PRA}
s_cmp_lt_u32 {s(sWave)}, 4
s_cbranch_scc1 L_mtile
s_setprio {PRB}"""


def phase2(a):
    SH = "dst_sel:DWORD dst_unused:UNUSED_PAD src0_sel:DWORD src1_sel:WORD_1"
    t0, t1 = ACC, ACC + 1
    a("L_p2:")
    for g in range(NLW):
        a(f"s_cmp_lg_u32 {s(sWave)}, {g + 1}\ns_cbranch_scc1 L_nodma{g}\ns_setprio 3")
        load_groups(a, (g,), ACC)
        a(f"L_nodma{g}:")
    wait_count(a, "L_wi", F_INIT, 2)
    a(f"""
v_bfe_u32 {v(t0)}, {v(vL16)}, 6, 2            ; r
v_and_b32 {v(t1)}, 48, {v(vL16)}              ; 16c'
v_lshrrev_b32 {v(t1 + 1)}, 9, {v(vL16)}         ; g>>1
v_lshl_add_u32 {v(t0)}, {v(t1 + 1)}, 3, {v(t0)}   ; row = 8(g>>1) + r
v_lshl_add_u32 {v(vA[1])}, {v(t0)}, 6, {v(t1)}
v_mul_u32_u24 {v(t0)}, 192, {v(t0)}
v_add_u32 {v(vA[2])}, {v(t0)}, {v(t1)}
v_bfe_u32 {v(t0)}, {v(vL16)}, 8, 1            ; g&1
v_mul_u32_u24 {v(t1)}, {DZ}, {v(t0)}
v_add_u32 {v(vA[1])}, {v(vA[1])}, {v(t1)}
v_add_u32 {v(vA[2])}, {v(vA[2])}, {v(t1)}
s_mov_b32 {s(cNB)}, {h2(-BETA)}
s_mov_b32 {s(cS)}, {h2(SC)}
s_mov_b32 {s(cK)}, {f32(SC * 2.0 ** SEXP)}
s_mov_b32 {s(cLo)}, 0x00003f80
s_mov_b32 {s(cHi)}, 0x3f800000
s_mov_b32 {s(sTile)}, 0
s_mov_b32 {s(sRdy)}, 0
{prio_init()}
L_mtile:
""")
    stamp(a, 2)
    stamp_rt(a, 13)
    if E("XL128"):
        for tx in (poff if E("XL128") == "1" else poffn)(XR):
            a(tx)
        a(f"v_mov_b32 {v(vXoff)}, {v(XR)}\ns_mov_b32 s88, {s(sTB)}\ns_mov_b32 s89, {s(sTB + 1)}\ns_add_u32 s90, s88, {2 * ROWB}\ns_add_u32 s91, s89, {2 * ROWB}")
    st = Stream(a)
    zone_now = {1: 0, 2: 0}
    seen = set()

    def slot(f):
        return WS + 4 * (FRAGS.index(f) % NWS)

    def rd(f):
        tp, n = f
        c, k = divmod(n, 6)
        zone, ad, _ = piece_addr(tp, c)
        base = slot(f)
        if zone != zone_now[tp]:
            zone_now[tp] = zone
            st(f"v_bfe_u32 {v(base)}, {v(vL16)}, 8, 1")
            st(f"v_mul_u32_u24 {v(base)}, {DZ - DZ1}, {v(base)}")
            st(f"v_subrev_u32 {v(base)}, {E1}, {v(base)}")
            st(f"v_{'sub' if zone else 'add'}_u32 {v(vA[tp])}, {v(vA[tp])}, {v(base)}")
        if (tp, c) not in seen:
            seen.add((tp, c))
            need = PIECES.index((tp, c)) + 1
            if need > 0:
                lb = f"L_rd{need}"
                a(f"""
s_cmp_ge_u32 {s(sRdy)}, {need}
s_cbranch_scc1 {lb}_go
v_mov_b32 {v(base)}, {F_RDY}
""")
                spin(a, lb, f"v_cmp_le_u32 vcc, {need}, {v(base + 1)}", base, base + 1)
                a(f"""
v_readfirstlane_b32 {s(sRdy)}, {v(base + 1)}
{lb}_go:
""")
                if need == 1:
                    stamp(a, 3)
        off = ad - (E1 if zone else 0)
        for hf in range(2):
            if tp == 1:
                ht, ks = divmod(k, 3)
                o = off + 1024 * ks + 256 * hf + 8 * ht
            else:
                o = off + 768 * hf + 64 * (k // 2) + 8 * (k % 2)
            assert o < 65536
            st(f"ds_read_b64_tr_b16 {v(base + 2 * hf, 2)}, {v(vA[tp])} offset:{o}")

    def xreg(T, Q):
        return X + 8 * (4 * (T // 2) + Q) + 4 * (T % 2)

    def mf(f, Q):
        tp, n = f
        c, k = divmod(n, 6)
        if tp == 1:
            ks = n % 3
            d = ACC + 16 * ((n // 3) % 3) + 4 * Q
            return (f"v_mfma_f32_16x16x32_bf16 {v(d, 4)}, {v(slot(f), 4)}, "
                    f"{v(H + 16 * ks + 4 * Q, 4)}, {'0' if ks == 0 else v(d, 4)}")
        d = xreg(k, Q)
        return (f"v_mfma_f32_16x16x32_bf16 {v(d, 4)}, {v(slot(f), 4)}, "
                f"{v(G + 16 * (c % 2) + 4 * Q, 4)}, {'0' if c == 0 else v(d, 4)}")

    def look(u, i):
        a0 = ACC + 16 * (u % 3) + 2 * i
        return [(4, f"v_lshlrev_b32_sdwa {v(a0)}, 1, {v(a0)} {SH}"),
                (4, f"v_lshlrev_b32_sdwa {v(a0 + 1)}, 1, {v(a0 + 1)} {SH}"),
                (0, f"ds_read_u16_d16 {v(a0)}, {v(a0)}"),
                (0, f"ds_read_u16_d16_hi {v(a0 + 1)}, {v(a0 + 1)}")]

    def greg(u, i):
        c, ht = divmod(u, 2)
        return G + 16 * (c % 2) + 4 * (i // 2) + 2 * ht + i % 2

    def nexp(u):
        return EXPK[u % len(EXPK)]

    def comb(u, i):
        a0 = ACC + 16 * (u % 3) + 2 * i
        return [(4, f"v_or_b32 {v(greg(u, i))}, {v(a0)}, {v(a0 + 1)}")]

    def expo(u):
        LO = "dst_sel:WORD_0 dst_unused:UNUSED_PRESERVE src0_sel:WORD_0"
        HI = "dst_sel:WORD_1 dst_unused:UNUSED_PRESERVE src0_sel:WORD_1"
        ch1, ch2 = [], []
        for i in range(8 - nexp(u), 8):
            b, t, r = v(ACC + 16 * (u % 3) + 2 * i), v(ACC + 16 * (u % 3) + 2 * i + 1), v(greg(u, i))
            ch1.append([(4, f"v_fma_mixlo_f16 {b}, {b}, {s(cK)}, 0"),
                        (4, f"v_fma_mixhi_f16 {b}, {t}, {s(cK)}, 0"),
                        (4, f"v_pk_fma_f16 {t}, {b}, {b}, {s(cNB)} neg_lo:[0,1,0] neg_hi:[0,1,0]"),
                        (4, f"v_pk_mul_f16 {t}, {t}, {b}"),
                        (8, f"v_exp_f16_sdwa {t}, {t} {LO}"),
                        (8, f"v_exp_f16_sdwa {t}, {t} {HI}"),
                        (4, f"v_pk_fma_f16 {t}, {t}, {s(cS)}, {s(cS)}")])
            ch2.append([(8, f"v_rcp_f16_sdwa {t}, {t} {LO}"),
                        (8, f"v_rcp_f16_sdwa {t}, {t} {HI}"),
                        (4, f"v_fma_mix_f32 {r}, {b}, {t}, 0 op_sel_hi:[1,1,0]"),
                        (4, f"v_fma_mix_f32 {t}, {b}, {t}, 0 op_sel:[1,1,0] op_sel_hi:[1,1,0]"),
                        (4, f"v_cvt_pk_bf16_f32 {r}, {r}, {t}")])
        return ch1, ch2

    def weave(chains):
        out = []
        n = max([len(c) for c in chains], default=0)
        for k in range(n):
            need_pad = sum(1 for c in chains if k < len(c)) == 1
            out += [c[k] + (need_pad,) for c in chains if k < len(c)]
        return out

    extra = {}

    def put(u, m, tx):
        extra.setdefault((u, m), []).append(tx)

    put(23, 0, "s_waitcnt vmcnt(0)")
    for tx in poff(XR):
        put(23, 0, tx)
    for g in range(0 if NOPARK else 12):
        ks = (1, 2, 0)[g // 4]
        put(23, g, f"buffer_load_dwordx4 {v(H + 16 * ks + 4 * (g % 4), 4)}, {paddr(g, XR)}{HLF}")

    for tx in poffn(XR):
        put(24, 2, tx)
    def rgroups(rho):
        oy, ln = divmod(rho, 3)
        return [4 * (p % 3) + 2 * oy + p // 3 for p in (2 * ln, 2 * ln + 1)]

    def xload(rho):
        if E("XL128"):
            return [f"buffer_load_dwordx4 {v(XR + 4 * e, 4)}, {v(vXoff)}, {s(sX, 4)}, {s(88 + (2 * rho + e) // 3)} offen offset:{128 * ((2 * rho + e) % 3)}{XFF}" for e in range(2)]
        return [f"buffer_load_dwordx4 {v(XR + 4 * e, 4)}, {v(vXoff)}, {s(sX, 4)}, {goff(g, sTB)}{XFF}"
                for e, g in enumerate(rgroups(rho)) if not NOX]

    for tx in xload(0):
        put(RU0 - 3, 22, tx)
    for rho in range(6):
        u = RU0 + 3 * rho
        act = {f[1] % 6: 4 * i for i, f in enumerate(STEPS[u]) if f[0] == 2}
        used = []
        for e, g in enumerate(rgroups(rho)):
            tp, Q = divmod(g, 4)
            for tl in range(2):
                T = 2 * tp + tl
                m = 5
                while any(abs(m - x) < 2 for x in used) or (T in act and act[T] + Q - 4 < m < act[T] + Q + 5):
                    m += 1
                assert m < 21
                used.append(m)
                for r in range(4):
                    d = xreg(T, Q) + r
                    put(u, m + r // 2, "s_nop 0" if NOX else f"v_dot2_f32_bf16 {v(d)}, {v(XR + 4 * e + 2 * tl + r // 2)}, "
                                       f"{s(cHi if r % 2 else cLo)}, {v(d)}")
        if not E("NOXW"):
            extra[(u, min(used))].insert(0, "s_waitcnt vmcnt(0)")
        if rho < 5:
            for tx in xload(rho + 1):
                put(u, max(used) + 1, tx)

    def hook():
        a(f"""
s_cmp_eq_u32 {s(sMode)}, 0
s_cbranch_scc1 L_rdh_go
v_mov_b32 {v(XR)}, {F_ISS}
""")
        spin(a, "L_wi9", f"v_cmp_eq_u32 vcc, 9, {v(XR + 1)}", XR, XR + 1)
        park(a, XR)
        a(f"s_mov_b32 {s(sMode)}, 0\nL_rdh_go:")
        stamp(a, 1)

    for f in FRAGS[:NWS]:
        rd(f)
    a(f"s_waitcnt vmcnt({13 if DIAG else 12})")
    def steps(u0, u1, fl):
      for u in range(u0, u1):
        if PSCH == "prog" and u == PU:
            a(f"s_cmp_eq_u32 {s(sTile)}, 0\ns_cbranch_scc1 L_pu\ns_setprio {PM[2]}\nL_pu:")
        grp = []
        for i in range(8):
            g = []
            if 0 <= u - 1 < 24 and i < 8 - nexp(u - 1):
                g += comb(u - 1, i)
            if 0 <= u < 24 and i < 8 - nexp(u):
                g += look(u, i)
            if g:
                grp.append(g)
        ex = weave((expo(u - 1)[1] if 0 <= u - 1 < 24 else []) + (expo(u)[0] if 0 <= u < 24 else []))
        flat = [t for g in grp for t in g]
        seq = []
        tl, te = sum(t[0] for t in flat), sum(t[0] for t in ex)
        cl = ce = il = ie = 0
        lastpad = False
        while il < len(flat) or ie < len(ex):
            take_ex = ie < len(ex) and (il >= len(flat) or (flat[il][0] and ce * max(tl, 1) < cl * max(te, 1)))
            if take_ex and lastpad and il < len(flat):
                take_ex = False
            if take_ex:
                if lastpad:
                    seq.append((4, "s_nop 0"))
                seq.append(ex[ie][:2])
                lastpad = ex[ie][2]
                ce += ex[ie][0]
                ie += 1
            else:
                seq.append(flat[il])
                lastpad = False
                cl += flat[il][0]
                il += 1
        if u == UH:
            seq += [(0, hook)]
        lead = 4 if 0 <= u < 4 else 0
        tot = sum(t[0] for t in seq)
        mfs = [(f, Q) for f in STEPS[u] for Q in range(4)]
        nm = len(mfs)
        k = cyc = 0
        for m, (f, Q) in enumerate(mfs):
            st(mf(f, Q))
            if Q == 3 and FRAGS.index(f) + NWS < len(FRAGS):
                rd(FRAGS[FRAGS.index(f) + NWS])
            if m >= lead:
                tgt = tot * (m - lead + 1) / max(nm - lead - TRAIL, 1)
                while k < len(seq) and (cyc < tgt or seq[k][0] == 0):
                    st(seq[k][1]) if isinstance(seq[k][1], str) else seq[k][1]()
                    cyc += seq[k][0]
                    k += 1
            for tx in extra.pop((u, m), []):
                st(tx)
            if u >= 25:
                g = (f[1] - 66) * 4 + Q - 12
                if g >= 0 and (g // 4) % 2 == 0:
                    epi(st, 4 * (g // 8) + g % 4)
        assert k == len(seq)

    def finish(fl):
        steps(25, 27, fl)
        assert not extra and not st.out and zone_now == {1: 0, 2: 0}
        stamp(a, 8)
        for oy in range(2):
            line_out(st, oy, 0, fl)
        for oy in range(2):
            epi(st, 8 + 2 * oy)
            epi(st, 9 + 2 * oy)
            line_out(st, oy, 1, fl)
            line_out(st, oy, 2, fl)

    steps(-1, 25, None)
    if STF2 is not None:
        a(f"s_cmp_eq_u32 {s(sTile)}, 0\ns_cbranch_scc1 L_fin1")
        keep = list(st.out)
        finish(STF2)
        a("s_branch L_fin2\nL_fin1:\ns_nop 7")
        st.out = keep
    finish(STF)
    a("L_fin2:")
    if DIAG:
        stamp(a, 9)
        stamp_rt(a, 11)
        a(f"s_lshl_b32 s62, {s(sTile)}, 3\ns_xor_b32 s62, s62, 8\ns_add_u32 s62, s62, {s(sWave)}")
        stamp_flush(a, 14, 1, t0, t1)
    a(f"""
s_cmp_lg_u32 {s(sTile)}, 0
s_cbranch_scc1 {"L_pad" if E("PADT") else "L_end"}
s_mov_b32 {s(sTile)}, 1
s_mov_b32 {s(sTB)}, {s(sNB)}
s_mov_b32 {s(sTB + 1)}, {s(sNB + 1)}
s_mov_b32 {s(sNB)}, {BIG}
s_mov_b32 {s(sNB + 1)}, {BIG}
{f"s_setprio {PM[1]}" if PSCH == "prog" else ""}
s_branch L_mtile
{PAD}
L_end:
s_endpgm
""")


def epi(st, g):
    b = X + 8 * g
    for d in range(4):
        st(f"v_cvt_pk_bf16_f32 {v(b + d)}, {v(b + 2 * d)}, {v(b + 2 * d + 1)}")


def line_out(st, oy, ln, fl):
    ga, gb = [4 * (p % 3) + 2 * oy + p // 3 for p in (2 * ln, 2 * ln + 1)]
    A, B = X + 8 * ga, X + 8 * gb
    for d in range(4):
        st(f"v_mov_b32 {v(A + 4 + d)}, {v(A + d)}")
    for d in range(4):
        st(f"v_mov_b32_dpp {v(A + d)}, {v(B + d)} row_ror:8 row_mask:0xf bank_mask:0xc")
    for d in range(4):
        st(f"v_mov_b32_dpp {v(B + d)}, {v(A + 4 + d)} row_ror:8 row_mask:0xf bank_mask:0x3")
    for e, r in enumerate((A, B)):
        st(f"buffer_store_dwordx4 {v(r, 4)}, {v(XR + e)}, {s(sO, 4)}, {s(sTB + oy)} offen offset:{128 * ln}{fl}")


def descriptor(a, name, nv, ns):
    a(f"""
.p2align 6
.amdhsa_kernel {name}
  .amdhsa_next_free_vgpr {nv}
  .amdhsa_next_free_sgpr {ns}
  .amdhsa_accum_offset {(nv + 3) // 4 * 4}
  .amdhsa_group_segment_fixed_size 0
  .amdhsa_kernarg_size 64
  .amdhsa_user_sgpr_count 2
  .amdhsa_user_sgpr_kernarg_segment_ptr 1
  .amdhsa_system_sgpr_workgroup_id_x 1
  .amdhsa_float_denorm_mode_32 3
.end_amdhsa_kernel
""")


def main():
    here = os.path.dirname(os.path.abspath(__file__))
    ref = open(os.path.join(here, "..", NAME + ".s.ref")).read().split("\n")
    head = [l for l in ref if l.startswith(";") and "@launch" not in l]
    a = Asm()
    for l in head:
        a(l)
    a(f"; @launch grid=(256,1,1) block=(512,1,1) lds={LDS_BYTES}")
    a('.amdgcn_target "amdgcn-amd-amdhsa--gfx950"')
    a(".text")
    prologue(a)
    phase1(a)
    phase2(a)
    probs = check_hazards(a.lines)
    fast, skip = [], None
    for ln in a.lines:
        t = ln.strip()
        if skip:
            if t == skip + ":":
                skip = None
            continue
        fast.append(ln)
        if t.startswith("s_cbranch_scc1 L_rd") and t.endswith("_go"):
            skip = t.split()[1]
    probs += check_hazards(fast)
    for p in probs:
        print("HAZARD:", p)
    a('.section .rodata,"a"')
    descriptor(a, NAME + "_kernel", 256, 100)
    out = sys.argv[1] if len(sys.argv) > 1 else os.path.join(here, "..", NAME + ".s")
    open(out, "w").write(a.text())
    print("wrote", out, "lines", len(a.lines), "hazards", len(probs), "lds", LDS_BYTES)


if __name__ == "__main__":
    main()
```

```python
import math
import struct
import sys
import os

import numpy as np

sys.path.insert(0, os.path.dirname(os.path.abspath(__file__)))
from asmlib import Asm, Ins, v, s, check_hazards

NAME = "standalone__modern_conv_block_replknet__vision"
E = os.environ.get
DIAG = E("DIAG", "0") == "1"
STF = E("STF", " sc1")
XLF, PKF, HLF, XFF = E("XLF", " sc1"), E("PKF", " sc1"), E("HLF", ""), E("XFF", " sc1")
EXPK = [int(c) for c in E("EXPK", "0")]
TRAIL = int(E("TRAIL", "2"))
PKN = E("PKN", "1") == "1"
PKS = E("PKS", "1") == "1"
PCV, PLN = int(E("PCV", "2")), int(E("PLN", "2"))
PM = [int(c) for c in E("PM", "110")]
STF2 = E("STF2")
DEFER = int(E("DEFER", "1"))
NPRE = 1
ILV = E("ILV", "0") == "1"
NLW = int(E("NLW", "1"))
WPF = int(E("WPF", "-1"))
NOX, NOPARK, NOST = E("NOX"), E("NOPARK"), E("NOST")
UH = 2
RU0 = 7
PRA, PRB = int(E("PRA", "0")), int(E("PRB", "1"))
sStamp = 64


def f32(x):
    return "0x%08x" % struct.unpack("<I", struct.pack("<f", x))[0]


def h2(x):
    b = int(np.float16(x).view(np.uint16))
    return "0x%08x" % (b | (b << 16))


KAPPA = 2.0 * math.sqrt(2.0 / math.pi) * math.log2(math.e)
BETA = float(np.float16(KAPPA / (KAPPA * 0.044715) ** (1.0 / 3.0)))
SC = KAPPA / BETA
BIG = 0x40000000
NBIN = 28
SEXP = 111

XBYTES = 512 * 512 * 96 * 2
ROWB = 512 * 192
WS_END = 256 * 8 * 12288
WS_STAMP = 0x2000000
TW = NBIN * 256
TABP, TABN = 0, 65536
E0 = TW
DZ = 65544
E1 = E0 + DZ + 19 * 3072
DZ1 = 5 * 3072 + 8
L_FLAG = E1 + DZ1 + 5 * 3072
LDS_BYTES = L_FLAG + 256
assert L_FLAG % 16 == 0 and LDS_BYTES <= 163840 and E0 + 19 * 3072 <= 65536
OS = 584
RS = 7104
SS = 14336
RL = E0
RU = TABN + TW + 128
TL = RL + 3 * SS
TU = RU + 2 * SS + RS + 12 * OS
assert TL + 15360 <= 65536 and TU % 16 == 0 and TU + 15360 <= E1 and RL % 256 == 0 and RU % 256 == 128
R3L = (E1 + 255) // 256 * 256
R3U = R3L + 2 * RS
assert R3U % 256 == 128 and R3U + RS + 12 * OS <= L_FLAG
F_STG = L_FLAG
F_DONE = L_FLAG + 40
F_TRDY = L_FLAG + 160
F_ISS = L_FLAG + 164
F_RDY = L_FLAG + 168
F_INIT = L_FLAG + 172
F_WRAW = L_FLAG + 176
WTMP = RL + SS


def kap(ch, q):
    return 32 * (q >> 4) + 16 * ch + (q & 15)


def coff(c):
    return (c // 8) * OS + (c % 8) * 72


STEPS = {u: [(tp, n) for i in range(3) for tp, n in ((1, 3 * (u + 1) + i), (2, 3 * (u - 3) + i)) if 0 <= n < 72]
         for u in range(-1, 27)}
FRAGS = [f for u in range(-1, 27) for f in STEPS[u]]
PIECES = []
for tp_, n_ in FRAGS:
    if (tp_, n_ // 6) not in PIECES:
        PIECES.append((tp_, n_ // 6))
assert len(PIECES) == 24 and len(FRAGS) == 144


def piece_addr(tp, c):
    i = PIECES.index((tp, c))
    if i < 5:
        return 1, E1 + 3072 * i, DZ1
    return 0, E0 + 3072 * (i - 5), DZ


SB = 48
TS = 192
DS = 212
TMP = 232
vL16, vT0, vT1 = 253, 254, 255
vFl, vTa, vCA, vLdA, vLdB, vSt, vCv, vK = 240, 241, 244, 247, 248, 249, 250, 251
H = 0
X = 48
G = 144
ACC = 176
WS = 224
NWS = 5
XR = 244
vXoff = 252
vA = {1: 254, 2: 255}

NE = 4
NSL = 5

sX, sO, sW = 4, 8, 12
sWave, sTile, sPair, sRdy = 16, 17, 18, 19
sSelLo, sSelHi = 20, 21
sX0, sY0 = 22, 23
sTB = 24
sA, sB, sC, sD = 26, 27, 28, 29
sR = 30
sNB = 36
sMode = 38
sRot = 39
sI1, sI2 = 40, 44
sDL, sDS = 48, 52
sEL, sER, sE1 = 80, 81, 82
cNB, cS, cLo, cHi, cK = 84, 85, 86, 87, 83


def stamp(a, k):
    if DIAG:
        a(f"s_waitcnt lgkmcnt(0)\ns_memtime s[60:61]\ns_waitcnt lgkmcnt(0)\ns_mov_b32 {s(sStamp + k)}, s60")


def stamp_rt(a, k):
    if DIAG:
        a(f"s_waitcnt lgkmcnt(0)\ns_memrealtime s[60:61]\ns_waitcnt lgkmcnt(0)\ns_mov_b32 {s(sStamp + k)}, s60")


def stamp_flush(a, n, rec, vT0=vT0, vT1=vT1):
    if DIAG:
        a(f"s_mov_b32 {s(sStamp + 12)}, {s(sWave)}")
        a(f"v_mov_b32 {v(vT0)}, 0")
        for k in range(n):
            a(f"v_writelane_b32 {v(vT0)}, {s(sStamp + k)}, {k}")
        a(f"""s_lshl_b32 s60, s2, 4
s_add_u32 s60, s60, s62
s_lshl_b32 s60, s60, 7
s_add_u32 s60, s60, {WS_STAMP + 64 * rec}
v_lshrrev_b32 {v(vT1)}, 2, {v(vL16)}
s_mov_b32 exec_lo, 0xffff
s_mov_b32 exec_hi, 0
buffer_store_dword {v(vT0)}, {v(vT1)}, {s(sW, 4)}, s60 offen
s_mov_b64 exec, -1
s_nop 1""")


def srd(a, d, lo, nbytes):
    a(f"""s_mov_b32 {s(d)}, {s(lo)}
s_and_b32 {s(d + 1)}, {s(lo + 1)}, 0xffff
s_mov_b32 {s(d + 2)}, {nbytes}
s_mov_b32 {s(d + 3)}, 0x20000""")


def spin(a, label, cmp, t0=vT0, t1=vT1):
    a(f"""
s_mov_b32 {s(sD)}, 200000
{label}:
ds_read_b32 {v(t1)}, {v(t0)}
s_waitcnt lgkmcnt(0)
{cmp}
s_cmp_eq_u64 vcc, exec
s_cbranch_scc1 {label}_ok
s_sleep 2
s_sub_u32 {s(sD)}, {s(sD)}, 1
s_cmp_lg_u32 {s(sD)}, 0
s_cbranch_scc1 {label}
{label}_ok:
""")


def wait_flags(a, label, addr):
    a(f"v_add_u32 {v(vT0)}, {addr}, {v(vFl)}")
    spin(a, label, f"v_cmp_ne_u32 vcc, 0, {v(vT1)}")


def wait_count(a, label, addr, n, op="eq"):
    a(f"v_mov_b32 {v(vT0)}, {addr}")
    spin(a, label, f"v_cmp_{op}_u32 vcc, {n}, {v(vT1)}")


def count(a, addr):
    a(f"""
v_mov_b32 {v(vT0)}, {addr}
v_mov_b32 {v(vT1)}, 1
s_waitcnt lgkmcnt(0)
s_mov_b64 exec, 1
ds_add_u32 {v(vT0)}, {v(vT1)}
s_mov_b64 exec, -1
""")


def issue_loads(a):
    a(f"""
s_lshl_b32 {s(sA)}, {s(sPair)}, 2
s_add_u32 {s(sA)}, {s(sA)}, {s(sY0)}
s_lshl_b32 {s(sB)}, {s(sA)}, 9
s_add_u32 {s(sB)}, {s(sB)}, {s(sX0)}
s_mul_i32 {s(sB)}, {s(sB)}, 192
s_cmp_lt_u32 {s(sA)}, 2
s_cselect_b64 vcc, s[58:59], 0
v_mov_b32 {v(vLdB)}, {BIG}
s_sub_u32 {s(sC)}, {s(sB)}, {2 * ROWB}
v_add_u32 {v(vT1)}, {s(sC)}, {v(vLdA)}
v_cndmask_b32 {v(vLdB)}, {v(vT1)}, {v(vLdB)}, vcc
v_add_u32 {v(vT1)}, -384, {v(vLdB)}
""")
    for xq in range(9):
        for i in range(4):
            off = 768 * xq + 192 * i - 384
            if xq == 0 and i < 2:
                a(f"buffer_load_dwordx4 {v(SB + 4 * i, 4)}, {v(vT1)}, {s(sX, 4)}, {s(sEL)} offen offset:{192 * i}{XLF}")
                continue
            elif xq == 8 and i >= 2:
                so, im = sER, off - 3840
            elif off < 3840:
                so, im = "0", off
            else:
                so, im = sE1, off - 3840
            so = so if isinstance(so, str) else s(so)
            a(f"buffer_load_dwordx4 {v(SB + 16 * xq + 4 * i, 4)}, {v(vLdB)}, {s(sX, 4)}, {so} offen offset:{im}{XLF}")


def dma_consts(a, r):
    a(f"""
v_lshrrev_b32 {v(r)}, 9, {v(vL16)}             ; l>>5
v_mul_u32_u24 {v(r + 1)}, 1536, {v(r)}
v_add_u32 {v(r + 1)}, {v(r + 1)}, {v(vL16)}
v_bfe_u32 {v(vT0)}, {v(vL16)}, 6, 3            ; (l>>2)&7
v_lshl_add_u32 {v(r)}, {v(r)}, 4, {v(vT0)}
v_mul_u32_u24 {v(r)}, 768, {v(r)}
v_and_b32 {v(vT0)}, 48, {v(vL16)}
v_add_u32 {v(r)}, {v(r)}, {v(vT0)}             ; w1
""")


def dma_piece(a, tp, c, r):
    _, ad, dz = piece_addr(tp, c)
    a(f"""
s_add_u32 {s(sA)}, {s(sRot)}, {c}
s_cmp_ge_u32 {s(sA)}, 12
s_cselect_b32 {s(sB)}, 12, 0
s_sub_u32 {s(sA)}, {s(sA)}, {s(sB)}
s_mul_i32 {s(sA)}, {s(sA)}, {64 if tp == 1 else 6144}
""")
    for par in range(2):
        a(f"s_mov_b32 m0, {ad + par * dz}")
        if tp == 1:
            for ks in range(3):
                a(f"s_add_u32 {s(sR + ks)}, {s(sA)}, {(32 * ks + 8 * par) * 768 - 1024 * ks}")
            for ks in range(3):
                a(f"buffer_load_dwordx4 {v(r)}, {s(sI1, 4)}, {s(sR + ks)} offen offset:{1024 * ks} lds")
        else:
            a(f"s_add_u32 {s(sR)}, {s(sA)}, {1536 * par}")
            a(f"s_add_u32 {s(sR + 1)}, {s(sA)}, {1536 * par + 1536}")
            a(f"buffer_load_dwordx4 {v(vL16)}, {s(sI2, 4)}, {s(sR)} offen lds")
            a(f"buffer_load_dwordx4 {v(r + 1)}, {s(sI2, 4)}, {s(sR)} offen offset:1024 lds")
            a(f"buffer_load_dwordx4 {v(vL16)}, {s(sI2, 4)}, {s(sR + 1)} offen offset:2048 lds")


XADJ = f"""v_lshrrev_b32 v3, 5, v0
v_mul_u32_u24 v3, {2 * ROWB}, v3
v_bfe_u32 v4, v0, 2, 3
v_mul_u32_u24 v4, 768, v4
v_add_u32 v3, v3, v4
v_and_b32 v4, 3, v0
v_lshl_add_u32 {v(vXoff)}, v4, 4, v3""" if E("XADJ") else ""


def prologue(a):
    k = NAME + "_kernel"
    a(f"""
.globl {k}
.p2align 8
.type {k},@function
{k}:
s_cmp_ge_u32 s2, 256
s_cbranch_scc1 L_end
s_load_dwordx8 s[64:71], s[0:1], 0
s_load_dwordx4 s[72:75], s[0:1], 32
{"s_load_dwordx2 s[76:77], s[0:1], 56" if DIAG else ""}
{"s_memrealtime s[92:93]" if E("PADT") else ""}
s_setprio 3
v_mov_b32 v14, v0                ; tid
v_lshrrev_b32 v1, 6, v0
v_and_b32 v0, 63, v0
v_mov_b32 v10, {BIG}
v_readfirstlane_b32 {s(sWave)}, v1
v_lshlrev_b32 v2, 2, v0
v_add_u32 v2, {L_FLAG}, v2
v_add_u32 v3, -10, v0
v_cmp_gt_u32 vcc, 10, v3
v_cmp_eq_u32 s[56:57], 36, v0
s_or_b64 vcc, vcc, s[56:57]
v_cndmask_b32 v3, 0, 1, vcc
v_lshlrev_b32 {v(vL16)}, 4, v0
v_min_u32 {v(vFl)}, 1, v0
ds_write_b32 v2, v3
v_lshlrev_b32 {v(vFl)}, 2, {v(vFl)}
s_and_b32 {s(sA)}, s2, 3
s_lshl_b32 {s(sA)}, {s(sA)}, 2
s_bfe_u32 {s(sB)}, s2, 0x20003
s_add_u32 {s(sA)}, {s(sA)}, {s(sB)}
s_lshl_b32 {s(sX0)}, {s(sA)}, 5
s_bfe_u32 {s(sA)}, s2, 0x10002
s_lshl_b32 {s(sA)}, {s(sA)}, 3
s_lshr_b32 {s(sB)}, s2, 5
s_add_u32 {s(sA)}, {s(sA)}, {s(sB)}
s_lshl_b32 {s(sY0)}, {s(sA)}, 5
; staging lane map: row = l/12, o = l%12 (lanes < 48)
v_mul_u32_u24 v12, 43, v0
v_lshrrev_b32 v12, 9, v12          ; row
v_mul_u32_u24 v13, 12, v12
v_sub_u32 v13, v0, v13             ; o
v_mul_u32_u24 v5, {ROWB}, v12
v_lshl_add_u32 v5, v13, 4, v5
v_cmp_gt_u32 vcc, 48, v0
v_cmp_gt_u32 s[58:59], 24, v0    ; rows 0,1
s_cmp_eq_u32 {s(sX0)}, 0
s_cselect_b32 {s(sEL)}, {BIG}, 0
v_cndmask_b32 {v(vLdA)}, v10, v5, vcc
s_mov_b32 {s(sE1)}, 3840
s_cmp_eq_u32 {s(sX0)}, 480
s_cselect_b32 {s(sER)}, {BIG}, {s(sE1)}
s_mov_b32 {s(sPair)}, {s(sWave)}
v_add_u32 v15, -256, v14             ; waves 4..7: 0..255
s_waitcnt lgkmcnt(0)
s_barrier
""")
    srd(a, sX, 64, XBYTES)
    srd(a, sDL, 66, 9 * 96 * 2)
    srd(a, sDS, 68, 25 * 96 * 2)
    srd(a, sI1, 70, 96 * 384 * 2)
    srd(a, sI2, 72, 96 * 384 * 2)
    srd(a, sO, 74, XBYTES)
    if DIAG:
        srd(a, sW, 76, WS_STAMP + 0x100000)
    if E("PADG"):
        a("""s_load_dwordx2 s[88:89], s[0:1], 48
s_waitcnt lgkmcnt(0)
s_and_b32 s89, s89, 0xffff
s_mov_b32 s90, 256
s_mov_b32 s91, 0x20000
s_not_b32 s94, s92
v_mov_b32 v20, s94
v_mov_b32 v21, 0
s_cmp_lg_u32 s16, 7
s_cbranch_scc1 L_noat
s_mov_b64 exec, 1
buffer_atomic_umax v20, v21, s[88:91], 0 offen
s_mov_b64 exec, -1
L_noat:""")
    stamp(a, 0)
    stamp_rt(a, 10)
    a(f"""
s_cmp_lg_u32 {s(sWave)}, 0
s_cbranch_scc1 L_pb
s_mov_b32 m0, {WTMP}
s_mov_b32 {s(sA)}, 4096
""")
    for i in range(4):
        a(f"buffer_load_dwordx4 {v(vL16)}, {s(sDS, 4)}, 0 offen offset:{1024 * i} lds")
    a(f"s_mov_b32 m0, {WTMP + 4096}\ns_nop 0\nbuffer_load_dwordx4 {v(vL16)}, {s(sDS, 4)}, {s(sA)} offen lds")
    a(f"s_mov_b32 m0, {WTMP + 5120}\ns_nop 0")
    for i in range(2):
        a(f"buffer_load_dwordx4 {v(vL16)}, {s(sDL, 4)}, 0 offen offset:{1024 * i} lds")
    stamp(a, 9)
    issue_loads(a)
    a(f"""
v_mov_b32 {v(vT0)}, {F_ISS}
v_mov_b32 {v(vT1)}, 1
ds_write_b32 {v(vT0)}, {v(vT1)}
s_waitcnt vmcnt(36)
ds_write_b32 {v(vT0)}, {v(vT1)} offset:{F_WRAW - F_ISS}
""")
    stamp(a, 11)
    a(f"""
L_pb:
s_mov_b32 {s(sSelLo)}, 0x05040100
s_mov_b32 {s(sSelHi)}, 0x07060302
s_lshr_b32 {s(sA)}, s2, 3
s_mul_i32 {s(sB)}, {s(sA)}, 43
s_lshr_b32 {s(sB)}, {s(sB)}, 9
s_mul_i32 {s(sB)}, {s(sB)}, 12
s_sub_u32 {s(sRot)}, {s(sA)}, {s(sB)}       ; (wg>>3) % 12
v_bfe_u32 v1, v0, 3, 1
v_lshrrev_b32 v2, 5, v0          ; ch'
v_bfe_u32 v3, v0, 4, 1           ; dyp
v_bfe_u32 v4, v0, 2, 1           ; oy
v_sub_u32 v3, v3, v4             ; dyp-oy
v_and_b32 v4, 3, v0
v_mul_u32_u24 v5, {TU - TL}, v1
v_lshl_add_u32 v5, v4, 4, v5
v_add_u32 v5, {TL}, v5
v_cmp_eq_u32 s[56:57], v1, v2
v_add_u32 v6, 0, v3
v_cmp_gt_u32 vcc, 5, v6
v_lshl_add_u32 v7, v6, 6, v5
s_and_b64 vcc, vcc, s[56:57]
v_cndmask_b32 {v(vTa)}, v10, v7, vcc
v_add_u32 v6, 2, v3
v_lshl_add_u32 v7, v6, 6, v5
v_cndmask_b32 {v(vTa + 1)}, v10, v7, s[56:57]
v_add_u32 v6, 4, v3
v_cmp_gt_u32 vcc, 5, v6
v_lshl_add_u32 v7, v6, 6, v5
s_and_b64 vcc, vcc, s[56:57]
v_cndmask_b32 {v(vTa + 2)}, v10, v7, vcc
v_mul_u32_u24 v2, {2 * OS}, v2
v_and_b32 v3, 7, v0
v_lshl_add_u32 {v(vCv)}, v3, 3, v2
v_mul_u32_u24 v3, 768, v3
v_mul_u32_u24 v4, {2 * ROWB}, v1
v_add_u32 v3, v3, v4
v_lshrrev_b32 v4, 4, v0
v_lshl_add_u32 {v(vXoff)}, v4, 4, v3
{XADJ}
v_bfe_u32 v3, v0, 4, 1
v_mul_u32_u24 v3, {RS}, v3
v_add_u32 {v(vCv)}, {v(vCv)}, v3
v_cmp_eq_u32 s[56:57], 1, v1
v_and_b32 v5, 1, v12
v_mul_u32_u24 v5, {RS}, v5
v_mul_u32_u24 v6, {OS}, v13
v_add_u32 {v(vSt)}, v5, v6
s_lshl_b32 {s(sA)}, {s(sWave)}, 2
s_add_u32 {s(sA)}, {s(sA)}, {s(sY0)}
s_lshl_b32 {s(sA)}, {s(sA)}, 9
s_add_u32 {s(sA)}, {s(sA)}, {s(sX0)}
s_mul_i32 {s(sNB)}, {s(sA)}, 192
s_add_u32 {s(sNB + 1)}, {s(sNB)}, {ROWB}
s_add_u32 {s(sTB)}, {s(sNB)}, 384
s_add_u32 {s(sTB + 1)}, {s(sTB)}, {ROWB}
s_cmp_lt_u32 {s(sWave)}, {NPRE}
s_cbranch_scc1 L_perm
s_cmp_lt_u32 {s(sWave)}, 4
s_cbranch_scc1 L_xload
""")
    wait_count(a, "L_wraw", F_WRAW, 1)
    for r in range(2):
        b = 128 + 16 * r
        a(f"""
v_add_u32 v1, {256 * r}, v15         ; task
v_mul_u32_u24 v{b}, 683, v1
v_lshrrev_b32 v{b}, 16, v{b}         ; dy
v_mul_u32_u24 v{b + 1}, 96, v{b}
v_sub_u32 v{b + 1}, v1, v{b + 1}     ; c
v_mul_u32_u24 v2, 960, v{b}
v_lshl_add_u32 v2, v{b + 1}, 1, v2
v_add_u32 v1, -1, v{b}
v_mul_u32_u24 v3, 576, v1
v_lshl_add_u32 v3, v{b + 1}, 1, v3
v_cmp_gt_u32 vcc, 3, v1
s_nop 1
v_cndmask_b32 v3, v10, v3, vcc
""")
        for jx in range(5):
            a(f"ds_read_u16 v{b + 4 + jx}, v2 offset:{WTMP + 192 * jx}")
        for jx in range(3):
            a(f"ds_read_u16 v{b + 9 + jx}, v3 offset:{WTMP + 5120 + 192 * jx}")
    a("s_waitcnt lgkmcnt(0)")
    for r in range(2):
        b = 128 + 16 * r
        w = b + 4
        o = 160 + 16 * r
        for jx in range(8):
            a(f"v_lshlrev_b32 v{w + jx}, 16, v{w + jx}")
        a(f"""
v_add_f32 v{w + 1}, v{w + 1}, v{w + 5}
v_add_f32 v{w + 2}, v{w + 2}, v{w + 6}
v_add_f32 v{w + 3}, v{w + 3}, v{w + 7}
v_mov_b32 v1, 0
v_cvt_pk_bf16_f32 v{o}, v{w}, v{w + 1}
v_cvt_pk_bf16_f32 v{o + 1}, v{w + 2}, v{w + 3}
v_cvt_pk_bf16_f32 v{o + 2}, v{w + 4}, v1
v_mov_b32 v{o + 3}, 0
v_cvt_pk_bf16_f32 v{o + 4}, v1, v{w}
v_cvt_pk_bf16_f32 v{o + 5}, v{w + 1}, v{w + 2}
v_cvt_pk_bf16_f32 v{o + 6}, v{w + 3}, v{w + 4}
v_mov_b32 v{o + 7}, 0
v_mov_b32 v{o + 8}, 0
v_mov_b32 v{o + 9}, v{o}
v_mov_b32 v{o + 10}, v{o + 1}
v_mov_b32 v{o + 11}, v{o + 2}
v_mov_b32 v{o + 12}, 0
v_mov_b32 v{o + 13}, v{o + 4}
v_mov_b32 v{o + 14}, v{o + 5}
v_mov_b32 v{o + 15}, v{o + 6}
v_lshrrev_b32 v2, 5, v{b + 1}
v_and_b32 v3, 15, v{b + 1}
v_lshl_add_u32 v2, v2, 4, v3
v_mul_u32_u24 v2, 320, v2
v_bfe_u32 v3, v{b + 1}, 4, 1
v_mul_u32_u24 v3, {TU - TL}, v3
v_add_u32 v2, v2, v3
v_lshl_add_u32 v2, v{b}, 6, v2
v_add_u32 v2, {TL}, v2
v_cmp_gt_u32 vcc, 5, v{b}
s_nop 1
v_cndmask_b32 v2, v10, v2, vcc
ds_write_b128 v2, v[{o}:{o + 3}]
ds_write_b128 v2, v[{o + 4}:{o + 7}] offset:16
ds_write_b128 v2, v[{o + 8}:{o + 11}] offset:32
ds_write_b128 v2, v[{o + 12}:{o + 15}] offset:48
""")
    count(a, F_TRDY)
    a(f"""
s_cmp_lt_u32 {s(sWave)}, 6
s_cbranch_scc1 L_xload
L_tab:
v_add_u32 v1, -384, v14
v_lshlrev_b32 v2, 2, v1
v_add_u32 v3, {TABN}, v2
v_lshlrev_b32 v4, 17, v1              ; code 2i << 16
v_or_b32 v4, 0x8000, v4
v_cmp_gt_u32 vcc, 64, v1
v_mov_b32 v5, {SEXP << 23}
v_mov_b32 v6, {(SEXP + 1) << 23}
v_cndmask_b32 v5, v5, v6, vcc
v_cndmask_b32 v6, 0, v6, vcc
v_add_u32 v4, v4, v5
s_mov_b32 {s(sA)}, {f32(KAPPA * 0.044715)}
v_mov_b32 v7, {f32(KAPPA)}
s_mov_b32 {s(sB)}, {NBIN // 2}
L_tabl:
v_add_u32 v9, 0x10000, v4
v_sub_f32 v8, v4, v6
v_sub_f32 v9, v9, v6
v_mul_f32 v10, v8, v8
v_mul_f32 v11, v9, v9
v_fma_f32 v10, v10, {s(sA)}, v7
v_fma_f32 v11, v11, {s(sA)}, v7
v_mul_f32 v10, v10, v8
v_mul_f32 v11, v11, v9
v_exp_f32 v10, -v10
v_exp_f32 v11, -v11
s_nop 0
v_add_f32 v12, 1.0, v10
v_add_f32 v13, 1.0, v11
v_rcp_f32 v12, v12
v_rcp_f32 v13, v13
s_nop 0
v_mul_f32 v8, v8, v12
v_mul_f32 v9, v9, v13
v_mul_f32 v10, -v8, v10
v_mul_f32 v11, -v9, v11
v_cvt_pk_bf16_f32 v12, v8, v9
v_cvt_pk_bf16_f32 v13, v10, v11
ds_write_b32 v2, v12
ds_write_b32 v3, v13
v_sub_u32 v4, v4, v5
v_mov_b32 v5, {SEXP << 23}
v_mov_b32 v6, 0
v_add_u32 v4, v4, v5
v_add_u32 v4, 0x1000000, v4
v_add_u32 v2, 512, v2
v_add_u32 v3, 512, v3
s_sub_u32 {s(sB)}, {s(sB)}, 1
s_cmp_lg_u32 {s(sB)}, 0
s_cbranch_scc1 L_tabl
""")
    count(a, F_INIT)
    a("L_xload:")
    stamp(a, 13)
    wait_count(a, "L_wiss", F_ISS, s(sPair))
    stamp(a, 9)
    issue_loads(a)
    a(f"""
s_add_u32 {s(sA)}, {s(sPair)}, 1
v_mov_b32 {v(vT1)}, {s(sA)}
ds_write_b32 {v(vT0)}, {v(vT1)}
""")
    stamp(a, 11)
    a("L_perm:")


def slot_of(a, dst, src):
    a(f"""
s_add_u32 {s(dst)}, {src}, 2
s_and_b32 {s(dst)}, {s(dst)}, 3
s_cmp_eq_u32 {s(dst)}, 3
s_mul_i32 {s(dst)}, {s(dst)}, {SS}
s_cselect_b32 {s(dst + 1)}, {R3U - RU}, {s(dst)}
s_cselect_b32 {s(dst)}, {R3L - RL}, {s(dst)}
s_add_u32 {s(dst)}, {s(dst)}, {RL}
s_add_u32 {s(dst + 1)}, {s(dst + 1)}, {RU}
""")


def goff(g, base):
    tp, Q = divmod(g, 4)
    return f"{s(base + (Q >> 1))} offen offset:{192 * (Q & 1) + 64 * tp}"


def poff(t):
    return [f"v_lshrrev_b32 {v(t)}, 7, {v(vL16)}",
            f"v_mul_u32_u24 {v(t)}, 640, {v(t)}",
            f"v_add_u32 {v(t)}, {v(t)}, {v(vL16)}",
            f"v_add_u32 {v(t + 1)}, {2 * ROWB}, {v(t)}"]


def poffn(t):
    return [f"v_bfe_u32 {v(t)}, {v(vL16)}, 4, 3",
            f"v_mul_u32_u24 {v(t)}, 768, {v(t)}",
            f"v_bfe_u32 {v(t + 1)}, {v(vL16)}, 7, 1",
            f"v_lshl_add_u32 {v(t)}, {v(t + 1)}, 6, {v(t)}",
            f"v_lshrrev_b32 {v(t + 1)}, 8, {v(vL16)}",
            f"v_lshl_add_u32 {v(t)}, {v(t + 1)}, 4, {v(t)}",
            f"v_add_u32 {v(t + 1)}, {2 * ROWB}, {v(t)}"]


def paddr(g, t):
    r, ln = divmod(g, 3)
    return f"{v(t + (r >> 1))}, {s(sO, 4)}, {s(sNB + (r & 1))} offen offset:{128 * ln}"


def park(a, t):
    for tx in poff(t):
        a(tx)
    for g in range(0 if NOPARK else 12):
        a(f"buffer_store_dwordx4 {v(X + 4 * g, 4)}, {paddr(g, t)}{PKF}")


def phase1(a):
    def oreg(rnd):
        return SB + (144 if rnd == 0 else 16 * (rnd - 1))

    def perms(rnd):
        a(f"s_waitcnt vmcnt({32 - 4 * rnd})")
        L = SB + 16 * rnd
        O = oreg(rnd)
        for d in range(4):
            a(f"v_perm_b32 {v(O + 4 * d)}, {v(L + 4 + d)}, {v(L + d)}, {s(sSelLo)}")
            a(f"v_perm_b32 {v(O + 4 * d + 1)}, {v(L + 12 + d)}, {v(L + 8 + d)}, {s(sSelLo)}")
            a(f"v_perm_b32 {v(O + 4 * d + 2)}, {v(L + 4 + d)}, {v(L + d)}, {s(sSelHi)}")
            a(f"v_perm_b32 {v(O + 4 * d + 3)}, {v(L + 12 + d)}, {v(L + 8 + d)}, {s(sSelHi)}")
            if ILV:
                writes(rnd, d)

    def writes(rnd, d):
        O = oreg(rnd)
        a(f"ds_write_b64 {v(vT0)}, {v(O + 4 * d, 2)} offset:{8 * rnd + 2 * d * 72}")
        a(f"ds_write_b64 {v(vT0)}, {v(O + 4 * d + 2, 2)} offset:{8 * rnd + (2 * d + 1) * 72}")

    if not ILV:
        a("s_mov_b32 exec_hi, 0x0000ffff")
        for rnd in range(9):
            perms(rnd)
        a("s_mov_b32 exec_hi, -1")
    stamp(a, 1)
    a(f"s_cmp_lg_u32 {s(sPair)}, 3\ns_cbranch_scc1 L_wt3_ok")
    wait_count(a, "L_wt3", F_TRDY, 4)
    a(f"""
s_lshl_b32 {s(sA)}, {s(sPair)}, 3
s_add_u32 {s(sA)}, {s(sA)}, {F_DONE + 4}
""")
    wait_flags(a, "L_wslot", s(sA))
    stamp(a, 2)
    slot_of(a, sR, s(sPair))
    a(f"""
v_add_u32 {v(vT0)}, {s(sR)}, {v(vSt)}
v_add_u32 {v(vT1)}, {s(sR + 1)}, {v(vSt)}
v_cndmask_b32 {v(vT0)}, {v(vT1)}, {v(vT0)}, s[58:59]
s_mov_b32 exec_hi, 0x0000ffff
""")
    for rnd in range(9):
        if ILV:
            perms(rnd)
        else:
            for d in range(4):
                writes(rnd, d)
    a(f"""
s_mov_b32 exec_hi, -1
s_lshl_b32 {s(sA)}, {s(sPair)}, 2
s_add_u32 {s(sA)}, {s(sA)}, {F_STG}
v_mov_b32 {v(vT0)}, {s(sA)}
v_mov_b32 {v(vT1)}, 1
s_waitcnt lgkmcnt(0)
ds_write_b32 {v(vT0)}, {v(vT1)}
s_cmp_eq_u32 {s(sPair)}, 8
s_cbranch_scc1 L_loader
""")
    stamp(a, 4)
    a(f"s_setprio {PCV}")
    a(f"s_add_u32 {s(sB)}, {s(sPair)}, 1")
    slot_of(a, sR + 2, s(sB))
    for z in range(4):
        a(f"v_add_u32 {v(TMP + z)}, {s(sR + z)}, {v(vCv)}")
    for z in range(3):
        a(f"v_cndmask_b32 {v(vCA + z)}, {v(TMP + z)}, {v(TMP + z + 1)}, s[56:57]")
    wait_count(a, "L_wt", F_TRDY, 4)
    stamp(a, 5)

    NST = 144

    def cread(i):
        z, q = divmod(i, 48)
        r = DS + 4 * (i % NSL)
        return (f"ds_read_b128 {v(TS + 4 * (i % NSL), 4)}, {v(vTa + z)} offset:{320 * q}\n"
                f"ds_read_b64 {v(r, 2)}, {v(vCA + z)} offset:{coff(kap(0, q))}\n"
                f"ds_read_b64 {v(r + 2, 2)}, {v(vCA + z)} offset:{coff(kap(0, q)) + 8}")

    def stats_pk(q):
        out = []
        for r in (0, 2):
            acc = 4 * q + r
            if q == 0:
                out.append(f"v_pk_add_f32 {v(TMP + r, 2)}, {v(acc, 2)}, {v(acc + 4, 2)}")
                out.append(f"v_pk_mul_f32 {v(TMP + 4 + r, 2)}, {v(acc, 2)}, {v(acc, 2)}")
            else:
                if q > 1:
                    out.append(f"v_pk_add_f32 {v(TMP + r, 2)}, {v(TMP + r, 2)}, {v(acc, 2)}")
                out.append(f"v_pk_fma_f32 {v(TMP + 4 + r, 2)}, {v(acc, 2)}, {v(acc, 2)}, {v(TMP + 4 + r, 2)}")
        return out

    def stats(q):
        out = []
        for r in range(4):
            acc = 4 * q + r
            if q == 0:
                out.append(f"v_mov_b32 {v(TMP + r)}, {v(acc)}")
                out.append(f"v_mul_f32 {v(TMP + 4 + r)}, {v(acc)}, {v(acc)}")
            else:
                out.append(f"v_add_f32 {v(TMP + r)}, {v(TMP + r)}, {v(acc)}")
                out.append(f"v_fmac_f32 {v(TMP + 4 + r)}, {v(acc)}, {v(acc)}")
        return out

    SLAG = 3
    for i in range(NE + 1):
        a(cread(i))
    for i in range(NST):
        z, q = divmod(i, 48)
        left = min(i + NE + 1, NST) - (i + 1)
        if i % 2 == 0:
            a(f"s_waitcnt lgkmcnt({3 * max(left - 1, 0)})")
        if i == 96:
            a(f"ds_write_b32 {v(vT0)}, {v(vT1)}")
        c = "0" if z == 0 else v(4 * q, 4)
        a(f"v_mfma_f32_16x16x32_bf16 {v(4 * q, 4)}, {v(TS + 4 * (i % NSL), 4)}, {v(DS + 4 * (i % NSL), 4)}, {c}")
        if i + NE + 1 < NST:
            if i == 97:
                a("s_waitcnt lgkmcnt(12)")
            if i == 43:
                wait_flags(a, "L_wrdy", s(sA))
                stamp(a, 3)
                a(f"""
s_lshl_b32 {s(sA)}, {s(sWave)}, 3
s_add_u32 {s(sA)}, {s(sA)}, {F_DONE + 40}
v_mov_b32 {v(vT0)}, {s(sA)}
v_mov_b32 {v(vT1)}, 1
""")
            a(cread(i + NE + 1))
        if i == NST - 2:
            a(f"ds_write_b32 {v(vT0)}, {v(vT1)} offset:4")
        if not PKS and i >= 96 + SLAG:
            for tx in stats(i - 96 - SLAG):
                a(tx)
    a(f"s_setprio {PLN}")
    if WPF >= 0:
        a(f"""
s_cmp_lg_u32 {s(sWave)}, {WPF}
s_cbranch_scc1 L_nopf
s_lshr_b32 {s(sA)}, s2, 3
s_mul_i32 {s(sA)}, {s(sA)}, 2304
v_lshlrev_b32 v230, 2, {v(vL16)}
buffer_load_dword v231, v230, {s(sI1, 4)}, {s(sA)} offen
buffer_load_dword v231, v230, {s(sI2, 4)}, {s(sA)} offen
L_nopf:
""")
    stamp(a, 8)
    if PKS:
        for q in range(48):
            for tx in stats_pk(q):
                a(tx)
    else:
        for q in range(48 - SLAG, 48):
            for tx in stats(q):
                a(tx)
    stamp(a, 6)
    s1, s2 = TMP, TMP + 4
    a(f"""
s_nop 1
v_permlane32_swap_b32 {v(s1)}, {v(s1 + 1)}
v_permlane32_swap_b32 {v(s1 + 2)}, {v(s1 + 3)}
v_permlane32_swap_b32 {v(s2)}, {v(s2 + 1)}
v_permlane32_swap_b32 {v(s2 + 2)}, {v(s2 + 3)}
""")
    for e in (0, 2):
        m, w_ = s1 + e, s2 + e
        a(f"""
v_add_f32 {v(m)}, {v(m)}, {v(m + 1)}
v_add_f32 {v(w_)}, {v(w_)}, {v(w_ + 1)}
v_mul_f32 {v(m)}, {f32(1.0 / 96)}, {v(m)}
v_mul_f32 {v(w_)}, {f32(1.0 / 96)}, {v(w_)}
v_fma_f32 {v(w_)}, -{v(m)}, {v(m)}, {v(w_)}
v_max_f32 {v(w_)}, 0, {v(w_)}
v_add_f32 {v(w_)}, {f32(1e-5)}, {v(w_)}
v_rsq_f32 {v(w_)}, {v(w_)}
s_nop 0
v_mul_f32 {v(m)}, {v(m)}, {v(w_)}
v_mul_f32 {v(w_)}, {f32(2.0 ** -SEXP)}, {v(w_)}
v_mul_f32 {v(m)}, {f32(-2.0 ** -SEXP)}, {v(m)}
v_mov_b32 {v(w_ + 1)}, {v(w_)}
v_mov_b32 {v(m + 1)}, {v(m)}
""")
    a(f"""
s_nop 1
v_permlane32_swap_b32 {v(s1)}, {v(s1 + 1)}
v_permlane32_swap_b32 {v(s1 + 2)}, {v(s1 + 3)}
v_permlane32_swap_b32 {v(s2)}, {v(s2 + 1)}
v_permlane32_swap_b32 {v(s2 + 2)}, {v(s2 + 3)}
""")
    for ks in range(3):
        for q in range(16 * ks, 16 * ks + 16):
            if PKN:
                for r in (0, 2):
                    acc = 4 * q + r
                    a(f"v_pk_fma_f32 {v(acc, 2)}, {v(acc, 2)}, {v(s2 + r, 2)}, {v(s1 + r, 2)}")
            else:
                for r in range(4):
                    acc = 4 * q + r
                    a(f"v_fma_f32 {v(acc)}, {v(acc)}, {v(s2 + r)}, {v(s1 + r)}")
        ta = (192, X, X + 16)[ks]
        tb = 208 if ks == 0 else 16 * ks
        for r in range(4):
            base = ta if r < 2 else tb
            for sel in range(2):
                for d in range(4):
                    qp = 8 * ks + 4 * sel + d
                    a(f"v_cvt_pk_bf16_f32 {v(base + 8 * sel + 4 * (r & 1) + d)}, {v(8 * qp + r)}, {v(8 * qp + 4 + r)}")
        a("s_nop 0")
        for base in (ta, tb):
            for i in range(8):
                a(f"v_permlane16_swap_b32 {v(base + i)}, {v(base + 8 + i)}")
        if ks == 0:
            for i in range(16):
                a(f"v_mov_b32 {v(i)}, {v(208 + i)}")
        if ks == 1:
            for i in range(16):
                a(f"v_mov_b32 {v(X + 32 + i)}, {v(192 + i)}")
    stamp(a, 7)
    if DIAG:
        a(f"s_mov_b32 s62, {s(sWave)}")
    stamp_flush(a, 14, 0)
    a(f"""
s_mov_b32 {s(sPair)}, 8
s_mov_b32 {s(sMode)}, 1
s_sub_u32 {s(sA)}, {s(sWave)}, 1
s_cmp_lt_u32 {s(sA)}, {DEFER - 1}
s_cbranch_scc1 L_p2
s_mov_b32 {s(sMode)}, 0
""")
    park(a, TMP)
    a(f"""
s_cmp_lg_u32 {s(sWave)}, 0
s_cbranch_scc1 L_p2
s_setprio 3
s_branch L_xload
L_loader:
""")
    load_groups(a, tuple(range(NLW, 4)), 60)


GROUPS = [(0, 5), (5, 4), (9, 5), (14, 10)]


def load_groups(a, gs, r):
    dma_consts(a, r)
    for gi in gs:
        n0, n = GROUPS[gi]
        wait_flags(a, f"L_wg{gi}", F_DONE + 4 + 8 * (9 + gi))
        for tp, c in PIECES[n0:n0 + n]:
            dma_piece(a, tp, c, r)
        if gi == gs[0] and gi:
            wait_count(a, f"L_wo{gi}", F_RDY, n0)
        a(f"v_mov_b32 {v(vT0)}, {F_RDY}")
        for i in range(n):
            a(f"v_mov_b32 {v(r + 4 + i)}, {n0 + i + 1}")
            a(f"s_waitcnt vmcnt({6 * (n - 1 - i)})")
            a(f"ds_write_b32 {v(vT0)}, {v(r + 4 + i)}")


class Stream:
    def __init__(self, a):
        self.a = a
        self.out = []

    def __call__(self, tx):
        for ln in tx.split("\n"):
            i = Ins(ln)
            if i.states == 0:
                self.a(ln)
                continue
            touch = (i.rd | i.wr) if i.kind != "lds" else set(i.rd)
            need = -1
            for k, d in enumerate(self.out):
                if d & touch:
                    need = k
            if need >= 0:
                n = min(len(self.out) - 1 - need, 14)
                self.a(f"s_waitcnt lgkmcnt({n})")
                self.out = self.out[len(self.out) - n:] if n else []
            self.a(ln)
            if i.kind == "lds":
                self.out.append(set(i.wr))


PSCH = E("PSCH", "prog")
PU = int(E("PU", "12"))


PADG = """s_cmp_lg_u32 s16, 7
s_cbranch_scc1 L_end
v_mov_b32 v20, 0
v_mov_b32 v21, 0
s_mov_b64 exec, 1
buffer_atomic_or v20, v21, s[88:91], 0 offen sc0
s_waitcnt vmcnt(0)
v_readfirstlane_b32 s92, v20
s_not_b32 s92, s92""" if E("PADG") else ""
PAD = f"""L_pad:
{PADG}
L_pad2:
s_sleep 4
s_memrealtime s[94:95]
s_waitcnt lgkmcnt(0)
s_sub_u32 s94, s94, s92
s_cmp_lt_u32 s94, {int(float(E("PADT", "0")) * 100)}
s_cbranch_scc1 L_pad2""" if E("PADT") else ""


def prio_init():
    if PSCH == "prog":
        return f"s_setprio {PM[0]}"
    return f"""s_setprio {PRA}
s_cmp_lt_u32 {s(sWave)}, 4
s_cbranch_scc1 L_mtile
s_setprio {PRB}"""


def phase2(a):
    SH = "dst_sel:DWORD dst_unused:UNUSED_PAD src0_sel:DWORD src1_sel:WORD_1"
    t0, t1 = ACC, ACC + 1
    a("L_p2:")
    for g in range(NLW):
        a(f"s_cmp_lg_u32 {s(sWave)}, {g + 1}\ns_cbranch_scc1 L_nodma{g}\ns_setprio 3")
        load_groups(a, (g,), ACC)
        a(f"L_nodma{g}:")
    wait_count(a, "L_wi", F_INIT, 2)
    a(f"""
v_bfe_u32 {v(t0)}, {v(vL16)}, 6, 2            ; r
v_and_b32 {v(t1)}, 48, {v(vL16)}              ; 16c'
v_lshrrev_b32 {v(t1 + 1)}, 9, {v(vL16)}         ; g>>1
v_lshl_add_u32 {v(t0)}, {v(t1 + 1)}, 3, {v(t0)}   ; row = 8(g>>1) + r
v_lshl_add_u32 {v(vA[1])}, {v(t0)}, 6, {v(t1)}
v_mul_u32_u24 {v(t0)}, 192, {v(t0)}
v_add_u32 {v(vA[2])}, {v(t0)}, {v(t1)}
v_bfe_u32 {v(t0)}, {v(vL16)}, 8, 1            ; g&1
v_mul_u32_u24 {v(t1)}, {DZ}, {v(t0)}
v_add_u32 {v(vA[1])}, {v(vA[1])}, {v(t1)}
v_add_u32 {v(vA[2])}, {v(vA[2])}, {v(t1)}
s_mov_b32 {s(cNB)}, {h2(-BETA)}
s_mov_b32 {s(cS)}, {h2(SC)}
s_mov_b32 {s(cK)}, {f32(SC * 2.0 ** SEXP)}
s_mov_b32 {s(cLo)}, 0x00003f80
s_mov_b32 {s(cHi)}, 0x3f800000
s_mov_b32 {s(sTile)}, 0
s_mov_b32 {s(sRdy)}, 0
{prio_init()}
L_mtile:
""")
    stamp(a, 2)
    stamp_rt(a, 13)
    if E("XL128"):
        for tx in (poff if E("XL128") == "1" else poffn)(XR):
            a(tx)
        a(f"v_mov_b32 {v(vXoff)}, {v(XR)}\ns_mov_b32 s88, {s(sTB)}\ns_mov_b32 s89, {s(sTB + 1)}\ns_add_u32 s90, s88, {2 * ROWB}\ns_add_u32 s91, s89, {2 * ROWB}")
    st = Stream(a)
    zone_now = {1: 0, 2: 0}
    seen = set()

    def slot(f):
        return WS + 4 * (FRAGS.index(f) % NWS)

    def rd(f):
        tp, n = f
        c, k = divmod(n, 6)
        zone, ad, _ = piece_addr(tp, c)
        base = slot(f)
        if zone != zone_now[tp]:
            zone_now[tp] = zone
            st(f"v_bfe_u32 {v(base)}, {v(vL16)}, 8, 1")
            st(f"v_mul_u32_u24 {v(base)}, {DZ - DZ1}, {v(base)}")
            st(f"v_subrev_u32 {v(base)}, {E1}, {v(base)}")
            st(f"v_{'sub' if zone else 'add'}_u32 {v(vA[tp])}, {v(vA[tp])}, {v(base)}")
        if (tp, c) not in seen:
            seen.add((tp, c))
            need = PIECES.index((tp, c)) + 1
            if need > 0:
                lb = f"L_rd{need}"
                a(f"""
s_cmp_ge_u32 {s(sRdy)}, {need}
s_cbranch_scc1 {lb}_go
v_mov_b32 {v(base)}, {F_RDY}
""")
                spin(a, lb, f"v_cmp_le_u32 vcc, {need}, {v(base + 1)}", base, base + 1)
                a(f"""
v_readfirstlane_b32 {s(sRdy)}, {v(base + 1)}
{lb}_go:
""")
                if need == 1:
                    stamp(a, 3)
        off = ad - (E1 if zone else 0)
        for hf in range(2):
            if tp == 1:
                ht, ks = divmod(k, 3)
                o = off + 1024 * ks + 256 * hf + 8 * ht
            else:
                o = off + 768 * hf + 64 * (k // 2) + 8 * (k % 2)
            assert o < 65536
            st(f"ds_read_b64_tr_b16 {v(base + 2 * hf, 2)}, {v(vA[tp])} offset:{o}")

    def xreg(T, Q):
        return X + 8 * (4 * (T // 2) + Q) + 4 * (T % 2)

    def mf(f, Q):
        tp, n = f
        c, k = divmod(n, 6)
        if tp == 1:
            ks = n % 3
            d = ACC + 16 * ((n // 3) % 3) + 4 * Q
            return (f"v_mfma_f32_16x16x32_bf16 {v(d, 4)}, {v(slot(f), 4)}, "
                    f"{v(H + 16 * ks + 4 * Q, 4)}, {'0' if ks == 0 else v(d, 4)}")
        d = xreg(k, Q)
        return (f"v_mfma_f32_16x16x32_bf16 {v(d, 4)}, {v(slot(f), 4)}, "
                f"{v(G + 16 * (c % 2) + 4 * Q, 4)}, {'0' if c == 0 else v(d, 4)}")

    def look(u, i):
        a0 = ACC + 16 * (u % 3) + 2 * i
        return [(4, f"v_lshlrev_b32_sdwa {v(a0)}, 1, {v(a0)} {SH}"),
                (4, f"v_lshlrev_b32_sdwa {v(a0 + 1)}, 1, {v(a0 + 1)} {SH}"),
                (0, f"ds_read_u16_d16 {v(a0)}, {v(a0)}"),
                (0, f"ds_read_u16_d16_hi {v(a0 + 1)}, {v(a0 + 1)}")]

    def greg(u, i):
        c, ht = divmod(u, 2)
        return G + 16 * (c % 2) + 4 * (i // 2) + 2 * ht + i % 2

    def nexp(u):
        return EXPK[u % len(EXPK)]

    def comb(u, i):
        a0 = ACC + 16 * (u % 3) + 2 * i
        return [(4, f"v_or_b32 {v(greg(u, i))}, {v(a0)}, {v(a0 + 1)}")]

    def expo(u):
        LO = "dst_sel:WORD_0 dst_unused:UNUSED_PRESERVE src0_sel:WORD_0"
        HI = "dst_sel:WORD_1 dst_unused:UNUSED_PRESERVE src0_sel:WORD_1"
        ch1, ch2 = [], []
        for i in range(8 - nexp(u), 8):
            b, t, r = v(ACC + 16 * (u % 3) + 2 * i), v(ACC + 16 * (u % 3) + 2 * i + 1), v(greg(u, i))
            ch1.append([(4, f"v_fma_mixlo_f16 {b}, {b}, {s(cK)}, 0"),
                        (4, f"v_fma_mixhi_f16 {b}, {t}, {s(cK)}, 0"),
                        (4, f"v_pk_fma_f16 {t}, {b}, {b}, {s(cNB)} neg_lo:[0,1,0] neg_hi:[0,1,0]"),
                        (4, f"v_pk_mul_f16 {t}, {t}, {b}"),
                        (8, f"v_exp_f16_sdwa {t}, {t} {LO}"),
                        (8, f"v_exp_f16_sdwa {t}, {t} {HI}"),
                        (4, f"v_pk_fma_f16 {t}, {t}, {s(cS)}, {s(cS)}")])
            ch2.append([(8, f"v_rcp_f16_sdwa {t}, {t} {LO}"),
                        (8, f"v_rcp_f16_sdwa {t}, {t} {HI}"),
                        (4, f"v_fma_mix_f32 {r}, {b}, {t}, 0 op_sel_hi:[1,1,0]"),
                        (4, f"v_fma_mix_f32 {t}, {b}, {t}, 0 op_sel:[1,1,0] op_sel_hi:[1,1,0]"),
                        (4, f"v_cvt_pk_bf16_f32 {r}, {r}, {t}")])
        return ch1, ch2

    def weave(chains):
        out = []
        n = max([len(c) for c in chains], default=0)
        for k in range(n):
            need_pad = sum(1 for c in chains if k < len(c)) == 1
            out += [c[k] + (need_pad,) for c in chains if k < len(c)]
        return out

    extra = {}

    def put(u, m, tx):
        extra.setdefault((u, m), []).append(tx)

    put(23, 0, "s_waitcnt vmcnt(0)")
    for tx in poff(XR):
        put(23, 0, tx)
    for g in range(0 if NOPARK else 12):
        ks = (1, 2, 0)[g // 4]
        put(23, g, f"buffer_load_dwordx4 {v(H + 16 * ks + 4 * (g % 4), 4)}, {paddr(g, XR)}{HLF}")

    for tx in poffn(XR):
        put(24, 2, tx)
    def rgroups(rho):
        oy, ln = divmod(rho, 3)
        return [4 * (p % 3) + 2 * oy + p // 3 for p in (2 * ln, 2 * ln + 1)]

    def xload(rho):
        if E("XL128"):
            return [f"buffer_load_dwordx4 {v(XR + 4 * e, 4)}, {v(vXoff)}, {s(sX, 4)}, {s(88 + (2 * rho + e) // 3)} offen offset:{128 * ((2 * rho + e) % 3)}{XFF}" for e in range(2)]
        return [f"buffer_load_dwordx4 {v(XR + 4 * e, 4)}, {v(vXoff)}, {s(sX, 4)}, {goff(g, sTB)}{XFF}"
                for e, g in enumerate(rgroups(rho)) if not NOX]

    for tx in xload(0):
        put(RU0 - 3, 22, tx)
    for rho in range(6):
        u = RU0 + 3 * rho
        act = {f[1] % 6: 4 * i for i, f in enumerate(STEPS[u]) if f[0] == 2}
        used = []
        for e, g in enumerate(rgroups(rho)):
            tp, Q = divmod(g, 4)
            for tl in range(2):
                T = 2 * tp + tl
                m = 5
                while any(abs(m - x) < 2 for x in used) or (T in act and act[T] + Q - 4 < m < act[T] + Q + 5):
                    m += 1
                assert m < 21
                used.append(m)
                for r in range(4):
                    d = xreg(T, Q) + r
                    put(u, m + r // 2, "s_nop 0" if NOX else f"v_dot2_f32_bf16 {v(d)}, {v(XR + 4 * e + 2 * tl + r // 2)}, "
                                       f"{s(cHi if r % 2 else cLo)}, {v(d)}")
        if not E("NOXW"):
            extra[(u, min(used))].insert(0, "s_waitcnt vmcnt(0)")
        if rho < 5:
            for tx in xload(rho + 1):
                put(u, max(used) + 1, tx)

    def hook():
        a(f"""
s_cmp_eq_u32 {s(sMode)}, 0
s_cbranch_scc1 L_rdh_go
v_mov_b32 {v(XR)}, {F_ISS}
""")
        spin(a, "L_wi9", f"v_cmp_eq_u32 vcc, 9, {v(XR + 1)}", XR, XR + 1)
        park(a, XR)
        a(f"s_mov_b32 {s(sMode)}, 0\nL_rdh_go:")
        stamp(a, 1)

    for f in FRAGS[:NWS]:
        rd(f)
    a(f"s_waitcnt vmcnt({13 if DIAG else 12})")
    def steps(u0, u1, fl):
      for u in range(u0, u1):
        if PSCH == "prog" and u == PU:
            a(f"s_cmp_eq_u32 {s(sTile)}, 0\ns_cbranch_scc1 L_pu\ns_setprio {PM[2]}\nL_pu:")
        grp = []
        for i in range(8):
            g = []
            if 0 <= u - 1 < 24 and i < 8 - nexp(u - 1):
                g += comb(u - 1, i)
            if 0 <= u < 24 and i < 8 - nexp(u):
                g += look(u, i)
            if g:
                grp.append(g)
        ex = weave((expo(u - 1)[1] if 0 <= u - 1 < 24 else []) + (expo(u)[0] if 0 <= u < 24 else []))
        flat = [t for g in grp for t in g]
        seq = []
        tl, te = sum(t[0] for t in flat), sum(t[0] for t in ex)
        cl = ce = il = ie = 0
        lastpad = False
        while il < len(flat) or ie < len(ex):
            take_ex = ie < len(ex) and (il >= len(flat) or (flat[il][0] and ce * max(tl, 1) < cl * max(te, 1)))
            if take_ex and lastpad and il < len(flat):
                take_ex = False
            if take_ex:
                if lastpad:
                    seq.append((4, "s_nop 0"))
                seq.append(ex[ie][:2])
                lastpad = ex[ie][2]
                ce += ex[ie][0]
                ie += 1
            else:
                seq.append(flat[il])
                lastpad = False
                cl += flat[il][0]
                il += 1
        if u == UH:
            seq += [(0, hook)]
        lead = 4 if 0 <= u < 4 else 0
        tot = sum(t[0] for t in seq)
        mfs = [(f, Q) for f in STEPS[u] for Q in range(4)]
        nm = len(mfs)
        k = cyc = 0
        for m, (f, Q) in enumerate(mfs):
            st(mf(f, Q))
            if Q == 3 and FRAGS.index(f) + NWS < len(FRAGS):
                rd(FRAGS[FRAGS.index(f) + NWS])
            if m >= lead:
                tgt = tot * (m - lead + 1) / max(nm - lead - TRAIL, 1)
                while k < len(seq) and (cyc < tgt or seq[k][0] == 0):
                    st(seq[k][1]) if isinstance(seq[k][1], str) else seq[k][1]()
                    cyc += seq[k][0]
                    k += 1
            for tx in extra.pop((u, m), []):
                st(tx)
            if u >= 25:
                g = (f[1] - 66) * 4 + Q - 12
                if g >= 0 and (g // 4) % 2 == 0:
                    epi(st, 4 * (g // 8) + g % 4)
        assert k == len(seq)

    def finish(fl):
        steps(25, 27, fl)
        assert not extra and not st.out and zone_now == {1: 0, 2: 0}
        stamp(a, 8)
        for oy in range(2):
            line_out(st, oy, 0, fl)
        for oy in range(2):
            epi(st, 8 + 2 * oy)
            epi(st, 9 + 2 * oy)
            line_out(st, oy, 1, fl)
            line_out(st, oy, 2, fl)

    steps(-1, 25, None)
    if STF2 is not None:
        a(f"s_cmp_eq_u32 {s(sTile)}, 0\ns_cbranch_scc1 L_fin1")
        keep = list(st.out)
        finish(STF2)
        a("s_branch L_fin2\nL_fin1:\ns_nop 7")
        st.out = keep
    finish(STF)
    a("L_fin2:")
    if DIAG:
        stamp(a, 9)
        stamp_rt(a, 11)
        a(f"s_lshl_b32 s62, {s(sTile)}, 3\ns_xor_b32 s62, s62, 8\ns_add_u32 s62, s62, {s(sWave)}")
        stamp_flush(a, 14, 1, t0, t1)
    a(f"""
s_cmp_lg_u32 {s(sTile)}, 0
s_cbranch_scc1 {"L_pad" if E("PADT") else "L_end"}
s_mov_b32 {s(sTile)}, 1
s_mov_b32 {s(sTB)}, {s(sNB)}
s_mov_b32 {s(sTB + 1)}, {s(sNB + 1)}
s_mov_b32 {s(sNB)}, {BIG}
s_mov_b32 {s(sNB + 1)}, {BIG}
{f"s_setprio {PM[1]}" if PSCH == "prog" else ""}
s_branch L_mtile
{PAD}
L_end:
s_endpgm
""")


def epi(st, g):
    b = X + 8 * g
    for d in range(4):
        st(f"v_cvt_pk_bf16_f32 {v(b + d)}, {v(b + 2 * d)}, {v(b + 2 * d + 1)}")


def line_out(st, oy, ln, fl):
    ga, gb = [4 * (p % 3) + 2 * oy + p // 3 for p in (2 * ln, 2 * ln + 1)]
    A, B = X + 8 * ga, X + 8 * gb
    for d in range(4):
        st(f"v_mov_b32 {v(A + 4 + d)}, {v(A + d)}")
    for d in range(4):
        st(f"v_mov_b32_dpp {v(A + d)}, {v(B + d)} row_ror:8 row_mask:0xf bank_mask:0xc")
    for d in range(4):
        st(f"v_mov_b32_dpp {v(B + d)}, {v(A + 4 + d)} row_ror:8 row_mask:0xf bank_mask:0x3")
    for e, r in enumerate((A, B)):
        st(f"buffer_store_dwordx4 {v(r, 4)}, {v(XR + e)}, {s(sO, 4)}, {s(sTB + oy)} offen offset:{128 * ln}{fl}")


def descriptor(a, name, nv, ns):
    a(f"""
.p2align 6
.amdhsa_kernel {name}
  .amdhsa_next_free_vgpr {nv}
  .amdhsa_next_free_sgpr {ns}
  .amdhsa_accum_offset {(nv + 3) // 4 * 4}
  .amdhsa_group_segment_fixed_size 0
  .amdhsa_kernarg_size 64
  .amdhsa_user_sgpr_count 2
  .amdhsa_user_sgpr_kernarg_segment_ptr 1
  .amdhsa_system_sgpr_workgroup_id_x 1
  .amdhsa_float_denorm_mode_32 3
.end_amdhsa_kernel
""")


def main():
    here = os.path.dirname(os.path.abspath(__file__))
    ref = open(os.path.join(here, "..", NAME + ".s.ref")).read().split("\n")
    head = [l for l in ref if l.startswith(";") and "@launch" not in l]
    a = Asm()
    for l in head:
        a(l)
    a(f"; @launch grid=(256,1,1) block=(512,1,1) lds={LDS_BYTES}")
    a('.amdgcn_target "amdgcn-amd-amdhsa--gfx950"')
    a(".text")
    prologue(a)
    phase1(a)
    phase2(a)
    probs = check_hazards(a.lines)
    fast, skip = [], None
    for ln in a.lines:
        t = ln.strip()
        if skip:
            if t == skip + ":":
                skip = None
            continue
        fast.append(ln)
        if t.startswith("s_cbranch_scc1 L_rd") and t.endswith("_go"):
            skip = t.split()[1]
    probs += check_hazards(fast)
    for p in probs:
        print("HAZARD:", p)
    a('.section .rodata,"a"')
    descriptor(a, NAME + "_kernel", 256, 100)
    out = sys.argv[1] if len(sys.argv) > 1 else os.path.join(here, "..", NAME + ".s")
    open(out, "w").write(a.text())
    print("wrote", out, "lines", len(a.lines), "hazards", len(probs), "lds", LDS_BYTES)


if __name__ == "__main__":
    main()
```

```python
import math
import struct
import sys
import os

import numpy as np

sys.path.insert(0, os.path.dirname(os.path.abspath(__file__)))
from asmlib import Asm, Ins, v, s, check_hazards

NAME = "standalone__modern_conv_block_replknet__vision"
E = os.environ.get
DIAG = E("DIAG", "0") == "1"
STF = E("STF", " sc1")
XLF, PKF, HLF, XFF = E("XLF", " sc1"), E("PKF", " sc1"), E("HLF", ""), E("XFF", " sc1")
EXPK = [int(c) for c in E("EXPK", "0")]
TRAIL = int(E("TRAIL", "2"))
PKN = E("PKN", "1") == "1"
PKS = E("PKS", "1") == "1"
PCV, PLN = int(E("PCV", "2")), int(E("PLN", "2"))
PM = [int(c) for c in E("PM", "110")]
STF2 = E("STF2")
DEFER = int(E("DEFER", "1"))
NPRE = 1
ILV = E("ILV", "0") == "1"
NLW = int(E("NLW", "1"))
WPF = int(E("WPF", "-1"))
NOX, NOPARK, NOST = E("NOX"), E("NOPARK"), E("NOST")
UH = 2
RU0 = 7
PRA, PRB = int(E("PRA", "0")), int(E("PRB", "1"))
sStamp = 64


def f32(x):
    return "0x%08x" % struct.unpack("<I", struct.pack("<f", x))[0]


def h2(x):
    b = int(np.float16(x).view(np.uint16))
    return "0x%08x" % (b | (b << 16))


KAPPA = 2.0 * math.sqrt(2.0 / math.pi) * math.log2(math.e)
BETA = float(np.float16(KAPPA / (KAPPA * 0.044715) ** (1.0 / 3.0)))
SC = KAPPA / BETA
BIG = 0x40000000
NBIN = 28
SEXP = 111

XBYTES = 512 * 512 * 96 * 2
ROWB = 512 * 192
WS_END = 256 * 8 * 12288
WS_STAMP = 0x2000000
TW = NBIN * 256
TABP, TABN = 0, 65536
E0 = TW
DZ = 65544
E1 = E0 + DZ + 19 * 3072
DZ1 = 5 * 3072 + 8
L_FLAG = E1 + DZ1 + 5 * 3072
LDS_BYTES = L_FLAG + 256
assert L_FLAG % 16 == 0 and LDS_BYTES <= 163840 and E0 + 19 * 3072 <= 65536
OS = 584
RS = 7104
SS = 14336
RL = E0
RU = TABN + TW + 128
TL = RL + 3 * SS
TU = RU + 2 * SS + RS + 12 * OS
assert TL + 15360 <= 65536 and TU % 16 == 0 and TU + 15360 <= E1 and RL % 256 == 0 and RU % 256 == 128
R3L = (E1 + 255) // 256 * 256
R3U = R3L + 2 * RS
assert R3U % 256 == 128 and R3U + RS + 12 * OS <= L_FLAG
F_STG = L_FLAG
F_DONE = L_FLAG + 40
F_TRDY = L_FLAG + 160
F_ISS = L_FLAG + 164
F_RDY = L_FLAG + 168
F_INIT = L_FLAG + 172
F_WRAW = L_FLAG + 176
WTMP = RL + SS


def kap(ch, q):
    return 32 * (q >> 4) + 16 * ch + (q & 15)


def coff(c):
    return (c // 8) * OS + (c % 8) * 72


STEPS = {u: [(tp, n) for i in range(3) for tp, n in ((1, 3 * (u + 1) + i), (2, 3 * (u - 3) + i)) if 0 <= n < 72]
         for u in range(-1, 27)}
FRAGS = [f for u in range(-1, 27) for f in STEPS[u]]
PIECES = []
for tp_, n_ in FRAGS:
    if (tp_, n_ // 6) not in PIECES:
        PIECES.append((tp_, n_ // 6))
assert len(PIECES) == 24 and len(FRAGS) == 144


def piece_addr(tp, c):
    i = PIECES.index((tp, c))
    if i < 5:
        return 1, E1 + 3072 * i, DZ1
    return 0, E0 + 3072 * (i - 5), DZ


SB = 48
TS = 192
DS = 212
TMP = 232
vL16, vT0, vT1 = 253, 254, 255
vFl, vTa, vCA, vLdA, vLdB, vSt, vCv, vK = 240, 241, 244, 247, 248, 249, 250, 251
H = 0
X = 48
G = 144
ACC = 176
WS = 224
NWS = 5
XR = 244
vXoff = 252
vA = {1: 254, 2: 255}

NE = 4
NSL = 5

sX, sO, sW = 4, 8, 12
sWave, sTile, sPair, sRdy = 16, 17, 18, 19
sSelLo, sSelHi = 20, 21
sX0, sY0 = 22, 23
sTB = 24
sA, sB, sC, sD = 26, 27, 28, 29
sR = 30
sNB = 36
sMode = 38
sRot = 39
sI1, sI2 = 40, 44
sDL, sDS = 48, 52
sEL, sER, sE1 = 80, 81, 82
cNB, cS, cLo, cHi, cK = 84, 85, 86, 87, 83


def stamp(a, k):
    if DIAG:
        a(f"s_waitcnt lgkmcnt(0)\ns_memtime s[60:61]\ns_waitcnt lgkmcnt(0)\ns_mov_b32 {s(sStamp + k)}, s60")


def stamp_rt(a, k):
    if DIAG:
        a(f"s_waitcnt lgkmcnt(0)\ns_memrealtime s[60:61]\ns_waitcnt lgkmcnt(0)\ns_mov_b32 {s(sStamp + k)}, s60")


def stamp_flush(a, n, rec, vT0=vT0, vT1=vT1):
    if DIAG:
        a(f"s_mov_b32 {s(sStamp + 12)}, {s(sWave)}")
        a(f"v_mov_b32 {v(vT0)}, 0")
        for k in range(n):
            a(f"v_writelane_b32 {v(vT0)}, {s(sStamp + k)}, {k}")
        a(f"""s_lshl_b32 s60, s2, 4
s_add_u32 s60, s60, s62
s_lshl_b32 s60, s60, 7
s_add_u32 s60, s60, {WS_STAMP + 64 * rec}
v_lshrrev_b32 {v(vT1)}, 2, {v(vL16)}
s_mov_b32 exec_lo, 0xffff
s_mov_b32 exec_hi, 0
buffer_store_dword {v(vT0)}, {v(vT1)}, {s(sW, 4)}, s60 offen
s_mov_b64 exec, -1
s_nop 1""")


def srd(a, d, lo, nbytes):
    a(f"""s_mov_b32 {s(d)}, {s(lo)}
s_and_b32 {s(d + 1)}, {s(lo + 1)}, 0xffff
s_mov_b32 {s(d + 2)}, {nbytes}
s_mov_b32 {s(d + 3)}, 0x20000""")


def spin(a, label, cmp, t0=vT0, t1=vT1):
    a(f"""
s_mov_b32 {s(sD)}, 200000
{label}:
ds_read_b32 {v(t1)}, {v(t0)}
s_waitcnt lgkmcnt(0)
{cmp}
s_cmp_eq_u64 vcc, exec
s_cbranch_scc1 {label}_ok
s_sleep 2
s_sub_u32 {s(sD)}, {s(sD)}, 1
s_cmp_lg_u32 {s(sD)}, 0
s_cbranch_scc1 {label}
{label}_ok:
""")


def wait_flags(a, label, addr):
    a(f"v_add_u32 {v(vT0)}, {addr}, {v(vFl)}")
    spin(a, label, f"v_cmp_ne_u32 vcc, 0, {v(vT1)}")


def wait_count(a, label, addr, n, op="eq"):
    a(f"v_mov_b32 {v(vT0)}, {addr}")
    spin(a, label, f"v_cmp_{op}_u32 vcc, {n}, {v(vT1)}")


def count(a, addr):
    a(f"""
v_mov_b32 {v(vT0)}, {addr}
v_mov_b32 {v(vT1)}, 1
s_waitcnt lgkmcnt(0)
s_mov_b64 exec, 1
ds_add_u32 {v(vT0)}, {v(vT1)}
s_mov_b64 exec, -1
""")


def issue_loads(a):
    a(f"""
s_lshl_b32 {s(sA)}, {s(sPair)}, 2
s_add_u32 {s(sA)}, {s(sA)}, {s(sY0)}
s_lshl_b32 {s(sB)}, {s(sA)}, 9
s_add_u32 {s(sB)}, {s(sB)}, {s(sX0)}
s_mul_i32 {s(sB)}, {s(sB)}, 192
s_cmp_lt_u32 {s(sA)}, 2
s_cselect_b64 vcc, s[58:59], 0
v_mov_b32 {v(vLdB)}, {BIG}
s_sub_u32 {s(sC)}, {s(sB)}, {2 * ROWB}
v_add_u32 {v(vT1)}, {s(sC)}, {v(vLdA)}
v_cndmask_b32 {v(vLdB)}, {v(vT1)}, {v(vLdB)}, vcc
v_add_u32 {v(vT1)}, -384, {v(vLdB)}
""")
    for xq in range(9):
        for i in range(4):
            off = 768 * xq + 192 * i - 384
            if xq == 0 and i < 2:
                a(f"buffer_load_dwordx4 {v(SB + 4 * i, 4)}, {v(vT1)}, {s(sX, 4)}, {s(sEL)} offen offset:{192 * i}{XLF}")
                continue
            elif xq == 8 and i >= 2:
                so, im = sER, off - 3840
            elif off < 3840:
                so, im = "0", off
            else:
                so, im = sE1, off - 3840
            so = so if isinstance(so, str) else s(so)
            a(f"buffer_load_dwordx4 {v(SB + 16 * xq + 4 * i, 4)}, {v(vLdB)}, {s(sX, 4)}, {so} offen offset:{im}{XLF}")


def dma_consts(a, r):
    a(f"""
v_lshrrev_b32 {v(r)}, 9, {v(vL16)}             ; l>>5
v_mul_u32_u24 {v(r + 1)}, 1536, {v(r)}
v_add_u32 {v(r + 1)}, {v(r + 1)}, {v(vL16)}
v_bfe_u32 {v(vT0)}, {v(vL16)}, 6, 3            ; (l>>2)&7
v_lshl_add_u32 {v(r)}, {v(r)}, 4, {v(vT0)}
v_mul_u32_u24 {v(r)}, 768, {v(r)}
v_and_b32 {v(vT0)}, 48, {v(vL16)}
v_add_u32 {v(r)}, {v(r)}, {v(vT0)}             ; w1
""")


def dma_piece(a, tp, c, r):
    _, ad, dz = piece_addr(tp, c)
    a(f"""
s_add_u32 {s(sA)}, {s(sRot)}, {c}
s_cmp_ge_u32 {s(sA)}, 12
s_cselect_b32 {s(sB)}, 12, 0
s_sub_u32 {s(sA)}, {s(sA)}, {s(sB)}
s_mul_i32 {s(sA)}, {s(sA)}, {64 if tp == 1 else 6144}
""")
    for par in range(2):
        a(f"s_mov_b32 m0, {ad + par * dz}")
        if tp == 1:
            for ks in range(3):
                a(f"s_add_u32 {s(sR + ks)}, {s(sA)}, {(32 * ks + 8 * par) * 768 - 1024 * ks}")
            for ks in range(3):
                a(f"buffer_load_dwordx4 {v(r)}, {s(sI1, 4)}, {s(sR + ks)} offen offset:{1024 * ks} lds")
        else:
            a(f"s_add_u32 {s(sR)}, {s(sA)}, {1536 * par}")
            a(f"s_add_u32 {s(sR + 1)}, {s(sA)}, {1536 * par + 1536}")
            a(f"buffer_load_dwordx4 {v(vL16)}, {s(sI2, 4)}, {s(sR)} offen lds")
            a(f"buffer_load_dwordx4 {v(r + 1)}, {s(sI2, 4)}, {s(sR)} offen offset:1024 lds")
            a(f"buffer_load_dwordx4 {v(vL16)}, {s(sI2, 4)}, {s(sR + 1)} offen offset:2048 lds")


XADJ = f"""v_lshrrev_b32 v3, 5, v0
v_mul_u32_u24 v3, {2 * ROWB}, v3
v_bfe_u32 v4, v0, 2, 3
v_mul_u32_u24 v4, 768, v4
v_add_u32 v3, v3, v4
v_and_b32 v4, 3, v0
v_lshl_add_u32 {v(vXoff)}, v4, 4, v3""" if E("XADJ") else ""


def prologue(a):
    k = NAME + "_kernel"
    a(f"""
.globl {k}
.p2align 8
.type {k},@function
{k}:
s_cmp_ge_u32 s2, 256
s_cbranch_scc1 L_end
s_load_dwordx8 s[64:71], s[0:1], 0
s_load_dwordx4 s[72:75], s[0:1], 32
{"s_load_dwordx2 s[76:77], s[0:1], 56" if DIAG else ""}
{"s_memrealtime s[92:93]" if E("PADT") or E("PAD1") else ""}
s_setprio 3
v_mov_b32 v14, v0                ; tid
v_lshrrev_b32 v1, 6, v0
v_and_b32 v0, 63, v0
v_mov_b32 v10, {BIG}
v_readfirstlane_b32 {s(sWave)}, v1
v_lshlrev_b32 v2, 2, v0
v_add_u32 v2, {L_FLAG}, v2
v_add_u32 v3, -10, v0
v_cmp_gt_u32 vcc, 10, v3
v_cmp_eq_u32 s[56:57], 36, v0
s_or_b64 vcc, vcc, s[56:57]
v_cndmask_b32 v3, 0, 1, vcc
v_lshlrev_b32 {v(vL16)}, 4, v0
v_min_u32 {v(vFl)}, 1, v0
ds_write_b32 v2, v3
v_lshlrev_b32 {v(vFl)}, 2, {v(vFl)}
s_and_b32 {s(sA)}, s2, 3
s_lshl_b32 {s(sA)}, {s(sA)}, 2
s_bfe_u32 {s(sB)}, s2, 0x20003
s_add_u32 {s(sA)}, {s(sA)}, {s(sB)}
s_lshl_b32 {s(sX0)}, {s(sA)}, 5
s_bfe_u32 {s(sA)}, s2, 0x10002
s_lshl_b32 {s(sA)}, {s(sA)}, 3
s_lshr_b32 {s(sB)}, s2, 5
s_add_u32 {s(sA)}, {s(sA)}, {s(sB)}
s_lshl_b32 {s(sY0)}, {s(sA)}, 5
; staging lane map: row = l/12, o = l%12 (lanes < 48)
v_mul_u32_u24 v12, 43, v0
v_lshrrev_b32 v12, 9, v12          ; row
v_mul_u32_u24 v13, 12, v12
v_sub_u32 v13, v0, v13             ; o
v_mul_u32_u24 v5, {ROWB}, v12
v_lshl_add_u32 v5, v13, 4, v5
v_cmp_gt_u32 vcc, 48, v0
v_cmp_gt_u32 s[58:59], 24, v0    ; rows 0,1
s_cmp_eq_u32 {s(sX0)}, 0
s_cselect_b32 {s(sEL)}, {BIG}, 0
v_cndmask_b32 {v(vLdA)}, v10, v5, vcc
s_mov_b32 {s(sE1)}, 3840
s_cmp_eq_u32 {s(sX0)}, 480
s_cselect_b32 {s(sER)}, {BIG}, {s(sE1)}
s_mov_b32 {s(sPair)}, {s(sWave)}
v_add_u32 v15, -256, v14             ; waves 4..7: 0..255
s_waitcnt lgkmcnt(0)
s_barrier
""")
    srd(a, sX, 64, XBYTES)
    srd(a, sDL, 66, 9 * 96 * 2)
    srd(a, sDS, 68, 25 * 96 * 2)
    srd(a, sI1, 70, 96 * 384 * 2)
    srd(a, sI2, 72, 96 * 384 * 2)
    srd(a, sO, 74, XBYTES)
    if DIAG:
        srd(a, sW, 76, WS_STAMP + 0x100000)
    if E("PADG"):
        a("""s_load_dwordx2 s[88:89], s[0:1], 48
s_waitcnt lgkmcnt(0)
s_and_b32 s89, s89, 0xffff
s_mov_b32 s90, 256
s_mov_b32 s91, 0x20000
s_not_b32 s94, s92
v_mov_b32 v20, s94
v_mov_b32 v21, 0
s_cmp_lg_u32 s16, 7
s_cbranch_scc1 L_noat
s_mov_b64 exec, 1
buffer_atomic_umax v20, v21, s[88:91], 0 offen
s_mov_b64 exec, -1
L_noat:""")
    stamp(a, 0)
    stamp_rt(a, 10)
    a(f"""
s_cmp_lg_u32 {s(sWave)}, 0
s_cbranch_scc1 L_pb
s_mov_b32 m0, {WTMP}
s_mov_b32 {s(sA)}, 4096
""")
    for i in range(4):
        a(f"buffer_load_dwordx4 {v(vL16)}, {s(sDS, 4)}, 0 offen offset:{1024 * i} lds")
    a(f"s_mov_b32 m0, {WTMP + 4096}\ns_nop 0\nbuffer_load_dwordx4 {v(vL16)}, {s(sDS, 4)}, {s(sA)} offen lds")
    a(f"s_mov_b32 m0, {WTMP + 5120}\ns_nop 0")
    for i in range(2):
        a(f"buffer_load_dwordx4 {v(vL16)}, {s(sDL, 4)}, 0 offen offset:{1024 * i} lds")
    stamp(a, 9)
    issue_loads(a)
    a(f"""
v_mov_b32 {v(vT0)}, {F_ISS}
v_mov_b32 {v(vT1)}, 1
ds_write_b32 {v(vT0)}, {v(vT1)}
s_waitcnt vmcnt(36)
ds_write_b32 {v(vT0)}, {v(vT1)} offset:{F_WRAW - F_ISS}
""")
    stamp(a, 11)
    a(f"""
L_pb:
s_mov_b32 {s(sSelLo)}, 0x05040100
s_mov_b32 {s(sSelHi)}, 0x07060302
s_lshr_b32 {s(sA)}, s2, 3
s_mul_i32 {s(sB)}, {s(sA)}, 43
s_lshr_b32 {s(sB)}, {s(sB)}, 9
s_mul_i32 {s(sB)}, {s(sB)}, 12
s_sub_u32 {s(sRot)}, {s(sA)}, {s(sB)}       ; (wg>>3) % 12
v_bfe_u32 v1, v0, 3, 1
v_lshrrev_b32 v2, 5, v0          ; ch'
v_bfe_u32 v3, v0, 4, 1           ; dyp
v_bfe_u32 v4, v0, 2, 1           ; oy
v_sub_u32 v3, v3, v4             ; dyp-oy
v_and_b32 v4, 3, v0
v_mul_u32_u24 v5, {TU - TL}, v1
v_lshl_add_u32 v5, v4, 4, v5
v_add_u32 v5, {TL}, v5
v_cmp_eq_u32 s[56:57], v1, v2
v_add_u32 v6, 0, v3
v_cmp_gt_u32 vcc, 5, v6
v_lshl_add_u32 v7, v6, 6, v5
s_and_b64 vcc, vcc, s[56:57]
v_cndmask_b32 {v(vTa)}, v10, v7, vcc
v_add_u32 v6, 2, v3
v_lshl_add_u32 v7, v6, 6, v5
v_cndmask_b32 {v(vTa + 1)}, v10, v7, s[56:57]
v_add_u32 v6, 4, v3
v_cmp_gt_u32 vcc, 5, v6
v_lshl_add_u32 v7, v6, 6, v5
s_and_b64 vcc, vcc, s[56:57]
v_cndmask_b32 {v(vTa + 2)}, v10, v7, vcc
v_mul_u32_u24 v2, {2 * OS}, v2
v_and_b32 v3, 7, v0
v_lshl_add_u32 {v(vCv)}, v3, 3, v2
v_mul_u32_u24 v3, 768, v3
v_mul_u32_u24 v4, {2 * ROWB}, v1
v_add_u32 v3, v3, v4
v_lshrrev_b32 v4, 4, v0
v_lshl_add_u32 {v(vXoff)}, v4, 4, v3
{XADJ}
v_bfe_u32 v3, v0, 4, 1
v_mul_u32_u24 v3, {RS}, v3
v_add_u32 {v(vCv)}, {v(vCv)}, v3
v_cmp_eq_u32 s[56:57], 1, v1
v_and_b32 v5, 1, v12
v_mul_u32_u24 v5, {RS}, v5
v_mul_u32_u24 v6, {OS}, v13
v_add_u32 {v(vSt)}, v5, v6
s_lshl_b32 {s(sA)}, {s(sWave)}, 2
s_add_u32 {s(sA)}, {s(sA)}, {s(sY0)}
s_lshl_b32 {s(sA)}, {s(sA)}, 9
s_add_u32 {s(sA)}, {s(sA)}, {s(sX0)}
s_mul_i32 {s(sNB)}, {s(sA)}, 192
s_add_u32 {s(sNB + 1)}, {s(sNB)}, {ROWB}
s_add_u32 {s(sTB)}, {s(sNB)}, 384
s_add_u32 {s(sTB + 1)}, {s(sTB)}, {ROWB}
s_cmp_lt_u32 {s(sWave)}, {NPRE}
s_cbranch_scc1 L_perm
s_cmp_lt_u32 {s(sWave)}, 4
s_cbranch_scc1 L_xload
""")
    wait_count(a, "L_wraw", F_WRAW, 1)
    for r in range(2):
        b = 128 + 16 * r
        a(f"""
v_add_u32 v1, {256 * r}, v15         ; task
v_mul_u32_u24 v{b}, 683, v1
v_lshrrev_b32 v{b}, 16, v{b}         ; dy
v_mul_u32_u24 v{b + 1}, 96, v{b}
v_sub_u32 v{b + 1}, v1, v{b + 1}     ; c
v_mul_u32_u24 v2, 960, v{b}
v_lshl_add_u32 v2, v{b + 1}, 1, v2
v_add_u32 v1, -1, v{b}
v_mul_u32_u24 v3, 576, v1
v_lshl_add_u32 v3, v{b + 1}, 1, v3
v_cmp_gt_u32 vcc, 3, v1
s_nop 1
v_cndmask_b32 v3, v10, v3, vcc
""")
        for jx in range(5):
            a(f"ds_read_u16 v{b + 4 + jx}, v2 offset:{WTMP + 192 * jx}")
        for jx in range(3):
            a(f"ds_read_u16 v{b + 9 + jx}, v3 offset:{WTMP + 5120 + 192 * jx}")
    a("s_waitcnt lgkmcnt(0)")
    for r in range(2):
        b = 128 + 16 * r
        w = b + 4
        o = 160 + 16 * r
        for jx in range(8):
            a(f"v_lshlrev_b32 v{w + jx}, 16, v{w + jx}")
        a(f"""
v_add_f32 v{w + 1}, v{w + 1}, v{w + 5}
v_add_f32 v{w + 2}, v{w + 2}, v{w + 6}
v_add_f32 v{w + 3}, v{w + 3}, v{w + 7}
v_mov_b32 v1, 0
v_cvt_pk_bf16_f32 v{o}, v{w}, v{w + 1}
v_cvt_pk_bf16_f32 v{o + 1}, v{w + 2}, v{w + 3}
v_cvt_pk_bf16_f32 v{o + 2}, v{w + 4}, v1
v_mov_b32 v{o + 3}, 0
v_cvt_pk_bf16_f32 v{o + 4}, v1, v{w}
v_cvt_pk_bf16_f32 v{o + 5}, v{w + 1}, v{w + 2}
v_cvt_pk_bf16_f32 v{o + 6}, v{w + 3}, v{w + 4}
v_mov_b32 v{o + 7}, 0
v_mov_b32 v{o + 8}, 0
v_mov_b32 v{o + 9}, v{o}
v_mov_b32 v{o + 10}, v{o + 1}
v_mov_b32 v{o + 11}, v{o + 2}
v_mov_b32 v{o + 12}, 0
v_mov_b32 v{o + 13}, v{o + 4}
v_mov_b32 v{o + 14}, v{o + 5}
v_mov_b32 v{o + 15}, v{o + 6}
v_lshrrev_b32 v2, 5, v{b + 1}
v_and_b32 v3, 15, v{b + 1}
v_lshl_add_u32 v2, v2, 4, v3
v_mul_u32_u24 v2, 320, v2
v_bfe_u32 v3, v{b + 1}, 4, 1
v_mul_u32_u24 v3, {TU - TL}, v3
v_add_u32 v2, v2, v3
v_lshl_add_u32 v2, v{b}, 6, v2
v_add_u32 v2, {TL}, v2
v_cmp_gt_u32 vcc, 5, v{b}
s_nop 1
v_cndmask_b32 v2, v10, v2, vcc
ds_write_b128 v2, v[{o}:{o + 3}]
ds_write_b128 v2, v[{o + 4}:{o + 7}] offset:16
ds_write_b128 v2, v[{o + 8}:{o + 11}] offset:32
ds_write_b128 v2, v[{o + 12}:{o + 15}] offset:48
""")
    count(a, F_TRDY)
    a(f"""
s_cmp_lt_u32 {s(sWave)}, 6
s_cbranch_scc1 L_xload
L_tab:
v_add_u32 v1, -384, v14
v_lshlrev_b32 v2, 2, v1
v_add_u32 v3, {TABN}, v2
v_lshlrev_b32 v4, 17, v1              ; code 2i << 16
v_or_b32 v4, 0x8000, v4
v_cmp_gt_u32 vcc, 64, v1
v_mov_b32 v5, {SEXP << 23}
v_mov_b32 v6, {(SEXP + 1) << 23}
v_cndmask_b32 v5, v5, v6, vcc
v_cndmask_b32 v6, 0, v6, vcc
v_add_u32 v4, v4, v5
s_mov_b32 {s(sA)}, {f32(KAPPA * 0.044715)}
v_mov_b32 v7, {f32(KAPPA)}
s_mov_b32 {s(sB)}, {NBIN // 2}
L_tabl:
v_add_u32 v9, 0x10000, v4
v_sub_f32 v8, v4, v6
v_sub_f32 v9, v9, v6
v_mul_f32 v10, v8, v8
v_mul_f32 v11, v9, v9
v_fma_f32 v10, v10, {s(sA)}, v7
v_fma_f32 v11, v11, {s(sA)}, v7
v_mul_f32 v10, v10, v8
v_mul_f32 v11, v11, v9
v_exp_f32 v10, -v10
v_exp_f32 v11, -v11
s_nop 0
v_add_f32 v12, 1.0, v10
v_add_f32 v13, 1.0, v11
v_rcp_f32 v12, v12
v_rcp_f32 v13, v13
s_nop 0
v_mul_f32 v8, v8, v12
v_mul_f32 v9, v9, v13
v_mul_f32 v10, -v8, v10
v_mul_f32 v11, -v9, v11
v_cvt_pk_bf16_f32 v12, v8, v9
v_cvt_pk_bf16_f32 v13, v10, v11
ds_write_b32 v2, v12
ds_write_b32 v3, v13
v_sub_u32 v4, v4, v5
v_mov_b32 v5, {SEXP << 23}
v_mov_b32 v6, 0
v_add_u32 v4, v4, v5
v_add_u32 v4, 0x1000000, v4
v_add_u32 v2, 512, v2
v_add_u32 v3, 512, v3
s_sub_u32 {s(sB)}, {s(sB)}, 1
s_cmp_lg_u32 {s(sB)}, 0
s_cbranch_scc1 L_tabl
""")
    count(a, F_INIT)
    a("L_xload:")
    stamp(a, 13)
    wait_count(a, "L_wiss", F_ISS, s(sPair))
    stamp(a, 9)
    issue_loads(a)
    a(f"""
s_add_u32 {s(sA)}, {s(sPair)}, 1
v_mov_b32 {v(vT1)}, {s(sA)}
ds_write_b32 {v(vT0)}, {v(vT1)}
""")
    stamp(a, 11)
    a("L_perm:")


def slot_of(a, dst, src):
    a(f"""
s_add_u32 {s(dst)}, {src}, 2
s_and_b32 {s(dst)}, {s(dst)}, 3
s_cmp_eq_u32 {s(dst)}, 3
s_mul_i32 {s(dst)}, {s(dst)}, {SS}
s_cselect_b32 {s(dst + 1)}, {R3U - RU}, {s(dst)}
s_cselect_b32 {s(dst)}, {R3L - RL}, {s(dst)}
s_add_u32 {s(dst)}, {s(dst)}, {RL}
s_add_u32 {s(dst + 1)}, {s(dst + 1)}, {RU}
""")


def goff(g, base):
    tp, Q = divmod(g, 4)
    return f"{s(base + (Q >> 1))} offen offset:{192 * (Q & 1) + 64 * tp}"


def poff(t):
    return [f"v_lshrrev_b32 {v(t)}, 7, {v(vL16)}",
            f"v_mul_u32_u24 {v(t)}, 640, {v(t)}",
            f"v_add_u32 {v(t)}, {v(t)}, {v(vL16)}",
            f"v_add_u32 {v(t + 1)}, {2 * ROWB}, {v(t)}"]


def poffn(t):
    return [f"v_bfe_u32 {v(t)}, {v(vL16)}, 4, 3",
            f"v_mul_u32_u24 {v(t)}, 768, {v(t)}",
            f"v_bfe_u32 {v(t + 1)}, {v(vL16)}, 7, 1",
            f"v_lshl_add_u32 {v(t)}, {v(t + 1)}, 6, {v(t)}",
            f"v_lshrrev_b32 {v(t + 1)}, 8, {v(vL16)}",
            f"v_lshl_add_u32 {v(t)}, {v(t + 1)}, 4, {v(t)}",
            f"v_add_u32 {v(t + 1)}, {2 * ROWB}, {v(t)}"]


def paddr(g, t):
    r, ln = divmod(g, 3)
    return f"{v(t + (r >> 1))}, {s(sO, 4)}, {s(sNB + (r & 1))} offen offset:{128 * ln}"


def park(a, t):
    for tx in poff(t):
        a(tx)
    for g in range(0 if NOPARK else 12):
        a(f"buffer_store_dwordx4 {v(X + 4 * g, 4)}, {paddr(g, t)}{PKF}")


def phase1(a):
    def oreg(rnd):
        return SB + (144 if rnd == 0 else 16 * (rnd - 1))

    def perms(rnd):
        a(f"s_waitcnt vmcnt({32 - 4 * rnd})")
        L = SB + 16 * rnd
        O = oreg(rnd)
        for d in range(4):
            a(f"v_perm_b32 {v(O + 4 * d)}, {v(L + 4 + d)}, {v(L + d)}, {s(sSelLo)}")
            a(f"v_perm_b32 {v(O + 4 * d + 1)}, {v(L + 12 + d)}, {v(L + 8 + d)}, {s(sSelLo)}")
            a(f"v_perm_b32 {v(O + 4 * d + 2)}, {v(L + 4 + d)}, {v(L + d)}, {s(sSelHi)}")
            a(f"v_perm_b32 {v(O + 4 * d + 3)}, {v(L + 12 + d)}, {v(L + 8 + d)}, {s(sSelHi)}")
            if ILV:
                writes(rnd, d)

    def writes(rnd, d):
        O = oreg(rnd)
        a(f"ds_write_b64 {v(vT0)}, {v(O + 4 * d, 2)} offset:{8 * rnd + 2 * d * 72}")
        a(f"ds_write_b64 {v(vT0)}, {v(O + 4 * d + 2, 2)} offset:{8 * rnd + (2 * d + 1) * 72}")

    if not ILV:
        a("s_mov_b32 exec_hi, 0x0000ffff")
        for rnd in range(9):
            perms(rnd)
        a("s_mov_b32 exec_hi, -1")
    stamp(a, 1)
    a(f"s_cmp_lg_u32 {s(sPair)}, 3\ns_cbranch_scc1 L_wt3_ok")
    wait_count(a, "L_wt3", F_TRDY, 4)
    a(f"""
s_lshl_b32 {s(sA)}, {s(sPair)}, 3
s_add_u32 {s(sA)}, {s(sA)}, {F_DONE + 4}
""")
    wait_flags(a, "L_wslot", s(sA))
    stamp(a, 2)
    slot_of(a, sR, s(sPair))
    a(f"""
v_add_u32 {v(vT0)}, {s(sR)}, {v(vSt)}
v_add_u32 {v(vT1)}, {s(sR + 1)}, {v(vSt)}
v_cndmask_b32 {v(vT0)}, {v(vT1)}, {v(vT0)}, s[58:59]
s_mov_b32 exec_hi, 0x0000ffff
""")
    for rnd in range(9):
        if ILV:
            perms(rnd)
        else:
            for d in range(4):
                writes(rnd, d)
    a(f"""
s_mov_b32 exec_hi, -1
s_lshl_b32 {s(sA)}, {s(sPair)}, 2
s_add_u32 {s(sA)}, {s(sA)}, {F_STG}
v_mov_b32 {v(vT0)}, {s(sA)}
v_mov_b32 {v(vT1)}, 1
s_waitcnt lgkmcnt(0)
ds_write_b32 {v(vT0)}, {v(vT1)}
s_cmp_eq_u32 {s(sPair)}, 8
s_cbranch_scc1 L_loader
""")
    stamp(a, 4)
    a(f"s_setprio {PCV}")
    a(f"s_add_u32 {s(sB)}, {s(sPair)}, 1")
    slot_of(a, sR + 2, s(sB))
    for z in range(4):
        a(f"v_add_u32 {v(TMP + z)}, {s(sR + z)}, {v(vCv)}")
    for z in range(3):
        a(f"v_cndmask_b32 {v(vCA + z)}, {v(TMP + z)}, {v(TMP + z + 1)}, s[56:57]")
    wait_count(a, "L_wt", F_TRDY, 4)
    stamp(a, 5)

    NST = 144

    def cread(i):
        z, q = divmod(i, 48)
        r = DS + 4 * (i % NSL)
        return (f"ds_read_b128 {v(TS + 4 * (i % NSL), 4)}, {v(vTa + z)} offset:{320 * q}\n"
                f"ds_read_b64 {v(r, 2)}, {v(vCA + z)} offset:{coff(kap(0, q))}\n"
                f"ds_read_b64 {v(r + 2, 2)}, {v(vCA + z)} offset:{coff(kap(0, q)) + 8}")

    def stats_pk(q):
        out = []
        for r in (0, 2):
            acc = 4 * q + r
            if q == 0:
                out.append(f"v_pk_add_f32 {v(TMP + r, 2)}, {v(acc, 2)}, {v(acc + 4, 2)}")
                out.append(f"v_pk_mul_f32 {v(TMP + 4 + r, 2)}, {v(acc, 2)}, {v(acc, 2)}")
            else:
                if q > 1:
                    out.append(f"v_pk_add_f32 {v(TMP + r, 2)}, {v(TMP + r, 2)}, {v(acc, 2)}")
                out.append(f"v_pk_fma_f32 {v(TMP + 4 + r, 2)}, {v(acc, 2)}, {v(acc, 2)}, {v(TMP + 4 + r, 2)}")
        return out

    def stats(q):
        out = []
        for r in range(4):
            acc = 4 * q + r
            if q == 0:
                out.append(f"v_mov_b32 {v(TMP + r)}, {v(acc)}")
                out.append(f"v_mul_f32 {v(TMP + 4 + r)}, {v(acc)}, {v(acc)}")
            else:
                out.append(f"v_add_f32 {v(TMP + r)}, {v(TMP + r)}, {v(acc)}")
                out.append(f"v_fmac_f32 {v(TMP + 4 + r)}, {v(acc)}, {v(acc)}")
        return out

    SLAG = 3
    for i in range(NE + 1):
        a(cread(i))
    for i in range(NST):
        z, q = divmod(i, 48)
        left = min(i + NE + 1, NST) - (i + 1)
        if i % 2 == 0:
            a(f"s_waitcnt lgkmcnt({3 * max(left - 1, 0)})")
        if i == 96:
            a(f"ds_write_b32 {v(vT0)}, {v(vT1)}")
        c = "0" if z == 0 else v(4 * q, 4)
        a(f"v_mfma_f32_16x16x32_bf16 {v(4 * q, 4)}, {v(TS + 4 * (i % NSL), 4)}, {v(DS + 4 * (i % NSL), 4)}, {c}")
        if i + NE + 1 < NST:
            if i == 97:
                a("s_waitcnt lgkmcnt(12)")
            if i == 43:
                wait_flags(a, "L_wrdy", s(sA))
                stamp(a, 3)
                a(f"""
s_lshl_b32 {s(sA)}, {s(sWave)}, 3
s_add_u32 {s(sA)}, {s(sA)}, {F_DONE + 40}
v_mov_b32 {v(vT0)}, {s(sA)}
v_mov_b32 {v(vT1)}, 1
""")
            a(cread(i + NE + 1))
        if i == NST - 2:
            a(f"ds_write_b32 {v(vT0)}, {v(vT1)} offset:4")
        if not PKS and i >= 96 + SLAG:
            for tx in stats(i - 96 - SLAG):
                a(tx)
    a(f"s_setprio {PLN}")
    if WPF >= 0:
        a(f"""
s_cmp_lg_u32 {s(sWave)}, {WPF}
s_cbranch_scc1 L_nopf
s_lshr_b32 {s(sA)}, s2, 3
s_mul_i32 {s(sA)}, {s(sA)}, 2304
v_lshlrev_b32 v230, 2, {v(vL16)}
buffer_load_dword v231, v230, {s(sI1, 4)}, {s(sA)} offen
buffer_load_dword v231, v230, {s(sI2, 4)}, {s(sA)} offen
L_nopf:
""")
    stamp(a, 8)
    if PKS:
        for q in range(48):
            for tx in stats_pk(q):
                a(tx)
    else:
        for q in range(48 - SLAG, 48):
            for tx in stats(q):
                a(tx)
    stamp(a, 6)
    s1, s2 = TMP, TMP + 4
    a(f"""
s_nop 1
v_permlane32_swap_b32 {v(s1)}, {v(s1 + 1)}
v_permlane32_swap_b32 {v(s1 + 2)}, {v(s1 + 3)}
v_permlane32_swap_b32 {v(s2)}, {v(s2 + 1)}
v_permlane32_swap_b32 {v(s2 + 2)}, {v(s2 + 3)}
""")
    for e in (0, 2):
        m, w_ = s1 + e, s2 + e
        a(f"""
v_add_f32 {v(m)}, {v(m)}, {v(m + 1)}
v_add_f32 {v(w_)}, {v(w_)}, {v(w_ + 1)}
v_mul_f32 {v(m)}, {f32(1.0 / 96)}, {v(m)}
v_mul_f32 {v(w_)}, {f32(1.0 / 96)}, {v(w_)}
v_fma_f32 {v(w_)}, -{v(m)}, {v(m)}, {v(w_)}
v_max_f32 {v(w_)}, 0, {v(w_)}
v_add_f32 {v(w_)}, {f32(1e-5)}, {v(w_)}
v_rsq_f32 {v(w_)}, {v(w_)}
s_nop 0
v_mul_f32 {v(m)}, {v(m)}, {v(w_)}
v_mul_f32 {v(w_)}, {f32(2.0 ** -SEXP)}, {v(w_)}
v_mul_f32 {v(m)}, {f32(-2.0 ** -SEXP)}, {v(m)}
v_mov_b32 {v(w_ + 1)}, {v(w_)}
v_mov_b32 {v(m + 1)}, {v(m)}
""")
    a(f"""
s_nop 1
v_permlane32_swap_b32 {v(s1)}, {v(s1 + 1)}
v_permlane32_swap_b32 {v(s1 + 2)}, {v(s1 + 3)}
v_permlane32_swap_b32 {v(s2)}, {v(s2 + 1)}
v_permlane32_swap_b32 {v(s2 + 2)}, {v(s2 + 3)}
""")
    for ks in range(3):
        for q in range(16 * ks, 16 * ks + 16):
            if PKN:
                for r in (0, 2):
                    acc = 4 * q + r
                    a(f"v_pk_fma_f32 {v(acc, 2)}, {v(acc, 2)}, {v(s2 + r, 2)}, {v(s1 + r, 2)}")
            else:
                for r in range(4):
                    acc = 4 * q + r
                    a(f"v_fma_f32 {v(acc)}, {v(acc)}, {v(s2 + r)}, {v(s1 + r)}")
        ta = (192, X, X + 16)[ks]
        tb = 208 if ks == 0 else 16 * ks
        for r in range(4):
            base = ta if r < 2 else tb
            for sel in range(2):
                for d in range(4):
                    qp = 8 * ks + 4 * sel + d
                    a(f"v_cvt_pk_bf16_f32 {v(base + 8 * sel + 4 * (r & 1) + d)}, {v(8 * qp + r)}, {v(8 * qp + 4 + r)}")
        a("s_nop 0")
        for base in (ta, tb):
            for i in range(8):
                a(f"v_permlane16_swap_b32 {v(base + i)}, {v(base + 8 + i)}")
        if ks == 0:
            for i in range(16):
                a(f"v_mov_b32 {v(i)}, {v(208 + i)}")
        if ks == 1:
            for i in range(16):
                a(f"v_mov_b32 {v(X + 32 + i)}, {v(192 + i)}")
    stamp(a, 7)
    if DIAG:
        a(f"s_mov_b32 s62, {s(sWave)}")
    stamp_flush(a, 14, 0)
    a(f"""
s_mov_b32 {s(sPair)}, 8
s_mov_b32 {s(sMode)}, 1
s_sub_u32 {s(sA)}, {s(sWave)}, 1
s_cmp_lt_u32 {s(sA)}, {DEFER - 1}
s_cbranch_scc1 L_p2
s_mov_b32 {s(sMode)}, 0
""")
    park(a, TMP)
    a(f"""
s_cmp_lg_u32 {s(sWave)}, 0
s_cbranch_scc1 L_p2
s_setprio 3
s_branch L_xload
L_loader:
""")
    load_groups(a, tuple(range(NLW, 4)), 60)


GROUPS = [(0, 5), (5, 4), (9, 5), (14, 10)]


def load_groups(a, gs, r):
    dma_consts(a, r)
    for gi in gs:
        n0, n = GROUPS[gi]
        wait_flags(a, f"L_wg{gi}", F_DONE + 4 + 8 * (9 + gi))
        for tp, c in PIECES[n0:n0 + n]:
            dma_piece(a, tp, c, r)
        if gi == gs[0] and gi:
            wait_count(a, f"L_wo{gi}", F_RDY, n0)
        a(f"v_mov_b32 {v(vT0)}, {F_RDY}")
        for i in range(n):
            a(f"v_mov_b32 {v(r + 4 + i)}, {n0 + i + 1}")
            a(f"s_waitcnt vmcnt({6 * (n - 1 - i)})")
            a(f"ds_write_b32 {v(vT0)}, {v(r + 4 + i)}")


class Stream:
    def __init__(self, a):
        self.a = a
        self.out = []

    def __call__(self, tx):
        for ln in tx.split("\n"):
            i = Ins(ln)
            if i.states == 0:
                self.a(ln)
                continue
            touch = (i.rd | i.wr) if i.kind != "lds" else set(i.rd)
            need = -1
            for k, d in enumerate(self.out):
                if d & touch:
                    need = k
            if need >= 0:
                n = min(len(self.out) - 1 - need, 14)
                self.a(f"s_waitcnt lgkmcnt({n})")
                self.out = self.out[len(self.out) - n:] if n else []
            self.a(ln)
            if i.kind == "lds":
                self.out.append(set(i.wr))


PSCH = E("PSCH", "prog")
PU = int(E("PU", "12"))


PADG = """s_cmp_lg_u32 s16, 7
s_cbranch_scc1 L_end
v_mov_b32 v20, 0
v_mov_b32 v21, 0
s_mov_b64 exec, 1
buffer_atomic_or v20, v21, s[88:91], 0 offen sc0
s_waitcnt vmcnt(0)
v_readfirstlane_b32 s92, v20
s_not_b32 s92, s92""" if E("PADG") else ""
PAD = f"""L_pad:
{PADG}
L_pad2:
s_sleep 4
s_memrealtime s[94:95]
s_waitcnt lgkmcnt(0)
s_sub_u32 s94, s94, s92
s_cmp_lt_u32 s94, {int(float(E("PADT", "0")) * 100)}
s_cbranch_scc1 L_pad2""" if E("PADT") else ""


def prio_init():
    if PSCH == "prog":
        return f"s_setprio {PM[0]}"
    return f"""s_setprio {PRA}
s_cmp_lt_u32 {s(sWave)}, 4
s_cbranch_scc1 L_mtile
s_setprio {PRB}"""


def phase2(a):
    SH = "dst_sel:DWORD dst_unused:UNUSED_PAD src0_sel:DWORD src1_sel:WORD_1"
    t0, t1 = ACC, ACC + 1
    a("L_p2:")
    for g in range(NLW):
        a(f"s_cmp_lg_u32 {s(sWave)}, {g + 1}\ns_cbranch_scc1 L_nodma{g}\ns_setprio 3")
        load_groups(a, (g,), ACC)
        a(f"L_nodma{g}:")
    if E("PAD1"):
        a(f"""L_pad1:
s_sleep 2
s_memrealtime s[94:95]
s_waitcnt lgkmcnt(0)
s_sub_u32 s94, s94, s92
s_cmp_lt_u32 s94, {int(float(E("PAD1")) * 100)}
s_cbranch_scc1 L_pad1""")
    wait_count(a, "L_wi", F_INIT, 2)
    a(f"""
v_bfe_u32 {v(t0)}, {v(vL16)}, 6, 2            ; r
v_and_b32 {v(t1)}, 48, {v(vL16)}              ; 16c'
v_lshrrev_b32 {v(t1 + 1)}, 9, {v(vL16)}         ; g>>1
v_lshl_add_u32 {v(t0)}, {v(t1 + 1)}, 3, {v(t0)}   ; row = 8(g>>1) + r
v_lshl_add_u32 {v(vA[1])}, {v(t0)}, 6, {v(t1)}
v_mul_u32_u24 {v(t0)}, 192, {v(t0)}
v_add_u32 {v(vA[2])}, {v(t0)}, {v(t1)}
v_bfe_u32 {v(t0)}, {v(vL16)}, 8, 1            ; g&1
v_mul_u32_u24 {v(t1)}, {DZ}, {v(t0)}
v_add_u32 {v(vA[1])}, {v(vA[1])}, {v(t1)}
v_add_u32 {v(vA[2])}, {v(vA[2])}, {v(t1)}
s_mov_b32 {s(cNB)}, {h2(-BETA)}
s_mov_b32 {s(cS)}, {h2(SC)}
s_mov_b32 {s(cK)}, {f32(SC * 2.0 ** SEXP)}
s_mov_b32 {s(cLo)}, 0x00003f80
s_mov_b32 {s(cHi)}, 0x3f800000
s_mov_b32 {s(sTile)}, 0
s_mov_b32 {s(sRdy)}, 0
{prio_init()}
L_mtile:
""")
    stamp(a, 2)
    stamp_rt(a, 13)
    if E("XL128"):
        for tx in (poff if E("XL128") == "1" else poffn)(XR):
            a(tx)
        a(f"v_mov_b32 {v(vXoff)}, {v(XR)}\ns_mov_b32 s88, {s(sTB)}\ns_mov_b32 s89, {s(sTB + 1)}\ns_add_u32 s90, s88, {2 * ROWB}\ns_add_u32 s91, s89, {2 * ROWB}")
    st = Stream(a)
    zone_now = {1: 0, 2: 0}
    seen = set()

    def slot(f):
        return WS + 4 * (FRAGS.index(f) % NWS)

    def rd(f):
        tp, n = f
        c, k = divmod(n, 6)
        zone, ad, _ = piece_addr(tp, c)
        base = slot(f)
        if zone != zone_now[tp]:
            zone_now[tp] = zone
            st(f"v_bfe_u32 {v(base)}, {v(vL16)}, 8, 1")
            st(f"v_mul_u32_u24 {v(base)}, {DZ - DZ1}, {v(base)}")
            st(f"v_subrev_u32 {v(base)}, {E1}, {v(base)}")
            st(f"v_{'sub' if zone else 'add'}_u32 {v(vA[tp])}, {v(vA[tp])}, {v(base)}")
        if (tp, c) not in seen:
            seen.add((tp, c))
            need = PIECES.index((tp, c)) + 1
            if need > 0:
                lb = f"L_rd{need}"
                a(f"""
s_cmp_ge_u32 {s(sRdy)}, {need}
s_cbranch_scc1 {lb}_go
v_mov_b32 {v(base)}, {F_RDY}
""")
                spin(a, lb, f"v_cmp_le_u32 vcc, {need}, {v(base + 1)}", base, base + 1)
                a(f"""
v_readfirstlane_b32 {s(sRdy)}, {v(base + 1)}
{lb}_go:
""")
                if need == 1:
                    stamp(a, 3)
        off = ad - (E1 if zone else 0)
        for hf in range(2):
            if tp == 1:
                ht, ks = divmod(k, 3)
                o = off + 1024 * ks + 256 * hf + 8 * ht
            else:
                o = off + 768 * hf + 64 * (k // 2) + 8 * (k % 2)
            assert o < 65536
            st(f"ds_read_b64_tr_b16 {v(base + 2 * hf, 2)}, {v(vA[tp])} offset:{o}")

    def xreg(T, Q):
        return X + 8 * (4 * (T // 2) + Q) + 4 * (T % 2)

    def mf(f, Q):
        tp, n = f
        c, k = divmod(n, 6)
        if tp == 1:
            ks = n % 3
            d = ACC + 16 * ((n // 3) % 3) + 4 * Q
            return (f"v_mfma_f32_16x16x32_bf16 {v(d, 4)}, {v(slot(f), 4)}, "
                    f"{v(H + 16 * ks + 4 * Q, 4)}, {'0' if ks == 0 else v(d, 4)}")
        d = xreg(k, Q)
        return (f"v_mfma_f32_16x16x32_bf16 {v(d, 4)}, {v(slot(f), 4)}, "
                f"{v(G + 16 * (c % 2) + 4 * Q, 4)}, {'0' if c == 0 else v(d, 4)}")

    def look(u, i):
        a0 = ACC + 16 * (u % 3) + 2 * i
        return [(4, f"v_lshlrev_b32_sdwa {v(a0)}, 1, {v(a0)} {SH}"),
                (4, f"v_lshlrev_b32_sdwa {v(a0 + 1)}, 1, {v(a0 + 1)} {SH}"),
                (0, f"ds_read_u16_d16 {v(a0)}, {v(a0)}"),
                (0, f"ds_read_u16_d16_hi {v(a0 + 1)}, {v(a0 + 1)}")]

    def greg(u, i):
        c, ht = divmod(u, 2)
        return G + 16 * (c % 2) + 4 * (i // 2) + 2 * ht + i % 2

    def nexp(u):
        return EXPK[u % len(EXPK)]

    def comb(u, i):
        a0 = ACC + 16 * (u % 3) + 2 * i
        return [(4, f"v_or_b32 {v(greg(u, i))}, {v(a0)}, {v(a0 + 1)}")]

    def expo(u):
        LO = "dst_sel:WORD_0 dst_unused:UNUSED_PRESERVE src0_sel:WORD_0"
        HI = "dst_sel:WORD_1 dst_unused:UNUSED_PRESERVE src0_sel:WORD_1"
        ch1, ch2 = [], []
        for i in range(8 - nexp(u), 8):
            b, t, r = v(ACC + 16 * (u % 3) + 2 * i), v(ACC + 16 * (u % 3) + 2 * i + 1), v(greg(u, i))
            ch1.append([(4, f"v_fma_mixlo_f16 {b}, {b}, {s(cK)}, 0"),
                        (4, f"v_fma_mixhi_f16 {b}, {t}, {s(cK)}, 0"),
                        (4, f"v_pk_fma_f16 {t}, {b}, {b}, {s(cNB)} neg_lo:[0,1,0] neg_hi:[0,1,0]"),
                        (4, f"v_pk_mul_f16 {t}, {t}, {b}"),
                        (8, f"v_exp_f16_sdwa {t}, {t} {LO}"),
                        (8, f"v_exp_f16_sdwa {t}, {t} {HI}"),
                        (4, f"v_pk_fma_f16 {t}, {t}, {s(cS)}, {s(cS)}")])
            ch2.append([(8, f"v_rcp_f16_sdwa {t}, {t} {LO}"),
                        (8, f"v_rcp_f16_sdwa {t}, {t} {HI}"),
                        (4, f"v_fma_mix_f32 {r}, {b}, {t}, 0 op_sel_hi:[1,1,0]"),
                        (4, f"v_fma_mix_f32 {t}, {b}, {t}, 0 op_sel:[1,1,0] op_sel_hi:[1,1,0]"),
                        (4, f"v_cvt_pk_bf16_f32 {r}, {r}, {t}")])
        return ch1, ch2

    def weave(chains):
        out = []
        n = max([len(c) for c in chains], default=0)
        for k in range(n):
            need_pad = sum(1 for c in chains if k < len(c)) == 1
            out += [c[k] + (need_pad,) for c in chains if k < len(c)]
        return out

    extra = {}

    def put(u, m, tx):
        extra.setdefault((u, m), []).append(tx)

    put(23, 0, "s_waitcnt vmcnt(0)")
    for tx in poff(XR):
        put(23, 0, tx)
    for g in range(0 if NOPARK else 12):
        ks = (1, 2, 0)[g // 4]
        put(23, g, f"buffer_load_dwordx4 {v(H + 16 * ks + 4 * (g % 4), 4)}, {paddr(g, XR)}{HLF}")

    for tx in poffn(XR):
        put(24, 2, tx)
    def rgroups(rho):
        oy, ln = divmod(rho, 3)
        return [4 * (p % 3) + 2 * oy + p // 3 for p in (2 * ln, 2 * ln + 1)]

    def xload(rho):
        if E("XL128"):
            return [f"buffer_load_dwordx4 {v(XR + 4 * e, 4)}, {v(vXoff)}, {s(sX, 4)}, {s(88 + (2 * rho + e) // 3)} offen offset:{128 * ((2 * rho + e) % 3)}{XFF}" for e in range(2)]
        return [f"buffer_load_dwordx4 {v(XR + 4 * e, 4)}, {v(vXoff)}, {s(sX, 4)}, {goff(g, sTB)}{XFF}"
                for e, g in enumerate(rgroups(rho)) if not NOX]

    for tx in xload(0):
        put(RU0 - 3, 22, tx)
    for rho in range(6):
        u = RU0 + 3 * rho
        act = {f[1] % 6: 4 * i for i, f in enumerate(STEPS[u]) if f[0] == 2}
        used = []
        for e, g in enumerate(rgroups(rho)):
            tp, Q = divmod(g, 4)
            for tl in range(2):
                T = 2 * tp + tl
                m = 5
                while any(abs(m - x) < 2 for x in used) or (T in act and act[T] + Q - 4 < m < act[T] + Q + 5):
                    m += 1
                assert m < 21
                used.append(m)
                for r in range(4):
                    d = xreg(T, Q) + r
                    put(u, m + r // 2, "s_nop 0" if NOX else f"v_dot2_f32_bf16 {v(d)}, {v(XR + 4 * e + 2 * tl + r // 2)}, "
                                       f"{s(cHi if r % 2 else cLo)}, {v(d)}")
        if not E("NOXW"):
            extra[(u, min(used))].insert(0, "s_waitcnt vmcnt(0)")
        if rho < 5:
            for tx in xload(rho + 1):
                put(u, max(used) + 1, tx)

    def hook():
        a(f"""
s_cmp_eq_u32 {s(sMode)}, 0
s_cbranch_scc1 L_rdh_go
v_mov_b32 {v(XR)}, {F_ISS}
""")
        spin(a, "L_wi9", f"v_cmp_eq_u32 vcc, 9, {v(XR + 1)}", XR, XR + 1)
        park(a, XR)
        a(f"s_mov_b32 {s(sMode)}, 0\nL_rdh_go:")
        stamp(a, 1)

    for f in FRAGS[:NWS]:
        rd(f)
    a(f"s_waitcnt vmcnt({13 if DIAG else 12})")
    def steps(u0, u1, fl):
      for u in range(u0, u1):
        if PSCH == "prog" and u == PU:
            a(f"s_cmp_eq_u32 {s(sTile)}, 0\ns_cbranch_scc1 L_pu\ns_setprio {PM[2]}\nL_pu:")
        grp = []
        for i in range(8):
            g = []
            if 0 <= u - 1 < 24 and i < 8 - nexp(u - 1):
                g += comb(u - 1, i)
            if 0 <= u < 24 and i < 8 - nexp(u):
                g += look(u, i)
            if g:
                grp.append(g)
        ex = weave((expo(u - 1)[1] if 0 <= u - 1 < 24 else []) + (expo(u)[0] if 0 <= u < 24 else []))
        flat = [t for g in grp for t in g]
        seq = []
        tl, te = sum(t[0] for t in flat), sum(t[0] for t in ex)
        cl = ce = il = ie = 0
        lastpad = False
        while il < len(flat) or ie < len(ex):
            take_ex = ie < len(ex) and (il >= len(flat) or (flat[il][0] and ce * max(tl, 1) < cl * max(te, 1)))
            if take_ex and lastpad and il < len(flat):
                take_ex = False
            if take_ex:
                if lastpad:
                    seq.append((4, "s_nop 0"))
                seq.append(ex[ie][:2])
                lastpad = ex[ie][2]
                ce += ex[ie][0]
                ie += 1
            else:
                seq.append(flat[il])
                lastpad = False
                cl += flat[il][0]
                il += 1
        if u == UH:
            seq += [(0, hook)]
        lead = 4 if 0 <= u < 4 else 0
        tot = sum(t[0] for t in seq)
        mfs = [(f, Q) for f in STEPS[u] for Q in range(4)]
        nm = len(mfs)
        k = cyc = 0
        for m, (f, Q) in enumerate(mfs):
            st(mf(f, Q))
            if Q == 3 and FRAGS.index(f) + NWS < len(FRAGS):
                rd(FRAGS[FRAGS.index(f) + NWS])
            if m >= lead:
                tgt = tot * (m - lead + 1) / max(nm - lead - TRAIL, 1)
                while k < len(seq) and (cyc < tgt or seq[k][0] == 0):
                    st(seq[k][1]) if isinstance(seq[k][1], str) else seq[k][1]()
                    cyc += seq[k][0]
                    k += 1
            for tx in extra.pop((u, m), []):
                st(tx)
            if u >= 25:
                g = (f[1] - 66) * 4 + Q - 12
                if g >= 0 and (g // 4) % 2 == 0:
                    epi(st, 4 * (g // 8) + g % 4)
        assert k == len(seq)

    def finish(fl):
        steps(25, 27, fl)
        assert not extra and not st.out and zone_now == {1: 0, 2: 0}
        stamp(a, 8)
        for oy in range(2):
            line_out(st, oy, 0, fl)
        for oy in range(2):
            epi(st, 8 + 2 * oy)
            epi(st, 9 + 2 * oy)
            line_out(st, oy, 1, fl)
            line_out(st, oy, 2, fl)

    steps(-1, 25, None)
    if STF2 is not None:
        a(f"s_cmp_eq_u32 {s(sTile)}, 0\ns_cbranch_scc1 L_fin1")
        keep = list(st.out)
        finish(STF2)
        a("s_branch L_fin2\nL_fin1:\ns_nop 7")
        st.out = keep
    finish(STF)
    a("L_fin2:")
    if DIAG:
        stamp(a, 9)
        stamp_rt(a, 11)
        a(f"s_lshl_b32 s62, {s(sTile)}, 3\ns_xor_b32 s62, s62, 8\ns_add_u32 s62, s62, {s(sWave)}")
        stamp_flush(a, 14, 1, t0, t1)
    a(f"""
s_cmp_lg_u32 {s(sTile)}, 0
s_cbranch_scc1 {"L_pad" if E("PADT") else "L_end"}
s_mov_b32 {s(sTile)}, 1
s_mov_b32 {s(sTB)}, {s(sNB)}
s_mov_b32 {s(sTB + 1)}, {s(sNB + 1)}
s_mov_b32 {s(sNB)}, {BIG}
s_mov_b32 {s(sNB + 1)}, {BIG}
{f"s_setprio {PM[1]}" if PSCH == "prog" else ""}
s_branch L_mtile
{PAD}
L_end:
s_endpgm
""")


def epi(st, g):
    b = X + 8 * g
    for d in range(4):
        st(f"v_cvt_pk_bf16_f32 {v(b + d)}, {v(b + 2 * d)}, {v(b + 2 * d + 1)}")


def line_out(st, oy, ln, fl):
    ga, gb = [4 * (p % 3) + 2 * oy + p // 3 for p in (2 * ln, 2 * ln + 1)]
    A, B = X + 8 * ga, X + 8 * gb
    for d in range(4):
        st(f"v_mov_b32 {v(A + 4 + d)}, {v(A + d)}")
    for d in range(4):
        st(f"v_mov_b32_dpp {v(A + d)}, {v(B + d)} row_ror:8 row_mask:0xf bank_mask:0xc")
    for d in range(4):
        st(f"v_mov_b32_dpp {v(B + d)}, {v(A + 4 + d)} row_ror:8 row_mask:0xf bank_mask:0x3")
    for e, r in enumerate((A, B)):
        st(f"buffer_store_dwordx4 {v(r, 4)}, {v(XR + e)}, {s(sO, 4)}, {s(sTB + oy)} offen offset:{128 * ln}{fl}")


def descriptor(a, name, nv, ns):
    a(f"""
.p2align 6
.amdhsa_kernel {name}
  .amdhsa_next_free_vgpr {nv}
  .amdhsa_next_free_sgpr {ns}
  .amdhsa_accum_offset {(nv + 3) // 4 * 4}
  .amdhsa_group_segment_fixed_size 0
  .amdhsa_kernarg_size 64
  .amdhsa_user_sgpr_count 2
  .amdhsa_user_sgpr_kernarg_segment_ptr 1
  .amdhsa_system_sgpr_workgroup_id_x 1
  .amdhsa_float_denorm_mode_32 3
.end_amdhsa_kernel
""")


def main():
    here = os.path.dirname(os.path.abspath(__file__))
    ref = open(os.path.join(here, "..", NAME + ".s.ref")).read().split("\n")
    head = [l for l in ref if l.startswith(";") and "@launch" not in l]
    a = Asm()
    for l in head:
        a(l)
    a(f"; @launch grid=(256,1,1) block=(512,1,1) lds={LDS_BYTES}")
    a('.amdgcn_target "amdgcn-amd-amdhsa--gfx950"')
    a(".text")
    prologue(a)
    phase1(a)
    phase2(a)
    probs = check_hazards(a.lines)
    fast, skip = [], None
    for ln in a.lines:
        t = ln.strip()
        if skip:
            if t == skip + ":":
                skip = None
            continue
        fast.append(ln)
        if t.startswith("s_cbranch_scc1 L_rd") and t.endswith("_go"):
            skip = t.split()[1]
    probs += check_hazards(fast)
    for p in probs:
        print("HAZARD:", p)
    a('.section .rodata,"a"')
    descriptor(a, NAME + "_kernel", 256, 100)
    out = sys.argv[1] if len(sys.argv) > 1 else os.path.join(here, "..", NAME + ".s")
    open(out, "w").write(a.text())
    print("wrote", out, "lines", len(a.lines), "hazards", len(probs), "lds", LDS_BYTES)


if __name__ == "__main__":
    main()
```

```python
import math
import struct
import sys
import os

import numpy as np

sys.path.insert(0, os.path.dirname(os.path.abspath(__file__)))
from asmlib import Asm, Ins, v, s, check_hazards

NAME = "standalone__modern_conv_block_replknet__vision"
E = os.environ.get
DIAG = E("DIAG", "0") == "1"
STF = E("STF", " sc1")
XLF, PKF, HLF, XFF = E("XLF", " sc1"), E("PKF", " sc1"), E("HLF", ""), E("XFF", " sc1")
EXPK = [int(c) for c in E("EXPK", "0")]
TRAIL = int(E("TRAIL", "2"))
PKN = E("PKN", "1") == "1"
PKS = E("PKS", "1") == "1"
PCV, PLN = int(E("PCV", "2")), int(E("PLN", "2"))
PM = [int(c) for c in E("PM", "110")]
STF2 = E("STF2")
DEFER = int(E("DEFER", "1"))
NPRE = 1
XPF, XPFF = int(E("XPF", "0")), E("XPFF", " sc1")
ILV = E("ILV", "0") == "1"
NLW = int(E("NLW", "1"))
WPF = int(E("WPF", "-1"))
NOX, NOPARK, NOST = E("NOX"), E("NOPARK"), E("NOST")
UH = 2
RU0 = 7
PRA, PRB = int(E("PRA", "0")), int(E("PRB", "1"))
sStamp = 64


def f32(x):
    return "0x%08x" % struct.unpack("<I", struct.pack("<f", x))[0]


def h2(x):
    b = int(np.float16(x).view(np.uint16))
    return "0x%08x" % (b | (b << 16))


KAPPA = 2.0 * math.sqrt(2.0 / math.pi) * math.log2(math.e)
BETA = float(np.float16(KAPPA / (KAPPA * 0.044715) ** (1.0 / 3.0)))
SC = KAPPA / BETA
BIG = 0x40000000
NBIN = 28
SEXP = 111

XBYTES = 512 * 512 * 96 * 2
ROWB = 512 * 192
WS_END = 256 * 8 * 12288
WS_STAMP = 0x2000000
TW = NBIN * 256
TABP, TABN = 0, 65536
E0 = TW
DZ = 65544
E1 = E0 + DZ + 19 * 3072
DZ1 = 5 * 3072 + 8
L_FLAG = E1 + DZ1 + 5 * 3072
L_JUNK = L_FLAG + 256
LDS_BYTES = L_FLAG + 512
assert L_FLAG % 16 == 0 and LDS_BYTES <= 163840 and E0 + 19 * 3072 <= 65536
OS = 584
RS = 7104
SS = 14336
RL = E0
RU = TABN + TW + 128
TL = RL + 3 * SS
TU = RU + 2 * SS + RS + 12 * OS
assert TL + 15360 <= 65536 and TU % 16 == 0 and TU + 15360 <= E1 and RL % 256 == 0 and RU % 256 == 128
R3L = (E1 + 255) // 256 * 256
R3U = R3L + 2 * RS
assert R3U % 256 == 128 and R3U + RS + 12 * OS <= L_FLAG
F_STG = L_FLAG
F_DONE = L_FLAG + 40
F_TRDY = L_FLAG + 160
F_ISS = L_FLAG + 164
F_RDY = L_FLAG + 168
F_INIT = L_FLAG + 172
F_WRAW = L_FLAG + 176
WTMP = RL + SS


def kap(ch, q):
    return 32 * (q >> 4) + 16 * ch + (q & 15)


def coff(c):
    return (c // 8) * OS + (c % 8) * 72


STEPS = {u: [(tp, n) for i in range(3) for tp, n in ((1, 3 * (u + 1) + i), (2, 3 * (u - 3) + i)) if 0 <= n < 72]
         for u in range(-1, 27)}
FRAGS = [f for u in range(-1, 27) for f in STEPS[u]]
PIECES = []
for tp_, n_ in FRAGS:
    if (tp_, n_ // 6) not in PIECES:
        PIECES.append((tp_, n_ // 6))
assert len(PIECES) == 24 and len(FRAGS) == 144


def piece_addr(tp, c):
    i = PIECES.index((tp, c))
    if i < 5:
        return 1, E1 + 3072 * i, DZ1
    return 0, E0 + 3072 * (i - 5), DZ


SB = 48
TS = 192
DS = 212
TMP = 232
vL16, vT0, vT1 = 253, 254, 255
vFl, vTa, vCA, vLdA, vLdB, vSt, vCv, vK = 240, 241, 244, 247, 248, 249, 250, 251
H = 0
X = 48
G = 144
ACC = 176
WS = 224
NWS = 5
XR = 244
vXoff = 252
vA = {1: 254, 2: 255}

NE = 4
NSL = 5

sX, sO, sW = 4, 8, 12
sWave, sTile, sPair, sRdy = 16, 17, 18, 19
sSelLo, sSelHi = 20, 21
sX0, sY0 = 22, 23
sTB = 24
sA, sB, sC, sD = 26, 27, 28, 29
sR = 30
sNB = 36
sMode = 38
sRot = 39
sI1, sI2 = 40, 44
sDL, sDS = 48, 52
sEL, sER, sE1 = 80, 81, 82
cNB, cS, cLo, cHi, cK = 84, 85, 86, 87, 83


def stamp(a, k):
    if DIAG:
        a(f"s_waitcnt lgkmcnt(0)\ns_memtime s[60:61]\ns_waitcnt lgkmcnt(0)\ns_mov_b32 {s(sStamp + k)}, s60")


def stamp_rt(a, k):
    if DIAG:
        a(f"s_waitcnt lgkmcnt(0)\ns_memrealtime s[60:61]\ns_waitcnt lgkmcnt(0)\ns_mov_b32 {s(sStamp + k)}, s60")


def stamp_flush(a, n, rec, vT0=vT0, vT1=vT1):
    if DIAG:
        a(f"s_mov_b32 {s(sStamp + 12)}, {s(sWave)}")
        a(f"v_mov_b32 {v(vT0)}, 0")
        for k in range(n):
            a(f"v_writelane_b32 {v(vT0)}, {s(sStamp + k)}, {k}")
        a(f"""s_lshl_b32 s60, s2, 4
s_add_u32 s60, s60, s62
s_lshl_b32 s60, s60, 7
s_add_u32 s60, s60, {WS_STAMP + 64 * rec}
v_lshrrev_b32 {v(vT1)}, 2, {v(vL16)}
s_mov_b32 exec_lo, 0xffff
s_mov_b32 exec_hi, 0
buffer_store_dword {v(vT0)}, {v(vT1)}, {s(sW, 4)}, s60 offen
s_mov_b64 exec, -1
s_nop 1""")


def srd(a, d, lo, nbytes):
    a(f"""s_mov_b32 {s(d)}, {s(lo)}
s_and_b32 {s(d + 1)}, {s(lo + 1)}, 0xffff
s_mov_b32 {s(d + 2)}, {nbytes}
s_mov_b32 {s(d + 3)}, 0x20000""")


def spin(a, label, cmp, t0=vT0, t1=vT1):
    a(f"""
s_mov_b32 {s(sD)}, 200000
{label}:
ds_read_b32 {v(t1)}, {v(t0)}
s_waitcnt lgkmcnt(0)
{cmp}
s_cmp_eq_u64 vcc, exec
s_cbranch_scc1 {label}_ok
s_sleep 2
s_sub_u32 {s(sD)}, {s(sD)}, 1
s_cmp_lg_u32 {s(sD)}, 0
s_cbranch_scc1 {label}
{label}_ok:
""")


def wait_flags(a, label, addr):
    a(f"v_add_u32 {v(vT0)}, {addr}, {v(vFl)}")
    spin(a, label, f"v_cmp_ne_u32 vcc, 0, {v(vT1)}")


def wait_count(a, label, addr, n, op="eq"):
    a(f"v_mov_b32 {v(vT0)}, {addr}")
    spin(a, label, f"v_cmp_{op}_u32 vcc, {n}, {v(vT1)}")


def count(a, addr):
    a(f"""
v_mov_b32 {v(vT0)}, {addr}
v_mov_b32 {v(vT1)}, 1
s_waitcnt lgkmcnt(0)
s_mov_b64 exec, 1
ds_add_u32 {v(vT0)}, {v(vT1)}
s_mov_b64 exec, -1
""")


def issue_loads(a):
    a(f"""
s_lshl_b32 {s(sA)}, {s(sPair)}, 2
s_add_u32 {s(sA)}, {s(sA)}, {s(sY0)}
s_lshl_b32 {s(sB)}, {s(sA)}, 9
s_add_u32 {s(sB)}, {s(sB)}, {s(sX0)}
s_mul_i32 {s(sB)}, {s(sB)}, 192
s_cmp_lt_u32 {s(sA)}, 2
s_cselect_b64 vcc, s[58:59], 0
v_mov_b32 {v(vLdB)}, {BIG}
s_sub_u32 {s(sC)}, {s(sB)}, {2 * ROWB}
v_add_u32 {v(vT1)}, {s(sC)}, {v(vLdA)}
v_cndmask_b32 {v(vLdB)}, {v(vT1)}, {v(vLdB)}, vcc
v_add_u32 {v(vT1)}, -384, {v(vLdB)}
""")
    for xq in range(9):
        for i in range(4):
            off = 768 * xq + 192 * i - 384
            if xq == 0 and i < 2:
                a(f"buffer_load_dwordx4 {v(SB + 4 * i, 4)}, {v(vT1)}, {s(sX, 4)}, {s(sEL)} offen offset:{192 * i}{XLF}")
                continue
            elif xq == 8 and i >= 2:
                so, im = sER, off - 3840
            elif off < 3840:
                so, im = "0", off
            else:
                so, im = sE1, off - 3840
            so = so if isinstance(so, str) else s(so)
            a(f"buffer_load_dwordx4 {v(SB + 16 * xq + 4 * i, 4)}, {v(vLdB)}, {s(sX, 4)}, {so} offen offset:{im}{XLF}")


CPF = E("CPF", "0")


def code_pf(a, tag, first, last, r=16):
    a(f"""
s_getpc_b64 s[96:97]
L_pc{tag}:
s_add_u32 s96, s96, {first}-L_pc{tag}
s_addc_u32 s97, s97, {"0" if tag in FWD else "-1"}
v_lshlrev_b32 v{r}, 3, {v(vL16)}
v_mov_b32 v{r + 3}, s97
""")
    for i in range(NPF[tag]):
        a(f"""
v_add_u32 v{r + 1}, {8192 * i}, v{r}
v_min_u32 v{r + 1}, {last}-{first}, v{r + 1}
v_add_co_u32 v{r + 4 + 2 * i}, vcc, s96, v{r + 1}
s_nop 1
v_addc_co_u32 v{r + 5 + 2 * i}, vcc, 0, v{r + 3}, vcc
global_load_dword v{r + 2}, v[{r + 4 + 2 * i}:{r + 5 + 2 * i}], off sc1
""")


FWD = {"a", "b"}
NPF = {"a": 3, "b": 5}


def dma_consts(a, r):
    a(f"""
v_lshrrev_b32 {v(r)}, 9, {v(vL16)}             ; l>>5
v_mul_u32_u24 {v(r + 1)}, 1536, {v(r)}
v_add_u32 {v(r + 1)}, {v(r + 1)}, {v(vL16)}
v_bfe_u32 {v(vT0)}, {v(vL16)}, 6, 3            ; (l>>2)&7
v_lshl_add_u32 {v(r)}, {v(r)}, 4, {v(vT0)}
v_mul_u32_u24 {v(r)}, 768, {v(r)}
v_and_b32 {v(vT0)}, 48, {v(vL16)}
v_add_u32 {v(r)}, {v(r)}, {v(vT0)}             ; w1
""")


def dma_piece(a, tp, c, r):
    _, ad, dz = piece_addr(tp, c)
    a(f"""
s_add_u32 {s(sA)}, {s(sRot)}, {c}
s_cmp_ge_u32 {s(sA)}, 12
s_cselect_b32 {s(sB)}, 12, 0
s_sub_u32 {s(sA)}, {s(sA)}, {s(sB)}
s_mul_i32 {s(sA)}, {s(sA)}, {64 if tp == 1 else 6144}
""")
    for par in range(2):
        a(f"s_mov_b32 m0, {ad + par * dz}")
        if tp == 1:
            for ks in range(3):
                a(f"s_add_u32 {s(sR + ks)}, {s(sA)}, {(32 * ks + 8 * par) * 768 - 1024 * ks}")
            for ks in range(3):
                a(f"buffer_load_dwordx4 {v(r)}, {s(sI1, 4)}, {s(sR + ks)} offen offset:{1024 * ks} lds")
        else:
            a(f"s_add_u32 {s(sR)}, {s(sA)}, {1536 * par}")
            a(f"s_add_u32 {s(sR + 1)}, {s(sA)}, {1536 * par + 1536}")
            a(f"buffer_load_dwordx4 {v(vL16)}, {s(sI2, 4)}, {s(sR)} offen lds")
            a(f"buffer_load_dwordx4 {v(r + 1)}, {s(sI2, 4)}, {s(sR)} offen offset:1024 lds")
            a(f"buffer_load_dwordx4 {v(vL16)}, {s(sI2, 4)}, {s(sR + 1)} offen offset:2048 lds")


XADJ = f"""v_lshrrev_b32 v3, 5, v0
v_mul_u32_u24 v3, {2 * ROWB}, v3
v_bfe_u32 v4, v0, 2, 3
v_mul_u32_u24 v4, 768, v4
v_add_u32 v3, v3, v4
v_and_b32 v4, 3, v0
v_lshl_add_u32 {v(vXoff)}, v4, 4, v3""" if E("XADJ") else ""


def prologue(a):
    k = NAME + "_kernel"
    a(f"""
.globl {k}
.p2align 8
.type {k},@function
{k}:
s_cmp_ge_u32 s2, 256
s_cbranch_scc1 L_end
s_load_dwordx8 s[64:71], s[0:1], 0
s_load_dwordx4 s[72:75], s[0:1], 32
{"s_load_dwordx2 s[76:77], s[0:1], 56" if DIAG else ""}
{"s_memrealtime s[92:93]" if E("PADT") or E("PAD1") else ""}
s_setprio 3
v_mov_b32 v14, v0                ; tid
v_lshrrev_b32 v1, 6, v0
v_and_b32 v0, 63, v0
v_mov_b32 v10, {BIG}
v_readfirstlane_b32 {s(sWave)}, v1
v_lshlrev_b32 v2, 2, v0
v_add_u32 v2, {L_FLAG}, v2
v_add_u32 v3, -10, v0
v_cmp_gt_u32 vcc, 10, v3
v_cmp_eq_u32 s[56:57], 36, v0
s_or_b64 vcc, vcc, s[56:57]
v_cndmask_b32 v3, 0, 1, vcc
v_lshlrev_b32 {v(vL16)}, 4, v0
v_min_u32 {v(vFl)}, 1, v0
ds_write_b32 v2, v3
v_lshlrev_b32 {v(vFl)}, 2, {v(vFl)}
s_and_b32 {s(sA)}, s2, 3
s_lshl_b32 {s(sA)}, {s(sA)}, 2
s_bfe_u32 {s(sB)}, s2, 0x20003
s_add_u32 {s(sA)}, {s(sA)}, {s(sB)}
s_lshl_b32 {s(sX0)}, {s(sA)}, 5
s_bfe_u32 {s(sA)}, s2, 0x10002
s_lshl_b32 {s(sA)}, {s(sA)}, 3
s_lshr_b32 {s(sB)}, s2, 5
s_add_u32 {s(sA)}, {s(sA)}, {s(sB)}
s_lshl_b32 {s(sY0)}, {s(sA)}, 5
; staging lane map: row = l/12, o = l%12 (lanes < 48)
v_mul_u32_u24 v12, 43, v0
v_lshrrev_b32 v12, 9, v12          ; row
v_mul_u32_u24 v13, 12, v12
v_sub_u32 v13, v0, v13             ; o
v_mul_u32_u24 v5, {ROWB}, v12
v_lshl_add_u32 v5, v13, 4, v5
v_cmp_gt_u32 vcc, 48, v0
v_cmp_gt_u32 s[58:59], 24, v0    ; rows 0,1
s_cmp_eq_u32 {s(sX0)}, 0
s_cselect_b32 {s(sEL)}, {BIG}, 0
v_cndmask_b32 {v(vLdA)}, v10, v5, vcc
s_mov_b32 {s(sE1)}, 3840
s_cmp_eq_u32 {s(sX0)}, 480
s_cselect_b32 {s(sER)}, {BIG}, {s(sE1)}
s_mov_b32 {s(sPair)}, {s(sWave)}
v_add_u32 v15, -256, v14             ; waves 4..7: 0..255
""")
    if CPF != "0":
        a(f"s_cmp_lg_u32 {s(sWave)}, 7\ns_cbranch_scc1 L_nocpa")
        code_pf(a, "a", "L_pb", "L_mtile")
        a("L_nocpa:")
    a("s_waitcnt lgkmcnt(0)\ns_barrier")
    srd(a, sX, 64, XBYTES)
    srd(a, sDL, 66, 9 * 96 * 2)
    srd(a, sDS, 68, 25 * 96 * 2)
    srd(a, sI1, 70, 96 * 384 * 2)
    srd(a, sI2, 72, 96 * 384 * 2)
    srd(a, sO, 74, XBYTES)
    if DIAG:
        srd(a, sW, 76, WS_STAMP + 0x100000)
    if E("PADG"):
        a("""s_load_dwordx2 s[88:89], s[0:1], 48
s_waitcnt lgkmcnt(0)
s_and_b32 s89, s89, 0xffff
s_mov_b32 s90, 256
s_mov_b32 s91, 0x20000
s_not_b32 s94, s92
v_mov_b32 v20, s94
v_mov_b32 v21, 0
s_cmp_lg_u32 s16, 7
s_cbranch_scc1 L_noat
s_mov_b64 exec, 1
buffer_atomic_umax v20, v21, s[88:91], 0 offen
s_mov_b64 exec, -1
L_noat:""")
    stamp(a, 0)
    stamp_rt(a, 10)
    a(f"""
s_cmp_lg_u32 {s(sWave)}, 0
s_cbranch_scc1 L_pb
s_mov_b32 m0, {WTMP}
s_mov_b32 {s(sA)}, 4096
""")
    for i in range(4):
        a(f"buffer_load_dwordx4 {v(vL16)}, {s(sDS, 4)}, 0 offen offset:{1024 * i} lds")
    a(f"s_mov_b32 m0, {WTMP + 4096}\ns_nop 0\nbuffer_load_dwordx4 {v(vL16)}, {s(sDS, 4)}, {s(sA)} offen lds")
    a(f"s_mov_b32 m0, {WTMP + 5120}\ns_nop 0")
    for i in range(2):
        a(f"buffer_load_dwordx4 {v(vL16)}, {s(sDL, 4)}, 0 offen offset:{1024 * i} lds")
    stamp(a, 9)
    issue_loads(a)
    a(f"""
v_mov_b32 {v(vT0)}, {F_ISS}
v_mov_b32 {v(vT1)}, 1
ds_write_b32 {v(vT0)}, {v(vT1)}
s_waitcnt vmcnt(36)
ds_write_b32 {v(vT0)}, {v(vT1)} offset:{F_WRAW - F_ISS}
""")
    stamp(a, 11)
    a(f"""
L_pb:
s_mov_b32 {s(sSelLo)}, 0x05040100
s_mov_b32 {s(sSelHi)}, 0x07060302
s_lshr_b32 {s(sA)}, s2, 3
s_mul_i32 {s(sB)}, {s(sA)}, 43
s_lshr_b32 {s(sB)}, {s(sB)}, 9
s_mul_i32 {s(sB)}, {s(sB)}, 12
s_sub_u32 {s(sRot)}, {s(sA)}, {s(sB)}       ; (wg>>3) % 12
v_bfe_u32 v1, v0, 3, 1
v_lshrrev_b32 v2, 5, v0          ; ch'
v_bfe_u32 v3, v0, 4, 1           ; dyp
v_bfe_u32 v4, v0, 2, 1           ; oy
v_sub_u32 v3, v3, v4             ; dyp-oy
v_and_b32 v4, 3, v0
v_mul_u32_u24 v5, {TU - TL}, v1
v_lshl_add_u32 v5, v4, 4, v5
v_add_u32 v5, {TL}, v5
v_cmp_eq_u32 s[56:57], v1, v2
v_add_u32 v6, 0, v3
v_cmp_gt_u32 vcc, 5, v6
v_lshl_add_u32 v7, v6, 6, v5
s_and_b64 vcc, vcc, s[56:57]
v_cndmask_b32 {v(vTa)}, v10, v7, vcc
v_add_u32 v6, 2, v3
v_lshl_add_u32 v7, v6, 6, v5
v_cndmask_b32 {v(vTa + 1)}, v10, v7, s[56:57]
v_add_u32 v6, 4, v3
v_cmp_gt_u32 vcc, 5, v6
v_lshl_add_u32 v7, v6, 6, v5
s_and_b64 vcc, vcc, s[56:57]
v_cndmask_b32 {v(vTa + 2)}, v10, v7, vcc
v_mul_u32_u24 v2, {2 * OS}, v2
v_and_b32 v3, 7, v0
v_lshl_add_u32 {v(vCv)}, v3, 3, v2
v_mul_u32_u24 v3, 768, v3
v_mul_u32_u24 v4, {2 * ROWB}, v1
v_add_u32 v3, v3, v4
v_lshrrev_b32 v4, 4, v0
v_lshl_add_u32 {v(vXoff)}, v4, 4, v3
{XADJ}
v_bfe_u32 v3, v0, 4, 1
v_mul_u32_u24 v3, {RS}, v3
v_add_u32 {v(vCv)}, {v(vCv)}, v3
v_cmp_eq_u32 s[56:57], 1, v1
v_and_b32 v5, 1, v12
v_mul_u32_u24 v5, {RS}, v5
v_mul_u32_u24 v6, {OS}, v13
v_add_u32 {v(vSt)}, v5, v6
s_lshl_b32 {s(sA)}, {s(sWave)}, 2
s_add_u32 {s(sA)}, {s(sA)}, {s(sY0)}
s_lshl_b32 {s(sA)}, {s(sA)}, 9
s_add_u32 {s(sA)}, {s(sA)}, {s(sX0)}
s_mul_i32 {s(sNB)}, {s(sA)}, 192
s_add_u32 {s(sNB + 1)}, {s(sNB)}, {ROWB}
s_add_u32 {s(sTB)}, {s(sNB)}, 384
s_add_u32 {s(sTB + 1)}, {s(sTB)}, {ROWB}
s_cmp_lt_u32 {s(sWave)}, {NPRE}
s_cbranch_scc1 L_perm
s_cmp_lt_u32 {s(sWave)}, 4
s_cbranch_scc1 L_xload
""")
    wait_count(a, "L_wraw", F_WRAW, 1)
    for r in range(2):
        b = 128 + 16 * r
        a(f"""
v_add_u32 v1, {256 * r}, v15         ; task
v_mul_u32_u24 v{b}, 683, v1
v_lshrrev_b32 v{b}, 16, v{b}         ; dy
v_mul_u32_u24 v{b + 1}, 96, v{b}
v_sub_u32 v{b + 1}, v1, v{b + 1}     ; c
v_mul_u32_u24 v2, 960, v{b}
v_lshl_add_u32 v2, v{b + 1}, 1, v2
v_add_u32 v1, -1, v{b}
v_mul_u32_u24 v3, 576, v1
v_lshl_add_u32 v3, v{b + 1}, 1, v3
v_cmp_gt_u32 vcc, 3, v1
s_nop 1
v_cndmask_b32 v3, v10, v3, vcc
""")
        for jx in range(5):
            a(f"ds_read_u16 v{b + 4 + jx}, v2 offset:{WTMP + 192 * jx}")
        for jx in range(3):
            a(f"ds_read_u16 v{b + 9 + jx}, v3 offset:{WTMP + 5120 + 192 * jx}")
    a("s_waitcnt lgkmcnt(0)")
    for r in range(2):
        b = 128 + 16 * r
        w = b + 4
        o = 160 + 16 * r
        for jx in range(8):
            a(f"v_lshlrev_b32 v{w + jx}, 16, v{w + jx}")
        a(f"""
v_add_f32 v{w + 1}, v{w + 1}, v{w + 5}
v_add_f32 v{w + 2}, v{w + 2}, v{w + 6}
v_add_f32 v{w + 3}, v{w + 3}, v{w + 7}
v_mov_b32 v1, 0
v_cvt_pk_bf16_f32 v{o}, v{w}, v{w + 1}
v_cvt_pk_bf16_f32 v{o + 1}, v{w + 2}, v{w + 3}
v_cvt_pk_bf16_f32 v{o + 2}, v{w + 4}, v1
v_mov_b32 v{o + 3}, 0
v_cvt_pk_bf16_f32 v{o + 4}, v1, v{w}
v_cvt_pk_bf16_f32 v{o + 5}, v{w + 1}, v{w + 2}
v_cvt_pk_bf16_f32 v{o + 6}, v{w + 3}, v{w + 4}
v_mov_b32 v{o + 7}, 0
v_mov_b32 v{o + 8}, 0
v_mov_b32 v{o + 9}, v{o}
v_mov_b32 v{o + 10}, v{o + 1}
v_mov_b32 v{o + 11}, v{o + 2}
v_mov_b32 v{o + 12}, 0
v_mov_b32 v{o + 13}, v{o + 4}
v_mov_b32 v{o + 14}, v{o + 5}
v_mov_b32 v{o + 15}, v{o + 6}
v_lshrrev_b32 v2, 5, v{b + 1}
v_and_b32 v3, 15, v{b + 1}
v_lshl_add_u32 v2, v2, 4, v3
v_mul_u32_u24 v2, 320, v2
v_bfe_u32 v3, v{b + 1}, 4, 1
v_mul_u32_u24 v3, {TU - TL}, v3
v_add_u32 v2, v2, v3
v_lshl_add_u32 v2, v{b}, 6, v2
v_add_u32 v2, {TL}, v2
v_cmp_gt_u32 vcc, 5, v{b}
s_nop 1
v_cndmask_b32 v2, v10, v2, vcc
ds_write_b128 v2, v[{o}:{o + 3}]
ds_write_b128 v2, v[{o + 4}:{o + 7}] offset:16
ds_write_b128 v2, v[{o + 8}:{o + 11}] offset:32
ds_write_b128 v2, v[{o + 12}:{o + 15}] offset:48
""")
    count(a, F_TRDY)
    a(f"""
s_cmp_lt_u32 {s(sWave)}, 6
s_cbranch_scc1 L_xload
L_tab:
v_add_u32 v1, -384, v14
v_lshlrev_b32 v2, 2, v1
v_add_u32 v3, {TABN}, v2
v_lshlrev_b32 v4, 17, v1              ; code 2i << 16
v_or_b32 v4, 0x8000, v4
v_cmp_gt_u32 vcc, 64, v1
v_mov_b32 v5, {SEXP << 23}
v_mov_b32 v6, {(SEXP + 1) << 23}
v_cndmask_b32 v5, v5, v6, vcc
v_cndmask_b32 v6, 0, v6, vcc
v_add_u32 v4, v4, v5
s_mov_b32 {s(sA)}, {f32(KAPPA * 0.044715)}
v_mov_b32 v7, {f32(KAPPA)}
s_mov_b32 {s(sB)}, {NBIN // 2}
L_tabl:
v_add_u32 v9, 0x10000, v4
v_sub_f32 v8, v4, v6
v_sub_f32 v9, v9, v6
v_mul_f32 v10, v8, v8
v_mul_f32 v11, v9, v9
v_fma_f32 v10, v10, {s(sA)}, v7
v_fma_f32 v11, v11, {s(sA)}, v7
v_mul_f32 v10, v10, v8
v_mul_f32 v11, v11, v9
v_exp_f32 v10, -v10
v_exp_f32 v11, -v11
s_nop 0
v_add_f32 v12, 1.0, v10
v_add_f32 v13, 1.0, v11
v_rcp_f32 v12, v12
v_rcp_f32 v13, v13
s_nop 0
v_mul_f32 v8, v8, v12
v_mul_f32 v9, v9, v13
v_mul_f32 v10, -v8, v10
v_mul_f32 v11, -v9, v11
v_cvt_pk_bf16_f32 v12, v8, v9
v_cvt_pk_bf16_f32 v13, v10, v11
ds_write_b32 v2, v12
ds_write_b32 v3, v13
v_sub_u32 v4, v4, v5
v_mov_b32 v5, {SEXP << 23}
v_mov_b32 v6, 0
v_add_u32 v4, v4, v5
v_add_u32 v4, 0x1000000, v4
v_add_u32 v2, 512, v2
v_add_u32 v3, 512, v3
s_sub_u32 {s(sB)}, {s(sB)}, 1
s_cmp_lg_u32 {s(sB)}, 0
s_cbranch_scc1 L_tabl
""")
    count(a, F_INIT)
    a("L_xload:")
    stamp(a, 13)
    wait_count(a, "L_wiss", F_ISS, s(sPair))
    stamp(a, 9)
    if CPF == "2":
        a(f"s_cmp_eq_u32 {s(sPair)}, 8\ns_cbranch_scc1 L_nocpb\ns_bitcmp1_b32 {s(sPair)}, 0\ns_cbranch_scc1 L_nocpb")
        code_pf(a, "b", "L_wt", "L_end")
        a("L_nocpb:")
    issue_loads(a)
    a(f"""
s_add_u32 {s(sA)}, {s(sPair)}, 1
v_mov_b32 {v(vT1)}, {s(sA)}
ds_write_b32 {v(vT0)}, {v(vT1)}
""")
    stamp(a, 11)
    a("L_perm:")


def slot_of(a, dst, src):
    a(f"""
s_add_u32 {s(dst)}, {src}, 2
s_and_b32 {s(dst)}, {s(dst)}, 3
s_cmp_eq_u32 {s(dst)}, 3
s_mul_i32 {s(dst)}, {s(dst)}, {SS}
s_cselect_b32 {s(dst + 1)}, {R3U - RU}, {s(dst)}
s_cselect_b32 {s(dst)}, {R3L - RL}, {s(dst)}
s_add_u32 {s(dst)}, {s(dst)}, {RL}
s_add_u32 {s(dst + 1)}, {s(dst + 1)}, {RU}
""")


def goff(g, base):
    tp, Q = divmod(g, 4)
    return f"{s(base + (Q >> 1))} offen offset:{192 * (Q & 1) + 64 * tp}"


def poff(t):
    return [f"v_lshrrev_b32 {v(t)}, 7, {v(vL16)}",
            f"v_mul_u32_u24 {v(t)}, 640, {v(t)}",
            f"v_add_u32 {v(t)}, {v(t)}, {v(vL16)}",
            f"v_add_u32 {v(t + 1)}, {2 * ROWB}, {v(t)}"]


def poffn(t):
    return [f"v_bfe_u32 {v(t)}, {v(vL16)}, 4, 3",
            f"v_mul_u32_u24 {v(t)}, 768, {v(t)}",
            f"v_bfe_u32 {v(t + 1)}, {v(vL16)}, 7, 1",
            f"v_lshl_add_u32 {v(t)}, {v(t + 1)}, 6, {v(t)}",
            f"v_lshrrev_b32 {v(t + 1)}, 8, {v(vL16)}",
            f"v_lshl_add_u32 {v(t)}, {v(t + 1)}, 4, {v(t)}",
            f"v_add_u32 {v(t + 1)}, {2 * ROWB}, {v(t)}"]


def paddr(g, t):
    r, ln = divmod(g, 3)
    return f"{v(t + (r >> 1))}, {s(sO, 4)}, {s(sNB + (r & 1))} offen offset:{128 * ln}"


def park(a, t):
    for tx in poff(t):
        a(tx)
    for g in range(0 if NOPARK else 12):
        a(f"buffer_store_dwordx4 {v(X + 4 * g, 4)}, {paddr(g, t)}{PKF}")


def phase1(a):
    def oreg(rnd):
        return SB + (144 if rnd == 0 else 16 * (rnd - 1))

    def perms(rnd):
        a(f"s_waitcnt vmcnt({32 - 4 * rnd})")
        L = SB + 16 * rnd
        O = oreg(rnd)
        for d in range(4):
            a(f"v_perm_b32 {v(O + 4 * d)}, {v(L + 4 + d)}, {v(L + d)}, {s(sSelLo)}")
            a(f"v_perm_b32 {v(O + 4 * d + 1)}, {v(L + 12 + d)}, {v(L + 8 + d)}, {s(sSelLo)}")
            a(f"v_perm_b32 {v(O + 4 * d + 2)}, {v(L + 4 + d)}, {v(L + d)}, {s(sSelHi)}")
            a(f"v_perm_b32 {v(O + 4 * d + 3)}, {v(L + 12 + d)}, {v(L + 8 + d)}, {s(sSelHi)}")
            if ILV:
                writes(rnd, d)

    def writes(rnd, d):
        O = oreg(rnd)
        a(f"ds_write_b64 {v(vT0)}, {v(O + 4 * d, 2)} offset:{8 * rnd + 2 * d * 72}")
        a(f"ds_write_b64 {v(vT0)}, {v(O + 4 * d + 2, 2)} offset:{8 * rnd + (2 * d + 1) * 72}")

    if not ILV:
        a("s_mov_b32 exec_hi, 0x0000ffff")
        for rnd in range(9):
            perms(rnd)
        a("s_mov_b32 exec_hi, -1")
    stamp(a, 1)
    a(f"s_cmp_lg_u32 {s(sPair)}, 3\ns_cbranch_scc1 L_wt3_ok")
    wait_count(a, "L_wt3", F_TRDY, 4)
    a(f"""
s_lshl_b32 {s(sA)}, {s(sPair)}, 3
s_add_u32 {s(sA)}, {s(sA)}, {F_DONE + 4}
""")
    wait_flags(a, "L_wslot", s(sA))
    stamp(a, 2)
    slot_of(a, sR, s(sPair))
    a(f"""
v_add_u32 {v(vT0)}, {s(sR)}, {v(vSt)}
v_add_u32 {v(vT1)}, {s(sR + 1)}, {v(vSt)}
v_cndmask_b32 {v(vT0)}, {v(vT1)}, {v(vT0)}, s[58:59]
s_mov_b32 exec_hi, 0x0000ffff
""")
    for rnd in range(9):
        if ILV:
            perms(rnd)
        else:
            for d in range(4):
                writes(rnd, d)
    a(f"""
s_mov_b32 exec_hi, -1
s_lshl_b32 {s(sA)}, {s(sPair)}, 2
s_add_u32 {s(sA)}, {s(sA)}, {F_STG}
v_mov_b32 {v(vT0)}, {s(sA)}
v_mov_b32 {v(vT1)}, 1
s_waitcnt lgkmcnt(0)
ds_write_b32 {v(vT0)}, {v(vT1)}
s_cmp_eq_u32 {s(sPair)}, 8
s_cbranch_scc1 L_loader
""")
    stamp(a, 4)
    a(f"s_setprio {PCV}")
    a(f"s_add_u32 {s(sB)}, {s(sPair)}, 1")
    slot_of(a, sR + 2, s(sB))
    for z in range(4):
        a(f"v_add_u32 {v(TMP + z)}, {s(sR + z)}, {v(vCv)}")
    for z in range(3):
        a(f"v_cndmask_b32 {v(vCA + z)}, {v(TMP + z)}, {v(TMP + z + 1)}, s[56:57]")
    wait_count(a, "L_wt", F_TRDY, 4)
    stamp(a, 5)

    NST = 144

    def cread(i):
        z, q = divmod(i, 48)
        r = DS + 4 * (i % NSL)
        return (f"ds_read_b128 {v(TS + 4 * (i % NSL), 4)}, {v(vTa + z)} offset:{320 * q}\n"
                f"ds_read_b64 {v(r, 2)}, {v(vCA + z)} offset:{coff(kap(0, q))}\n"
                f"ds_read_b64 {v(r + 2, 2)}, {v(vCA + z)} offset:{coff(kap(0, q)) + 8}")

    def stats_pk(q):
        out = []
        for r in (0, 2):
            acc = 4 * q + r
            if q == 0:
                out.append(f"v_pk_add_f32 {v(TMP + r, 2)}, {v(acc, 2)}, {v(acc + 4, 2)}")
                out.append(f"v_pk_mul_f32 {v(TMP + 4 + r, 2)}, {v(acc, 2)}, {v(acc, 2)}")
            else:
                if q > 1:
                    out.append(f"v_pk_add_f32 {v(TMP + r, 2)}, {v(TMP + r, 2)}, {v(acc, 2)}")
                out.append(f"v_pk_fma_f32 {v(TMP + 4 + r, 2)}, {v(acc, 2)}, {v(acc, 2)}, {v(TMP + 4 + r, 2)}")
        return out

    def stats(q):
        out = []
        for r in range(4):
            acc = 4 * q + r
            if q == 0:
                out.append(f"v_mov_b32 {v(TMP + r)}, {v(acc)}")
                out.append(f"v_mul_f32 {v(TMP + 4 + r)}, {v(acc)}, {v(acc)}")
            else:
                out.append(f"v_add_f32 {v(TMP + r)}, {v(TMP + r)}, {v(acc)}")
                out.append(f"v_fmac_f32 {v(TMP + 4 + r)}, {v(acc)}, {v(acc)}")
        return out

    SLAG = 3
    for i in range(NE + 1):
        a(cread(i))
    for i in range(NST):
        z, q = divmod(i, 48)
        left = min(i + NE + 1, NST) - (i + 1)
        if i % 2 == 0:
            a(f"s_waitcnt lgkmcnt({3 * max(left - 1, 0)})")
        if i == 96:
            a(f"ds_write_b32 {v(vT0)}, {v(vT1)}")
        c = "0" if z == 0 else v(4 * q, 4)
        a(f"v_mfma_f32_16x16x32_bf16 {v(4 * q, 4)}, {v(TS + 4 * (i % NSL), 4)}, {v(DS + 4 * (i % NSL), 4)}, {c}")
        if i + NE + 1 < NST:
            if i == 97:
                a("s_waitcnt lgkmcnt(12)")
            if i == 43:
                wait_flags(a, "L_wrdy", s(sA))
                stamp(a, 3)
                a(f"""
s_lshl_b32 {s(sA)}, {s(sWave)}, 3
s_add_u32 {s(sA)}, {s(sA)}, {F_DONE + 40}
v_mov_b32 {v(vT0)}, {s(sA)}
v_mov_b32 {v(vT1)}, 1
""")
            a(cread(i + NE + 1))
        if i == NST - 2:
            a(f"ds_write_b32 {v(vT0)}, {v(vT1)} offset:4")
        if not PKS and i >= 96 + SLAG:
            for tx in stats(i - 96 - SLAG):
                a(tx)
    a(f"s_setprio {PLN}")
    if WPF >= 0:
        a(f"""
s_cmp_lg_u32 {s(sWave)}, {WPF}
s_cbranch_scc1 L_nopf
s_lshr_b32 {s(sA)}, s2, 3
s_mul_i32 {s(sA)}, {s(sA)}, 2304
v_lshlrev_b32 v230, 2, {v(vL16)}
buffer_load_dword v231, v230, {s(sI1, 4)}, {s(sA)} offen
buffer_load_dword v231, v230, {s(sI2, 4)}, {s(sA)} offen
L_nopf:
""")
    stamp(a, 8)
    if PKS:
        for q in range(48):
            for tx in stats_pk(q):
                a(tx)
    else:
        for q in range(48 - SLAG, 48):
            for tx in stats(q):
                a(tx)
    stamp(a, 6)
    s1, s2 = TMP, TMP + 4
    a(f"""
s_nop 1
v_permlane32_swap_b32 {v(s1)}, {v(s1 + 1)}
v_permlane32_swap_b32 {v(s1 + 2)}, {v(s1 + 3)}
v_permlane32_swap_b32 {v(s2)}, {v(s2 + 1)}
v_permlane32_swap_b32 {v(s2 + 2)}, {v(s2 + 3)}
""")
    for e in (0, 2):
        m, w_ = s1 + e, s2 + e
        a(f"""
v_add_f32 {v(m)}, {v(m)}, {v(m + 1)}
v_add_f32 {v(w_)}, {v(w_)}, {v(w_ + 1)}
v_mul_f32 {v(m)}, {f32(1.0 / 96)}, {v(m)}
v_mul_f32 {v(w_)}, {f32(1.0 / 96)}, {v(w_)}
v_fma_f32 {v(w_)}, -{v(m)}, {v(m)}, {v(w_)}
v_max_f32 {v(w_)}, 0, {v(w_)}
v_add_f32 {v(w_)}, {f32(1e-5)}, {v(w_)}
v_rsq_f32 {v(w_)}, {v(w_)}
s_nop 0
v_mul_f32 {v(m)}, {v(m)}, {v(w_)}
v_mul_f32 {v(w_)}, {f32(2.0 ** -SEXP)}, {v(w_)}
v_mul_f32 {v(m)}, {f32(-2.0 ** -SEXP)}, {v(m)}
v_mov_b32 {v(w_ + 1)}, {v(w_)}
v_mov_b32 {v(m + 1)}, {v(m)}
""")
    a(f"""
s_nop 1
v_permlane32_swap_b32 {v(s1)}, {v(s1 + 1)}
v_permlane32_swap_b32 {v(s1 + 2)}, {v(s1 + 3)}
v_permlane32_swap_b32 {v(s2)}, {v(s2 + 1)}
v_permlane32_swap_b32 {v(s2 + 2)}, {v(s2 + 3)}
""")
    for ks in range(3):
        for q in range(16 * ks, 16 * ks + 16):
            if PKN:
                for r in (0, 2):
                    acc = 4 * q + r
                    a(f"v_pk_fma_f32 {v(acc, 2)}, {v(acc, 2)}, {v(s2 + r, 2)}, {v(s1 + r, 2)}")
            else:
                for r in range(4):
                    acc = 4 * q + r
                    a(f"v_fma_f32 {v(acc)}, {v(acc)}, {v(s2 + r)}, {v(s1 + r)}")
        ta = (192, X, X + 16)[ks]
        tb = 208 if ks == 0 else 16 * ks
        for r in range(4):
            base = ta if r < 2 else tb
            for sel in range(2):
                for d in range(4):
                    qp = 8 * ks + 4 * sel + d
                    a(f"v_cvt_pk_bf16_f32 {v(base + 8 * sel + 4 * (r & 1) + d)}, {v(8 * qp + r)}, {v(8 * qp + 4 + r)}")
        a("s_nop 0")
        for base in (ta, tb):
            for i in range(8):
                a(f"v_permlane16_swap_b32 {v(base + i)}, {v(base + 8 + i)}")
        if ks == 0:
            for i in range(16):
                a(f"v_mov_b32 {v(i)}, {v(208 + i)}")
        if ks == 1:
            for i in range(16):
                a(f"v_mov_b32 {v(X + 32 + i)}, {v(192 + i)}")
    stamp(a, 7)
    if DIAG:
        a(f"s_mov_b32 s62, {s(sWave)}")
    stamp_flush(a, 14, 0)
    a(f"""
s_mov_b32 {s(sPair)}, 8
s_mov_b32 {s(sMode)}, 1
s_sub_u32 {s(sA)}, {s(sWave)}, 1
s_cmp_lt_u32 {s(sA)}, {DEFER - 1}
s_cbranch_scc1 L_p2
s_mov_b32 {s(sMode)}, 0
""")
    park(a, TMP)
    a(f"""
s_cmp_lg_u32 {s(sWave)}, 0
s_cbranch_scc1 L_p2
s_setprio 3
s_branch L_xload
L_loader:
""")
    load_groups(a, tuple(range(NLW, 4)), 60)


GROUPS = [(0, 5), (5, 4), (9, 5), (14, 10)]


def load_groups(a, gs, r):
    dma_consts(a, r)
    for gi in gs:
        n0, n = GROUPS[gi]
        wait_flags(a, f"L_wg{gi}", F_DONE + 4 + 8 * (9 + gi))
        for tp, c in PIECES[n0:n0 + n]:
            dma_piece(a, tp, c, r)
        if gi == gs[0] and gi:
            wait_count(a, f"L_wo{gi}", F_RDY, n0)
        a(f"v_mov_b32 {v(vT0)}, {F_RDY}")
        for i in range(n):
            a(f"v_mov_b32 {v(r + 4 + i)}, {n0 + i + 1}")
            a(f"s_waitcnt vmcnt({6 * (n - 1 - i)})")
            a(f"ds_write_b32 {v(vT0)}, {v(r + 4 + i)}")


class Stream:
    def __init__(self, a):
        self.a = a
        self.out = []

    def __call__(self, tx):
        for ln in tx.split("\n"):
            i = Ins(ln)
            if i.states == 0:
                self.a(ln)
                continue
            touch = (i.rd | i.wr) if i.kind != "lds" else set(i.rd)
            need = -1
            for k, d in enumerate(self.out):
                if d & touch:
                    need = k
            if need >= 0:
                n = min(len(self.out) - 1 - need, 14)
                self.a(f"s_waitcnt lgkmcnt({n})")
                self.out = self.out[len(self.out) - n:] if n else []
            self.a(ln)
            if i.kind == "lds":
                self.out.append(set(i.wr))


PSCH = E("PSCH", "prog")
PU = int(E("PU", "12"))


PADG = """s_cmp_lg_u32 s16, 7
s_cbranch_scc1 L_end
v_mov_b32 v20, 0
v_mov_b32 v21, 0
s_mov_b64 exec, 1
buffer_atomic_or v20, v21, s[88:91], 0 offen sc0
s_waitcnt vmcnt(0)
v_readfirstlane_b32 s92, v20
s_not_b32 s92, s92""" if E("PADG") else ""
PAD = f"""L_pad:
{PADG}
L_pad2:
s_sleep 4
s_memrealtime s[94:95]
s_waitcnt lgkmcnt(0)
s_sub_u32 s94, s94, s92
s_cmp_lt_u32 s94, {int(float(E("PADT", "0")) * 100)}
s_cbranch_scc1 L_pad2""" if E("PADT") else ""


def prio_init():
    if PSCH == "prog":
        return f"s_setprio {PM[0]}"
    return f"""s_setprio {PRA}
s_cmp_lt_u32 {s(sWave)}, 4
s_cbranch_scc1 L_mtile
s_setprio {PRB}"""


def phase2(a):
    SH = "dst_sel:DWORD dst_unused:UNUSED_PAD src0_sel:DWORD src1_sel:WORD_1"
    t0, t1 = ACC, ACC + 1
    a("L_p2:")
    for g in range(NLW):
        a(f"s_cmp_lg_u32 {s(sWave)}, {g + 1}\ns_cbranch_scc1 L_nodma{g}\ns_setprio 3")
        load_groups(a, (g,), ACC)
        a(f"L_nodma{g}:")
    if E("PAD1"):
        a(f"""L_pad1:
s_sleep 2
s_memrealtime s[94:95]
s_waitcnt lgkmcnt(0)
s_sub_u32 s94, s94, s92
s_cmp_lt_u32 s94, {int(float(E("PAD1")) * 100)}
s_cbranch_scc1 L_pad1""")
    wait_count(a, "L_wi", F_INIT, 2)
    a(f"""
v_bfe_u32 {v(t0)}, {v(vL16)}, 6, 2            ; r
v_and_b32 {v(t1)}, 48, {v(vL16)}              ; 16c'
v_lshrrev_b32 {v(t1 + 1)}, 9, {v(vL16)}         ; g>>1
v_lshl_add_u32 {v(t0)}, {v(t1 + 1)}, 3, {v(t0)}   ; row = 8(g>>1) + r
v_lshl_add_u32 {v(vA[1])}, {v(t0)}, 6, {v(t1)}
v_mul_u32_u24 {v(t0)}, 192, {v(t0)}
v_add_u32 {v(vA[2])}, {v(t0)}, {v(t1)}
v_bfe_u32 {v(t0)}, {v(vL16)}, 8, 1            ; g&1
v_mul_u32_u24 {v(t1)}, {DZ}, {v(t0)}
v_add_u32 {v(vA[1])}, {v(vA[1])}, {v(t1)}
v_add_u32 {v(vA[2])}, {v(vA[2])}, {v(t1)}
s_mov_b32 {s(cNB)}, {h2(-BETA)}
s_mov_b32 {s(cS)}, {h2(SC)}
s_mov_b32 {s(cK)}, {f32(SC * 2.0 ** SEXP)}
s_mov_b32 {s(cLo)}, 0x00003f80
s_mov_b32 {s(cHi)}, 0x3f800000
s_mov_b32 {s(sTile)}, 0
s_mov_b32 {s(sRdy)}, 0
{prio_init()}
L_mtile:
""")
    stamp(a, 2)
    stamp_rt(a, 13)
    if E("XL128"):
        for tx in (poff if E("XL128") == "1" else poffn)(XR):
            a(tx)
        a(f"v_mov_b32 {v(vXoff)}, {v(XR)}\ns_mov_b32 s88, {s(sTB)}\ns_mov_b32 s89, {s(sTB + 1)}\ns_add_u32 s90, s88, {2 * ROWB}\ns_add_u32 s91, s89, {2 * ROWB}")
    st = Stream(a)
    zone_now = {1: 0, 2: 0}
    seen = set()

    def slot(f):
        return WS + 4 * (FRAGS.index(f) % NWS)

    def rd(f):
        tp, n = f
        c, k = divmod(n, 6)
        zone, ad, _ = piece_addr(tp, c)
        base = slot(f)
        if zone != zone_now[tp]:
            zone_now[tp] = zone
            st(f"v_bfe_u32 {v(base)}, {v(vL16)}, 8, 1")
            st(f"v_mul_u32_u24 {v(base)}, {DZ - DZ1}, {v(base)}")
            st(f"v_subrev_u32 {v(base)}, {E1}, {v(base)}")
            st(f"v_{'sub' if zone else 'add'}_u32 {v(vA[tp])}, {v(vA[tp])}, {v(base)}")
        if (tp, c) not in seen:
            seen.add((tp, c))
            need = PIECES.index((tp, c)) + 1
            if need > 0:
                lb = f"L_rd{need}"
                a(f"""
s_cmp_ge_u32 {s(sRdy)}, {need}
s_cbranch_scc1 {lb}_go
v_mov_b32 {v(base)}, {F_RDY}
""")
                spin(a, lb, f"v_cmp_le_u32 vcc, {need}, {v(base + 1)}", base, base + 1)
                a(f"""
v_readfirstlane_b32 {s(sRdy)}, {v(base + 1)}
{lb}_go:
""")
                if need == 1:
                    stamp(a, 3)
        off = ad - (E1 if zone else 0)
        for hf in range(2):
            if tp == 1:
                ht, ks = divmod(k, 3)
                o = off + 1024 * ks + 256 * hf + 8 * ht
            else:
                o = off + 768 * hf + 64 * (k // 2) + 8 * (k % 2)
            assert o < 65536
            st(f"ds_read_b64_tr_b16 {v(base + 2 * hf, 2)}, {v(vA[tp])} offset:{o}")

    def xreg(T, Q):
        return X + 8 * (4 * (T // 2) + Q) + 4 * (T % 2)

    def mf(f, Q):
        tp, n = f
        c, k = divmod(n, 6)
        if tp == 1:
            ks = n % 3
            d = ACC + 16 * ((n // 3) % 3) + 4 * Q
            return (f"v_mfma_f32_16x16x32_bf16 {v(d, 4)}, {v(slot(f), 4)}, "
                    f"{v(H + 16 * ks + 4 * Q, 4)}, {'0' if ks == 0 else v(d, 4)}")
        d = xreg(k, Q)
        return (f"v_mfma_f32_16x16x32_bf16 {v(d, 4)}, {v(slot(f), 4)}, "
                f"{v(G + 16 * (c % 2) + 4 * Q, 4)}, {'0' if c == 0 else v(d, 4)}")

    def look(u, i):
        a0 = ACC + 16 * (u % 3) + 2 * i
        return [(4, f"v_lshlrev_b32_sdwa {v(a0)}, 1, {v(a0)} {SH}"),
                (4, f"v_lshlrev_b32_sdwa {v(a0 + 1)}, 1, {v(a0 + 1)} {SH}"),
                (0, f"ds_read_u16_d16 {v(a0)}, {v(a0)}"),
                (0, f"ds_read_u16_d16_hi {v(a0 + 1)}, {v(a0 + 1)}")]

    def greg(u, i):
        c, ht = divmod(u, 2)
        return G + 16 * (c % 2) + 4 * (i // 2) + 2 * ht + i % 2

    def nexp(u):
        return EXPK[u % len(EXPK)]

    def comb(u, i):
        a0 = ACC + 16 * (u % 3) + 2 * i
        return [(4, f"v_or_b32 {v(greg(u, i))}, {v(a0)}, {v(a0 + 1)}")]

    def expo(u):
        LO = "dst_sel:WORD_0 dst_unused:UNUSED_PRESERVE src0_sel:WORD_0"
        HI = "dst_sel:WORD_1 dst_unused:UNUSED_PRESERVE src0_sel:WORD_1"
        ch1, ch2 = [], []
        for i in range(8 - nexp(u), 8):
            b, t, r = v(ACC + 16 * (u % 3) + 2 * i), v(ACC + 16 * (u % 3) + 2 * i + 1), v(greg(u, i))
            ch1.append([(4, f"v_fma_mixlo_f16 {b}, {b}, {s(cK)}, 0"),
                        (4, f"v_fma_mixhi_f16 {b}, {t}, {s(cK)}, 0"),
                        (4, f"v_pk_fma_f16 {t}, {b}, {b}, {s(cNB)} neg_lo:[0,1,0] neg_hi:[0,1,0]"),
                        (4, f"v_pk_mul_f16 {t}, {t}, {b}"),
                        (8, f"v_exp_f16_sdwa {t}, {t} {LO}"),
                        (8, f"v_exp_f16_sdwa {t}, {t} {HI}"),
                        (4, f"v_pk_fma_f16 {t}, {t}, {s(cS)}, {s(cS)}")])
            ch2.append([(8, f"v_rcp_f16_sdwa {t}, {t} {LO}"),
                        (8, f"v_rcp_f16_sdwa {t}, {t} {HI}"),
                        (4, f"v_fma_mix_f32 {r}, {b}, {t}, 0 op_sel_hi:[1,1,0]"),
                        (4, f"v_fma_mix_f32 {t}, {b}, {t}, 0 op_sel:[1,1,0] op_sel_hi:[1,1,0]"),
                        (4, f"v_cvt_pk_bf16_f32 {r}, {r}, {t}")])
        return ch1, ch2

    def weave(chains):
        out = []
        n = max([len(c) for c in chains], default=0)
        for k in range(n):
            need_pad = sum(1 for c in chains if k < len(c)) == 1
            out += [c[k] + (need_pad,) for c in chains if k < len(c)]
        return out

    extra = {}

    def put(u, m, tx):
        extra.setdefault((u, m), []).append(tx)

    put(23, 0, "s_waitcnt vmcnt(0)")
    for tx in poff(XR):
        put(23, 0, tx)
    for g in range(0 if NOPARK else 12):
        ks = (1, 2, 0)[g // 4]
        put(23, g, f"buffer_load_dwordx4 {v(H + 16 * ks + 4 * (g % 4), 4)}, {paddr(g, XR)}{HLF}")

    for tx in poffn(XR):
        put(24, 2, tx)
    def rgroups(rho):
        oy, ln = divmod(rho, 3)
        return [4 * (p % 3) + 2 * oy + p // 3 for p in (2 * ln, 2 * ln + 1)]

    def xload(rho):
        if E("XL128"):
            return [f"buffer_load_dwordx4 {v(XR + 4 * e, 4)}, {v(vXoff)}, {s(sX, 4)}, {s(88 + (2 * rho + e) // 3)} offen offset:{128 * ((2 * rho + e) % 3)}{XFF}" for e in range(2)]
        return [f"buffer_load_dwordx4 {v(XR + 4 * e, 4)}, {v(vXoff)}, {s(sX, 4)}, {goff(g, sTB)}{XFF}"
                for e, g in enumerate(rgroups(rho)) if not NOX]

    def xpf(oy, t):
        return [f"v_lshrrev_b32 {v(t)}, 8, {v(vL16)}",
                f"v_mul_u32_u24 {v(t)}, 112, {v(t)}",
                f"s_mov_b32 m0, {L_JUNK}",
                f"v_add_u32 {v(t)}, {v(t)}, {v(vXoff)}",
                f"buffer_load_dword {v(t)}, {s(sX, 4)}, {s(sTB + oy)} offen{XPFF} lds"]

    if XPF:
        for tx in xpf(0, XR):
            put(-1, 0, tx)
        if XPF == 2:
            for tx in xpf(1, XR):
                put(-1, 1, tx)
    for tx in xload(0):
        put(RU0 - 3, 22, tx)
    for rho in range(6):
        u = RU0 + 3 * rho
        act = {f[1] % 6: 4 * i for i, f in enumerate(STEPS[u]) if f[0] == 2}
        used = []
        for e, g in enumerate(rgroups(rho)):
            tp, Q = divmod(g, 4)
            for tl in range(2):
                T = 2 * tp + tl
                m = 5
                while any(abs(m - x) < 2 for x in used) or (T in act and act[T] + Q - 4 < m < act[T] + Q + 5):
                    m += 1
                assert m < 21
                used.append(m)
                for r in range(4):
                    d = xreg(T, Q) + r
                    put(u, m + r // 2, "s_nop 0" if NOX else f"v_dot2_f32_bf16 {v(d)}, {v(XR + 4 * e + 2 * tl + r // 2)}, "
                                       f"{s(cHi if r % 2 else cLo)}, {v(d)}")
        if not E("NOXW"):
            extra[(u, min(used))].insert(0, "s_waitcnt vmcnt(0)")
        if rho == 0 and XPF == 1:
            for tx in xpf(1, XR):
                put(u, max(used) + 1, tx)
        if rho < 5:
            for tx in xload(rho + 1):
                put(u, max(used) + 1, tx)

    def hook():
        a(f"""
s_cmp_eq_u32 {s(sMode)}, 0
s_cbranch_scc1 L_rdh_go
v_mov_b32 {v(XR)}, {F_ISS}
""")
        spin(a, "L_wi9", f"v_cmp_eq_u32 vcc, 9, {v(XR + 1)}", XR, XR + 1)
        park(a, XR)
        a(f"s_mov_b32 {s(sMode)}, 0\nL_rdh_go:")
        stamp(a, 1)

    for f in FRAGS[:NWS]:
        rd(f)
    a(f"s_waitcnt vmcnt({13 if DIAG else 12})")
    def steps(u0, u1, fl):
      for u in range(u0, u1):
        if PSCH == "prog" and u == PU:
            a(f"s_cmp_eq_u32 {s(sTile)}, 0\ns_cbranch_scc1 L_pu\ns_setprio {PM[2]}\nL_pu:")
        grp = []
        for i in range(8):
            g = []
            if 0 <= u - 1 < 24 and i < 8 - nexp(u - 1):
                g += comb(u - 1, i)
            if 0 <= u < 24 and i < 8 - nexp(u):
                g += look(u, i)
            if g:
                grp.append(g)
        ex = weave((expo(u - 1)[1] if 0 <= u - 1 < 24 else []) + (expo(u)[0] if 0 <= u < 24 else []))
        flat = [t for g in grp for t in g]
        seq = []
        tl, te = sum(t[0] for t in flat), sum(t[0] for t in ex)
        cl = ce = il = ie = 0
        lastpad = False
        while il < len(flat) or ie < len(ex):
            take_ex = ie < len(ex) and (il >= len(flat) or (flat[il][0] and ce * max(tl, 1) < cl * max(te, 1)))
            if take_ex and lastpad and il < len(flat):
                take_ex = False
            if take_ex:
                if lastpad:
                    seq.append((4, "s_nop 0"))
                seq.append(ex[ie][:2])
                lastpad = ex[ie][2]
                ce += ex[ie][0]
                ie += 1
            else:
                seq.append(flat[il])
                lastpad = False
                cl += flat[il][0]
                il += 1
        if u == UH:
            seq += [(0, hook)]
        lead = 4 if 0 <= u < 4 else 0
        tot = sum(t[0] for t in seq)
        mfs = [(f, Q) for f in STEPS[u] for Q in range(4)]
        nm = len(mfs)
        k = cyc = 0
        for m, (f, Q) in enumerate(mfs):
            st(mf(f, Q))
            if Q == 3 and FRAGS.index(f) + NWS < len(FRAGS):
                rd(FRAGS[FRAGS.index(f) + NWS])
            if m >= lead:
                tgt = tot * (m - lead + 1) / max(nm - lead - TRAIL, 1)
                while k < len(seq) and (cyc < tgt or seq[k][0] == 0):
                    st(seq[k][1]) if isinstance(seq[k][1], str) else seq[k][1]()
                    cyc += seq[k][0]
                    k += 1
            for tx in extra.pop((u, m), []):
                st(tx)
            if u >= 25:
                g = (f[1] - 66) * 4 + Q - 12
                if g >= 0 and (g // 4) % 2 == 0:
                    epi(st, 4 * (g // 8) + g % 4)
        assert k == len(seq)

    def finish(fl):
        steps(25, 27, fl)
        assert not extra and not st.out and zone_now == {1: 0, 2: 0}
        stamp(a, 8)
        for oy in range(2):
            line_out(st, oy, 0, fl)
        for oy in range(2):
            epi(st, 8 + 2 * oy)
            epi(st, 9 + 2 * oy)
            line_out(st, oy, 1, fl)
            line_out(st, oy, 2, fl)

    steps(-1, 25, None)
    if STF2 is not None:
        a(f"s_cmp_eq_u32 {s(sTile)}, 0\ns_cbranch_scc1 L_fin1")
        keep = list(st.out)
        finish(STF2)
        a("s_branch L_fin2\nL_fin1:\ns_nop 7")
        st.out = keep
    finish(STF)
    a("L_fin2:")
    if DIAG:
        stamp(a, 9)
        stamp_rt(a, 11)
        a(f"s_lshl_b32 s62, {s(sTile)}, 3\ns_xor_b32 s62, s62, 8\ns_add_u32 s62, s62, {s(sWave)}")
        stamp_flush(a, 14, 1, t0, t1)
    a(f"""
s_cmp_lg_u32 {s(sTile)}, 0
s_cbranch_scc1 {"L_pad" if E("PADT") else "L_end"}
s_mov_b32 {s(sTile)}, 1
s_mov_b32 {s(sTB)}, {s(sNB)}
s_mov_b32 {s(sTB + 1)}, {s(sNB + 1)}
s_mov_b32 {s(sNB)}, {BIG}
s_mov_b32 {s(sNB + 1)}, {BIG}
{f"s_setprio {PM[1]}" if PSCH == "prog" else ""}
s_branch L_mtile
{PAD}
L_end:
s_endpgm
""")


def epi(st, g):
    b = X + 8 * g
    for d in range(4):
        st(f"v_cvt_pk_bf16_f32 {v(b + d)}, {v(b + 2 * d)}, {v(b + 2 * d + 1)}")


def line_out(st, oy, ln, fl):
    ga, gb = [4 * (p % 3) + 2 * oy + p // 3 for p in (2 * ln, 2 * ln + 1)]
    A, B = X + 8 * ga, X + 8 * gb
    for d in range(4):
        st(f"v_mov_b32 {v(A + 4 + d)}, {v(A + d)}")
    for d in range(4):
        st(f"v_mov_b32_dpp {v(A + d)}, {v(B + d)} row_ror:8 row_mask:0xf bank_mask:0xc")
    for d in range(4):
        st(f"v_mov_b32_dpp {v(B + d)}, {v(A + 4 + d)} row_ror:8 row_mask:0xf bank_mask:0x3")
    for e, r in enumerate((A, B)):
        st(f"buffer_store_dwordx4 {v(r, 4)}, {v(XR + e)}, {s(sO, 4)}, {s(sTB + oy)} offen offset:{128 * ln}{fl}")


def descriptor(a, name, nv, ns):
    a(f"""
.p2align 6
.amdhsa_kernel {name}
  .amdhsa_next_free_vgpr {nv}
  .amdhsa_next_free_sgpr {ns}
  .amdhsa_accum_offset {(nv + 3) // 4 * 4}
  .amdhsa_group_segment_fixed_size 0
  .amdhsa_kernarg_size 64
  .amdhsa_user_sgpr_count 2
  .amdhsa_user_sgpr_kernarg_segment_ptr 1
  .amdhsa_system_sgpr_workgroup_id_x 1
  .amdhsa_float_denorm_mode_32 3
.end_amdhsa_kernel
""")


def main():
    here = os.path.dirname(os.path.abspath(__file__))
    ref = open(os.path.join(here, "..", NAME + ".s.ref")).read().split("\n")
    head = [l for l in ref if l.startswith(";") and "@launch" not in l]
    a = Asm()
    for l in head:
        a(l)
    a(f"; @launch grid=(256,1,1) block=(512,1,1) lds={LDS_BYTES}")
    a('.amdgcn_target "amdgcn-amd-amdhsa--gfx950"')
    a(".text")
    prologue(a)
    phase1(a)
    phase2(a)
    probs = check_hazards(a.lines)
    fast, skip = [], None
    for ln in a.lines:
        t = ln.strip()
        if skip:
            if t == skip + ":":
                skip = None
            continue
        fast.append(ln)
        if t.startswith("s_cbranch_scc1 L_rd") and t.endswith("_go"):
            skip = t.split()[1]
    probs += check_hazards(fast)
    for p in probs:
        print("HAZARD:", p)
    a('.section .rodata,"a"')
    descriptor(a, NAME + "_kernel", 256, 100)
    out = sys.argv[1] if len(sys.argv) > 1 else os.path.join(here, "..", NAME + ".s")
    open(out, "w").write(a.text())
    print("wrote", out, "lines", len(a.lines), "hazards", len(probs), "lds", LDS_BYTES)


if __name__ == "__main__":
    main()
```

```python
import math
import struct
import sys
import os

import numpy as np

sys.path.insert(0, os.path.dirname(os.path.abspath(__file__)))
from asmlib import Asm, Ins, v, s, check_hazards

NAME = "standalone__modern_conv_block_replknet__vision"
E = os.environ.get
DIAG = E("DIAG", "0") == "1"
STF = E("STF", " sc1")
XLF, PKF, HLF, XFF = E("XLF", " sc1"), E("PKF", " sc1"), E("HLF", ""), E("XFF", " sc1")
EXPK = [int(c) for c in E("EXPK", "0")]
TRAIL = int(E("TRAIL", "2"))
PKN = E("PKN", "1") == "1"
PKS = E("PKS", "1") == "1"
PCV, PLN = int(E("PCV", "2")), int(E("PLN", "2"))
PM = [int(c) for c in E("PM", "110")]
STF2 = E("STF2")
DEFER = int(E("DEFER", "1"))
NPRE = 1
XPF, XPFF = int(E("XPF", "0")), E("XPFF", " sc1")
ILV = E("ILV", "0") == "1"
NLW = int(E("NLW", "1"))
WPF = int(E("WPF", "-1"))
NOX, NOPARK, NOST = E("NOX"), E("NOPARK"), E("NOST")
UH = 2
RU0 = 7
PRA, PRB = int(E("PRA", "0")), int(E("PRB", "1"))
sStamp = 64


def f32(x):
    return "0x%08x" % struct.unpack("<I", struct.pack("<f", x))[0]


def h2(x):
    b = int(np.float16(x).view(np.uint16))
    return "0x%08x" % (b | (b << 16))


KAPPA = 2.0 * math.sqrt(2.0 / math.pi) * math.log2(math.e)
BETA = float(np.float16(KAPPA / (KAPPA * 0.044715) ** (1.0 / 3.0)))
SC = KAPPA / BETA
BIG = 0x40000000
NBIN = 28
SEXP = 111

XBYTES = 512 * 512 * 96 * 2
ROWB = 512 * 192
WS_END = 256 * 8 * 12288
WS_STAMP = 0x2000000
TW = NBIN * 256
TABP, TABN = 0, 65536
E0 = TW
DZ = 65544
E1 = E0 + DZ + 19 * 3072
DZ1 = 5 * 3072 + 8
L_FLAG = E1 + DZ1 + 5 * 3072
L_JUNK = L_FLAG + 256
LDS_BYTES = L_FLAG + 512
assert L_FLAG % 16 == 0 and LDS_BYTES <= 163840 and E0 + 19 * 3072 <= 65536
OS = 584
RS = 7104
SS = 14336
RL = E0
RU = TABN + TW + 128
TL = RL + 3 * SS
TU = RU + 2 * SS + RS + 12 * OS
assert TL + 15360 <= 65536 and TU % 16 == 0 and TU + 15360 <= E1 and RL % 256 == 0 and RU % 256 == 128
R3L = (E1 + 255) // 256 * 256
R3U = R3L + 2 * RS
assert R3U % 256 == 128 and R3U + RS + 12 * OS <= L_FLAG
F_STG = L_FLAG
F_DONE = L_FLAG + 40
F_TRDY = L_FLAG + 160
F_ISS = L_FLAG + 164
F_RDY = L_FLAG + 168
F_INIT = L_FLAG + 172
F_WRAW = L_FLAG + 176
WTMP = RL + SS


def kap(ch, q):
    return 32 * (q >> 4) + 16 * ch + (q & 15)


def coff(c):
    return (c // 8) * OS + (c % 8) * 72


STEPS = {u: [(tp, n) for i in range(3) for tp, n in ((1, 3 * (u + 1) + i), (2, 3 * (u - 3) + i)) if 0 <= n < 72]
         for u in range(-1, 27)}
FRAGS = [f for u in range(-1, 27) for f in STEPS[u]]
PIECES = []
for tp_, n_ in FRAGS:
    if (tp_, n_ // 6) not in PIECES:
        PIECES.append((tp_, n_ // 6))
assert len(PIECES) == 24 and len(FRAGS) == 144


def piece_addr(tp, c):
    i = PIECES.index((tp, c))
    if i < 5:
        return 1, E1 + 3072 * i, DZ1
    return 0, E0 + 3072 * (i - 5), DZ


SB = 48
TS = 192
DS = 212
TMP = 232
vL16, vT0, vT1 = 253, 254, 255
vFl, vTa, vCA, vLdA, vLdB, vSt, vCv, vK = 240, 241, 244, 247, 248, 249, 250, 251
H = 0
X = 48
G = 144
ACC = 176
WS = 224
NWS = 5
XR = 244
vXoff = 252
vA = {1: 254, 2: 255}

NE = 4
NSL = 5

sX, sO, sW = 4, 8, 12
sWave, sTile, sPair, sRdy = 16, 17, 18, 19
sSelLo, sSelHi = 20, 21
sX0, sY0 = 22, 23
sTB = 24
sA, sB, sC, sD = 26, 27, 28, 29
sR = 30
sNB = 36
sMode = 38
sRot = 39
sI1, sI2 = 40, 44
sDL, sDS = 48, 52
sEL, sER, sE1 = 80, 81, 82
cNB, cS, cLo, cHi, cK = 84, 85, 86, 87, 83


def stamp(a, k):
    if DIAG:
        a(f"s_waitcnt lgkmcnt(0)\ns_memtime s[60:61]\ns_waitcnt lgkmcnt(0)\ns_mov_b32 {s(sStamp + k)}, s60")


def stamp_rt(a, k):
    if DIAG:
        a(f"s_waitcnt lgkmcnt(0)\ns_memrealtime s[60:61]\ns_waitcnt lgkmcnt(0)\ns_mov_b32 {s(sStamp + k)}, s60")


def stamp_flush(a, n, rec, vT0=vT0, vT1=vT1):
    if DIAG:
        a(f"s_mov_b32 {s(sStamp + 12)}, {s(sWave)}")
        a(f"v_mov_b32 {v(vT0)}, 0")
        for k in range(n):
            a(f"v_writelane_b32 {v(vT0)}, {s(sStamp + k)}, {k}")
        a(f"""s_lshl_b32 s60, s2, 4
s_add_u32 s60, s60, s62
s_lshl_b32 s60, s60, 7
s_add_u32 s60, s60, {WS_STAMP + 64 * rec}
v_lshrrev_b32 {v(vT1)}, 2, {v(vL16)}
s_mov_b32 exec_lo, 0xffff
s_mov_b32 exec_hi, 0
buffer_store_dword {v(vT0)}, {v(vT1)}, {s(sW, 4)}, s60 offen
s_mov_b64 exec, -1
s_nop 1""")


def srd(a, d, lo, nbytes):
    a(f"""s_mov_b32 {s(d)}, {s(lo)}
s_and_b32 {s(d + 1)}, {s(lo + 1)}, 0xffff
s_mov_b32 {s(d + 2)}, {nbytes}
s_mov_b32 {s(d + 3)}, 0x20000""")


def spin(a, label, cmp, t0=vT0, t1=vT1):
    a(f"""
s_mov_b32 {s(sD)}, 200000
{label}:
ds_read_b32 {v(t1)}, {v(t0)}
s_waitcnt lgkmcnt(0)
{cmp}
s_cmp_eq_u64 vcc, exec
s_cbranch_scc1 {label}_ok
s_sleep 2
s_sub_u32 {s(sD)}, {s(sD)}, 1
s_cmp_lg_u32 {s(sD)}, 0
s_cbranch_scc1 {label}
{label}_ok:
""")


def wait_flags(a, label, addr):
    a(f"v_add_u32 {v(vT0)}, {addr}, {v(vFl)}")
    spin(a, label, f"v_cmp_ne_u32 vcc, 0, {v(vT1)}")


def wait_count(a, label, addr, n, op="eq"):
    a(f"v_mov_b32 {v(vT0)}, {addr}")
    spin(a, label, f"v_cmp_{op}_u32 vcc, {n}, {v(vT1)}")


def count(a, addr):
    a(f"""
v_mov_b32 {v(vT0)}, {addr}
v_mov_b32 {v(vT1)}, 1
s_waitcnt lgkmcnt(0)
s_mov_b64 exec, 1
ds_add_u32 {v(vT0)}, {v(vT1)}
s_mov_b64 exec, -1
""")


def issue_loads(a):
    a(f"""
s_lshl_b32 {s(sA)}, {s(sPair)}, 2
s_add_u32 {s(sA)}, {s(sA)}, {s(sY0)}
s_lshl_b32 {s(sB)}, {s(sA)}, 9
s_add_u32 {s(sB)}, {s(sB)}, {s(sX0)}
s_mul_i32 {s(sB)}, {s(sB)}, 192
s_cmp_lt_u32 {s(sA)}, 2
s_cselect_b64 vcc, s[58:59], 0
v_mov_b32 {v(vLdB)}, {BIG}
s_sub_u32 {s(sC)}, {s(sB)}, {2 * ROWB}
v_add_u32 {v(vT1)}, {s(sC)}, {v(vLdA)}
v_cndmask_b32 {v(vLdB)}, {v(vT1)}, {v(vLdB)}, vcc
v_add_u32 {v(vT1)}, -384, {v(vLdB)}
""")
    for xq in range(9):
        for i in range(4):
            off = 768 * xq + 192 * i - 384
            if xq == 0 and i < 2:
                a(f"buffer_load_dwordx4 {v(SB + 4 * i, 4)}, {v(vT1)}, {s(sX, 4)}, {s(sEL)} offen offset:{192 * i}{XLF}")
                continue
            elif xq == 8 and i >= 2:
                so, im = sER, off - 3840
            elif off < 3840:
                so, im = "0", off
            else:
                so, im = sE1, off - 3840
            so = so if isinstance(so, str) else s(so)
            a(f"buffer_load_dwordx4 {v(SB + 16 * xq + 4 * i, 4)}, {v(vLdB)}, {s(sX, 4)}, {so} offen offset:{im}{XLF}")


CPF = E("CPF", "0")


def code_pf(a, tag, first, last, r=16):
    a(f"""
s_getpc_b64 s[96:97]
L_pc{tag}:
s_add_u32 s96, s96, {first}-L_pc{tag}
s_addc_u32 s97, s97, {"0" if tag in FWD else "-1"}
v_lshlrev_b32 v{r}, 3, {v(vL16)}
v_mov_b32 v{r + 3}, s97
""")
    for i in range(NPF[tag]):
        a(f"""
v_add_u32 v{r + 1}, {8192 * i}, v{r}
v_min_u32 v{r + 1}, {last}-{first}, v{r + 1}
v_add_co_u32 v{r + 4 + 2 * i}, vcc, s96, v{r + 1}
s_nop 1
v_addc_co_u32 v{r + 5 + 2 * i}, vcc, 0, v{r + 3}, vcc
global_load_dword v{r + 2}, v[{r + 4 + 2 * i}:{r + 5 + 2 * i}], off sc1
""")


FWD = {"a", "b"}
NPF = {"a": 3, "b": 5}


def dma_consts(a, r):
    a(f"""
v_lshrrev_b32 {v(r)}, 9, {v(vL16)}             ; l>>5
v_mul_u32_u24 {v(r + 1)}, 1536, {v(r)}
v_add_u32 {v(r + 1)}, {v(r + 1)}, {v(vL16)}
v_bfe_u32 {v(vT0)}, {v(vL16)}, 6, 3            ; (l>>2)&7
v_lshl_add_u32 {v(r)}, {v(r)}, 4, {v(vT0)}
v_mul_u32_u24 {v(r)}, 768, {v(r)}
v_and_b32 {v(vT0)}, 48, {v(vL16)}
v_add_u32 {v(r)}, {v(r)}, {v(vT0)}             ; w1
""")


def dma_piece(a, tp, c, r):
    _, ad, dz = piece_addr(tp, c)
    a(f"""
s_add_u32 {s(sA)}, {s(sRot)}, {c}
s_cmp_ge_u32 {s(sA)}, 12
s_cselect_b32 {s(sB)}, 12, 0
s_sub_u32 {s(sA)}, {s(sA)}, {s(sB)}
s_mul_i32 {s(sA)}, {s(sA)}, {64 if tp == 1 else 6144}
""")
    for par in range(2):
        a(f"s_mov_b32 m0, {ad + par * dz}")
        if tp == 1:
            for ks in range(3):
                a(f"s_add_u32 {s(sR + ks)}, {s(sA)}, {(32 * ks + 8 * par) * 768 - 1024 * ks}")
            for ks in range(3):
                a(f"buffer_load_dwordx4 {v(r)}, {s(sI1, 4)}, {s(sR + ks)} offen offset:{1024 * ks} lds")
        else:
            a(f"s_add_u32 {s(sR)}, {s(sA)}, {1536 * par}")
            a(f"s_add_u32 {s(sR + 1)}, {s(sA)}, {1536 * par + 1536}")
            a(f"buffer_load_dwordx4 {v(vL16)}, {s(sI2, 4)}, {s(sR)} offen lds")
            a(f"buffer_load_dwordx4 {v(r + 1)}, {s(sI2, 4)}, {s(sR)} offen offset:1024 lds")
            a(f"buffer_load_dwordx4 {v(vL16)}, {s(sI2, 4)}, {s(sR + 1)} offen offset:2048 lds")


XADJ = f"""v_lshrrev_b32 v3, 5, v0
v_mul_u32_u24 v3, {2 * ROWB}, v3
v_bfe_u32 v4, v0, 2, 3
v_mul_u32_u24 v4, 768, v4
v_add_u32 v3, v3, v4
v_and_b32 v4, 3, v0
v_lshl_add_u32 {v(vXoff)}, v4, 4, v3""" if E("XADJ") else ""


TOPPF = """; pull the kernel's code towards L2: one dword per 128-byte line, wave 1 takes the first 8 KB
s_getpc_b64 s[96:97]
L_pc0:
v_add_u32 v16, 448, v0
v_and_b32 v16, 511, v16
v_lshlrev_b32 v16, 7, v16
v_min_u32 v16, L_end-L_pc0, v16
v_mov_b32 v17, s97
v_add_co_u32 v16, vcc, s96, v16
s_nop 1
v_addc_co_u32 v17, vcc, 0, v17, vcc
global_load_dword v18, v[16:17], off sc1""" if CPF in ("3", "4") else ""


def prologue(a):
    k = NAME + "_kernel"
    a(f"""
.globl {k}
.p2align 8
.type {k},@function
{k}:
s_cmp_ge_u32 s2, 256
s_cbranch_scc1 L_end
s_load_dwordx8 s[64:71], s[0:1], 0
s_load_dwordx4 s[72:75], s[0:1], 32
{"s_load_dwordx2 s[76:77], s[0:1], 56" if DIAG else ""}
{"s_memrealtime s[92:93]" if E("PADT") or E("PAD1") else ""}
{TOPPF}
s_setprio 3
v_mov_b32 v14, v0                ; tid
v_lshrrev_b32 v1, 6, v0
v_and_b32 v0, 63, v0
v_mov_b32 v10, {BIG}
v_readfirstlane_b32 {s(sWave)}, v1
v_lshlrev_b32 v2, 2, v0
v_add_u32 v2, {L_FLAG}, v2
v_add_u32 v3, -10, v0
v_cmp_gt_u32 vcc, 10, v3
v_cmp_eq_u32 s[56:57], 36, v0
s_or_b64 vcc, vcc, s[56:57]
v_cndmask_b32 v3, 0, 1, vcc
v_lshlrev_b32 {v(vL16)}, 4, v0
v_min_u32 {v(vFl)}, 1, v0
ds_write_b32 v2, v3
v_lshlrev_b32 {v(vFl)}, 2, {v(vFl)}
s_and_b32 {s(sA)}, s2, 3
s_lshl_b32 {s(sA)}, {s(sA)}, 2
s_bfe_u32 {s(sB)}, s2, 0x20003
s_add_u32 {s(sA)}, {s(sA)}, {s(sB)}
s_lshl_b32 {s(sX0)}, {s(sA)}, 5
s_bfe_u32 {s(sA)}, s2, 0x10002
s_lshl_b32 {s(sA)}, {s(sA)}, 3
s_lshr_b32 {s(sB)}, s2, 5
s_add_u32 {s(sA)}, {s(sA)}, {s(sB)}
s_lshl_b32 {s(sY0)}, {s(sA)}, 5
; staging lane map: row = l/12, o = l%12 (lanes < 48)
v_mul_u32_u24 v12, 43, v0
v_lshrrev_b32 v12, 9, v12          ; row
v_mul_u32_u24 v13, 12, v12
v_sub_u32 v13, v0, v13             ; o
v_mul_u32_u24 v5, {ROWB}, v12
v_lshl_add_u32 v5, v13, 4, v5
v_cmp_gt_u32 vcc, 48, v0
v_cmp_gt_u32 s[58:59], 24, v0    ; rows 0,1
s_cmp_eq_u32 {s(sX0)}, 0
s_cselect_b32 {s(sEL)}, {BIG}, 0
v_cndmask_b32 {v(vLdA)}, v10, v5, vcc
s_mov_b32 {s(sE1)}, 3840
s_cmp_eq_u32 {s(sX0)}, 480
s_cselect_b32 {s(sER)}, {BIG}, {s(sE1)}
s_mov_b32 {s(sPair)}, {s(sWave)}
v_add_u32 v15, -256, v14             ; waves 4..7: 0..255
""")
    if CPF in ("1", "2"):
        a(f"s_cmp_lg_u32 {s(sWave)}, 7\ns_cbranch_scc1 L_nocpa")
        code_pf(a, "a", "L_pb", "L_mtile")
        a("L_nocpa:")
    a("s_waitcnt lgkmcnt(0)\ns_barrier")
    srd(a, sX, 64, XBYTES)
    srd(a, sDL, 66, 9 * 96 * 2)
    srd(a, sDS, 68, 25 * 96 * 2)
    srd(a, sI1, 70, 96 * 384 * 2)
    srd(a, sI2, 72, 96 * 384 * 2)
    srd(a, sO, 74, XBYTES)
    if DIAG:
        srd(a, sW, 76, WS_STAMP + 0x100000)
    if E("PADG"):
        a("""s_load_dwordx2 s[88:89], s[0:1], 48
s_waitcnt lgkmcnt(0)
s_and_b32 s89, s89, 0xffff
s_mov_b32 s90, 256
s_mov_b32 s91, 0x20000
s_not_b32 s94, s92
v_mov_b32 v20, s94
v_mov_b32 v21, 0
s_cmp_lg_u32 s16, 7
s_cbranch_scc1 L_noat
s_mov_b64 exec, 1
buffer_atomic_umax v20, v21, s[88:91], 0 offen
s_mov_b64 exec, -1
L_noat:""")
    stamp(a, 0)
    stamp_rt(a, 10)
    a(f"""
s_cmp_lg_u32 {s(sWave)}, 0
s_cbranch_scc1 L_pb
s_mov_b32 m0, {WTMP}
s_mov_b32 {s(sA)}, 4096
""")
    for i in range(4):
        a(f"buffer_load_dwordx4 {v(vL16)}, {s(sDS, 4)}, 0 offen offset:{1024 * i} lds")
    a(f"s_mov_b32 m0, {WTMP + 4096}\ns_nop 0\nbuffer_load_dwordx4 {v(vL16)}, {s(sDS, 4)}, {s(sA)} offen lds")
    a(f"s_mov_b32 m0, {WTMP + 5120}\ns_nop 0")
    for i in range(2):
        a(f"buffer_load_dwordx4 {v(vL16)}, {s(sDL, 4)}, 0 offen offset:{1024 * i} lds")
    stamp(a, 9)
    issue_loads(a)
    a(f"""
v_mov_b32 {v(vT0)}, {F_ISS}
v_mov_b32 {v(vT1)}, 1
ds_write_b32 {v(vT0)}, {v(vT1)}
s_waitcnt vmcnt(36)
ds_write_b32 {v(vT0)}, {v(vT1)} offset:{F_WRAW - F_ISS}
""")
    stamp(a, 11)
    a(f"""
L_pb:
s_mov_b32 {s(sSelLo)}, 0x05040100
s_mov_b32 {s(sSelHi)}, 0x07060302
s_lshr_b32 {s(sA)}, s2, 3
s_mul_i32 {s(sB)}, {s(sA)}, 43
s_lshr_b32 {s(sB)}, {s(sB)}, 9
s_mul_i32 {s(sB)}, {s(sB)}, 12
s_sub_u32 {s(sRot)}, {s(sA)}, {s(sB)}       ; (wg>>3) % 12
v_bfe_u32 v1, v0, 3, 1
v_lshrrev_b32 v2, 5, v0          ; ch'
v_bfe_u32 v3, v0, 4, 1           ; dyp
v_bfe_u32 v4, v0, 2, 1           ; oy
v_sub_u32 v3, v3, v4             ; dyp-oy
v_and_b32 v4, 3, v0
v_mul_u32_u24 v5, {TU - TL}, v1
v_lshl_add_u32 v5, v4, 4, v5
v_add_u32 v5, {TL}, v5
v_cmp_eq_u32 s[56:57], v1, v2
v_add_u32 v6, 0, v3
v_cmp_gt_u32 vcc, 5, v6
v_lshl_add_u32 v7, v6, 6, v5
s_and_b64 vcc, vcc, s[56:57]
v_cndmask_b32 {v(vTa)}, v10, v7, vcc
v_add_u32 v6, 2, v3
v_lshl_add_u32 v7, v6, 6, v5
v_cndmask_b32 {v(vTa + 1)}, v10, v7, s[56:57]
v_add_u32 v6, 4, v3
v_cmp_gt_u32 vcc, 5, v6
v_lshl_add_u32 v7, v6, 6, v5
s_and_b64 vcc, vcc, s[56:57]
v_cndmask_b32 {v(vTa + 2)}, v10, v7, vcc
v_mul_u32_u24 v2, {2 * OS}, v2
v_and_b32 v3, 7, v0
v_lshl_add_u32 {v(vCv)}, v3, 3, v2
v_mul_u32_u24 v3, 768, v3
v_mul_u32_u24 v4, {2 * ROWB}, v1
v_add_u32 v3, v3, v4
v_lshrrev_b32 v4, 4, v0
v_lshl_add_u32 {v(vXoff)}, v4, 4, v3
{XADJ}
v_bfe_u32 v3, v0, 4, 1
v_mul_u32_u24 v3, {RS}, v3
v_add_u32 {v(vCv)}, {v(vCv)}, v3
v_cmp_eq_u32 s[56:57], 1, v1
v_and_b32 v5, 1, v12
v_mul_u32_u24 v5, {RS}, v5
v_mul_u32_u24 v6, {OS}, v13
v_add_u32 {v(vSt)}, v5, v6
s_lshl_b32 {s(sA)}, {s(sWave)}, 2
s_add_u32 {s(sA)}, {s(sA)}, {s(sY0)}
s_lshl_b32 {s(sA)}, {s(sA)}, 9
s_add_u32 {s(sA)}, {s(sA)}, {s(sX0)}
s_mul_i32 {s(sNB)}, {s(sA)}, 192
s_add_u32 {s(sNB + 1)}, {s(sNB)}, {ROWB}
s_add_u32 {s(sTB)}, {s(sNB)}, 384
s_add_u32 {s(sTB + 1)}, {s(sTB)}, {ROWB}
s_cmp_lt_u32 {s(sWave)}, {NPRE}
s_cbranch_scc1 L_perm
s_cmp_lt_u32 {s(sWave)}, 4
s_cbranch_scc1 L_xload
""")
    wait_count(a, "L_wraw", F_WRAW, 1)
    for r in range(2):
        b = 128 + 16 * r
        a(f"""
v_add_u32 v1, {256 * r}, v15         ; task
v_mul_u32_u24 v{b}, 683, v1
v_lshrrev_b32 v{b}, 16, v{b}         ; dy
v_mul_u32_u24 v{b + 1}, 96, v{b}
v_sub_u32 v{b + 1}, v1, v{b + 1}     ; c
v_mul_u32_u24 v2, 960, v{b}
v_lshl_add_u32 v2, v{b + 1}, 1, v2
v_add_u32 v1, -1, v{b}
v_mul_u32_u24 v3, 576, v1
v_lshl_add_u32 v3, v{b + 1}, 1, v3
v_cmp_gt_u32 vcc, 3, v1
s_nop 1
v_cndmask_b32 v3, v10, v3, vcc
""")
        for jx in range(5):
            a(f"ds_read_u16 v{b + 4 + jx}, v2 offset:{WTMP + 192 * jx}")
        for jx in range(3):
            a(f"ds_read_u16 v{b + 9 + jx}, v3 offset:{WTMP + 5120 + 192 * jx}")
    a("s_waitcnt lgkmcnt(0)")
    for r in range(2):
        b = 128 + 16 * r
        w = b + 4
        o = 160 + 16 * r
        for jx in range(8):
            a(f"v_lshlrev_b32 v{w + jx}, 16, v{w + jx}")
        a(f"""
v_add_f32 v{w + 1}, v{w + 1}, v{w + 5}
v_add_f32 v{w + 2}, v{w + 2}, v{w + 6}
v_add_f32 v{w + 3}, v{w + 3}, v{w + 7}
v_mov_b32 v1, 0
v_cvt_pk_bf16_f32 v{o}, v{w}, v{w + 1}
v_cvt_pk_bf16_f32 v{o + 1}, v{w + 2}, v{w + 3}
v_cvt_pk_bf16_f32 v{o + 2}, v{w + 4}, v1
v_mov_b32 v{o + 3}, 0
v_cvt_pk_bf16_f32 v{o + 4}, v1, v{w}
v_cvt_pk_bf16_f32 v{o + 5}, v{w + 1}, v{w + 2}
v_cvt_pk_bf16_f32 v{o + 6}, v{w + 3}, v{w + 4}
v_mov_b32 v{o + 7}, 0
v_mov_b32 v{o + 8}, 0
v_mov_b32 v{o + 9}, v{o}
v_mov_b32 v{o + 10}, v{o + 1}
v_mov_b32 v{o + 11}, v{o + 2}
v_mov_b32 v{o + 12}, 0
v_mov_b32 v{o + 13}, v{o + 4}
v_mov_b32 v{o + 14}, v{o + 5}
v_mov_b32 v{o + 15}, v{o + 6}
v_lshrrev_b32 v2, 5, v{b + 1}
v_and_b32 v3, 15, v{b + 1}
v_lshl_add_u32 v2, v2, 4, v3
v_mul_u32_u24 v2, 320, v2
v_bfe_u32 v3, v{b + 1}, 4, 1
v_mul_u32_u24 v3, {TU - TL}, v3
v_add_u32 v2, v2, v3
v_lshl_add_u32 v2, v{b}, 6, v2
v_add_u32 v2, {TL}, v2
v_cmp_gt_u32 vcc, 5, v{b}
s_nop 1
v_cndmask_b32 v2, v10, v2, vcc
ds_write_b128 v2, v[{o}:{o + 3}]
ds_write_b128 v2, v[{o + 4}:{o + 7}] offset:16
ds_write_b128 v2, v[{o + 8}:{o + 11}] offset:32
ds_write_b128 v2, v[{o + 12}:{o + 15}] offset:48
""")
    count(a, F_TRDY)
    a(f"""
s_cmp_lt_u32 {s(sWave)}, 6
s_cbranch_scc1 L_xload
L_tab:
v_add_u32 v1, -384, v14
v_lshlrev_b32 v2, 2, v1
v_add_u32 v3, {TABN}, v2
v_lshlrev_b32 v4, 17, v1              ; code 2i << 16
v_or_b32 v4, 0x8000, v4
v_cmp_gt_u32 vcc, 64, v1
v_mov_b32 v5, {SEXP << 23}
v_mov_b32 v6, {(SEXP + 1) << 23}
v_cndmask_b32 v5, v5, v6, vcc
v_cndmask_b32 v6, 0, v6, vcc
v_add_u32 v4, v4, v5
s_mov_b32 {s(sA)}, {f32(KAPPA * 0.044715)}
v_mov_b32 v7, {f32(KAPPA)}
s_mov_b32 {s(sB)}, {NBIN // 2}
L_tabl:
v_add_u32 v9, 0x10000, v4
v_sub_f32 v8, v4, v6
v_sub_f32 v9, v9, v6
v_mul_f32 v10, v8, v8
v_mul_f32 v11, v9, v9
v_fma_f32 v10, v10, {s(sA)}, v7
v_fma_f32 v11, v11, {s(sA)}, v7
v_mul_f32 v10, v10, v8
v_mul_f32 v11, v11, v9
v_exp_f32 v10, -v10
v_exp_f32 v11, -v11
s_nop 0
v_add_f32 v12, 1.0, v10
v_add_f32 v13, 1.0, v11
v_rcp_f32 v12, v12
v_rcp_f32 v13, v13
s_nop 0
v_mul_f32 v8, v8, v12
v_mul_f32 v9, v9, v13
v_mul_f32 v10, -v8, v10
v_mul_f32 v11, -v9, v11
v_cvt_pk_bf16_f32 v12, v8, v9
v_cvt_pk_bf16_f32 v13, v10, v11
ds_write_b32 v2, v12
ds_write_b32 v3, v13
v_sub_u32 v4, v4, v5
v_mov_b32 v5, {SEXP << 23}
v_mov_b32 v6, 0
v_add_u32 v4, v4, v5
v_add_u32 v4, 0x1000000, v4
v_add_u32 v2, 512, v2
v_add_u32 v3, 512, v3
s_sub_u32 {s(sB)}, {s(sB)}, 1
s_cmp_lg_u32 {s(sB)}, 0
s_cbranch_scc1 L_tabl
""")
    count(a, F_INIT)
    a("L_xload:")
    stamp(a, 13)
    wait_count(a, "L_wiss", F_ISS, s(sPair))
    stamp(a, 9)
    if CPF == "4":
        a(f"s_cmp_lg_u32 {s(sPair)}, 5\ns_cbranch_scc1 L_nocpb")
        NPF["b"] = 2
        code_pf(a, "b", "L_loader", "L_end", 20)
        a("L_nocpb:")
    if CPF == "2":
        a(f"s_cmp_eq_u32 {s(sPair)}, 8\ns_cbranch_scc1 L_nocpb\ns_bitcmp1_b32 {s(sPair)}, 0\ns_cbranch_scc1 L_nocpb")
        code_pf(a, "b", "L_wt", "L_end")
        a("L_nocpb:")
    issue_loads(a)
    a(f"""
s_add_u32 {s(sA)}, {s(sPair)}, 1
v_mov_b32 {v(vT1)}, {s(sA)}
ds_write_b32 {v(vT0)}, {v(vT1)}
""")
    stamp(a, 11)
    a("L_perm:")


def slot_of(a, dst, src):
    a(f"""
s_add_u32 {s(dst)}, {src}, 2
s_and_b32 {s(dst)}, {s(dst)}, 3
s_cmp_eq_u32 {s(dst)}, 3
s_mul_i32 {s(dst)}, {s(dst)}, {SS}
s_cselect_b32 {s(dst + 1)}, {R3U - RU}, {s(dst)}
s_cselect_b32 {s(dst)}, {R3L - RL}, {s(dst)}
s_add_u32 {s(dst)}, {s(dst)}, {RL}
s_add_u32 {s(dst + 1)}, {s(dst + 1)}, {RU}
""")


def goff(g, base):
    tp, Q = divmod(g, 4)
    return f"{s(base + (Q >> 1))} offen offset:{192 * (Q & 1) + 64 * tp}"


def poff(t):
    return [f"v_lshrrev_b32 {v(t)}, 7, {v(vL16)}",
            f"v_mul_u32_u24 {v(t)}, 640, {v(t)}",
            f"v_add_u32 {v(t)}, {v(t)}, {v(vL16)}",
            f"v_add_u32 {v(t + 1)}, {2 * ROWB}, {v(t)}"]


def poffn(t):
    return [f"v_bfe_u32 {v(t)}, {v(vL16)}, 4, 3",
            f"v_mul_u32_u24 {v(t)}, 768, {v(t)}",
            f"v_bfe_u32 {v(t + 1)}, {v(vL16)}, 7, 1",
            f"v_lshl_add_u32 {v(t)}, {v(t + 1)}, 6, {v(t)}",
            f"v_lshrrev_b32 {v(t + 1)}, 8, {v(vL16)}",
            f"v_lshl_add_u32 {v(t)}, {v(t + 1)}, 4, {v(t)}",
            f"v_add_u32 {v(t + 1)}, {2 * ROWB}, {v(t)}"]


def paddr(g, t):
    r, ln = divmod(g, 3)
    return f"{v(t + (r >> 1))}, {s(sO, 4)}, {s(sNB + (r & 1))} offen offset:{128 * ln}"


def park(a, t):
    for tx in poff(t):
        a(tx)
    for g in range(0 if NOPARK else 12):
        a(f"buffer_store_dwordx4 {v(X + 4 * g, 4)}, {paddr(g, t)}{PKF}")


def phase1(a):
    def oreg(rnd):
        return SB + (144 if rnd == 0 else 16 * (rnd - 1))

    def perms(rnd):
        a(f"s_waitcnt vmcnt({32 - 4 * rnd})")
        L = SB + 16 * rnd
        O = oreg(rnd)
        for d in range(4):
            a(f"v_perm_b32 {v(O + 4 * d)}, {v(L + 4 + d)}, {v(L + d)}, {s(sSelLo)}")
            a(f"v_perm_b32 {v(O + 4 * d + 1)}, {v(L + 12 + d)}, {v(L + 8 + d)}, {s(sSelLo)}")
            a(f"v_perm_b32 {v(O + 4 * d + 2)}, {v(L + 4 + d)}, {v(L + d)}, {s(sSelHi)}")
            a(f"v_perm_b32 {v(O + 4 * d + 3)}, {v(L + 12 + d)}, {v(L + 8 + d)}, {s(sSelHi)}")
            if ILV:
                writes(rnd, d)

    def writes(rnd, d):
        O = oreg(rnd)
        a(f"ds_write_b64 {v(vT0)}, {v(O + 4 * d, 2)} offset:{8 * rnd + 2 * d * 72}")
        a(f"ds_write_b64 {v(vT0)}, {v(O + 4 * d + 2, 2)} offset:{8 * rnd + (2 * d + 1) * 72}")

    if not ILV:
        a("s_mov_b32 exec_hi, 0x0000ffff")
        for rnd in range(9):
            perms(rnd)
        a("s_mov_b32 exec_hi, -1")
    stamp(a, 1)
    a(f"s_cmp_lg_u32 {s(sPair)}, 3\ns_cbranch_scc1 L_wt3_ok")
    wait_count(a, "L_wt3", F_TRDY, 4)
    a(f"""
s_lshl_b32 {s(sA)}, {s(sPair)}, 3
s_add_u32 {s(sA)}, {s(sA)}, {F_DONE + 4}
""")
    wait_flags(a, "L_wslot", s(sA))
    stamp(a, 2)
    slot_of(a, sR, s(sPair))
    a(f"""
v_add_u32 {v(vT0)}, {s(sR)}, {v(vSt)}
v_add_u32 {v(vT1)}, {s(sR + 1)}, {v(vSt)}
v_cndmask_b32 {v(vT0)}, {v(vT1)}, {v(vT0)}, s[58:59]
s_mov_b32 exec_hi, 0x0000ffff
""")
    for rnd in range(9):
        if ILV:
            perms(rnd)
        else:
            for d in range(4):
                writes(rnd, d)
    a(f"""
s_mov_b32 exec_hi, -1
s_lshl_b32 {s(sA)}, {s(sPair)}, 2
s_add_u32 {s(sA)}, {s(sA)}, {F_STG}
v_mov_b32 {v(vT0)}, {s(sA)}
v_mov_b32 {v(vT1)}, 1
s_waitcnt lgkmcnt(0)
ds_write_b32 {v(vT0)}, {v(vT1)}
s_cmp_eq_u32 {s(sPair)}, 8
s_cbranch_scc1 L_loader
""")
    stamp(a, 4)
    a(f"s_setprio {PCV}")
    a(f"s_add_u32 {s(sB)}, {s(sPair)}, 1")
    slot_of(a, sR + 2, s(sB))
    for z in range(4):
        a(f"v_add_u32 {v(TMP + z)}, {s(sR + z)}, {v(vCv)}")
    for z in range(3):
        a(f"v_cndmask_b32 {v(vCA + z)}, {v(TMP + z)}, {v(TMP + z + 1)}, s[56:57]")
    wait_count(a, "L_wt", F_TRDY, 4)
    stamp(a, 5)

    NST = 144

    def cread(i):
        z, q = divmod(i, 48)
        r = DS + 4 * (i % NSL)
        return (f"ds_read_b128 {v(TS + 4 * (i % NSL), 4)}, {v(vTa + z)} offset:{320 * q}\n"
                f"ds_read_b64 {v(r, 2)}, {v(vCA + z)} offset:{coff(kap(0, q))}\n"
                f"ds_read_b64 {v(r + 2, 2)}, {v(vCA + z)} offset:{coff(kap(0, q)) + 8}")

    def stats_pk(q):
        out = []
        for r in (0, 2):
            acc = 4 * q + r
            if q == 0:
                out.append(f"v_pk_add_f32 {v(TMP + r, 2)}, {v(acc, 2)}, {v(acc + 4, 2)}")
                out.append(f"v_pk_mul_f32 {v(TMP + 4 + r, 2)}, {v(acc, 2)}, {v(acc, 2)}")
            else:
                if q > 1:
                    out.append(f"v_pk_add_f32 {v(TMP + r, 2)}, {v(TMP + r, 2)}, {v(acc, 2)}")
                out.append(f"v_pk_fma_f32 {v(TMP + 4 + r, 2)}, {v(acc, 2)}, {v(acc, 2)}, {v(TMP + 4 + r, 2)}")
        return out

    def stats(q):
        out = []
        for r in range(4):
            acc = 4 * q + r
            if q == 0:
                out.append(f"v_mov_b32 {v(TMP + r)}, {v(acc)}")
                out.append(f"v_mul_f32 {v(TMP + 4 + r)}, {v(acc)}, {v(acc)}")
            else:
                out.append(f"v_add_f32 {v(TMP + r)}, {v(TMP + r)}, {v(acc)}")
                out.append(f"v_fmac_f32 {v(TMP + 4 + r)}, {v(acc)}, {v(acc)}")
        return out

    SLAG = 3
    for i in range(NE + 1):
        a(cread(i))
    for i in range(NST):
        z, q = divmod(i, 48)
        left = min(i + NE + 1, NST) - (i + 1)
        if i % 2 == 0:
            a(f"s_waitcnt lgkmcnt({3 * max(left - 1, 0)})")
        if i == 96:
            a(f"ds_write_b32 {v(vT0)}, {v(vT1)}")
        c = "0" if z == 0 else v(4 * q, 4)
        a(f"v_mfma_f32_16x16x32_bf16 {v(4 * q, 4)}, {v(TS + 4 * (i % NSL), 4)}, {v(DS + 4 * (i % NSL), 4)}, {c}")
        if i + NE + 1 < NST:
            if i == 97:
                a("s_waitcnt lgkmcnt(12)")
            if i == 43:
                wait_flags(a, "L_wrdy", s(sA))
                stamp(a, 3)
                a(f"""
s_lshl_b32 {s(sA)}, {s(sWave)}, 3
s_add_u32 {s(sA)}, {s(sA)}, {F_DONE + 40}
v_mov_b32 {v(vT0)}, {s(sA)}
v_mov_b32 {v(vT1)}, 1
""")
            a(cread(i + NE + 1))
        if i == NST - 2:
            a(f"ds_write_b32 {v(vT0)}, {v(vT1)} offset:4")
        if not PKS and i >= 96 + SLAG:
            for tx in stats(i - 96 - SLAG):
                a(tx)
    a(f"s_setprio {PLN}")
    if WPF >= 0:
        a(f"""
s_cmp_lg_u32 {s(sWave)}, {WPF}
s_cbranch_scc1 L_nopf
s_lshr_b32 {s(sA)}, s2, 3
s_mul_i32 {s(sA)}, {s(sA)}, 2304
v_lshlrev_b32 v230, 2, {v(vL16)}
buffer_load_dword v231, v230, {s(sI1, 4)}, {s(sA)} offen
buffer_load_dword v231, v230, {s(sI2, 4)}, {s(sA)} offen
L_nopf:
""")
    stamp(a, 8)
    if PKS:
        for q in range(48):
            for tx in stats_pk(q):
                a(tx)
    else:
        for q in range(48 - SLAG, 48):
            for tx in stats(q):
                a(tx)
    stamp(a, 6)
    s1, s2 = TMP, TMP + 4
    a(f"""
s_nop 1
v_permlane32_swap_b32 {v(s1)}, {v(s1 + 1)}
v_permlane32_swap_b32 {v(s1 + 2)}, {v(s1 + 3)}
v_permlane32_swap_b32 {v(s2)}, {v(s2 + 1)}
v_permlane32_swap_b32 {v(s2 + 2)}, {v(s2 + 3)}
""")
    for e in (0, 2):
        m, w_ = s1 + e, s2 + e
        a(f"""
v_add_f32 {v(m)}, {v(m)}, {v(m + 1)}
v_add_f32 {v(w_)}, {v(w_)}, {v(w_ + 1)}
v_mul_f32 {v(m)}, {f32(1.0 / 96)}, {v(m)}
v_mul_f32 {v(w_)}, {f32(1.0 / 96)}, {v(w_)}
v_fma_f32 {v(w_)}, -{v(m)}, {v(m)}, {v(w_)}
v_max_f32 {v(w_)}, 0, {v(w_)}
v_add_f32 {v(w_)}, {f32(1e-5)}, {v(w_)}
v_rsq_f32 {v(w_)}, {v(w_)}
s_nop 0
v_mul_f32 {v(m)}, {v(m)}, {v(w_)}
v_mul_f32 {v(w_)}, {f32(2.0 ** -SEXP)}, {v(w_)}
v_mul_f32 {v(m)}, {f32(-2.0 ** -SEXP)}, {v(m)}
v_mov_b32 {v(w_ + 1)}, {v(w_)}
v_mov_b32 {v(m + 1)}, {v(m)}
""")
    a(f"""
s_nop 1
v_permlane32_swap_b32 {v(s1)}, {v(s1 + 1)}
v_permlane32_swap_b32 {v(s1 + 2)}, {v(s1 + 3)}
v_permlane32_swap_b32 {v(s2)}, {v(s2 + 1)}
v_permlane32_swap_b32 {v(s2 + 2)}, {v(s2 + 3)}
""")
    for ks in range(3):
        for q in range(16 * ks, 16 * ks + 16):
            if PKN:
                for r in (0, 2):
                    acc = 4 * q + r
                    a(f"v_pk_fma_f32 {v(acc, 2)}, {v(acc, 2)}, {v(s2 + r, 2)}, {v(s1 + r, 2)}")
            else:
                for r in range(4):
                    acc = 4 * q + r
                    a(f"v_fma_f32 {v(acc)}, {v(acc)}, {v(s2 + r)}, {v(s1 + r)}")
        ta = (192, X, X + 16)[ks]
        tb = 208 if ks == 0 else 16 * ks
        for r in range(4):
            base = ta if r < 2 else tb
            for sel in range(2):
                for d in range(4):
                    qp = 8 * ks + 4 * sel + d
                    a(f"v_cvt_pk_bf16_f32 {v(base + 8 * sel + 4 * (r & 1) + d)}, {v(8 * qp + r)}, {v(8 * qp + 4 + r)}")
        a("s_nop 0")
        for base in (ta, tb):
            for i in range(8):
                a(f"v_permlane16_swap_b32 {v(base + i)}, {v(base + 8 + i)}")
        if ks == 0:
            for i in range(16):
                a(f"v_mov_b32 {v(i)}, {v(208 + i)}")
        if ks == 1:
            for i in range(16):
                a(f"v_mov_b32 {v(X + 32 + i)}, {v(192 + i)}")
    stamp(a, 7)
    if DIAG:
        a(f"s_mov_b32 s62, {s(sWave)}")
    stamp_flush(a, 14, 0)
    a(f"""
s_mov_b32 {s(sPair)}, 8
s_mov_b32 {s(sMode)}, 1
s_sub_u32 {s(sA)}, {s(sWave)}, 1
s_cmp_lt_u32 {s(sA)}, {DEFER - 1}
s_cbranch_scc1 L_p2
s_mov_b32 {s(sMode)}, 0
""")
    park(a, TMP)
    a(f"""
s_cmp_lg_u32 {s(sWave)}, 0
s_cbranch_scc1 L_p2
s_setprio 3
s_branch L_xload
L_loader:
""")
    load_groups(a, tuple(range(NLW, 4)), 60)


GROUPS = [(0, 5), (5, 4), (9, 5), (14, 10)]


def load_groups(a, gs, r):
    dma_consts(a, r)
    for gi in gs:
        n0, n = GROUPS[gi]
        wait_flags(a, f"L_wg{gi}", F_DONE + 4 + 8 * (9 + gi))
        for tp, c in PIECES[n0:n0 + n]:
            dma_piece(a, tp, c, r)
        if gi == gs[0] and gi:
            wait_count(a, f"L_wo{gi}", F_RDY, n0)
        a(f"v_mov_b32 {v(vT0)}, {F_RDY}")
        for i in range(n):
            a(f"v_mov_b32 {v(r + 4 + i)}, {n0 + i + 1}")
            a(f"s_waitcnt vmcnt({6 * (n - 1 - i)})")
            a(f"ds_write_b32 {v(vT0)}, {v(r + 4 + i)}")


class Stream:
    def __init__(self, a):
        self.a = a
        self.out = []

    def __call__(self, tx):
        for ln in tx.split("\n"):
            i = Ins(ln)
            if i.states == 0:
                self.a(ln)
                continue
            touch = (i.rd | i.wr) if i.kind != "lds" else set(i.rd)
            need = -1
            for k, d in enumerate(self.out):
                if d & touch:
                    need = k
            if need >= 0:
                n = min(len(self.out) - 1 - need, 14)
                self.a(f"s_waitcnt lgkmcnt({n})")
                self.out = self.out[len(self.out) - n:] if n else []
            self.a(ln)
            if i.kind == "lds":
                self.out.append(set(i.wr))


PSCH = E("PSCH", "prog")
PU = int(E("PU", "12"))


PADG = """s_cmp_lg_u32 s16, 7
s_cbranch_scc1 L_end
v_mov_b32 v20, 0
v_mov_b32 v21, 0
s_mov_b64 exec, 1
buffer_atomic_or v20, v21, s[88:91], 0 offen sc0
s_waitcnt vmcnt(0)
v_readfirstlane_b32 s92, v20
s_not_b32 s92, s92""" if E("PADG") else ""
PAD = f"""L_pad:
{PADG}
L_pad2:
s_sleep 4
s_memrealtime s[94:95]
s_waitcnt lgkmcnt(0)
s_sub_u32 s94, s94, s92
s_cmp_lt_u32 s94, {int(float(E("PADT", "0")) * 100)}
s_cbranch_scc1 L_pad2""" if E("PADT") else ""


def prio_init():
    if PSCH == "prog":
        return f"s_setprio {PM[0]}"
    return f"""s_setprio {PRA}
s_cmp_lt_u32 {s(sWave)}, 4
s_cbranch_scc1 L_mtile
s_setprio {PRB}"""


def phase2(a):
    SH = "dst_sel:DWORD dst_unused:UNUSED_PAD src0_sel:DWORD src1_sel:WORD_1"
    t0, t1 = ACC, ACC + 1
    a("L_p2:")
    for g in range(NLW):
        a(f"s_cmp_lg_u32 {s(sWave)}, {g + 1}\ns_cbranch_scc1 L_nodma{g}\ns_setprio 3")
        load_groups(a, (g,), ACC)
        a(f"L_nodma{g}:")
    if E("PAD1"):
        a(f"""L_pad1:
s_sleep 2
s_memrealtime s[94:95]
s_waitcnt lgkmcnt(0)
s_sub_u32 s94, s94, s92
s_cmp_lt_u32 s94, {int(float(E("PAD1")) * 100)}
s_cbranch_scc1 L_pad1""")
    wait_count(a, "L_wi", F_INIT, 2)
    a(f"""
v_bfe_u32 {v(t0)}, {v(vL16)}, 6, 2            ; r
v_and_b32 {v(t1)}, 48, {v(vL16)}              ; 16c'
v_lshrrev_b32 {v(t1 + 1)}, 9, {v(vL16)}         ; g>>1
v_lshl_add_u32 {v(t0)}, {v(t1 + 1)}, 3, {v(t0)}   ; row = 8(g>>1) + r
v_lshl_add_u32 {v(vA[1])}, {v(t0)}, 6, {v(t1)}
v_mul_u32_u24 {v(t0)}, 192, {v(t0)}
v_add_u32 {v(vA[2])}, {v(t0)}, {v(t1)}
v_bfe_u32 {v(t0)}, {v(vL16)}, 8, 1            ; g&1
v_mul_u32_u24 {v(t1)}, {DZ}, {v(t0)}
v_add_u32 {v(vA[1])}, {v(vA[1])}, {v(t1)}
v_add_u32 {v(vA[2])}, {v(vA[2])}, {v(t1)}
s_mov_b32 {s(cNB)}, {h2(-BETA)}
s_mov_b32 {s(cS)}, {h2(SC)}
s_mov_b32 {s(cK)}, {f32(SC * 2.0 ** SEXP)}
s_mov_b32 {s(cLo)}, 0x00003f80
s_mov_b32 {s(cHi)}, 0x3f800000
s_mov_b32 {s(sTile)}, 0
s_mov_b32 {s(sRdy)}, 0
{prio_init()}
L_mtile:
""")
    stamp(a, 2)
    stamp_rt(a, 13)
    if E("XL128"):
        for tx in (poff if E("XL128") == "1" else poffn)(XR):
            a(tx)
        a(f"v_mov_b32 {v(vXoff)}, {v(XR)}\ns_mov_b32 s88, {s(sTB)}\ns_mov_b32 s89, {s(sTB + 1)}\ns_add_u32 s90, s88, {2 * ROWB}\ns_add_u32 s91, s89, {2 * ROWB}")
    st = Stream(a)
    zone_now = {1: 0, 2: 0}
    seen = set()

    def slot(f):
        return WS + 4 * (FRAGS.index(f) % NWS)

    def rd(f):
        tp, n = f
        c, k = divmod(n, 6)
        zone, ad, _ = piece_addr(tp, c)
        base = slot(f)
        if zone != zone_now[tp]:
            zone_now[tp] = zone
            st(f"v_bfe_u32 {v(base)}, {v(vL16)}, 8, 1")
            st(f"v_mul_u32_u24 {v(base)}, {DZ - DZ1}, {v(base)}")
            st(f"v_subrev_u32 {v(base)}, {E1}, {v(base)}")
            st(f"v_{'sub' if zone else 'add'}_u32 {v(vA[tp])}, {v(vA[tp])}, {v(base)}")
        if (tp, c) not in seen:
            seen.add((tp, c))
            need = PIECES.index((tp, c)) + 1
            if need > 0:
                lb = f"L_rd{need}"
                a(f"""
s_cmp_ge_u32 {s(sRdy)}, {need}
s_cbranch_scc1 {lb}_go
v_mov_b32 {v(base)}, {F_RDY}
""")
                spin(a, lb, f"v_cmp_le_u32 vcc, {need}, {v(base + 1)}", base, base + 1)
                a(f"""
v_readfirstlane_b32 {s(sRdy)}, {v(base + 1)}
{lb}_go:
""")
                if need == 1:
                    stamp(a, 3)
        off = ad - (E1 if zone else 0)
        for hf in range(2):
            if tp == 1:
                ht, ks = divmod(k, 3)
                o = off + 1024 * ks + 256 * hf + 8 * ht
            else:
                o = off + 768 * hf + 64 * (k // 2) + 8 * (k % 2)
            assert o < 65536
            st(f"ds_read_b64_tr_b16 {v(base + 2 * hf, 2)}, {v(vA[tp])} offset:{o}")

    def xreg(T, Q):
        return X + 8 * (4 * (T // 2) + Q) + 4 * (T % 2)

    def mf(f, Q):
        tp, n = f
        c, k = divmod(n, 6)
        if tp == 1:
            ks = n % 3
            d = ACC + 16 * ((n // 3) % 3) + 4 * Q
            return (f"v_mfma_f32_16x16x32_bf16 {v(d, 4)}, {v(slot(f), 4)}, "
                    f"{v(H + 16 * ks + 4 * Q, 4)}, {'0' if ks == 0 else v(d, 4)}")
        d = xreg(k, Q)
        return (f"v_mfma_f32_16x16x32_bf16 {v(d, 4)}, {v(slot(f), 4)}, "
                f"{v(G + 16 * (c % 2) + 4 * Q, 4)}, {'0' if c == 0 else v(d, 4)}")

    def look(u, i):
        a0 = ACC + 16 * (u % 3) + 2 * i
        return [(4, f"v_lshlrev_b32_sdwa {v(a0)}, 1, {v(a0)} {SH}"),
                (4, f"v_lshlrev_b32_sdwa {v(a0 + 1)}, 1, {v(a0 + 1)} {SH}"),
                (0, f"ds_read_u16_d16 {v(a0)}, {v(a0)}"),
                (0, f"ds_read_u16_d16_hi {v(a0 + 1)}, {v(a0 + 1)}")]

    def greg(u, i):
        c, ht = divmod(u, 2)
        return G + 16 * (c % 2) + 4 * (i // 2) + 2 * ht + i % 2

    def nexp(u):
        return EXPK[u % len(EXPK)]

    def comb(u, i):
        a0 = ACC + 16 * (u % 3) + 2 * i
        return [(4, f"v_or_b32 {v(greg(u, i))}, {v(a0)}, {v(a0 + 1)}")]

    def expo(u):
        LO = "dst_sel:WORD_0 dst_unused:UNUSED_PRESERVE src0_sel:WORD_0"
        HI = "dst_sel:WORD_1 dst_unused:UNUSED_PRESERVE src0_sel:WORD_1"
        ch1, ch2 = [], []
        for i in range(8 - nexp(u), 8):
            b, t, r = v(ACC + 16 * (u % 3) + 2 * i), v(ACC + 16 * (u % 3) + 2 * i + 1), v(greg(u, i))
            ch1.append([(4, f"v_fma_mixlo_f16 {b}, {b}, {s(cK)}, 0"),
                        (4, f"v_fma_mixhi_f16 {b}, {t}, {s(cK)}, 0"),
                        (4, f"v_pk_fma_f16 {t}, {b}, {b}, {s(cNB)} neg_lo:[0,1,0] neg_hi:[0,1,0]"),
                        (4, f"v_pk_mul_f16 {t}, {t}, {b}"),
                        (8, f"v_exp_f16_sdwa {t}, {t} {LO}"),
                        (8, f"v_exp_f16_sdwa {t}, {t} {HI}"),
                        (4, f"v_pk_fma_f16 {t}, {t}, {s(cS)}, {s(cS)}")])
            ch2.append([(8, f"v_rcp_f16_sdwa {t}, {t} {LO}"),
                        (8, f"v_rcp_f16_sdwa {t}, {t} {HI}"),
                        (4, f"v_fma_mix_f32 {r}, {b}, {t}, 0 op_sel_hi:[1,1,0]"),
                        (4, f"v_fma_mix_f32 {t}, {b}, {t}, 0 op_sel:[1,1,0] op_sel_hi:[1,1,0]"),
                        (4, f"v_cvt_pk_bf16_f32 {r}, {r}, {t}")])
        return ch1, ch2

    def weave(chains):
        out = []
        n = max([len(c) for c in chains], default=0)
        for k in range(n):
            need_pad = sum(1 for c in chains if k < len(c)) == 1
            out += [c[k] + (need_pad,) for c in chains if k < len(c)]
        return out

    extra = {}

    def put(u, m, tx):
        extra.setdefault((u, m), []).append(tx)

    put(23, 0, "s_waitcnt vmcnt(0)")
    for tx in poff(XR):
        put(23, 0, tx)
    for g in range(0 if NOPARK else 12):
        ks = (1, 2, 0)[g // 4]
        put(23, g, f"buffer_load_dwordx4 {v(H + 16 * ks + 4 * (g % 4), 4)}, {paddr(g, XR)}{HLF}")

    for tx in poffn(XR):
        put(24, 2, tx)
    def rgroups(rho):
        oy, ln = divmod(rho, 3)
        return [4 * (p % 3) + 2 * oy + p // 3 for p in (2 * ln, 2 * ln + 1)]

    def xload(rho):
        if E("XL128"):
            return [f"buffer_load_dwordx4 {v(XR + 4 * e, 4)}, {v(vXoff)}, {s(sX, 4)}, {s(88 + (2 * rho + e) // 3)} offen offset:{128 * ((2 * rho + e) % 3)}{XFF}" for e in range(2)]
        return [f"buffer_load_dwordx4 {v(XR + 4 * e, 4)}, {v(vXoff)}, {s(sX, 4)}, {goff(g, sTB)}{XFF}"
                for e, g in enumerate(rgroups(rho)) if not NOX]

    def xpf(oy, t):
        return [f"v_lshrrev_b32 {v(t)}, 8, {v(vL16)}",
                f"v_mul_u32_u24 {v(t)}, 112, {v(t)}",
                f"s_mov_b32 m0, {L_JUNK}",
                f"v_add_u32 {v(t)}, {v(t)}, {v(vXoff)}",
                f"buffer_load_dword {v(t)}, {s(sX, 4)}, {s(sTB + oy)} offen{XPFF} lds"]

    if XPF:
        for tx in xpf(0, XR):
            put(-1, 0, tx)
        if XPF == 2:
            for tx in xpf(1, XR):
                put(-1, 1, tx)
    for tx in xload(0):
        put(RU0 - 3, 22, tx)
    for rho in range(6):
        u = RU0 + 3 * rho
        act = {f[1] % 6: 4 * i for i, f in enumerate(STEPS[u]) if f[0] == 2}
        used = []
        for e, g in enumerate(rgroups(rho)):
            tp, Q = divmod(g, 4)
            for tl in range(2):
                T = 2 * tp + tl
                m = 5
                while any(abs(m - x) < 2 for x in used) or (T in act and act[T] + Q - 4 < m < act[T] + Q + 5):
                    m += 1
                assert m < 21
                used.append(m)
                for r in range(4):
                    d = xreg(T, Q) + r
                    put(u, m + r // 2, "s_nop 0" if NOX else f"v_dot2_f32_bf16 {v(d)}, {v(XR + 4 * e + 2 * tl + r // 2)}, "
                                       f"{s(cHi if r % 2 else cLo)}, {v(d)}")
        if not E("NOXW"):
            extra[(u, min(used))].insert(0, "s_waitcnt vmcnt(0)")
        if rho == 0 and XPF == 1:
            for tx in xpf(1, XR):
                put(u, max(used) + 1, tx)
        if rho < 5:
            for tx in xload(rho + 1):
                put(u, max(used) + 1, tx)

    def hook():
        a(f"""
s_cmp_eq_u32 {s(sMode)}, 0
s_cbranch_scc1 L_rdh_go
v_mov_b32 {v(XR)}, {F_ISS}
""")
        spin(a, "L_wi9", f"v_cmp_eq_u32 vcc, 9, {v(XR + 1)}", XR, XR + 1)
        park(a, XR)
        a(f"s_mov_b32 {s(sMode)}, 0\nL_rdh_go:")
        stamp(a, 1)

    for f in FRAGS[:NWS]:
        rd(f)
    a(f"s_waitcnt vmcnt({13 if DIAG else 12})")
    def steps(u0, u1, fl):
      for u in range(u0, u1):
        if PSCH == "prog" and u == PU:
            a(f"s_cmp_eq_u32 {s(sTile)}, 0\ns_cbranch_scc1 L_pu\ns_setprio {PM[2]}\nL_pu:")
        grp = []
        for i in range(8):
            g = []
            if 0 <= u - 1 < 24 and i < 8 - nexp(u - 1):
                g += comb(u - 1, i)
            if 0 <= u < 24 and i < 8 - nexp(u):
                g += look(u, i)
            if g:
                grp.append(g)
        ex = weave((expo(u - 1)[1] if 0 <= u - 1 < 24 else []) + (expo(u)[0] if 0 <= u < 24 else []))
        flat = [t for g in grp for t in g]
        seq = []
        tl, te = sum(t[0] for t in flat), sum(t[0] for t in ex)
        cl = ce = il = ie = 0
        lastpad = False
        while il < len(flat) or ie < len(ex):
            take_ex = ie < len(ex) and (il >= len(flat) or (flat[il][0] and ce * max(tl, 1) < cl * max(te, 1)))
            if take_ex and lastpad and il < len(flat):
                take_ex = False
            if take_ex:
                if lastpad:
                    seq.append((4, "s_nop 0"))
                seq.append(ex[ie][:2])
                lastpad = ex[ie][2]
                ce += ex[ie][0]
                ie += 1
            else:
                seq.append(flat[il])
                lastpad = False
                cl += flat[il][0]
                il += 1
        if u == UH:
            seq += [(0, hook)]
        lead = 4 if 0 <= u < 4 else 0
        tot = sum(t[0] for t in seq)
        mfs = [(f, Q) for f in STEPS[u] for Q in range(4)]
        nm = len(mfs)
        k = cyc = 0
        for m, (f, Q) in enumerate(mfs):
            st(mf(f, Q))
            if Q == 3 and FRAGS.index(f) + NWS < len(FRAGS):
                rd(FRAGS[FRAGS.index(f) + NWS])
            if m >= lead:
                tgt = tot * (m - lead + 1) / max(nm - lead - TRAIL, 1)
                while k < len(seq) and (cyc < tgt or seq[k][0] == 0):
                    st(seq[k][1]) if isinstance(seq[k][1], str) else seq[k][1]()
                    cyc += seq[k][0]
                    k += 1
            for tx in extra.pop((u, m), []):
                st(tx)
            if u >= 25:
                g = (f[1] - 66) * 4 + Q - 12
                if g >= 0 and (g // 4) % 2 == 0:
                    epi(st, 4 * (g // 8) + g % 4)
        assert k == len(seq)

    def finish(fl):
        steps(25, 27, fl)
        assert not extra and not st.out and zone_now == {1: 0, 2: 0}
        stamp(a, 8)
        for oy in range(2):
            line_out(st, oy, 0, fl)
        for oy in range(2):
            epi(st, 8 + 2 * oy)
            epi(st, 9 + 2 * oy)
            line_out(st, oy, 1, fl)
            line_out(st, oy, 2, fl)

    steps(-1, 25, None)
    if STF2 is not None:
        a(f"s_cmp_eq_u32 {s(sTile)}, 0\ns_cbranch_scc1 L_fin1")
        keep = list(st.out)
        finish(STF2)
        a("s_branch L_fin2\nL_fin1:\ns_nop 7")
        st.out = keep
    finish(STF)
    a("L_fin2:")
    if DIAG:
        stamp(a, 9)
        stamp_rt(a, 11)
        a(f"s_lshl_b32 s62, {s(sTile)}, 3\ns_xor_b32 s62, s62, 8\ns_add_u32 s62, s62, {s(sWave)}")
        stamp_flush(a, 14, 1, t0, t1)
    a(f"""
s_cmp_lg_u32 {s(sTile)}, 0
s_cbranch_scc1 {"L_pad" if E("PADT") else "L_end"}
s_mov_b32 {s(sTile)}, 1
s_mov_b32 {s(sTB)}, {s(sNB)}
s_mov_b32 {s(sTB + 1)}, {s(sNB + 1)}
s_mov_b32 {s(sNB)}, {BIG}
s_mov_b32 {s(sNB + 1)}, {BIG}
{f"s_setprio {PM[1]}" if PSCH == "prog" else ""}
s_branch L_mtile
{PAD}
L_end:
s_endpgm
""")


def epi(st, g):
    b = X + 8 * g
    for d in range(4):
        st(f"v_cvt_pk_bf16_f32 {v(b + d)}, {v(b + 2 * d)}, {v(b + 2 * d + 1)}")


def line_out(st, oy, ln, fl):
    ga, gb = [4 * (p % 3) + 2 * oy + p // 3 for p in (2 * ln, 2 * ln + 1)]
    A, B = X + 8 * ga, X + 8 * gb
    for d in range(4):
        st(f"v_mov_b32 {v(A + 4 + d)}, {v(A + d)}")
    for d in range(4):
        st(f"v_mov_b32_dpp {v(A + d)}, {v(B + d)} row_ror:8 row_mask:0xf bank_mask:0xc")
    for d in range(4):
        st(f"v_mov_b32_dpp {v(B + d)}, {v(A + 4 + d)} row_ror:8 row_mask:0xf bank_mask:0x3")
    for e, r in enumerate((A, B)):
        st(f"buffer_store_dwordx4 {v(r, 4)}, {v(XR + e)}, {s(sO, 4)}, {s(sTB + oy)} offen offset:{128 * ln}{fl}")


def descriptor(a, name, nv, ns):
    a(f"""
.p2align 6
.amdhsa_kernel {name}
  .amdhsa_next_free_vgpr {nv}
  .amdhsa_next_free_sgpr {ns}
  .amdhsa_accum_offset {(nv + 3) // 4 * 4}
  .amdhsa_group_segment_fixed_size 0
  .amdhsa_kernarg_size 64
  .amdhsa_user_sgpr_count 2
  .amdhsa_user_sgpr_kernarg_segment_ptr 1
  .amdhsa_system_sgpr_workgroup_id_x 1
  .amdhsa_float_denorm_mode_32 3
.end_amdhsa_kernel
""")


def main():
    here = os.path.dirname(os.path.abspath(__file__))
    ref = open(os.path.join(here, "..", NAME + ".s.ref")).read().split("\n")
    head = [l for l in ref if l.startswith(";") and "@launch" not in l]
    a = Asm()
    for l in head:
        a(l)
    a(f"; @launch grid=(256,1,1) block=(512,1,1) lds={LDS_BYTES}")
    a('.amdgcn_target "amdgcn-amd-amdhsa--gfx950"')
    a(".text")
    prologue(a)
    phase1(a)
    phase2(a)
    probs = check_hazards(a.lines)
    fast, skip = [], None
    for ln in a.lines:
        t = ln.strip()
        if skip:
            if t == skip + ":":
                skip = None
            continue
        fast.append(ln)
        if t.startswith("s_cbranch_scc1 L_rd") and t.endswith("_go"):
            skip = t.split()[1]
    probs += check_hazards(fast)
    for p in probs:
        print("HAZARD:", p)
    a('.section .rodata,"a"')
    descriptor(a, NAME + "_kernel", 256, 100)
    out = sys.argv[1] if len(sys.argv) > 1 else os.path.join(here, "..", NAME + ".s")
    open(out, "w").write(a.text())
    print("wrote", out, "lines", len(a.lines), "hazards", len(probs), "lds", LDS_BYTES)


if __name__ == "__main__":
    main()
```

```python
import math
import struct
import sys
import os

import numpy as np

sys.path.insert(0, os.path.dirname(os.path.abspath(__file__)))
from asmlib import Asm, Ins, v, s, check_hazards

NAME = "standalone__modern_conv_block_replknet__vision"
E = os.environ.get
DIAG = E("DIAG", "0") == "1"
STF = E("STF", " sc1")
XLF, PKF, HLF, XFF = E("XLF", " sc1"), E("PKF", " sc1"), E("HLF", ""), E("XFF", " sc1")
EXPK = [int(c) for c in E("EXPK", "21")]
LEAD, XCOST, BACKLOG = int(E("LEAD", "2")), int(E("XCOST", "4")), int(E("BACKLOG", "4"))
PKN = E("PKN", "1") == "1"
PKS = E("PKS", "1") == "1"
PCV, PLN = int(E("PCV", "2")), int(E("PLN", "2"))
PM = [int(c) for c in E("PM", "110")]
STF2 = E("STF2")
DEFER = int(E("DEFER", "8"))
NPRE = 1
XPF, XPFF = int(E("XPF", "0")), E("XPFF", " sc1")
W0P = int(E("W0P", "0"))
RES, RPG = E("RES", "mfma"), int(E("RPG", "2"))
ILV = E("ILV", "0") == "1"
NLW = int(E("NLW", "1"))
WPF = int(E("WPF", "1"))
NOX, NOPARK, NOST = E("NOX"), E("NOPARK"), E("NOST")
UH = 2
RU0 = 7
PRA, PRB = int(E("PRA", "0")), int(E("PRB", "1"))
sStamp = 64


def f32(x):
    return "0x%08x" % struct.unpack("<I", struct.pack("<f", x))[0]


def h2(x):
    b = int(np.float16(x).view(np.uint16))
    return "0x%08x" % (b | (b << 16))


KAPPA = 2.0 * math.sqrt(2.0 / math.pi) * math.log2(math.e)
BETA = float(np.float16(KAPPA / (KAPPA * 0.044715) ** (1.0 / 3.0)))
SC = KAPPA / BETA
BIG = 0x40000000
NBIN = 28
SEXP = int(E("SEXP", "111"))

XBYTES = 512 * 512 * 96 * 2
ROWB = 512 * 192
WS_END = 256 * 8 * 12288
WS_STAMP = 0x2000000
TW = NBIN * 256
TABP, TABN = 0, 65536
E0 = TW
DZ = 65544
E1 = E0 + DZ + 19 * 3072
DZ1 = 5 * 3072 + 8
L_FLAG = E1 + DZ1 + 5 * 3072
L_JUNK = L_FLAG + 256
LDS_BYTES = L_FLAG + 512
assert L_FLAG % 16 == 0 and LDS_BYTES <= 163840 and E0 + 19 * 3072 <= 65536
OS = 584
RS = 7104
SS = 14336
RL = E0
RU = TABN + TW + 128
TL = RL + 3 * SS
TU = RU + 2 * SS + RS + 12 * OS
assert TL + 15360 <= 65536 and TU % 16 == 0 and TU + 15360 <= E1 and RL % 256 == 0 and RU % 256 == 128
R3L = (E1 + 255) // 256 * 256
R3U = R3L + 2 * RS
assert R3U % 256 == 128 and R3U + RS + 12 * OS <= L_FLAG
SLOTS = [int(c) for c in E("SLOTS", "230123012")]
assert SLOTS[6:] == [0, 1, 2] and len(set(SLOTS[:4])) == 4
PRED = [max([p for p in range(k) if SLOTS[p] == SLOTS[k]], default=k - 4) for k in range(9)]
LASTQ = [max(p for p in range(9) if SLOTS[p] == sl) for sl in (3, 0, 1, 2)]
F_STG = L_FLAG
F_DONE = L_FLAG + 40
F_TRDY = L_FLAG + 160
F_ISS = L_FLAG + 164
F_RDY = L_FLAG + 168
F_INIT = L_FLAG + 172
F_WRAW = L_FLAG + 176
WTMP = R3L if SLOTS[3] == 3 else RL + SLOTS[3] * SS


assert all(PRED[k] - (k - 4) in (0, 1) for k in range(9))


def kap(ch, q):
    return 32 * (q >> 4) + 16 * ch + (q & 15)


def coff(c):
    return (c // 8) * OS + (c % 8) * 72


STEPS = {u: [(tp, n) for i in range(3) for tp, n in ((1, 3 * (u + 1) + i), (2, 3 * (u - 3) + i)) if 0 <= n < 72]
         for u in range(-1, 27)}
FRAGS = [f for u in range(-1, 27) for f in STEPS[u]]
PIECES = []
for tp_, n_ in FRAGS:
    if (tp_, n_ // 6) not in PIECES:
        PIECES.append((tp_, n_ // 6))
assert len(PIECES) == 24 and len(FRAGS) == 144


def piece_addr(tp, c):
    i = PIECES.index((tp, c))
    if i < 5:
        return 1, E1 + 3072 * i, DZ1
    return 0, E0 + 3072 * (i - 5), DZ


SB = 48
TS = 192
DS = 212
TMP = 232
vL16, vT0, vT1 = 253, 254, 255
vFl, vTa, vCA, vLdA, vLdB, vSt, vCv, vK = 240, 241, 244, 247, 248, 249, 250, 251
H = 0
X = 48
G = 144
ACC = 176
WS = 224
NWS = int(E("NWS", "4"))
vID = 242
XR = 244
vXoff = 252
vA = {1: 254, 2: 255}

NE = 4
NSL = 5

sX, sO, sW = 4, 8, 12
sWave, sTile, sPair, sRdy = 16, 17, 18, 19
sSelLo, sSelHi = 20, 21
sX0, sY0 = 22, 23
sTB = 24
sA, sB, sC, sD = 26, 27, 28, 29
sR = 30
sNB = 36
sMode = 38
sRot = 39
sI1, sI2 = 40, 44
sDL, sDS = 48, 52
sEL, sER, sE1 = 80, 81, 82
cNB, cS, cLo, cHi, cK = 84, 85, 86, 87, 83


def stamp(a, k):
    if DIAG:
        a(f"s_waitcnt lgkmcnt(0)\ns_memtime s[60:61]\ns_waitcnt lgkmcnt(0)\ns_mov_b32 {s(sStamp + k)}, s60")


def stamp_rt(a, k):
    if DIAG:
        a(f"s_waitcnt lgkmcnt(0)\ns_memrealtime s[60:61]\ns_waitcnt lgkmcnt(0)\ns_mov_b32 {s(sStamp + k)}, s60")


def stamp_flush(a, n, rec, vT0=vT0, vT1=vT1):
    if DIAG:
        a(f"s_mov_b32 {s(sStamp + 12)}, {s(sWave)}")
        a(f"v_mov_b32 {v(vT0)}, 0")
        for k in range(n):
            a(f"v_writelane_b32 {v(vT0)}, {s(sStamp + k)}, {k}")
        a(f"""s_lshl_b32 s60, s2, 4
s_add_u32 s60, s60, s62
s_lshl_b32 s60, s60, 7
s_add_u32 s60, s60, {WS_STAMP + 64 * rec}
v_lshrrev_b32 {v(vT1)}, 2, {v(vL16)}
s_mov_b32 exec_lo, 0xffff
s_mov_b32 exec_hi, 0
buffer_store_dword {v(vT0)}, {v(vT1)}, {s(sW, 4)}, s60 offen
s_mov_b64 exec, -1
s_nop 1""")


def srd(a, d, lo, nbytes):
    a(f"""s_mov_b32 {s(d)}, {s(lo)}
s_and_b32 {s(d + 1)}, {s(lo + 1)}, 0xffff
s_mov_b32 {s(d + 2)}, {nbytes}
s_mov_b32 {s(d + 3)}, 0x20000""")


def spin(a, label, cmp, t0=vT0, t1=vT1):
    a(f"""
s_mov_b32 {s(sD)}, 200000
{label}:
ds_read_b32 {v(t1)}, {v(t0)}
s_waitcnt lgkmcnt(0)
{cmp}
s_cmp_eq_u64 vcc, exec
s_cbranch_scc1 {label}_ok
s_sleep 2
s_sub_u32 {s(sD)}, {s(sD)}, 1
s_cmp_lg_u32 {s(sD)}, 0
s_cbranch_scc1 {label}
{label}_ok:
""")


def wait_flags(a, label, addr):
    a(f"v_add_u32 {v(vT0)}, {addr}, {v(vFl)}")
    spin(a, label, f"v_cmp_ne_u32 vcc, 0, {v(vT1)}")


def wait_count(a, label, addr, n, op="eq"):
    a(f"v_mov_b32 {v(vT0)}, {addr}")
    spin(a, label, f"v_cmp_{op}_u32 vcc, {n}, {v(vT1)}")


def count(a, addr):
    a(f"""
v_mov_b32 {v(vT0)}, {addr}
v_mov_b32 {v(vT1)}, 1
s_waitcnt lgkmcnt(0)
s_mov_b64 exec, 1
ds_add_u32 {v(vT0)}, {v(vT1)}
s_mov_b64 exec, -1
""")


def issue_loads(a):
    a(f"""
s_lshl_b32 {s(sA)}, {s(sPair)}, 2
s_add_u32 {s(sA)}, {s(sA)}, {s(sY0)}
s_lshl_b32 {s(sB)}, {s(sA)}, 9
s_add_u32 {s(sB)}, {s(sB)}, {s(sX0)}
s_mul_i32 {s(sB)}, {s(sB)}, 192
s_cmp_lt_u32 {s(sA)}, 2
s_cselect_b64 vcc, s[58:59], 0
v_mov_b32 {v(vLdB)}, {BIG}
s_sub_u32 {s(sC)}, {s(sB)}, {2 * ROWB}
v_add_u32 {v(vT1)}, {s(sC)}, {v(vLdA)}
v_cndmask_b32 {v(vLdB)}, {v(vT1)}, {v(vLdB)}, vcc
v_add_u32 {v(vT1)}, -384, {v(vLdB)}
""")
    for xq in range(9):
        for i in range(4):
            off = 768 * xq + 192 * i - 384
            if xq == 0 and i < 2:
                a(f"buffer_load_dwordx4 {v(SB + 4 * i, 4)}, {v(vT1)}, {s(sX, 4)}, {s(sEL)} offen offset:{192 * i}{XLF}")
                continue
            elif xq == 8 and i >= 2:
                so, im = sER, off - 3840
            elif off < 3840:
                so, im = "0", off
            else:
                so, im = sE1, off - 3840
            so = so if isinstance(so, str) else s(so)
            a(f"buffer_load_dwordx4 {v(SB + 16 * xq + 4 * i, 4)}, {v(vLdB)}, {s(sX, 4)}, {so} offen offset:{im}{XLF}")


CPF = E("CPF", "4")


def code_pf(a, tag, first, last, r=16):
    a(f"""
s_getpc_b64 s[96:97]
L_pc{tag}:
s_add_u32 s96, s96, {first}-L_pc{tag}
s_addc_u32 s97, s97, {"0" if tag in FWD else "-1"}
v_lshlrev_b32 v{r}, 3, {v(vL16)}
v_mov_b32 v{r + 3}, s97
""")
    for i in range(NPF[tag]):
        a(f"""
v_add_u32 v{r + 1}, {8192 * i}, v{r}
v_min_u32 v{r + 1}, {last}-{first}, v{r + 1}
v_add_co_u32 v{r + 4 + 2 * i}, vcc, s96, v{r + 1}
s_nop 1
v_addc_co_u32 v{r + 5 + 2 * i}, vcc, 0, v{r + 3}, vcc
global_load_dword v{r + 2}, v[{r + 4 + 2 * i}:{r + 5 + 2 * i}], off sc1
""")


FWD = {"a", "b"}
NPF = {"a": 3, "b": 5}


def dma_consts(a, r):
    a(f"""
v_lshrrev_b32 {v(r)}, 9, {v(vL16)}             ; l>>5
v_mul_u32_u24 {v(r + 1)}, 1536, {v(r)}
v_add_u32 {v(r + 1)}, {v(r + 1)}, {v(vL16)}
v_bfe_u32 {v(vT0)}, {v(vL16)}, 6, 3            ; (l>>2)&7
v_lshl_add_u32 {v(r)}, {v(r)}, 4, {v(vT0)}
v_mul_u32_u24 {v(r)}, 768, {v(r)}
v_and_b32 {v(vT0)}, 48, {v(vL16)}
v_add_u32 {v(r)}, {v(r)}, {v(vT0)}             ; w1
""")


def dma_piece(a, tp, c, r):
    _, ad, dz = piece_addr(tp, c)
    a(f"""
s_add_u32 {s(sA)}, {s(sRot)}, {c}
s_cmp_ge_u32 {s(sA)}, 12
s_cselect_b32 {s(sB)}, 12, 0
s_sub_u32 {s(sA)}, {s(sA)}, {s(sB)}
s_mul_i32 {s(sA)}, {s(sA)}, {64 if tp == 1 else 6144}
""")
    for par in range(2):
        a(f"s_mov_b32 m0, {ad + par * dz}")
        if tp == 1:
            for ks in range(3):
                a(f"s_add_u32 {s(sR + ks)}, {s(sA)}, {(32 * ks + 8 * par) * 768 - 1024 * ks}")
            for ks in range(3):
                a(f"buffer_load_dwordx4 {v(r)}, {s(sI1, 4)}, {s(sR + ks)} offen offset:{1024 * ks} lds")
        else:
            a(f"s_add_u32 {s(sR)}, {s(sA)}, {1536 * par}")
            a(f"s_add_u32 {s(sR + 1)}, {s(sA)}, {1536 * par + 1536}")
            a(f"buffer_load_dwordx4 {v(vL16)}, {s(sI2, 4)}, {s(sR)} offen lds")
            a(f"buffer_load_dwordx4 {v(r + 1)}, {s(sI2, 4)}, {s(sR)} offen offset:1024 lds")
            a(f"buffer_load_dwordx4 {v(vL16)}, {s(sI2, 4)}, {s(sR + 1)} offen offset:2048 lds")


XADJ = f"""v_lshrrev_b32 v3, 5, v0
v_mul_u32_u24 v3, {2 * ROWB}, v3
v_bfe_u32 v4, v0, 2, 3
v_mul_u32_u24 v4, 768, v4
v_add_u32 v3, v3, v4
v_and_b32 v4, 3, v0
v_lshl_add_u32 {v(vXoff)}, v4, 4, v3""" if E("XADJ") else ""


TOPPF = """; pull the kernel's code towards L2: one dword per 128-byte line, wave 1 takes the first 8 KB
s_getpc_b64 s[96:97]
L_pc0:
v_add_u32 v16, 448, v0
v_and_b32 v16, 511, v16
v_lshlrev_b32 v16, 7, v16
v_min_u32 v16, L_end-L_pc0, v16
v_mov_b32 v17, s97
v_add_co_u32 v16, vcc, s96, v16
s_nop 1
v_addc_co_u32 v17, vcc, 0, v17, vcc
global_load_dword v18, v[16:17], off sc1""" if CPF in ("3", "4") else ""


def prologue(a):
    k = NAME + "_kernel"
    a(f"""
.globl {k}
.p2align 8
.type {k},@function
{k}:
s_cmp_ge_u32 s2, 256
s_cbranch_scc1 L_end
s_load_dwordx8 s[64:71], s[0:1], 0
s_load_dwordx4 s[72:75], s[0:1], 32
{"s_load_dwordx2 s[76:77], s[0:1], 56" if DIAG else ""}
{"s_memrealtime s[92:93]" if E("PADT") or E("PAD1") else ""}
{TOPPF}
s_setprio 3
v_mov_b32 v14, v0                ; tid
v_lshrrev_b32 v1, 6, v0
v_and_b32 v0, 63, v0
v_mov_b32 v10, {BIG}
v_readfirstlane_b32 {s(sWave)}, v1
v_lshlrev_b32 v2, 2, v0
v_add_u32 v2, {L_FLAG}, v2
v_add_u32 v3, -10, v0
v_cmp_gt_u32 vcc, 10, v3
v_cmp_eq_u32 s[56:57], 36, v0
s_or_b64 vcc, vcc, s[56:57]
v_cndmask_b32 v3, 0, 1, vcc
v_lshlrev_b32 {v(vL16)}, 4, v0
v_min_u32 {v(vFl)}, 1, v0
ds_write_b32 v2, v3
v_lshlrev_b32 {v(vFl)}, 2, {v(vFl)}
s_and_b32 {s(sA)}, s2, 3
s_lshl_b32 {s(sA)}, {s(sA)}, 2
s_bfe_u32 {s(sB)}, s2, 0x20003
s_add_u32 {s(sA)}, {s(sA)}, {s(sB)}
s_lshl_b32 {s(sX0)}, {s(sA)}, 5
s_bfe_u32 {s(sA)}, s2, 0x10002
s_lshl_b32 {s(sA)}, {s(sA)}, 3
s_lshr_b32 {s(sB)}, s2, 5
s_add_u32 {s(sA)}, {s(sA)}, {s(sB)}
s_lshl_b32 {s(sY0)}, {s(sA)}, 5
; staging lane map: row = l/12, o = l%12 (lanes < 48)
v_mul_u32_u24 v12, 43, v0
v_lshrrev_b32 v12, 9, v12          ; row
v_mul_u32_u24 v13, 12, v12
v_sub_u32 v13, v0, v13             ; o
v_mul_u32_u24 v5, {ROWB}, v12
v_lshl_add_u32 v5, v13, 4, v5
v_cmp_gt_u32 vcc, 48, v0
v_cmp_gt_u32 s[58:59], 24, v0    ; rows 0,1
s_cmp_eq_u32 {s(sX0)}, 0
s_cselect_b32 {s(sEL)}, {BIG}, 0
v_cndmask_b32 {v(vLdA)}, v10, v5, vcc
s_mov_b32 {s(sE1)}, 3840
s_cmp_eq_u32 {s(sX0)}, 480
s_cselect_b32 {s(sER)}, {BIG}, {s(sE1)}
s_mov_b32 {s(sPair)}, {s(sWave)}
v_add_u32 v15, -256, v14             ; waves 4..7: 0..255
""")
    if CPF in ("1", "2"):
        a(f"s_cmp_lg_u32 {s(sWave)}, 7\ns_cbranch_scc1 L_nocpa")
        code_pf(a, "a", "L_pb", "L_mtile")
        a("L_nocpa:")
    a("s_waitcnt lgkmcnt(0)\ns_barrier")
    srd(a, sX, 64, XBYTES)
    srd(a, sDL, 66, 9 * 96 * 2)
    srd(a, sDS, 68, 25 * 96 * 2)
    srd(a, sI1, 70, 96 * 384 * 2)
    srd(a, sI2, 72, 96 * 384 * 2)
    srd(a, sO, 74, XBYTES)
    if DIAG:
        srd(a, sW, 76, WS_STAMP + 0x100000)
    if E("PADG"):
        a("""s_load_dwordx2 s[88:89], s[0:1], 48
s_waitcnt lgkmcnt(0)
s_and_b32 s89, s89, 0xffff
s_mov_b32 s90, 256
s_mov_b32 s91, 0x20000
s_not_b32 s94, s92
v_mov_b32 v20, s94
v_mov_b32 v21, 0
s_cmp_lg_u32 s16, 7
s_cbranch_scc1 L_noat
s_mov_b64 exec, 1
buffer_atomic_umax v20, v21, s[88:91], 0 offen
s_mov_b64 exec, -1
L_noat:""")
    stamp(a, 0)
    stamp_rt(a, 10)
    a(f"""
s_cmp_lg_u32 {s(sWave)}, 0
s_cbranch_scc1 L_pb
s_mov_b32 m0, {WTMP}
s_mov_b32 {s(sA)}, 4096
""")
    for i in range(4):
        a(f"buffer_load_dwordx4 {v(vL16)}, {s(sDS, 4)}, 0 offen offset:{1024 * i} lds")
    a(f"s_mov_b32 m0, {WTMP + 4096}\ns_nop 0\nbuffer_load_dwordx4 {v(vL16)}, {s(sDS, 4)}, {s(sA)} offen lds")
    a(f"s_mov_b32 m0, {WTMP + 5120}\ns_nop 0")
    for i in range(2):
        a(f"buffer_load_dwordx4 {v(vL16)}, {s(sDL, 4)}, 0 offen offset:{1024 * i} lds")
    stamp(a, 9)
    issue_loads(a)
    a(f"""
v_mov_b32 {v(vT0)}, {F_ISS}
v_mov_b32 {v(vT1)}, 1
ds_write_b32 {v(vT0)}, {v(vT1)}
s_waitcnt vmcnt(36)
ds_write_b32 {v(vT0)}, {v(vT1)} offset:{F_WRAW - F_ISS}
""")
    stamp(a, 11)
    a(f"""
L_pb:
s_mov_b32 {s(sSelLo)}, 0x05040100
s_mov_b32 {s(sSelHi)}, 0x07060302
s_lshr_b32 {s(sA)}, s2, 3
s_mul_i32 {s(sB)}, {s(sA)}, 43
s_lshr_b32 {s(sB)}, {s(sB)}, 9
s_mul_i32 {s(sB)}, {s(sB)}, 12
s_sub_u32 {s(sRot)}, {s(sA)}, {s(sB)}       ; (wg>>3) % 12
v_bfe_u32 v1, v0, 3, 1
v_lshrrev_b32 v2, 5, v0          ; ch'
v_bfe_u32 v3, v0, 4, 1           ; dyp
v_bfe_u32 v4, v0, 2, 1           ; oy
v_sub_u32 v3, v3, v4             ; dyp-oy
v_and_b32 v4, 3, v0
v_mul_u32_u24 v5, {TU - TL}, v1
v_lshl_add_u32 v5, v4, 4, v5
v_add_u32 v5, {TL}, v5
v_cmp_eq_u32 s[56:57], v1, v2
v_add_u32 v6, 0, v3
v_cmp_gt_u32 vcc, 5, v6
v_lshl_add_u32 v7, v6, 6, v5
s_and_b64 vcc, vcc, s[56:57]
v_cndmask_b32 {v(vTa)}, v10, v7, vcc
v_add_u32 v6, 2, v3
v_lshl_add_u32 v7, v6, 6, v5
v_cndmask_b32 {v(vTa + 1)}, v10, v7, s[56:57]
v_add_u32 v6, 4, v3
v_cmp_gt_u32 vcc, 5, v6
v_lshl_add_u32 v7, v6, 6, v5
s_and_b64 vcc, vcc, s[56:57]
v_cndmask_b32 {v(vTa + 2)}, v10, v7, vcc
v_mul_u32_u24 v2, {2 * OS}, v2
v_and_b32 v3, 7, v0
v_lshl_add_u32 {v(vCv)}, v3, 3, v2
v_mul_u32_u24 v3, 768, v3
v_mul_u32_u24 v4, {2 * ROWB}, v1
v_add_u32 v3, v3, v4
v_lshrrev_b32 v4, 4, v0
v_lshl_add_u32 {v(vXoff)}, v4, 4, v3
{XADJ}
v_bfe_u32 v3, v0, 4, 1
v_mul_u32_u24 v3, {RS}, v3
v_add_u32 {v(vCv)}, {v(vCv)}, v3
v_cmp_eq_u32 s[56:57], 1, v1
v_and_b32 v5, 1, v12
v_mul_u32_u24 v5, {RS}, v5
v_mul_u32_u24 v6, {OS}, v13
v_add_u32 {v(vSt)}, v5, v6
s_lshl_b32 {s(sA)}, {s(sWave)}, 2
s_add_u32 {s(sA)}, {s(sA)}, {s(sY0)}
s_lshl_b32 {s(sA)}, {s(sA)}, 9
s_add_u32 {s(sA)}, {s(sA)}, {s(sX0)}
s_mul_i32 {s(sNB)}, {s(sA)}, 192
s_add_u32 {s(sNB + 1)}, {s(sNB)}, {ROWB}
s_add_u32 {s(sTB)}, {s(sNB)}, 384
s_add_u32 {s(sTB + 1)}, {s(sTB)}, {ROWB}
s_cmp_lt_u32 {s(sWave)}, {NPRE}
s_cbranch_scc1 L_perm
s_cmp_lt_u32 {s(sWave)}, 4
s_cbranch_scc1 L_xload
""")
    wait_count(a, "L_wraw", F_WRAW, 1)
    for r in range(2):
        b = 128 + 16 * r
        a(f"""
v_add_u32 v1, {256 * r}, v15         ; task
v_mul_u32_u24 v{b}, 683, v1
v_lshrrev_b32 v{b}, 16, v{b}         ; dy
v_mul_u32_u24 v{b + 1}, 96, v{b}
v_sub_u32 v{b + 1}, v1, v{b + 1}     ; c
v_mul_u32_u24 v2, 960, v{b}
v_lshl_add_u32 v2, v{b + 1}, 1, v2
v_add_u32 v2, {WTMP}, v2
v_add_u32 v1, -1, v{b}
v_mul_u32_u24 v3, 576, v1
v_lshl_add_u32 v3, v{b + 1}, 1, v3
v_add_u32 v3, {WTMP + 5120}, v3
v_cmp_gt_u32 vcc, 3, v1
s_nop 1
v_cndmask_b32 v3, v10, v3, vcc
""")
        for jx in range(5):
            a(f"ds_read_u16 v{b + 4 + jx}, v2 offset:{192 * jx}")
        for jx in range(3):
            a(f"ds_read_u16 v{b + 9 + jx}, v3 offset:{192 * jx}")
    a("s_waitcnt lgkmcnt(0)")
    for r in range(2):
        b = 128 + 16 * r
        w = b + 4
        o = 160 + 16 * r
        for jx in range(8):
            a(f"v_lshlrev_b32 v{w + jx}, 16, v{w + jx}")
        a(f"""
v_add_f32 v{w + 1}, v{w + 1}, v{w + 5}
v_add_f32 v{w + 2}, v{w + 2}, v{w + 6}
v_add_f32 v{w + 3}, v{w + 3}, v{w + 7}
v_mov_b32 v1, 0
v_cvt_pk_bf16_f32 v{o}, v{w}, v{w + 1}
v_cvt_pk_bf16_f32 v{o + 1}, v{w + 2}, v{w + 3}
v_cvt_pk_bf16_f32 v{o + 2}, v{w + 4}, v1
v_mov_b32 v{o + 3}, 0
v_cvt_pk_bf16_f32 v{o + 4}, v1, v{w}
v_cvt_pk_bf16_f32 v{o + 5}, v{w + 1}, v{w + 2}
v_cvt_pk_bf16_f32 v{o + 6}, v{w + 3}, v{w + 4}
v_mov_b32 v{o + 7}, 0
v_mov_b32 v{o + 8}, 0
v_mov_b32 v{o + 9}, v{o}
v_mov_b32 v{o + 10}, v{o + 1}
v_mov_b32 v{o + 11}, v{o + 2}
v_mov_b32 v{o + 12}, 0
v_mov_b32 v{o + 13}, v{o + 4}
v_mov_b32 v{o + 14}, v{o + 5}
v_mov_b32 v{o + 15}, v{o + 6}
v_lshrrev_b32 v2, 5, v{b + 1}
v_and_b32 v3, 15, v{b + 1}
v_lshl_add_u32 v2, v2, 4, v3
v_mul_u32_u24 v2, 320, v2
v_bfe_u32 v3, v{b + 1}, 4, 1
v_mul_u32_u24 v3, {TU - TL}, v3
v_add_u32 v2, v2, v3
v_lshl_add_u32 v2, v{b}, 6, v2
v_add_u32 v2, {TL}, v2
v_cmp_gt_u32 vcc, 5, v{b}
s_nop 1
v_cndmask_b32 v2, v10, v2, vcc
ds_write_b128 v2, v[{o}:{o + 3}]
ds_write_b128 v2, v[{o + 4}:{o + 7}] offset:16
ds_write_b128 v2, v[{o + 8}:{o + 11}] offset:32
ds_write_b128 v2, v[{o + 12}:{o + 15}] offset:48
""")
    count(a, F_TRDY)
    a(f"""
s_cmp_lt_u32 {s(sWave)}, 6
s_cbranch_scc1 L_xload
L_tab:
v_add_u32 v1, -384, v14
v_lshlrev_b32 v2, 2, v1
v_add_u32 v3, {TABN}, v2
v_lshlrev_b32 v4, 17, v1              ; code 2i << 16
v_or_b32 v4, 0x8000, v4
v_cmp_gt_u32 vcc, 64, v1
v_mov_b32 v5, {SEXP << 23}
v_mov_b32 v6, {(SEXP + 1) << 23}
v_cndmask_b32 v5, v5, v6, vcc
v_cndmask_b32 v6, 0, v6, vcc
v_add_u32 v4, v4, v5
s_mov_b32 {s(sA)}, {f32(KAPPA * 0.044715)}
v_mov_b32 v7, {f32(KAPPA)}
s_mov_b32 {s(sB)}, {NBIN // 2}
L_tabl:
v_add_u32 v9, 0x10000, v4
v_sub_f32 v8, v4, v6
v_sub_f32 v9, v9, v6
v_mul_f32 v10, v8, v8
v_mul_f32 v11, v9, v9
v_fma_f32 v10, v10, {s(sA)}, v7
v_fma_f32 v11, v11, {s(sA)}, v7
v_mul_f32 v10, v10, v8
v_mul_f32 v11, v11, v9
v_exp_f32 v10, -v10
v_exp_f32 v11, -v11
s_nop 0
v_add_f32 v12, 1.0, v10
v_add_f32 v13, 1.0, v11
v_rcp_f32 v12, v12
v_rcp_f32 v13, v13
s_nop 0
v_mul_f32 v8, v8, v12
v_mul_f32 v9, v9, v13
v_mul_f32 v10, -v8, v10
v_mul_f32 v11, -v9, v11
v_cvt_pk_bf16_f32 v12, v8, v9
v_cvt_pk_bf16_f32 v13, v10, v11
ds_write_b32 v2, v12
ds_write_b32 v3, v13
v_sub_u32 v4, v4, v5
v_mov_b32 v5, {SEXP << 23}
v_mov_b32 v6, 0
v_add_u32 v4, v4, v5
v_add_u32 v4, 0x1000000, v4
v_add_u32 v2, 512, v2
v_add_u32 v3, 512, v3
s_sub_u32 {s(sB)}, {s(sB)}, 1
s_cmp_lg_u32 {s(sB)}, 0
s_cbranch_scc1 L_tabl
""")
    count(a, F_INIT)
    a("L_xload:")
    stamp(a, 13)
    wait_count(a, "L_wiss", F_ISS, s(sPair))
    stamp(a, 9)
    if CPF == "4":
        a(f"s_cmp_lg_u32 {s(sPair)}, 5\ns_cbranch_scc1 L_nocpb")
        NPF["b"] = 2
        code_pf(a, "b", "L_loader", "L_end", 20)
        a("L_nocpb:")
    if CPF == "2":
        a(f"s_cmp_eq_u32 {s(sPair)}, 8\ns_cbranch_scc1 L_nocpb\ns_bitcmp1_b32 {s(sPair)}, 0\ns_cbranch_scc1 L_nocpb")
        code_pf(a, "b", "L_wt", "L_end")
        a("L_nocpb:")
    issue_loads(a)
    a(f"""
s_add_u32 {s(sA)}, {s(sPair)}, 1
v_mov_b32 {v(vT1)}, {s(sA)}
ds_write_b32 {v(vT0)}, {v(vT1)}
""")
    stamp(a, 11)
    a("L_perm:")


def slot_of(a, dst, src):
    a(f"""
s_lshl_b32 {s(dst)}, {src}, 1
s_lshr_b32 {s(dst)}, {sum(x << (2 * i) for i, x in enumerate(SLOTS))}, {s(dst)}
s_and_b32 {s(dst)}, {s(dst)}, 3
s_cmp_eq_u32 {s(dst)}, 3
s_mul_i32 {s(dst)}, {s(dst)}, {SS}
s_cselect_b32 {s(dst + 1)}, {R3U - RU}, {s(dst)}
s_cselect_b32 {s(dst)}, {R3L - RL}, {s(dst)}
s_add_u32 {s(dst)}, {s(dst)}, {RL}
s_add_u32 {s(dst + 1)}, {s(dst + 1)}, {RU}
""")


def goff(g, base):
    tp, Q = divmod(g, 4)
    return f"{s(base + (Q >> 1))} offen offset:{192 * (Q & 1) + 64 * tp}"


def poff(t):
    return [f"v_lshrrev_b32 {v(t)}, 7, {v(vL16)}",
            f"v_mul_u32_u24 {v(t)}, 640, {v(t)}",
            f"v_add_u32 {v(t)}, {v(t)}, {v(vL16)}",
            f"v_add_u32 {v(t + 1)}, {2 * ROWB}, {v(t)}"]


def poffn(t):
    return [f"v_bfe_u32 {v(t)}, {v(vL16)}, 4, 3",
            f"v_mul_u32_u24 {v(t)}, 768, {v(t)}",
            f"v_bfe_u32 {v(t + 1)}, {v(vL16)}, 7, 1",
            f"v_lshl_add_u32 {v(t)}, {v(t + 1)}, 6, {v(t)}",
            f"v_lshrrev_b32 {v(t + 1)}, 8, {v(vL16)}",
            f"v_lshl_add_u32 {v(t)}, {v(t + 1)}, 4, {v(t)}",
            f"v_add_u32 {v(t + 1)}, {2 * ROWB}, {v(t)}"]


def paddr(g, t):
    r, ln = divmod(g, 3)
    return f"{v(t + (r >> 1))}, {s(sO, 4)}, {s(sNB + (r & 1))} offen offset:{128 * ln}"


def park(a, t):
    for tx in poff(t):
        a(tx)
    for g in range(0 if NOPARK else 12):
        a(f"buffer_store_dwordx4 {v(X + 4 * g, 4)}, {paddr(g, t)}{PKF}")


def phase1(a):
    def oreg(rnd):
        return SB + (144 if rnd == 0 else 16 * (rnd - 1))

    def perms(rnd):
        a(f"s_waitcnt vmcnt({32 - 4 * rnd})")
        L = SB + 16 * rnd
        O = oreg(rnd)
        for d in range(4):
            a(f"v_perm_b32 {v(O + 4 * d)}, {v(L + 4 + d)}, {v(L + d)}, {s(sSelLo)}")
            a(f"v_perm_b32 {v(O + 4 * d + 1)}, {v(L + 12 + d)}, {v(L + 8 + d)}, {s(sSelLo)}")
            a(f"v_perm_b32 {v(O + 4 * d + 2)}, {v(L + 4 + d)}, {v(L + d)}, {s(sSelHi)}")
            a(f"v_perm_b32 {v(O + 4 * d + 3)}, {v(L + 12 + d)}, {v(L + 8 + d)}, {s(sSelHi)}")
            if ILV:
                writes(rnd, d)

    def writes(rnd, d):
        O = oreg(rnd)
        a(f"ds_write_b64 {v(vT0)}, {v(O + 4 * d, 2)} offset:{8 * rnd + 2 * d * 72}")
        a(f"ds_write_b64 {v(vT0)}, {v(O + 4 * d + 2, 2)} offset:{8 * rnd + (2 * d + 1) * 72}")

    if not ILV:
        a("s_mov_b32 exec_hi, 0x0000ffff")
        for rnd in range(9):
            perms(rnd)
        a("s_mov_b32 exec_hi, -1")
    stamp(a, 1)
    a(f"s_cmp_lg_u32 {s(sPair)}, 3\ns_cbranch_scc1 L_wt3_ok")
    wait_count(a, "L_wt3", F_TRDY, 4)
    a(f"""
s_lshr_b32 {s(sA)}, {sum((PRED[k] - (k - 4)) << k for k in range(9))}, {s(sPair)}
s_and_b32 {s(sA)}, {s(sA)}, 1
s_add_u32 {s(sA)}, {s(sA)}, {s(sPair)}
s_lshl_b32 {s(sA)}, {s(sA)}, 3
s_add_u32 {s(sA)}, {s(sA)}, {F_DONE + 4}
""")
    wait_flags(a, "L_wslot", s(sA))
    stamp(a, 2)
    slot_of(a, sR, s(sPair))
    a(f"""
v_add_u32 {v(vT0)}, {s(sR)}, {v(vSt)}
v_add_u32 {v(vT1)}, {s(sR + 1)}, {v(vSt)}
v_cndmask_b32 {v(vT0)}, {v(vT1)}, {v(vT0)}, s[58:59]
s_mov_b32 exec_hi, 0x0000ffff
""")
    for rnd in range(9):
        if ILV:
            perms(rnd)
        else:
            for d in range(4):
                writes(rnd, d)
    a(f"""
s_mov_b32 exec_hi, -1
s_lshl_b32 {s(sA)}, {s(sPair)}, 2
s_add_u32 {s(sA)}, {s(sA)}, {F_STG}
v_mov_b32 {v(vT0)}, {s(sA)}
v_mov_b32 {v(vT1)}, 1
s_waitcnt lgkmcnt(0)
ds_write_b32 {v(vT0)}, {v(vT1)}
s_cmp_eq_u32 {s(sPair)}, 8
s_cbranch_scc1 L_loader
""")
    stamp(a, 4)
    if W0P:
        a(f"s_cmp_lt_u32 {s(sWave)}, {W0P}\ns_cbranch_scc1 L_hp1")
    a(f"s_setprio {PCV}\nL_hp1:")
    a(f"s_add_u32 {s(sB)}, {s(sPair)}, 1")
    slot_of(a, sR + 2, s(sB))
    for z in range(4):
        a(f"v_add_u32 {v(TMP + z)}, {s(sR + z)}, {v(vCv)}")
    for z in range(3):
        a(f"v_cndmask_b32 {v(vCA + z)}, {v(TMP + z)}, {v(TMP + z + 1)}, s[56:57]")
    wait_count(a, "L_wt", F_TRDY, 4)
    stamp(a, 5)

    NST = 144

    def cread(i):
        z, q = divmod(i, 48)
        r = DS + 4 * (i % NSL)
        return (f"ds_read_b128 {v(TS + 4 * (i % NSL), 4)}, {v(vTa + z)} offset:{320 * q}\n"
                f"ds_read_b64 {v(r, 2)}, {v(vCA + z)} offset:{coff(kap(0, q))}\n"
                f"ds_read_b64 {v(r + 2, 2)}, {v(vCA + z)} offset:{coff(kap(0, q)) + 8}")

    def stats_pk(q):
        out = []
        for r in (0, 2):
            acc = 4 * q + r
            if q == 0:
                out.append(f"v_pk_add_f32 {v(TMP + r, 2)}, {v(acc, 2)}, {v(acc + 4, 2)}")
                out.append(f"v_pk_mul_f32 {v(TMP + 4 + r, 2)}, {v(acc, 2)}, {v(acc, 2)}")
            else:
                if q > 1:
                    out.append(f"v_pk_add_f32 {v(TMP + r, 2)}, {v(TMP + r, 2)}, {v(acc, 2)}")
                out.append(f"v_pk_fma_f32 {v(TMP + 4 + r, 2)}, {v(acc, 2)}, {v(acc, 2)}, {v(TMP + 4 + r, 2)}")
        return out

    def stats(q):
        out = []
        for r in range(4):
            acc = 4 * q + r
            if q == 0:
                out.append(f"v_mov_b32 {v(TMP + r)}, {v(acc)}")
                out.append(f"v_mul_f32 {v(TMP + 4 + r)}, {v(acc)}, {v(acc)}")
            else:
                out.append(f"v_add_f32 {v(TMP + r)}, {v(TMP + r)}, {v(acc)}")
                out.append(f"v_fmac_f32 {v(TMP + 4 + r)}, {v(acc)}, {v(acc)}")
        return out

    SLAG = 3
    for i in range(NE + 1):
        a(cread(i))
    for i in range(NST):
        z, q = divmod(i, 48)
        left = min(i + NE + 1, NST) - (i + 1)
        if i % 2 == 0:
            a(f"s_waitcnt lgkmcnt({3 * max(left - 1, 0)})")
        if i == 96:
            a(f"ds_write_b32 {v(vT0)}, {v(vT1)}")
        c = "0" if z == 0 else v(4 * q, 4)
        a(f"v_mfma_f32_16x16x32_bf16 {v(4 * q, 4)}, {v(TS + 4 * (i % NSL), 4)}, {v(DS + 4 * (i % NSL), 4)}, {c}")
        if i + NE + 1 < NST:
            if i == 97:
                a("s_waitcnt lgkmcnt(12)")
            if i == 43:
                wait_flags(a, "L_wrdy", s(sA))
                stamp(a, 3)
                a(f"""
s_lshl_b32 {s(sA)}, {s(sWave)}, 3
s_add_u32 {s(sA)}, {s(sA)}, {F_DONE + 40}
v_mov_b32 {v(vT0)}, {s(sA)}
v_mov_b32 {v(vT1)}, 1
""")
            a(cread(i + NE + 1))
        if i == NST - 2:
            a(f"ds_write_b32 {v(vT0)}, {v(vT1)} offset:4")
        if not PKS and i >= 96 + SLAG:
            for tx in stats(i - 96 - SLAG):
                a(tx)
    if W0P:
        a(f"s_cmp_lt_u32 {s(sWave)}, {W0P}\ns_cbranch_scc1 L_hp2")
    a(f"s_setprio {PLN}\nL_hp2:")
    if WPF >= 0:
        a(f"""
s_cmp_lg_u32 {s(sWave)}, {WPF}
s_cbranch_scc1 L_nopf
s_lshr_b32 {s(sA)}, s2, 3
s_mul_i32 {s(sA)}, {s(sA)}, 2304
v_lshlrev_b32 v230, 2, {v(vL16)}
buffer_load_dword v231, v230, {s(sI1, 4)}, {s(sA)} offen
buffer_load_dword v231, v230, {s(sI2, 4)}, {s(sA)} offen
L_nopf:
""")
    stamp(a, 8)
    if PKS:
        for q in range(48):
            for tx in (stats(q) if E("STP") else stats_pk(q)):
                a(tx)
    else:
        for q in range(48 - SLAG, 48):
            for tx in stats(q):
                a(tx)
    stamp(a, 6)
    s1, s2 = TMP, TMP + 4
    a(f"""
s_nop 1
v_permlane32_swap_b32 {v(s1)}, {v(s1 + 1)}
v_permlane32_swap_b32 {v(s1 + 2)}, {v(s1 + 3)}
v_permlane32_swap_b32 {v(s2)}, {v(s2 + 1)}
v_permlane32_swap_b32 {v(s2 + 2)}, {v(s2 + 3)}
""")
    for e in (0, 2):
        m, w_ = s1 + e, s2 + e
        a(f"""
v_add_f32 {v(m)}, {v(m)}, {v(m + 1)}
v_add_f32 {v(w_)}, {v(w_)}, {v(w_ + 1)}
v_mul_f32 {v(m)}, {f32(1.0 / 96)}, {v(m)}
v_mul_f32 {v(w_)}, {f32(1.0 / 96)}, {v(w_)}
v_fma_f32 {v(w_)}, -{v(m)}, {v(m)}, {v(w_)}
v_max_f32 {v(w_)}, 0, {v(w_)}
v_add_f32 {v(w_)}, {f32(1e-5)}, {v(w_)}
v_rsq_f32 {v(w_)}, {v(w_)}
s_nop 0
v_mul_f32 {v(m)}, {v(m)}, {v(w_)}
v_mul_f32 {v(w_)}, {f32(2.0 ** -SEXP)}, {v(w_)}
v_mul_f32 {v(m)}, {f32(-2.0 ** -SEXP)}, {v(m)}
v_mov_b32 {v(w_ + 1)}, {v(w_)}
v_mov_b32 {v(m + 1)}, {v(m)}
""")
    a(f"""
s_nop 1
v_permlane32_swap_b32 {v(s1)}, {v(s1 + 1)}
v_permlane32_swap_b32 {v(s1 + 2)}, {v(s1 + 3)}
v_permlane32_swap_b32 {v(s2)}, {v(s2 + 1)}
v_permlane32_swap_b32 {v(s2 + 2)}, {v(s2 + 3)}
""")
    for ks in range(3):
        for q in range(16 * ks, 16 * ks + 16):
            if PKN:
                for r in (0, 2):
                    acc = 4 * q + r
                    a(f"v_pk_fma_f32 {v(acc, 2)}, {v(acc, 2)}, {v(s2 + r, 2)}, {v(s1 + r, 2)}")
            else:
                for r in range(4):
                    acc = 4 * q + r
                    a(f"v_fma_f32 {v(acc)}, {v(acc)}, {v(s2 + r)}, {v(s1 + r)}")
        ta = (192, X, X + 16)[ks]
        tb = 208 if ks == 0 else 16 * ks
        for r in range(4):
            base = ta if r < 2 else tb
            for sel in range(2):
                for d in range(4):
                    qp = 8 * ks + 4 * sel + d
                    a(f"v_cvt_pk_bf16_f32 {v(base + 8 * sel + 4 * (r & 1) + d)}, {v(8 * qp + r)}, {v(8 * qp + 4 + r)}")
        a("s_nop 0")
        for base in (ta, tb):
            for i in range(8):
                a(f"v_permlane16_swap_b32 {v(base + i)}, {v(base + 8 + i)}")
        if ks == 0:
            for i in range(16):
                a(f"v_mov_b32 {v(i)}, {v(208 + i)}")
        if ks == 1:
            for i in range(16):
                a(f"v_mov_b32 {v(X + 32 + i)}, {v(192 + i)}")
    stamp(a, 7)
    if DIAG:
        a(f"s_mov_b32 s62, {s(sWave)}")
    stamp_flush(a, 14, 0)
    a(f"""
s_mov_b32 {s(sPair)}, 8
s_mov_b32 {s(sMode)}, 1
s_sub_u32 {s(sA)}, {s(sWave)}, 1
s_cmp_lt_u32 {s(sA)}, {DEFER - 1}
s_cbranch_scc1 L_p2
s_mov_b32 {s(sMode)}, 0
""")
    park(a, TMP)
    a(f"""
s_cmp_lg_u32 {s(sWave)}, 0
s_cbranch_scc1 L_p2
s_setprio 3
s_branch L_xload
L_loader:
""")
    load_groups(a, tuple(range(NLW, 4)), 60)


GROUPS = [(0, 5), (5, 4), (9, 5), (14, 10)]


def load_groups(a, gs, r):
    dma_consts(a, r)
    for gi in gs:
        n0, n = GROUPS[gi]
        wait_flags(a, f"L_wg{gi}", F_DONE + 4 + 8 * (LASTQ[gi] + 4))
        for tp, c in PIECES[n0:n0 + n]:
            dma_piece(a, tp, c, r)
        if gi == gs[0] and gi:
            wait_count(a, f"L_wo{gi}", F_RDY, n0)
        a(f"v_mov_b32 {v(vT0)}, {F_RDY}")
        for i in range(n):
            a(f"v_mov_b32 {v(r + 4 + i)}, {n0 + i + 1}")
            a(f"s_waitcnt vmcnt({6 * (n - 1 - i)})")
            a(f"ds_write_b32 {v(vT0)}, {v(r + 4 + i)}")


class Stream:
    def __init__(self, a):
        self.a = a
        self.out = []
        self.nops = 0

    def __call__(self, tx):
        for ln in tx.split("\n"):
            i = Ins(ln)
            if i.states == 0:
                self.a(ln)
                continue
            touch = (i.rd | i.wr) if i.kind != "lds" else set(i.rd)
            need = -1
            for k, d in enumerate(self.out):
                if d & touch:
                    need = k
            if need >= 0:
                n = min(len(self.out) - 1 - need, 14)
                self.a(f"s_waitcnt lgkmcnt({n})")
                self.out = self.out[len(self.out) - n:] if n else []
            tail = self.a.lines[-40:]
            pad = 0
            while check_hazards(tail + ([f"s_nop {pad - 1}"] if pad else []) + [ln], only_last=True):
                pad += 1
            if pad:
                self.a(f"s_nop {pad - 1}")
                self.nops += 1
            self.a(ln)
            if i.kind == "lds":
                self.out.append(set(i.wr))


PO, PY = E("PO", "1100"), E("PY", "1100")
PU1, PU2 = int(E("PU1", "12")), int(E("PU2", "20"))


PADG = """s_cmp_lg_u32 s16, 7
s_cbranch_scc1 L_end
v_mov_b32 v20, 0
v_mov_b32 v21, 0
s_mov_b64 exec, 1
buffer_atomic_or v20, v21, s[88:91], 0 offen sc0
s_waitcnt vmcnt(0)
v_readfirstlane_b32 s92, v20
s_not_b32 s92, s92""" if E("PADG") else ""
PAD = f"""L_pad:
{PADG}
L_pad2:
s_sleep 4
s_memrealtime s[94:95]
s_waitcnt lgkmcnt(0)
s_sub_u32 s94, s94, s92
s_cmp_lt_u32 s94, {int(float(E("PADT", "0")) * 100)}
s_cbranch_scc1 L_pad2""" if E("PADT") else ""


def prio(k):
    if k and PO[k] == PO[k - 1] and PY[k] == PY[k - 1]:
        return ""
    if PO[k] == PY[k]:
        return f"s_setprio {PO[k]}"
    return f"""s_setprio {PO[k]}
s_cmp_lt_u32 {s(sWave)}, 4
s_cbranch_scc1 L_pr{k}
s_setprio {PY[k]}
L_pr{k}:"""


IDENT = f"""v_lshrrev_b32 v{ACC}, 8, {v(vL16)}
v_bfe_u32 v{ACC + 1}, {v(vL16)}, 6, 2
v_cmp_eq_u32 vcc, v{ACC}, v{ACC + 1}
v_and_b32 v{ACC}, 16, {v(vL16)}
v_mov_b32 v{ACC + 1}, 0x3f80
v_lshlrev_b32 v{ACC}, v{ACC}, v{ACC + 1}
v_cndmask_b32 v{ACC}, 0, v{ACC}, vcc
v_and_b32 v{ACC + 1}, 32, {v(vL16)}
v_cmp_eq_u32 vcc, 0, v{ACC + 1}
s_nop 1
v_cndmask_b32 v{vID}, 0, v{ACC}, vcc
v_sub_u32 v{vID + 1}, v{ACC}, v{vID}""" if RES == "mfma" else ""


def phase2(a):
    SH = "dst_sel:DWORD dst_unused:UNUSED_PAD src0_sel:DWORD src1_sel:WORD_1"
    t0, t1 = ACC, ACC + 1
    a("L_p2:")
    for g in range(NLW):
        a(f"s_cmp_lg_u32 {s(sWave)}, {g + 1}\ns_cbranch_scc1 L_nodma{g}\ns_setprio 3")
        load_groups(a, (g,), ACC)
        a(f"L_nodma{g}:")
    if E("PAD1"):
        a(f"""L_pad1:
s_sleep 2
s_memrealtime s[94:95]
s_waitcnt lgkmcnt(0)
s_sub_u32 s94, s94, s92
s_cmp_lt_u32 s94, {int(float(E("PAD1")) * 100)}
s_cbranch_scc1 L_pad1""")
    wait_count(a, "L_wi", F_INIT, 2)
    a(f"""
v_bfe_u32 {v(t0)}, {v(vL16)}, 6, 2            ; r
v_and_b32 {v(t1)}, 48, {v(vL16)}              ; 16c'
v_lshrrev_b32 {v(t1 + 1)}, 9, {v(vL16)}         ; g>>1
v_lshl_add_u32 {v(t0)}, {v(t1 + 1)}, 3, {v(t0)}   ; row = 8(g>>1) + r
v_lshl_add_u32 {v(vA[1])}, {v(t0)}, 6, {v(t1)}
v_mul_u32_u24 {v(t0)}, 192, {v(t0)}
v_add_u32 {v(vA[2])}, {v(t0)}, {v(t1)}
v_bfe_u32 {v(t0)}, {v(vL16)}, 8, 1            ; g&1
v_mul_u32_u24 {v(t1)}, {DZ}, {v(t0)}
v_add_u32 {v(vA[1])}, {v(vA[1])}, {v(t1)}
v_add_u32 {v(vA[2])}, {v(vA[2])}, {v(t1)}
{IDENT}
s_mov_b32 {s(cNB)}, {h2(-BETA)}
s_mov_b32 {s(cS)}, {h2(SC)}
s_mov_b32 {s(cK)}, {f32(SC * 2.0 ** SEXP)}
s_mov_b32 {s(cLo)}, 0x00003f80
s_mov_b32 {s(cHi)}, 0x3f800000
s_mov_b32 {s(sTile)}, 0
s_mov_b32 {s(sRdy)}, 0
{chr(10).join(f"v_mov_b32 v{XR + i}, 0" for i in range(8)) if E("NOXL") else ""}
{prio(0)}
L_mtile:
""")
    stamp(a, 2)
    stamp_rt(a, 13)
    if E("XL128"):
        for tx in (poff if E("XL128") == "1" else poffn)(XR):
            a(tx)
        a(f"v_mov_b32 {v(vXoff)}, {v(XR)}\ns_mov_b32 s88, {s(sTB)}\ns_mov_b32 s89, {s(sTB + 1)}\ns_add_u32 s90, s88, {2 * ROWB}\ns_add_u32 s91, s89, {2 * ROWB}")
    st = Stream(a)
    zone_now = {1: 0, 2: 0}
    seen = [0]

    def slot(f):
        return WS + 4 * (FRAGS.index(f) % NWS)

    cold = Asm()

    def rd(f, hf):
        tp, n = f
        c, k = divmod(n, 6)
        zone, ad, _ = piece_addr(tp, c)
        base = slot(f)
        if zone != zone_now[tp]:
            zone_now[tp] = zone
            st(f"v_bfe_u32 {v(base)}, {v(vL16)}, 8, 1")
            st(f"v_mul_u32_u24 {v(base)}, {DZ - DZ1}, {v(base)}")
            st(f"v_subrev_u32 {v(base)}, {E1}, {v(base)}")
            st(f"v_{'sub' if zone else 'add'}_u32 {v(vA[tp])}, {v(vA[tp])}, {v(base)}")
        need = PIECES.index((tp, c)) + 1
        if need > seen[0]:
            if need > 4:
                need = min(need + 1, 24)
            seen[0] = need
            lb = f"L_rd{need}"
            a(f"s_cmp_lt_u32 {s(sRdy)}, {need}\ns_cbranch_scc1 {lb}_slow\n{lb}_go:")
            cold(f"{lb}_slow:\nv_mov_b32 {v(base)}, {F_RDY}")
            spin(cold, lb, f"v_cmp_le_u32 vcc, {need}, {v(base + 1)}", base, base + 1)
            cold(f"v_readfirstlane_b32 {s(sRdy)}, {v(base + 1)}\ns_branch {lb}_go")
            if need == 1:
                stamp(a, 3)
        off = ad - (E1 if zone else 0)
        if tp == 1:
            ht, ks = divmod(k, 3)
            o = off + 1024 * ks + 256 * hf + 8 * ht
        else:
            o = off + 768 * hf + 64 * (k // 2) + 8 * (k % 2)
        assert o < 65536
        st(f"ds_read_b64_tr_b16 {v(base + 2 * hf, 2)}, {v(vA[tp])} offset:{o}")

    def xreg(T, Q):
        return X + 8 * (4 * (T // 2) + Q) + 4 * (T % 2)

    def mf(f, Q):
        tp, n = f
        c, k = divmod(n, 6)
        if tp == 1:
            ks = n % 3
            d = ACC + 16 * ((n // 3) % 3) + 4 * Q
            return (f"v_mfma_f32_16x16x32_bf16 {v(d, 4)}, {v(slot(f), 4)}, "
                    f"{v(H + 16 * ks + 4 * Q, 4)}, {'0' if ks == 0 else v(d, 4)}")
        d = xreg(k, Q)
        return (f"v_mfma_f32_16x16x32_bf16 {v(d, 4)}, {v(slot(f), 4)}, "
                f"{v(G + 16 * (c % 2) + 4 * Q, 4)}, {'0' if c == 0 else v(d, 4)}")

    def look(u, i):
        a0 = ACC + 16 * (u % 3) + 2 * i
        if E("NOCF") and i < int(E("NOCF")):
            return [(4, f"v_lshrrev_b32 {v(a0)}, 2, {v(vL16)}"), (4, f"v_lshrrev_b32 {v(a0 + 1)}, 2, {v(vL16)}"),
                    (0, f"ds_read_u16_d16 {v(a0)}, {v(a0)} offset:{3072 + 256 * ((u + i) % 8)}"),
                    (0, f"ds_read_u16_d16_hi {v(a0 + 1)}, {v(a0 + 1)} offset:{3074 + 256 * ((u + 3 * i) % 8)}")]
        return [(4, f"v_lshlrev_b32_sdwa {v(a0)}, 1, {v(a0)} {SH}"),
                (4, f"v_lshlrev_b32_sdwa {v(a0 + 1)}, 1, {v(a0 + 1)} {SH}"),
                (0, f"ds_read_u16_d16 {v(a0)}, {v(a0)}"),
                (0, f"ds_read_u16_d16_hi {v(a0 + 1)}, {v(a0 + 1)}")]

    def greg(u, i):
        c, ht = divmod(u, 2)
        return G + 16 * (c % 2) + 4 * (i // 2) + 2 * ht + i % 2

    def nexp(u):
        return EXPK[u % len(EXPK)]

    def comb(u, i):
        a0 = ACC + 16 * (u % 3) + 2 * i
        return [(4, f"v_or_b32 {v(greg(u, i))}, {v(a0)}, {v(a0 + 1)}")]

    def expo(u):
        LO = "dst_sel:WORD_0 dst_unused:UNUSED_PRESERVE src0_sel:WORD_0"
        HI = "dst_sel:WORD_1 dst_unused:UNUSED_PRESERVE src0_sel:WORD_1"
        ch1, ch2 = [], []
        for i in range(8 - nexp(u), 8):
            b, t, r = v(ACC + 16 * (u % 3) + 2 * i), v(ACC + 16 * (u % 3) + 2 * i + 1), v(greg(u, i))
            ch1.append([(4, f"v_fma_mixlo_f16 {b}, {b}, {s(cK)}, 0"),
                        (4, f"v_fma_mixhi_f16 {b}, {t}, {s(cK)}, 0"),
                        (4, f"v_pk_fma_f16 {t}, {b}, {b}, {s(cNB)} neg_lo:[0,1,0] neg_hi:[0,1,0]"),
                        (4, f"v_pk_mul_f16 {t}, {t}, {b}"),
                        (8, f"v_exp_f16_sdwa {t}, {t} {LO}"),
                        (8, f"v_exp_f16_sdwa {t}, {t} {HI}"),
                        (4, f"v_pk_fma_f16 {t}, {t}, {s(cS)}, {s(cS)}")])
            ch2.append([(8, f"v_rcp_f16_sdwa {t}, {t} {LO}"),
                        (8, f"v_rcp_f16_sdwa {t}, {t} {HI}"),
                        (4, f"v_fma_mix_f32 {r}, {b}, {t}, 0 op_sel_hi:[1,1,0]"),
                        (4, f"v_fma_mix_f32 {t}, {b}, {t}, 0 op_sel:[1,1,0] op_sel_hi:[1,1,0]"),
                        (4, f"v_cvt_pk_bf16_f32 {r}, {r}, {t}")])
        return ch1, ch2

    def weave(chains):
        out = []
        n = max([len(c) for c in chains], default=0)
        for k in range(n):
            need_pad = sum(1 for c in chains if k < len(c)) == 1
            out += [c[k] + (need_pad,) for c in chains if k < len(c)]
        return out

    extra = {}

    def put(u, m, tx):
        extra.setdefault((u, m), []).append(tx)

    put(23, 0, "s_waitcnt vmcnt(0)")
    for tx in poff(XR):
        put(23, 0, tx)
    for g in range(0 if NOPARK else 12):
        ks = (1, 2, 0)[g // 4]
        put(23, g, f"buffer_load_dwordx4 {v(H + 16 * ks + 4 * (g % 4), 4)}, {paddr(g, XR)}{HLF}")

    for tx in poffn(XR):
        put(24, 2, tx)
    def rgroups(rho):
        oy, ln = divmod(rho, 3)
        return [4 * (p % 3) + 2 * oy + p // 3 for p in (2 * ln, 2 * ln + 1)]

    def xload(rho):
        if E("XL128"):
            return [f"buffer_load_dwordx4 {v(XR + 4 * e, 4)}, {v(vXoff)}, {s(sX, 4)}, {s(88 + (2 * rho + e) // 3)} offen offset:{128 * ((2 * rho + e) % 3)}{XFF}" for e in range(2)]
        return [f"buffer_load_dwordx4 {v(XR + 4 * e, 4)}, {v(vXoff)}, {s(sX, 4)}, {goff(g, sTB)}{XFF}"
                for e, g in enumerate(rgroups(rho)) if not NOX and not E("NOXL")]

    def xpf(oy, t):
        return [f"v_lshrrev_b32 {v(t)}, 8, {v(vL16)}",
                f"v_mul_u32_u24 {v(t)}, 112, {v(t)}",
                f"s_mov_b32 m0, {L_JUNK}",
                f"v_add_u32 {v(t)}, {v(t)}, {v(vXoff)}",
                f"buffer_load_dword {v(t)}, {s(sX, 4)}, {s(sTB + oy)} offen{XPFF} lds"]

    if XPF:
        for tx in xpf(0, XR):
            put(-1, 0, tx)
        if XPF == 2:
            for tx in xpf(1, XR):
                put(-1, 1, tx)
    for tx in xload(0):
        put(RU0 - 3 - (RES != "dot"), 22, tx)
    for rho in range(6 if RES == "plain" else 0):
        for e, g in enumerate(rgroups(rho)):
            u = RU0 - 1 + 3 * rho + e
            act = {f[1] % 6: 4 * i for i, f in enumerate(STEPS[u]) if f[0] == 2}
            tp, Q = divmod(g, 4)
            W = 8 // RPG
            starts = {}
            for tl in range(2):
                T = 2 * tp + tl
                m = 3
                while any(abs(m - x) < W for x in starts.values()) or (T in act and act[T] + Q - W - 1 < m < act[T] + Q + 4):
                    m += 1
                assert m + W <= 23, (u, T, m)
                starts[tl] = m
            prev = None
            for tl in sorted(starts, key=starts.get):
                ops = []
                for h in range(2):
                    P, d = XR + 4 * e + 2 * tl + h, xreg(2 * tp + tl, Q) + 2 * h
                    if prev is None:
                        ops += [f"v_dot2_f32_bf16 {v(d + 1)}, {v(P)}, {s(cHi)}, {v(d + 1)}", None]
                    else:
                        ops += [f"v_and_b32 {v(prev)}, 0xffff0000, {v(P)}", f"v_add_f32 {v(d + 1)}, {v(d + 1)}, {v(prev)}"]
                    ops += [f"v_lshlrev_b32 {v(P)}, 16, {v(P)}", f"v_add_f32 {v(d)}, {v(d)}, {v(P)}"]
                    ops[-3], ops[-2] = ops[-2], ops[-3]
                    prev = P
                for i, tx in enumerate(ops):
                    if tx:
                        put(u, starts[tl] + i // RPG, tx)
            extra[(u, min(starts.values()))].insert(0, f"s_waitcnt vmcnt({0 if rho == 5 and e else 1})")
            if rho < 5:
                put(u, max(starts.values()) + W - 1, xload(rho + 1)[e])
    for rho in range(6 if RES == "mfma" else 0):
        assert NWS == 4
        for e, g in enumerate(rgroups(rho)):
            u = RU0 - 1 + 3 * rho + e
            act = {f[1] % 6: 4 * i for i, f in enumerate(STEPS[u]) if f[0] == 2}
            tp, Q = divmod(g, 4)
            ms = []
            for tl in range(2):
                T = 2 * tp + tl
                m = 5
                while m in ms or m - 1 in ms or (T in act and act[T] + Q - 4 < m < act[T] + Q + 3):
                    m += 1
                ms.append(m)
                d = xreg(T, Q)
                put(u, m, f"v_mfma_f32_16x16x16_bf16 {v(d, 4)}, {v(vID, 2)}, {v(XR + 4 * e + 2 * tl, 2)}, {v(d, 4)}")
            extra[(u, min(ms))].insert(0, f"s_waitcnt vmcnt({0 if rho == 5 and e else 1})")
            if rho < 5:
                put(u, max(ms) + 1, xload(rho + 1)[e])
    for rho in range(6 if RES == "dot" else 0):
        u = RU0 + 3 * rho
        act = {f[1] % 6: 4 * i for i, f in enumerate(STEPS[u]) if f[0] == 2}
        used = []
        for e, g in enumerate(rgroups(rho)):
            tp, Q = divmod(g, 4)
            for tl in range(2):
                T = 2 * tp + tl
                m = 5
                while any(abs(m - x) < 2 for x in used) or (T in act and act[T] + Q - 4 < m < act[T] + Q + 5):
                    m += 1
                assert m < 21
                used.append(m)
                for r in range(4):
                    d = xreg(T, Q) + r
                    put(u, m + r // 2, "s_nop 0" if NOX or E("NOD") else f"v_dot2_f32_bf16 {v(d)}, {v(XR + 4 * e + 2 * tl + r // 2)}, "
                                       f"{s(cHi if r % 2 else cLo)}, {v(d)}")
        if not E("NOXW"):
            extra[(u, min(used))].insert(0, "s_waitcnt vmcnt(0)")
        if rho == 0 and XPF == 1:
            for tx in xpf(1, XR):
                put(u, max(used) + 1, tx)
        if rho < 5:
            for tx in xload(rho + 1):
                put(u, max(used) + 1, tx)

    def hook():
        a(f"s_cmp_lg_u32 {s(sMode)}, 0\ns_cbranch_scc1 L_park\nL_parked:")
        cold(f"L_park:\nv_mov_b32 {v(XR)}, {F_ISS}")
        spin(cold, "L_wi9", f"v_cmp_eq_u32 vcc, 9, {v(XR + 1)}", XR, XR + 1)
        park(cold, XR)
        cold(f"s_mov_b32 {s(sMode)}, 0\ns_nop 1\ns_branch L_parked")
        stamp(a, 1)

    pw, pg = [], []
    gap = [0]

    def emit(tx):
        i = Ins(tx)
        t = i.rd | i.wr
        while any(Ins(g).wr & t for _, g in pg):
            st(pg.pop(0)[1])
        while any({("v", slot(f) + r) for r in range(4)} & t for f, _ in pw):
            rd(*pw.pop(0))
        st(tx)

    for f in FRAGS[:NWS]:
        rd(f, 0)
        rd(f, 1)
    a(f"s_waitcnt vmcnt({13 if DIAG else 12})")
    for u in range(-1, 27):
        for k, pu in ((2, PU1), (3, PU2)):
            if u == pu and prio(k):
                a(f"s_cmp_lg_u32 {s(sTile)}, 0\ns_cbranch_scc1 L_pu{k}\nL_pb{k}:")
                cold(f"L_pu{k}:\n{prio(k)}\ns_branch L_pb{k}")
        base = []
        for i in range(8):
            if 0 <= u - 1 < 24 and i < 8 - nexp(u - 1):
                base += [t + (None,) for t in comb(u - 1, i)]
            if 0 <= u < 24 and i < 8 - nexp(u):
                lk = look(u, i)
                base += [lk[0] + (lk[2][1],), lk[1] + (lk[3][1],)]
        ex = weave((expo(u - 1)[1] if 0 <= u - 1 < 24 else []) + (expo(u)[0] if 0 <= u < 24 else []))
        V = []
        tb, te = sum(t[0] for t in base), sum(t[0] for t in ex)
        cb = ce = ib = ie = 0
        while ib < len(base) or ie < len(ex):
            if ie < len(ex) and (ib >= len(base) or ce * max(tb, 1) < cb * max(te, 1)):
                V.append(ex[ie][:2] + (None,))
                ce += ex[ie][0]
                ie += 1
            else:
                V.append(base[ib])
                cb += base[ib][0]
                ib += 1
        mfs = [(f, Q) for f in STEPS[u] for Q in range(4)]
        nm = len(mfs)
        lead = LEAD if 0 <= u < 4 else 0
        xc = [XCOST * sum(1 for t in extra.get((u, m), []) if "mfma" not in t) for m in range(nm)]
        tot = tb + te + sum(xc[lead:])
        nl = sum(1 for t in base if t[2]) + nm // 2
        k = cyc = 0
        for m, (f, Q) in enumerate(mfs):
            emit(mf(f, Q))
            if Q == 3 and FRAGS.index(f) + NWS < len(FRAGS):
                nf = FRAGS[FRAGS.index(f) + NWS]
                pw += [(nf, 0), (nf, 1)]
            quota = nl * (m + 1) // nm - nl * m // nm
            if len(pw) + len(pg) > BACKLOG:
                quota += 1
            for _ in range(max(quota, 1)):
                if pw:
                    rd(*pw.pop(0))
                elif pg and pg[0][0] <= gap[0]:
                    st(pg.pop(0)[1])
            for tx in extra.pop((u, m), []):
                emit(tx)
            if m >= lead:
                cyc += xc[m]
                last = m == nm - 1
                while k < len(V) and (last or cyc + V[k][0] / 2 <= tot * (m - lead + 1) / (nm - lead)):
                    emit(V[k][1])
                    if V[k][2]:
                        pg.append((gap[0] + 1, V[k][2]))
                    cyc += V[k][0]
                    k += 1
            if u >= 25:
                g = (f[1] - 66) * 4 + Q - 12
                if g >= 0 and (g // 4) % 2 == 0:
                    epi(st, 4 * (g // 8) + g % 4)
            gap[0] += 1
        if u == UH:
            hook()
    assert not extra and not st.out and not pw and not pg and zone_now == {1: 0, 2: 0}
    print("MLP nops", st.nops)
    stamp(a, 8)
    for oy in range(2):
        line_out(st, oy, 0, STF)
    for oy in range(2):
        epi(st, 8 + 2 * oy)
        epi(st, 9 + 2 * oy)
        line_out(st, oy, 1, STF)
        line_out(st, oy, 2, STF)
    if DIAG:
        stamp(a, 9)
        stamp_rt(a, 11)
        a(f"s_lshl_b32 s62, {s(sTile)}, 3\ns_xor_b32 s62, s62, 8\ns_add_u32 s62, s62, {s(sWave)}")
        stamp_flush(a, 14, 1, t0, t1)
    a(f"""
s_cmp_lg_u32 {s(sTile)}, 0
s_cbranch_scc1 {"L_pad" if E("PADT") else "L_end"}
s_mov_b32 {s(sTile)}, 1
s_mov_b32 {s(sTB)}, {s(sNB)}
s_mov_b32 {s(sTB + 1)}, {s(sNB + 1)}
s_mov_b32 {s(sNB)}, {BIG}
s_mov_b32 {s(sNB + 1)}, {BIG}
{prio(1)}
s_branch L_mtile
""")
    for ln in cold.lines:
        a(ln)
    a(f"""
{PAD}
L_end:
s_endpgm
""")


def epi(st, g):
    b = X + 8 * g
    for d in range(4):
        st(f"v_cvt_pk_bf16_f32 {v(b + d)}, {v(b + 2 * d)}, {v(b + 2 * d + 1)}")


def line_out(st, oy, ln, fl):
    ga, gb = [4 * (p % 3) + 2 * oy + p // 3 for p in (2 * ln, 2 * ln + 1)]
    A, B = X + 8 * ga, X + 8 * gb
    for d in range(4):
        st(f"v_mov_b32 {v(A + 4 + d)}, {v(A + d)}")
    for d in range(4):
        st(f"v_mov_b32_dpp {v(A + d)}, {v(B + d)} row_ror:8 row_mask:0xf bank_mask:0xc")
    for d in range(4):
        st(f"v_mov_b32_dpp {v(B + d)}, {v(A + 4 + d)} row_ror:8 row_mask:0xf bank_mask:0x3")
    for e, r in enumerate((A, B)):
        st(f"buffer_store_dwordx4 {v(r, 4)}, {v(XR + e)}, {s(sO, 4)}, {s(sTB + oy)} offen offset:{128 * ln}{fl}")


def descriptor(a, name, nv, ns):
    a(f"""
.p2align 6
.amdhsa_kernel {name}
  .amdhsa_next_free_vgpr {nv}
  .amdhsa_next_free_sgpr {ns}
  .amdhsa_accum_offset {(nv + 3) // 4 * 4}
  .amdhsa_group_segment_fixed_size 0
  .amdhsa_kernarg_size 64
  .amdhsa_user_sgpr_count 2
  .amdhsa_user_sgpr_kernarg_segment_ptr 1
  .amdhsa_system_sgpr_workgroup_id_x 1
  .amdhsa_float_denorm_mode_32 {E("DNM", "3")}
.end_amdhsa_kernel
""")


def main():
    here = os.path.dirname(os.path.abspath(__file__))
    ref = open(os.path.join(here, "..", NAME + ".s.ref")).read().split("\n")
    head = [l for l in ref if l.startswith(";") and "@launch" not in l]
    a = Asm()
    for l in head:
        a(l)
    a(f"; @launch grid=(256,1,1) block=(512,1,1) lds={LDS_BYTES}")
    a('.amdgcn_target "amdgcn-amd-amdhsa--gfx950"')
    a(".text")
    prologue(a)
    phase1(a)
    phase2(a)
    probs = check_hazards(a.lines)
    for p in probs:
        print("HAZARD:", p)
    a('.section .rodata,"a"')
    descriptor(a, NAME + "_kernel", 256, 100)
    out = sys.argv[1] if len(sys.argv) > 1 else os.path.join(here, "..", NAME + ".s")
    open(out, "w").write(a.text())
    print("wrote", out, "lines", len(a.lines), "hazards", len(probs), "lds", LDS_BYTES)


if __name__ == "__main__":
    main()
```

```python
import math
import struct
import sys
import os

import numpy as np

sys.path.insert(0, os.path.dirname(os.path.abspath(__file__)))
from asmlib import Asm, Ins, v, s, check_hazards

NAME = "standalone__modern_conv_block_replknet__vision"
E = os.environ.get
DIAG = E("DIAG", "0") == "1"
STF = E("STF", " sc1")
XLF, PKF, HLF, XFF = E("XLF", " sc1"), E("PKF", " sc1"), E("HLF", ""), E("XFF", " sc1")
EXPK = [int(c) for c in E("EXPK", "21")]
LEAD, XCOST, BACKLOG = int(E("LEAD", "2")), int(E("XCOST", "4")), int(E("BACKLOG", "4"))
PKN = E("PKN", "1") == "1"
PKS = E("PKS", "1") == "1"
PCV, PLN = int(E("PCV", "0")), int(E("PLN", "2"))
PM = [int(c) for c in E("PM", "110")]
STF2 = E("STF2")
DEFER = int(E("DEFER", "8"))
NPRE = 1
XPF, XPFF = int(E("XPF", "0")), E("XPFF", " sc1")
W0P = int(E("W0P", "0"))
RES, RPG = E("RES", "mfma"), int(E("RPG", "2"))
WCAP = int(E("WCAP", "14"))
FLIP, LBAR = int(E("FLIP", "1")), int(E("LBAR", "1"))
DYN = int(E("DYN", "1"))
TSC = 48
ILV = E("ILV", "0") == "1"
NLW = int(E("NLW", "1"))
WPF = int(E("WPF", "1"))
NOX, NOPARK, NOST = E("NOX"), E("NOPARK"), E("NOST")
UH = 2
RU0 = 7
PRA, PRB = int(E("PRA", "0")), int(E("PRB", "1"))
sStamp = 64


def f32(x):
    return "0x%08x" % struct.unpack("<I", struct.pack("<f", x))[0]


def h2(x):
    b = int(np.float16(x).view(np.uint16))
    return "0x%08x" % (b | (b << 16))


KAPPA = 2.0 * math.sqrt(2.0 / math.pi) * math.log2(math.e)
BETA = float(np.float16(KAPPA / (KAPPA * 0.044715) ** (1.0 / 3.0)))
SC = KAPPA / BETA
BIG = 0x40000000
NBIN = 28
SEXP = int(E("SEXP", "111"))

XBYTES = 512 * 512 * 96 * 2
ROWB = 512 * 192
WS_END = 256 * 8 * 12288
WS_STAMP = 0x2000000
TW = NBIN * 256
TABP, TABN = 0, 65536
E0 = TW
DZ = 65544
E1 = E0 + DZ + 19 * 3072
DZ1 = 5 * 3072 + 8
L_FLAG = E1 + DZ1 + 5 * 3072
L_JUNK = L_FLAG + 256
LDS_BYTES = L_FLAG + 512
assert L_FLAG % 16 == 0 and LDS_BYTES <= 163840 and E0 + 19 * 3072 <= 65536
OS = 584
RS = 7104
SS = 14336
RL = E0
RU = TABN + TW + 128
TL = RL + 3 * SS
TU = RU + 2 * SS + RS + 12 * OS
assert TL + 15360 <= 65536 and TU % 16 == 0 and TU + 15360 <= E1 and RL % 256 == 0 and RU % 256 == 128
R3L = (E1 + 255) // 256 * 256
R3U = R3L + 2 * RS
assert R3U % 256 == 128 and R3U + RS + 12 * OS <= L_FLAG
SLOTS = [int(c) for c in E("SLOTS", "120312012")]
assert SLOTS[6:] == [0, 1, 2] and len(set(SLOTS[:4])) == 4
PRED = [max([p for p in range(k) if SLOTS[p] == SLOTS[k]], default=k - 4) for k in range(9)]
LASTQ = [max(p for p in range(9) if SLOTS[p] == sl) for sl in (3, 0, 1, 2)]
F_STG = L_FLAG
F_DONE = L_FLAG + 40
F_TRDY = L_FLAG + 160
F_ISS = L_FLAG + 164
F_RDY = L_FLAG + 168
F_INIT = L_FLAG + 172
F_WRAW = L_FLAG + 176
F_WCNT = L_FLAG + 180
F_WMAX = L_FLAG + 184
WTMP = R3L if SLOTS[3] == 3 else RL + SLOTS[3] * SS


assert all(PRED[k] - (k - 4) in (0, 1) for k in range(9))


def kap(ch, q):
    return 32 * (q >> 4) + 16 * ch + (q & 15)


def coff(c):
    return (c // 8) * OS + (c % 8) * 72


STEPS = {u: [(tp, n) for i in range(3) for tp, n in ((1, 3 * (u + 1) + i), (2, 3 * (u - 3) + i)) if 0 <= n < 72]
         for u in range(-1, 27)}
FRAGS = [f for u in range(-1, 27) for f in STEPS[u]]
PIECES = []
for tp_, n_ in FRAGS:
    if (tp_, n_ // 6) not in PIECES:
        PIECES.append((tp_, n_ // 6))
assert len(PIECES) == 24 and len(FRAGS) == 144


def piece_addr(tp, c):
    i = PIECES.index((tp, c))
    if i < 5:
        return 1, E1 + 3072 * i, DZ1
    return 0, E0 + 3072 * (i - 5), DZ


SB = 48
TS = 192
DS = 212
TMP = 232
vL16, vT0, vT1 = 253, 254, 255
vFl, vTa, vCA, vLdA, vLdB, vSt, vCv, vK = 240, 241, 244, 247, 248, 249, 250, 251
H = 0
X = 48
G = 144
ACC = 176
WS = 224
NWS = int(E("NWS", "4"))
vID = 242
XR = 244
vXoff = 252
vA = {1: 254, 2: 255}

NE = 4
NSL = 5

sX, sO, sW = 4, 8, 12
sWave, sTile, sPair, sRdy = 16, 17, 18, 19
sSelLo, sSelHi = 20, 21
sX0, sY0 = 22, 23
sTB = 24
sA, sB, sC, sD = 26, 27, 28, 29
sR = 30
sNB = 36
sMode = 38
sRot = 39
sF = 34
sR2 = 35
sI1, sI2 = 40, 44
sDL, sDS = 48, 52
sEL, sER, sE1 = 80, 81, 82
sS = 98
cNB, cS, cLo, cHi, cK = 84, 85, 86, 87, 83


def stamp(a, k):
    if DIAG:
        a(f"s_waitcnt lgkmcnt(0)\ns_memtime s[60:61]\ns_waitcnt lgkmcnt(0)\ns_mov_b32 {s(sStamp + k)}, s60")


def stamp_rt(a, k):
    if DIAG:
        a(f"s_waitcnt lgkmcnt(0)\ns_memrealtime s[60:61]\ns_waitcnt lgkmcnt(0)\ns_mov_b32 {s(sStamp + k)}, s60")


def stamp_flush(a, n, rec, vT0=vT0, vT1=vT1):
    if DIAG:
        a(f"s_mov_b32 {s(sStamp + 12)}, {s(sWave)}")
        a(f"v_mov_b32 {v(vT0)}, 0")
        for k in range(n):
            a(f"v_writelane_b32 {v(vT0)}, {s(sStamp + k)}, {k}")
        a(f"""s_lshl_b32 s60, s2, 4
s_add_u32 s60, s60, s62
s_lshl_b32 s60, s60, 7
s_add_u32 s60, s60, {WS_STAMP + 64 * rec}
v_lshrrev_b32 {v(vT1)}, 2, {v(vL16)}
s_mov_b32 exec_lo, 0xffff
s_mov_b32 exec_hi, 0
buffer_store_dword {v(vT0)}, {v(vT1)}, {s(sW, 4)}, s60 offen
s_mov_b64 exec, -1
s_nop 1""")


def srd(a, d, lo, nbytes):
    a(f"""s_mov_b32 {s(d)}, {s(lo)}
s_and_b32 {s(d + 1)}, {s(lo + 1)}, 0xffff
s_mov_b32 {s(d + 2)}, {nbytes}
s_mov_b32 {s(d + 3)}, 0x20000""")


def spin(a, label, cmp, t0=vT0, t1=vT1):
    a(f"""
s_mov_b32 {s(sD)}, 200000
{label}:
ds_read_b32 {v(t1)}, {v(t0)}
s_waitcnt lgkmcnt(0)
{cmp}
s_cmp_eq_u64 vcc, exec
s_cbranch_scc1 {label}_ok
s_sleep 2
s_sub_u32 {s(sD)}, {s(sD)}, 1
s_cmp_lg_u32 {s(sD)}, 0
s_cbranch_scc1 {label}
{label}_ok:
""")


def wait_flags(a, label, addr):
    a(f"v_add_u32 {v(vT0)}, {addr}, {v(vFl)}")
    spin(a, label, f"v_cmp_ne_u32 vcc, 0, {v(vT1)}")


def wait_count(a, label, addr, n, op="eq"):
    a(f"v_mov_b32 {v(vT0)}, {addr}")
    spin(a, label, f"v_cmp_{op}_u32 vcc, {n}, {v(vT1)}")


def count(a, addr):
    a(f"""
v_mov_b32 {v(vT0)}, {addr}
v_mov_b32 {v(vT1)}, 1
s_waitcnt lgkmcnt(0)
s_mov_b64 exec, 1
ds_add_u32 {v(vT0)}, {v(vT1)}
s_mov_b64 exec, -1
""")


def get_scale(a, label):
    if not DYN:
        a(f"s_mov_b32 {s(sS)}, {SEXP << 23}")
        return
    wait_count(a, label, F_WCNT, 3)
    a(f"""
ds_read_b32 {v(vT1)}, {v(vT0)} offset:{F_WMAX - F_WCNT}
s_waitcnt lgkmcnt(0)
v_readfirstlane_b32 {s(sS)}, {v(vT1)}
s_lshr_b32 {s(sS)}, {s(sS)}, 7
s_max_u32 {s(sS)}, {s(sS)}, {NBIN - 8 + 1}
s_min_u32 {s(sS)}, {s(sS)}, {NBIN - 8 + 120}
s_sub_u32 {s(sS)}, {s(sS)}, {NBIN - 8}
s_lshl_b32 {s(sS)}, {s(sS)}, 23
""")


def issue_loads(a):
    a(f"""
s_sub_u32 {s(sA)}, 8, {s(sPair)}
s_cmp_eq_u32 {s(sF)}, 0
s_cselect_b32 {s(sA)}, {s(sPair)}, {s(sA)}
s_lshl_b32 {s(sA)}, {s(sA)}, 2
s_add_u32 {s(sA)}, {s(sA)}, {s(sY0)}
s_lshl_b32 {s(sB)}, {s(sA)}, 9
s_add_u32 {s(sB)}, {s(sB)}, {s(sX0)}
s_mul_i32 {s(sB)}, {s(sB)}, 192
s_cmp_lt_u32 {s(sA)}, 2
s_cselect_b64 vcc, s[58:59], 0
v_mov_b32 {v(vLdB)}, {BIG}
s_sub_u32 {s(sC)}, {s(sB)}, {2 * ROWB}
v_add_u32 {v(vT1)}, {s(sC)}, {v(vLdA)}
v_cndmask_b32 {v(vLdB)}, {v(vT1)}, {v(vLdB)}, vcc
v_add_u32 {v(vT1)}, -384, {v(vLdB)}
""")
    for xq in range(9):
        for i in range(4):
            off = 768 * xq + 192 * i - 384
            if xq == 0 and i < 2:
                a(f"buffer_load_dwordx4 {v(SB + 4 * i, 4)}, {v(vT1)}, {s(sX, 4)}, {s(sEL)} offen offset:{192 * i}{XLF}")
                continue
            elif xq == 8 and i >= 2:
                so, im = sER, off - 3840
            elif off < 3840:
                so, im = "0", off
            else:
                so, im = sE1, off - 3840
            so = so if isinstance(so, str) else s(so)
            a(f"buffer_load_dwordx4 {v(SB + 16 * xq + 4 * i, 4)}, {v(vLdB)}, {s(sX, 4)}, {so} offen offset:{im}{XLF}")


CPF = E("CPF", "4")


def code_pf(a, tag, first, last, r=16):
    a(f"""
s_getpc_b64 s[96:97]
L_pc{tag}:
s_add_u32 s96, s96, {first}-L_pc{tag}
s_addc_u32 s97, s97, {"0" if tag in FWD else "-1"}
v_lshlrev_b32 v{r}, 3, {v(vL16)}
v_mov_b32 v{r + 3}, s97
""")
    for i in range(NPF[tag]):
        a(f"""
v_add_u32 v{r + 1}, {8192 * i}, v{r}
v_min_u32 v{r + 1}, {last}-{first}, v{r + 1}
v_add_co_u32 v{r + 4 + 2 * i}, vcc, s96, v{r + 1}
s_nop 1
v_addc_co_u32 v{r + 5 + 2 * i}, vcc, 0, v{r + 3}, vcc
global_load_dword v{r + 2}, v[{r + 4 + 2 * i}:{r + 5 + 2 * i}], off sc1
""")


FWD = {"a", "b"}
NPF = {"a": 3, "b": 5}


def dma_consts(a, r):
    a(f"""
v_lshrrev_b32 {v(r)}, 9, {v(vL16)}             ; l>>5
v_mul_u32_u24 {v(r + 1)}, 1536, {v(r)}
v_add_u32 {v(r + 1)}, {v(r + 1)}, {v(vL16)}
v_bfe_u32 {v(vT0)}, {v(vL16)}, 6, 3            ; (l>>2)&7
v_lshl_add_u32 {v(r)}, {v(r)}, 4, {v(vT0)}
v_mul_u32_u24 {v(r)}, 768, {v(r)}
v_and_b32 {v(vT0)}, 48, {v(vL16)}
v_add_u32 {v(r)}, {v(r)}, {v(vT0)}             ; w1
""")


def dma_piece(a, tp, c, r):
    _, ad, dz = piece_addr(tp, c)
    a(f"""
s_add_u32 {s(sA)}, {s(sRot)}, {c}
s_cmp_ge_u32 {s(sA)}, 12
s_cselect_b32 {s(sB)}, 12, 0
s_sub_u32 {s(sA)}, {s(sA)}, {s(sB)}
s_mul_i32 {s(sA)}, {s(sA)}, {64 if tp == 1 else 6144}
""")
    for par in range(2):
        a(f"s_mov_b32 m0, {ad + par * dz}")
        if tp == 1:
            for ks in range(3):
                a(f"s_add_u32 {s(sR + ks)}, {s(sA)}, {(32 * ks + 8 * par) * 768 - 1024 * ks}")
            for ks in range(3):
                a(f"buffer_load_dwordx4 {v(r)}, {s(sI1, 4)}, {s(sR + ks)} offen offset:{1024 * ks} lds")
        else:
            a(f"s_add_u32 {s(sR)}, {s(sA)}, {1536 * par}")
            a(f"s_add_u32 {s(sR + 1)}, {s(sA)}, {1536 * par + 1536}")
            a(f"buffer_load_dwordx4 {v(vL16)}, {s(sI2, 4)}, {s(sR)} offen lds")
            a(f"buffer_load_dwordx4 {v(r + 1)}, {s(sI2, 4)}, {s(sR)} offen offset:1024 lds")
            a(f"buffer_load_dwordx4 {v(vL16)}, {s(sI2, 4)}, {s(sR + 1)} offen offset:2048 lds")


XADJ = f"""v_lshrrev_b32 v3, 5, v0
v_mul_u32_u24 v3, {2 * ROWB}, v3
v_bfe_u32 v4, v0, 2, 3
v_mul_u32_u24 v4, 768, v4
v_add_u32 v3, v3, v4
v_and_b32 v4, 3, v0
v_lshl_add_u32 {v(vXoff)}, v4, 4, v3""" if E("XADJ") else ""


TOPPF = """; pull the kernel's code towards L2: one dword per 128-byte line, wave 1 takes the first 8 KB
s_getpc_b64 s[96:97]
L_pc0:
v_add_u32 v16, 448, v0
v_and_b32 v16, 511, v16
v_lshlrev_b32 v16, 7, v16
v_min_u32 v16, L_end-L_pc0, v16
v_mov_b32 v17, s97
v_add_co_u32 v16, vcc, s96, v16
s_nop 1
v_addc_co_u32 v17, vcc, 0, v17, vcc
global_load_dword v18, v[16:17], off sc1""" if CPF in ("3", "4") else ""


def prologue(a):
    k = NAME + "_kernel"
    a(f"""
.globl {k}
.p2align 8
.type {k},@function
{k}:
s_cmp_ge_u32 s2, 256
s_cbranch_scc1 L_end
s_load_dwordx8 s[64:71], s[0:1], 0
s_load_dwordx4 s[72:75], s[0:1], 32
{"s_load_dwordx2 s[76:77], s[0:1], 56" if DIAG else ""}
{"s_memrealtime s[92:93]" if E("PADT") or E("PAD1") else ""}
{TOPPF}
s_setprio 3
v_mov_b32 v14, v0                ; tid
v_lshrrev_b32 v1, 6, v0
v_and_b32 v0, 63, v0
v_mov_b32 v10, {BIG}
v_readfirstlane_b32 {s(sWave)}, v1
v_lshlrev_b32 v2, 2, v0
v_add_u32 v2, {L_FLAG}, v2
v_add_u32 v3, -10, v0
v_cmp_gt_u32 vcc, 10, v3
v_cmp_eq_u32 s[56:57], 36, v0
s_or_b64 vcc, vcc, s[56:57]
{f"v_cmp_eq_u32 s[56:57], {(F_ISS - L_FLAG) // 4}, v0" if LBAR else ""}
{"s_or_b64 vcc, vcc, s[56:57]" if LBAR else ""}
v_cndmask_b32 v3, 0, 1, vcc
v_lshlrev_b32 {v(vL16)}, 4, v0
v_min_u32 {v(vFl)}, 1, v0
ds_write_b32 v2, v3
v_lshlrev_b32 {v(vFl)}, 2, {v(vFl)}
s_and_b32 {s(sA)}, s2, 3
s_lshl_b32 {s(sA)}, {s(sA)}, 2
s_bfe_u32 {s(sB)}, s2, 0x20003
s_add_u32 {s(sA)}, {s(sA)}, {s(sB)}
s_lshl_b32 {s(sX0)}, {s(sA)}, 5
s_bfe_u32 {s(sA)}, s2, 0x10002
s_lshl_b32 {s(sA)}, {s(sA)}, 3
s_lshr_b32 {s(sB)}, s2, 5
s_add_u32 {s(sA)}, {s(sA)}, {s(sB)}
s_lshl_b32 {s(sY0)}, {s(sA)}, 5
s_and_b32 {s(sF)}, {s(sA)}, {FLIP}
s_mul_i32 {s(sR2)}, {s(sF)}, {2 * ROWB}
s_mul_i32 {s(sF)}, {s(sF)}, 3
; staging lane map: row = l/12, o = l%12 (lanes < 48)
v_mul_u32_u24 v12, 43, v0
v_lshrrev_b32 v12, 9, v12          ; row
v_mul_u32_u24 v13, 12, v12
v_sub_u32 v13, v0, v13             ; o
v_xor_b32 v5, {s(sF)}, v12
v_mul_u32_u24 v5, {ROWB}, v5
v_lshl_add_u32 v5, v13, 4, v5
v_cmp_gt_u32 vcc, 48, v0
v_cmp_gt_u32 s[58:59], 24, v0    ; rows 0,1
s_cmp_eq_u32 {s(sX0)}, 0
s_cselect_b32 {s(sEL)}, {BIG}, 0
v_cndmask_b32 {v(vLdA)}, v10, v5, vcc
s_mov_b32 {s(sE1)}, 3840
s_cmp_eq_u32 {s(sX0)}, 480
s_cselect_b32 {s(sER)}, {BIG}, {s(sE1)}
s_mov_b32 {s(sPair)}, {s(sWave)}
v_add_u32 v15, -256, v14             ; waves 4..7: 0..255
""")
    if CPF in ("1", "2"):
        a(f"s_cmp_lg_u32 {s(sWave)}, 7\ns_cbranch_scc1 L_nocpa")
        code_pf(a, "a", "L_pb", "L_mtile")
        a("L_nocpa:")
    a("s_waitcnt lgkmcnt(0)" + ("" if LBAR else "\ns_barrier"))
    srd(a, sX, 64, XBYTES)
    srd(a, sDL, 66, 9 * 96 * 2)
    srd(a, sDS, 68, 25 * 96 * 2)
    srd(a, sI1, 70, 96 * 384 * 2)
    srd(a, sI2, 72, 96 * 384 * 2)
    srd(a, sO, 74, XBYTES)
    if DIAG:
        srd(a, sW, 76, WS_STAMP + 0x100000)
    if E("PADG"):
        a("""s_load_dwordx2 s[88:89], s[0:1], 48
s_waitcnt lgkmcnt(0)
s_and_b32 s89, s89, 0xffff
s_mov_b32 s90, 256
s_mov_b32 s91, 0x20000
s_not_b32 s94, s92
v_mov_b32 v20, s94
v_mov_b32 v21, 0
s_cmp_lg_u32 s16, 7
s_cbranch_scc1 L_noat
s_mov_b64 exec, 1
buffer_atomic_umax v20, v21, s[88:91], 0 offen
s_mov_b64 exec, -1
L_noat:""")
    if DYN and E("W1PF", "1") == "1":
        a(f"""
s_cmp_lg_u32 {s(sWave)}, 7
s_cbranch_scc1 L_now1
s_lshr_b32 {s(sA)}, s2, 3
s_mul_i32 {s(sA)}, {s(sA)}, 2304
v_lshlrev_b32 v19, 2, {v(vL16)}
buffer_load_dword v18, v19, {s(sI1, 4)}, {s(sA)} offen sc1
L_now1:
""")
    stamp(a, 0)
    stamp_rt(a, 10)
    a(f"""
s_cmp_lg_u32 {s(sWave)}, 0
s_cbranch_scc1 {"L_pb0" if LBAR else "L_pb"}
s_mov_b32 m0, {WTMP}
s_mov_b32 {s(sA)}, 4096
""")
    for i in range(4):
        a(f"buffer_load_dwordx4 {v(vL16)}, {s(sDS, 4)}, 0 offen offset:{1024 * i} lds")
    a(f"s_mov_b32 m0, {WTMP + 4096}\ns_nop 0\nbuffer_load_dwordx4 {v(vL16)}, {s(sDS, 4)}, {s(sA)} offen lds")
    a(f"s_mov_b32 m0, {WTMP + 5120}\ns_nop 0")
    for i in range(2):
        a(f"buffer_load_dwordx4 {v(vL16)}, {s(sDL, 4)}, 0 offen offset:{1024 * i} lds")
    stamp(a, 9)
    issue_loads(a)
    a(f"""
{"s_barrier" if LBAR else ""}
v_mov_b32 {v(vT0)}, {F_ISS}
v_mov_b32 {v(vT1)}, 1
{"" if LBAR else f"ds_write_b32 {v(vT0)}, {v(vT1)}"}
s_waitcnt vmcnt(36)
ds_write_b32 {v(vT0)}, {v(vT1)} offset:{F_WRAW - F_ISS}
""")
    stamp(a, 11)
    a(f"""
L_pb0:
L_pb:
s_mov_b32 {s(sSelLo)}, 0x05040100
s_mov_b32 {s(sSelHi)}, 0x07060302
s_lshr_b32 {s(sA)}, s2, 3
s_mul_i32 {s(sB)}, {s(sA)}, 43
s_lshr_b32 {s(sB)}, {s(sB)}, 9
s_mul_i32 {s(sB)}, {s(sB)}, 12
s_sub_u32 {s(sRot)}, {s(sA)}, {s(sB)}       ; (wg>>3) % 12
v_bfe_u32 v1, v0, 3, 1
v_lshrrev_b32 v2, 5, v0          ; ch'
v_bfe_u32 v3, v0, 4, 1           ; dyp
v_bfe_u32 v4, v0, 2, 1           ; oy
v_sub_u32 v3, v3, v4             ; dyp-oy
v_and_b32 v4, 3, v0
v_mul_u32_u24 v5, {TU - TL}, v1
v_lshl_add_u32 v5, v4, 4, v5
v_add_u32 v5, {TL}, v5
v_cmp_eq_u32 s[56:57], v1, v2
v_add_u32 v6, 0, v3
v_cmp_gt_u32 vcc, 5, v6
v_lshl_add_u32 v7, v6, 6, v5
s_and_b64 vcc, vcc, s[56:57]
v_cndmask_b32 {v(vTa)}, v10, v7, vcc
v_add_u32 v6, 2, v3
v_lshl_add_u32 v7, v6, 6, v5
v_cndmask_b32 {v(vTa + 1)}, v10, v7, s[56:57]
v_add_u32 v6, 4, v3
v_cmp_gt_u32 vcc, 5, v6
v_lshl_add_u32 v7, v6, 6, v5
s_and_b64 vcc, vcc, s[56:57]
v_cndmask_b32 {v(vTa + 2)}, v10, v7, vcc
v_mul_u32_u24 v2, {2 * OS}, v2
v_and_b32 v3, 7, v0
v_lshl_add_u32 {v(vCv)}, v3, 3, v2
v_mul_u32_u24 v3, 768, v3
v_mul_u32_u24 v4, {2 * ROWB}, v1
v_xor_b32 v4, {s(sR2)}, v4
v_add_u32 v3, v3, v4
v_lshrrev_b32 v4, 4, v0
v_lshl_add_u32 {v(vXoff)}, v4, 4, v3
{XADJ}
v_bfe_u32 v3, v0, 4, 1
v_mul_u32_u24 v3, {RS}, v3
v_add_u32 {v(vCv)}, {v(vCv)}, v3
v_cmp_eq_u32 s[56:57], 1, v1
v_and_b32 v5, 1, v12
v_mul_u32_u24 v5, {RS}, v5
v_mul_u32_u24 v6, {OS}, v13
v_add_u32 {v(vSt)}, v5, v6
s_sub_u32 {s(sA)}, 7, {s(sWave)}
s_cmp_eq_u32 {s(sF)}, 0
s_cselect_b32 {s(sA)}, {s(sWave)}, {s(sA)}
s_cselect_b32 {s(sB)}, 0, {ROWB}
s_cselect_b32 {s(sC)}, {ROWB}, 0
s_lshl_b32 {s(sA)}, {s(sA)}, 2
s_add_u32 {s(sA)}, {s(sA)}, {s(sY0)}
s_lshl_b32 {s(sA)}, {s(sA)}, 9
s_add_u32 {s(sA)}, {s(sA)}, {s(sX0)}
s_mul_i32 {s(sA)}, {s(sA)}, 192
s_add_u32 {s(sNB)}, {s(sA)}, {s(sB)}
s_add_u32 {s(sNB + 1)}, {s(sA)}, {s(sC)}
s_add_u32 {s(sTB)}, {s(sNB)}, 384
s_add_u32 {s(sTB + 1)}, {s(sNB + 1)}, 384
s_cmp_lt_u32 {s(sWave)}, {NPRE}
s_cbranch_scc1 L_perm
{"s_barrier" if LBAR else ""}
s_cmp_lt_u32 {s(sWave)}, 4
s_cbranch_scc1 L_xload
""")
    wait_count(a, "L_wraw", F_WRAW, 1)
    for r in range(2):
        b = 128 + 16 * r
        a(f"""
v_add_u32 v1, {256 * r}, v15         ; task
v_mul_u32_u24 v{b}, 683, v1
v_lshrrev_b32 v{b}, 16, v{b}         ; dy
v_mul_u32_u24 v{b + 1}, 96, v{b}
v_sub_u32 v{b + 1}, v1, v{b + 1}     ; c
v_mul_u32_u24 v2, 960, v{b}
v_lshl_add_u32 v2, v{b + 1}, 1, v2
v_add_u32 v2, {WTMP}, v2
v_add_u32 v1, -1, v{b}
v_mul_u32_u24 v3, 576, v1
v_lshl_add_u32 v3, v{b + 1}, 1, v3
v_add_u32 v3, {WTMP + 5120}, v3
v_cmp_gt_u32 vcc, 3, v1
s_nop 1
v_cndmask_b32 v3, v10, v3, vcc
""")
        for jx in range(5):
            a(f"ds_read_u16 v{b + 4 + jx}, v2 offset:{192 * jx}")
        for jx in range(3):
            a(f"ds_read_u16 v{b + 9 + jx}, v3 offset:{192 * jx}")
    a("s_waitcnt lgkmcnt(0)")
    for r in range(2):
        b = 128 + 16 * r
        w = b + 4
        o = 160 + 16 * r
        for jx in range(8):
            a(f"v_lshlrev_b32 v{w + jx}, 16, v{w + jx}")
        a(f"""
v_add_f32 v{w + 1}, v{w + 1}, v{w + 5}
v_add_f32 v{w + 2}, v{w + 2}, v{w + 6}
v_add_f32 v{w + 3}, v{w + 3}, v{w + 7}
v_mul_f32 v{w}, {f32(2.0 ** -TSC)}, v{w}
v_mul_f32 v{w + 1}, {f32(2.0 ** -TSC)}, v{w + 1}
v_mul_f32 v{w + 2}, {f32(2.0 ** -TSC)}, v{w + 2}
v_mul_f32 v{w + 3}, {f32(2.0 ** -TSC)}, v{w + 3}
v_mul_f32 v{w + 4}, {f32(2.0 ** -TSC)}, v{w + 4}
v_mov_b32 v1, 0
v_cvt_pk_bf16_f32 v{o}, v{w}, v{w + 1}
v_cvt_pk_bf16_f32 v{o + 1}, v{w + 2}, v{w + 3}
v_cvt_pk_bf16_f32 v{o + 2}, v{w + 4}, v1
v_mov_b32 v{o + 3}, 0
v_cvt_pk_bf16_f32 v{o + 4}, v1, v{w}
v_cvt_pk_bf16_f32 v{o + 5}, v{w + 1}, v{w + 2}
v_cvt_pk_bf16_f32 v{o + 6}, v{w + 3}, v{w + 4}
v_mov_b32 v{o + 7}, 0
v_mov_b32 v{o + 8}, 0
v_mov_b32 v{o + 9}, v{o}
v_mov_b32 v{o + 10}, v{o + 1}
v_mov_b32 v{o + 11}, v{o + 2}
v_mov_b32 v{o + 12}, 0
v_mov_b32 v{o + 13}, v{o + 4}
v_mov_b32 v{o + 14}, v{o + 5}
v_mov_b32 v{o + 15}, v{o + 6}
v_lshrrev_b32 v2, 5, v{b + 1}
v_and_b32 v3, 15, v{b + 1}
v_lshl_add_u32 v2, v2, 4, v3
v_mul_u32_u24 v2, 320, v2
v_bfe_u32 v3, v{b + 1}, 4, 1
v_mul_u32_u24 v3, {TU - TL}, v3
v_add_u32 v2, v2, v3
v_sub_u32 v3, 4, v{b}
s_cmp_eq_u32 {s(sF)}, 0
s_cselect_b64 vcc, -1, 0
v_cndmask_b32 v3, v3, v{b}, vcc
v_lshl_add_u32 v2, v3, 6, v2
v_add_u32 v2, {TL}, v2
v_cmp_gt_u32 vcc, 5, v{b}
s_nop 1
v_cndmask_b32 v2, v10, v2, vcc
ds_write_b128 v2, v[{o}:{o + 3}]
ds_write_b128 v2, v[{o + 4}:{o + 7}] offset:16
ds_write_b128 v2, v[{o + 8}:{o + 11}] offset:32
ds_write_b128 v2, v[{o + 12}:{o + 15}] offset:48
""")
    count(a, F_TRDY)
    a(f"""
s_cmp_lt_u32 {s(sWave)}, 6
s_cbranch_scc1 L_xload
""")
    get_scale(a, "L_ws0")
    a(f"""
s_add_u32 {s(sC)}, {s(sS)}, {1 << 23}
v_add_u32 v1, -384, v14
v_lshlrev_b32 v2, 2, v1
v_add_u32 v3, {TABN}, v2
v_lshlrev_b32 v4, 17, v1              ; code 2i << 16
v_or_b32 v4, 0x8000, v4
v_cmp_gt_u32 vcc, 64, v1
v_mov_b32 v5, {s(sS)}
v_mov_b32 v6, {s(sC)}
v_cndmask_b32 v5, v5, v6, vcc
v_cndmask_b32 v6, 0, v6, vcc
v_add_u32 v4, v4, v5
v_mov_b32 v5, 0x1000000
v_mov_b32 v7, 0x800000
v_cndmask_b32 v5, v5, v7, vcc
s_mov_b32 {s(sA)}, {f32(KAPPA * 0.044715)}
v_mov_b32 v7, {f32(KAPPA)}
s_mov_b32 {s(sB)}, {NBIN // 2}
L_tabl:
v_add_u32 v9, 0x10000, v4
v_sub_f32 v8, v4, v6
v_sub_f32 v9, v9, v6
v_mul_f32 v10, v8, v8
v_mul_f32 v11, v9, v9
v_fma_f32 v10, v10, {s(sA)}, v7
v_fma_f32 v11, v11, {s(sA)}, v7
v_mul_f32 v10, v10, v8
v_mul_f32 v11, v11, v9
v_exp_f32 v10, -v10
v_exp_f32 v11, -v11
s_nop 0
v_add_f32 v12, 1.0, v10
v_add_f32 v13, 1.0, v11
v_rcp_f32 v12, v12
v_rcp_f32 v13, v13
s_nop 0
v_mul_f32 v8, v8, v12
v_mul_f32 v9, v9, v13
v_mul_f32 v10, -v8, v10
v_mul_f32 v11, -v9, v11
v_cvt_pk_bf16_f32 v12, v8, v9
v_cvt_pk_bf16_f32 v13, v10, v11
ds_write_b32 v2, v12
ds_write_b32 v3, v13
v_add_u32 v4, v4, v5
v_mov_b32 v5, 0x1000000
v_mov_b32 v6, 0
v_add_u32 v2, 512, v2
v_add_u32 v3, 512, v3
s_sub_u32 {s(sB)}, {s(sB)}, 1
s_cmp_lg_u32 {s(sB)}, 0
s_cbranch_scc1 L_tabl
""")
    count(a, F_INIT)
    a("L_xload:")
    stamp(a, 13)
    wait_count(a, "L_wiss", F_ISS, s(sPair))
    stamp(a, 9)
    if CPF == "4":
        a(f"s_cmp_lg_u32 {s(sPair)}, 5\ns_cbranch_scc1 L_nocpb")
        NPF["b"] = 2
        code_pf(a, "b", "L_loader", "L_end", 20)
        a("L_nocpb:")
    if CPF == "2":
        a(f"s_cmp_eq_u32 {s(sPair)}, 8\ns_cbranch_scc1 L_nocpb\ns_bitcmp1_b32 {s(sPair)}, 0\ns_cbranch_scc1 L_nocpb")
        code_pf(a, "b", "L_wt", "L_end")
        a("L_nocpb:")
    MR = list(range(0, 48, 4)) + list(range(192, 240, 4))
    if DYN:
        a(f"""
s_sub_u32 {s(sA)}, {s(sPair)}, {DYN}
s_cmp_ge_u32 {s(sA)}, 3
s_cbranch_scc1 L_nomax
s_mul_i32 {s(sA)}, {s(sA)}, 24576
""")
        for i in range(24):
            a(f"buffer_load_dwordx4 {v(MR[i], 4)}, {v(vL16)}, {s(sI1, 4)}, {s(sA)} offen offset:{1024 * (i % 4)} sc1")
            if i % 4 == 3:
                a(f"s_add_u32 {s(sA)}, {s(sA)}, 4096")
        a("L_nomax:")
    issue_loads(a)
    a(f"""
s_add_u32 {s(sA)}, {s(sPair)}, 1
v_mov_b32 {v(vT1)}, {s(sA)}
ds_write_b32 {v(vT0)}, {v(vT1)}
""")
    stamp(a, 11)
    if DYN:
        m1, m2 = v(vCA), v(vCA + 1)
        a(f"""
s_sub_u32 {s(sA)}, {s(sPair)}, {DYN}
s_cmp_ge_u32 {s(sA)}, 3
s_cbranch_scc1 L_perm
v_mov_b32 {m1}, 0
v_mov_b32 {m2}, 0
s_waitcnt vmcnt(36)
""")
        for i in range(96):
            r = v(MR[i // 4] + i % 4)
            a(f"v_pk_max_i16 {m1}, {m1}, {r}\nv_pk_max_u16 {m2}, {m2}, {r}")
        a(f"""
v_and_b32 {m2}, 0x7fff7fff, {m2}
v_pk_max_u16 {m1}, {m1}, {m2}
v_mov_b32 v3, {F_WMAX}
v_lshrrev_b32 {m2}, 16, {m1}
v_and_b32 {m1}, 0xffff, {m1}
v_max_u32 {m1}, {m1}, {m2}
ds_max_u32 v3, {m1}
""")
        count(a, F_WCNT)
    a("L_perm:")


def slot_of(a, dst, src):
    a(f"""
s_lshl_b32 {s(dst)}, {src}, 1
s_lshr_b32 {s(dst)}, {sum(x << (2 * i) for i, x in enumerate(SLOTS))}, {s(dst)}
s_and_b32 {s(dst)}, {s(dst)}, 3
s_cmp_eq_u32 {s(dst)}, 3
s_mul_i32 {s(dst)}, {s(dst)}, {SS}
s_cselect_b32 {s(dst + 1)}, {R3U - RU}, {s(dst)}
s_cselect_b32 {s(dst)}, {R3L - RL}, {s(dst)}
s_add_u32 {s(dst)}, {s(dst)}, {RL}
s_add_u32 {s(dst + 1)}, {s(dst + 1)}, {RU}
""")


def goff(g, base):
    tp, Q = divmod(g, 4)
    return f"{s(base + (Q >> 1))} offen offset:{192 * (Q & 1) + 64 * tp}"


def poff(t):
    return [f"v_lshrrev_b32 {v(t)}, 7, {v(vL16)}",
            f"v_mul_u32_u24 {v(t)}, 640, {v(t)}",
            f"v_add_u32 {v(t)}, {v(t)}, {v(vL16)}",
            f"v_add_u32 {v(t + 1)}, {2 * ROWB}, {v(t)}"]


def poffn(t):
    return [f"v_bfe_u32 {v(t)}, {v(vL16)}, 4, 3",
            f"v_mul_u32_u24 {v(t)}, 768, {v(t)}",
            f"v_bfe_u32 {v(t + 1)}, {v(vL16)}, 7, 1",
            f"v_lshl_add_u32 {v(t)}, {v(t + 1)}, 6, {v(t)}",
            f"v_lshrrev_b32 {v(t + 1)}, 8, {v(vL16)}",
            f"v_lshl_add_u32 {v(t)}, {v(t + 1)}, 4, {v(t)}",
            f"v_add_u32 {v(t)}, {s(sR2)}, {v(t)}",
            f"v_xor_b32 {v(t + 1)}, {2 * ROWB}, {v(t)}"]


def paddr(g, t):
    r, ln = divmod(g, 3)
    return f"{v(t + (r >> 1))}, {s(sO, 4)}, {s(sNB + (r & 1))} offen offset:{128 * ln}"


def park(a, t):
    for tx in poff(t):
        a(tx)
    for g in range(0 if NOPARK else 12):
        a(f"buffer_store_dwordx4 {v(X + 4 * g, 4)}, {paddr(g, t)}{PKF}")


def phase1(a):
    def oreg(rnd):
        return SB + (144 if rnd == 0 else 16 * (rnd - 1))

    def perms(rnd):
        a(f"s_waitcnt vmcnt({32 - 4 * rnd})")
        L = SB + 16 * rnd
        O = oreg(rnd)
        for d in range(4):
            a(f"v_perm_b32 {v(O + 4 * d)}, {v(L + 4 + d)}, {v(L + d)}, {s(sSelLo)}")
            a(f"v_perm_b32 {v(O + 4 * d + 1)}, {v(L + 12 + d)}, {v(L + 8 + d)}, {s(sSelLo)}")
            a(f"v_perm_b32 {v(O + 4 * d + 2)}, {v(L + 4 + d)}, {v(L + d)}, {s(sSelHi)}")
            a(f"v_perm_b32 {v(O + 4 * d + 3)}, {v(L + 12 + d)}, {v(L + 8 + d)}, {s(sSelHi)}")
            if ILV:
                writes(rnd, d)

    def writes(rnd, d):
        O = oreg(rnd)
        a(f"ds_write_b64 {v(vT0)}, {v(O + 4 * d, 2)} offset:{8 * rnd + 2 * d * 72}")
        a(f"ds_write_b64 {v(vT0)}, {v(O + 4 * d + 2, 2)} offset:{8 * rnd + (2 * d + 1) * 72}")

    if not ILV:
        a("s_mov_b32 exec_hi, 0x0000ffff")
        for rnd in range(9):
            perms(rnd)
        a("s_mov_b32 exec_hi, -1")
    stamp(a, 1)
    a(f"s_cmp_lg_u32 {s(sPair)}, 3\ns_cbranch_scc1 L_wt3_ok")
    wait_count(a, "L_wt3", F_TRDY, 4)
    a(f"""
s_lshr_b32 {s(sA)}, {sum((PRED[k] - (k - 4)) << k for k in range(9))}, {s(sPair)}
s_and_b32 {s(sA)}, {s(sA)}, 1
s_add_u32 {s(sA)}, {s(sA)}, {s(sPair)}
s_lshl_b32 {s(sA)}, {s(sA)}, 3
s_add_u32 {s(sA)}, {s(sA)}, {F_DONE + 4}
""")
    wait_flags(a, "L_wslot", s(sA))
    stamp(a, 2)
    slot_of(a, sR, s(sPair))
    a(f"""
v_add_u32 {v(vT0)}, {s(sR)}, {v(vSt)}
v_add_u32 {v(vT1)}, {s(sR + 1)}, {v(vSt)}
v_cndmask_b32 {v(vT0)}, {v(vT1)}, {v(vT0)}, s[58:59]
s_mov_b32 exec_hi, 0x0000ffff
""")
    for rnd in range(9):
        if ILV:
            perms(rnd)
        else:
            for d in range(4):
                writes(rnd, d)
    a(f"""
s_mov_b32 exec_hi, -1
s_lshl_b32 {s(sA)}, {s(sPair)}, 2
s_add_u32 {s(sA)}, {s(sA)}, {F_STG}
v_mov_b32 {v(vT0)}, {s(sA)}
v_mov_b32 {v(vT1)}, 1
s_waitcnt lgkmcnt(0)
ds_write_b32 {v(vT0)}, {v(vT1)}
s_cmp_eq_u32 {s(sPair)}, 8
s_cbranch_scc1 L_loader
""")
    stamp(a, 4)
    if W0P:
        a(f"s_cmp_lt_u32 {s(sWave)}, {W0P}\ns_cbranch_scc1 L_hp1")
    a(f"s_setprio {PCV}\nL_hp1:")
    a(f"s_add_u32 {s(sB)}, {s(sPair)}, 1")
    slot_of(a, sR + 2, s(sB))
    for z in range(4):
        a(f"v_add_u32 {v(TMP + z)}, {s(sR + z)}, {v(vCv)}")
    for z in range(3):
        a(f"v_cndmask_b32 {v(vCA + z)}, {v(TMP + z)}, {v(TMP + z + 1)}, s[56:57]")
    wait_count(a, "L_wt", F_TRDY, 4)
    stamp(a, 5)

    NST = 144

    def cread(i):
        z, q = divmod(i, 48)
        r = DS + 4 * (i % NSL)
        return (f"ds_read_b128 {v(TS + 4 * (i % NSL), 4)}, {v(vTa + z)} offset:{320 * q}\n"
                f"ds_read_b64 {v(r, 2)}, {v(vCA + z)} offset:{coff(kap(0, q))}\n"
                f"ds_read_b64 {v(r + 2, 2)}, {v(vCA + z)} offset:{coff(kap(0, q)) + 8}")

    def stats_pk(q):
        out = []
        for r in (0, 2):
            acc = 4 * q + r
            if q == 0:
                out.append(f"v_pk_add_f32 {v(TMP + r, 2)}, {v(acc, 2)}, {v(acc + 4, 2)}")
                out.append(f"v_pk_mul_f32 {v(TMP + 4 + r, 2)}, {v(acc, 2)}, {v(acc, 2)}")
            else:
                if q > 1:
                    out.append(f"v_pk_add_f32 {v(TMP + r, 2)}, {v(TMP + r, 2)}, {v(acc, 2)}")
                out.append(f"v_pk_fma_f32 {v(TMP + 4 + r, 2)}, {v(acc, 2)}, {v(acc, 2)}, {v(TMP + 4 + r, 2)}")
        return out

    def stats(q):
        out = []
        for r in range(4):
            acc = 4 * q + r
            if q == 0:
                out.append(f"v_mov_b32 {v(TMP + r)}, {v(acc)}")
                out.append(f"v_mul_f32 {v(TMP + 4 + r)}, {v(acc)}, {v(acc)}")
            else:
                out.append(f"v_add_f32 {v(TMP + r)}, {v(TMP + r)}, {v(acc)}")
                out.append(f"v_fmac_f32 {v(TMP + 4 + r)}, {v(acc)}, {v(acc)}")
        return out

    SLAG = 3
    for i in range(NE + 1):
        a(cread(i))
    for i in range(NST):
        z, q = divmod(i, 48)
        left = min(i + NE + 1, NST) - (i + 1)
        if i % 2 == 0:
            a(f"s_waitcnt lgkmcnt({3 * max(left - 1, 0)})")
        if i == 96:
            a(f"ds_write_b32 {v(vT0)}, {v(vT1)}")
        c = "0" if z == 0 else v(4 * q, 4)
        a(f"v_mfma_f32_16x16x32_bf16 {v(4 * q, 4)}, {v(TS + 4 * (i % NSL), 4)}, {v(DS + 4 * (i % NSL), 4)}, {c}")
        if i + NE + 1 < NST:
            if i == 97:
                a("s_waitcnt lgkmcnt(12)")
            if i == 43:
                wait_flags(a, "L_wrdy", s(sA))
                stamp(a, 3)
                a(f"""
s_lshl_b32 {s(sA)}, {s(sWave)}, 3
s_add_u32 {s(sA)}, {s(sA)}, {F_DONE + 40}
v_mov_b32 {v(vT0)}, {s(sA)}
v_mov_b32 {v(vT1)}, 1
""")
            a(cread(i + NE + 1))
        if i == NST - 2:
            a(f"ds_write_b32 {v(vT0)}, {v(vT1)} offset:4")
        if not PKS and i >= 96 + SLAG:
            for tx in stats(i - 96 - SLAG):
                a(tx)
    if W0P:
        a(f"s_cmp_lt_u32 {s(sWave)}, {W0P}\ns_cbranch_scc1 L_hp2")
    a(f"s_setprio {PLN}\nL_hp2:")
    if WPF >= 0:
        a(f"""
s_cmp_lg_u32 {s(sWave)}, {WPF}
s_cbranch_scc1 L_nopf
s_lshr_b32 {s(sA)}, s2, 3
s_mul_i32 {s(sA)}, {s(sA)}, 2304
v_lshlrev_b32 v230, 2, {v(vL16)}
buffer_load_dword v231, v230, {s(sI1, 4)}, {s(sA)} offen
buffer_load_dword v231, v230, {s(sI2, 4)}, {s(sA)} offen
L_nopf:
""")
    stamp(a, 8)
    if PKS:
        for q in range(48):
            for tx in (stats(q) if E("STP") else stats_pk(q)):
                a(tx)
    else:
        for q in range(48 - SLAG, 48):
            for tx in stats(q):
                a(tx)
    stamp(a, 6)
    s1, s2 = TMP, TMP + 4
    get_scale(a, "L_ws1")
    a(f"s_sub_u32 {s(sA)}, 0x3f800000, {s(sS)}\ns_or_b32 {s(sB)}, {s(sA)}, 0x80000000")
    a(f"""
s_nop 1
v_permlane32_swap_b32 {v(s1)}, {v(s1 + 1)}
v_permlane32_swap_b32 {v(s1 + 2)}, {v(s1 + 3)}
v_permlane32_swap_b32 {v(s2)}, {v(s2 + 1)}
v_permlane32_swap_b32 {v(s2 + 2)}, {v(s2 + 3)}
""")
    for e in (0, 2):
        m, w_ = s1 + e, s2 + e
        a(f"""
v_add_f32 {v(m)}, {v(m)}, {v(m + 1)}
v_add_f32 {v(w_)}, {v(w_)}, {v(w_ + 1)}
v_mul_f32 {v(m)}, {f32(1.0 / 96)}, {v(m)}
v_mul_f32 {v(w_)}, {f32(1.0 / 96)}, {v(w_)}
v_fma_f32 {v(w_)}, -{v(m)}, {v(m)}, {v(w_)}
v_max_f32 {v(w_)}, 0, {v(w_)}
v_add_f32 {v(w_)}, {f32(1e-5 * 2.0 ** (-2 * TSC))}, {v(w_)}
v_rsq_f32 {v(w_)}, {v(w_)}
s_nop 0
v_mul_f32 {v(m)}, {v(m)}, {v(w_)}
v_mul_f32 {v(w_)}, {s(sA)}, {v(w_)}
v_mul_f32 {v(m)}, {s(sB)}, {v(m)}
v_mov_b32 {v(w_ + 1)}, {v(w_)}
v_mov_b32 {v(m + 1)}, {v(m)}
""")
    a(f"""
s_nop 1
v_permlane32_swap_b32 {v(s1)}, {v(s1 + 1)}
v_permlane32_swap_b32 {v(s1 + 2)}, {v(s1 + 3)}
v_permlane32_swap_b32 {v(s2)}, {v(s2 + 1)}
v_permlane32_swap_b32 {v(s2 + 2)}, {v(s2 + 3)}
""")
    for ks in range(3):
        for q in range(16 * ks, 16 * ks + 16):
            if PKN:
                for r in (0, 2):
                    acc = 4 * q + r
                    a(f"v_pk_fma_f32 {v(acc, 2)}, {v(acc, 2)}, {v(s2 + r, 2)}, {v(s1 + r, 2)}")
            else:
                for r in range(4):
                    acc = 4 * q + r
                    a(f"v_fma_f32 {v(acc)}, {v(acc)}, {v(s2 + r)}, {v(s1 + r)}")
        ta = (192, X, X + 16)[ks]
        tb = 208 if ks == 0 else 16 * ks
        for r in range(4):
            base = ta if r < 2 else tb
            for sel in range(2):
                for d in range(4):
                    qp = 8 * ks + 4 * sel + d
                    a(f"v_cvt_pk_bf16_f32 {v(base + 8 * sel + 4 * (r & 1) + d)}, {v(8 * qp + r)}, {v(8 * qp + 4 + r)}")
        a("s_nop 0")
        for base in (ta, tb):
            for i in range(8):
                a(f"v_permlane16_swap_b32 {v(base + i)}, {v(base + 8 + i)}")
        if ks == 0:
            for i in range(16):
                a(f"v_mov_b32 {v(i)}, {v(208 + i)}")
        if ks == 1:
            for i in range(16):
                a(f"v_mov_b32 {v(X + 32 + i)}, {v(192 + i)}")
    stamp(a, 7)
    if DIAG:
        a(f"s_mov_b32 s62, {s(sWave)}")
    stamp_flush(a, 14, 0)
    a(f"""
s_mov_b32 {s(sPair)}, 8
s_mov_b32 {s(sMode)}, 1
s_sub_u32 {s(sA)}, {s(sWave)}, 1
s_cmp_lt_u32 {s(sA)}, {DEFER - 1}
s_cbranch_scc1 L_p2
s_mov_b32 {s(sMode)}, 0
""")
    park(a, TMP)
    a(f"""
s_cmp_lg_u32 {s(sWave)}, 0
s_cbranch_scc1 L_p2
s_setprio 3
s_branch L_xload
L_loader:
""")
    load_groups(a, tuple(range(NLW, 4)), 60)


GROUPS = [(0, 5), (5, 4), (9, 5), (14, 10)]


def load_groups(a, gs, r):
    dma_consts(a, r)
    for gi in gs:
        n0, n = GROUPS[gi]
        wait_flags(a, f"L_wg{gi}", F_DONE + 4 + 8 * (LASTQ[gi] + 4))
        for tp, c in PIECES[n0:n0 + n]:
            dma_piece(a, tp, c, r)
        if gi == gs[0] and gi:
            wait_count(a, f"L_wo{gi}", F_RDY, n0)
        a(f"v_mov_b32 {v(vT0)}, {F_RDY}")
        for i in range(n):
            a(f"v_mov_b32 {v(r + 4 + i)}, {n0 + i + 1}")
            a(f"s_waitcnt vmcnt({6 * (n - 1 - i)})")
            a(f"ds_write_b32 {v(vT0)}, {v(r + 4 + i)}")


class Stream:
    def __init__(self, a):
        self.a = a
        self.out = []
        self.nops = 0

    def __call__(self, tx):
        for ln in tx.split("\n"):
            i = Ins(ln)
            if i.states == 0:
                self.a(ln)
                continue
            touch = (i.rd | i.wr) if i.kind != "lds" else set(i.rd)
            need = -1
            for k, d in enumerate(self.out):
                if d & touch:
                    need = k
            if need >= 0:
                n = min(len(self.out) - 1 - need, 14)
                n = min(n, WCAP)
                self.a(f"s_waitcnt lgkmcnt({n})")
                self.out = self.out[len(self.out) - n:] if n else []
            tail = self.a.lines[-40:]
            pad = 0
            while check_hazards(tail + ([f"s_nop {pad - 1}"] if pad else []) + [ln], only_last=True):
                pad += 1
            if pad:
                self.a(f"s_nop {pad - 1}")
                self.nops += 1
            self.a(ln)
            if i.kind == "lds":
                self.out.append(set(i.wr))


PO, PY = E("PO", "1100"), E("PY", "1100")
PU1, PU2 = int(E("PU1", "12")), int(E("PU2", "20"))


PADG = """s_cmp_lg_u32 s16, 7
s_cbranch_scc1 L_end
v_mov_b32 v20, 0
v_mov_b32 v21, 0
s_mov_b64 exec, 1
buffer_atomic_or v20, v21, s[88:91], 0 offen sc0
s_waitcnt vmcnt(0)
v_readfirstlane_b32 s92, v20
s_not_b32 s92, s92""" if E("PADG") else ""
PAD = f"""L_pad:
{PADG}
L_pad2:
s_sleep 4
s_memrealtime s[94:95]
s_waitcnt lgkmcnt(0)
s_sub_u32 s94, s94, s92
s_cmp_lt_u32 s94, {int(float(E("PADT", "0")) * 100)}
s_cbranch_scc1 L_pad2""" if E("PADT") else ""


def prio(k):
    if k and PO[k] == PO[k - 1] and PY[k] == PY[k - 1]:
        return ""
    if PO[k] == PY[k]:
        return f"s_setprio {PO[k]}"
    return f"""s_setprio {PO[k]}
s_cmp_lt_u32 {s(sWave)}, 4
s_cbranch_scc1 L_pr{k}
s_setprio {PY[k]}
L_pr{k}:"""


IDENT = f"""v_lshrrev_b32 v{ACC}, 8, {v(vL16)}
v_bfe_u32 v{ACC + 1}, {v(vL16)}, 6, 2
v_cmp_eq_u32 vcc, v{ACC}, v{ACC + 1}
v_and_b32 v{ACC}, 16, {v(vL16)}
v_mov_b32 v{ACC + 1}, 0x3f80
v_lshlrev_b32 v{ACC}, v{ACC}, v{ACC + 1}
v_cndmask_b32 v{ACC}, 0, v{ACC}, vcc
v_and_b32 v{ACC + 1}, 32, {v(vL16)}
v_cmp_eq_u32 vcc, 0, v{ACC + 1}
s_nop 1
v_cndmask_b32 v{vID}, 0, v{ACC}, vcc
v_sub_u32 v{vID + 1}, v{ACC}, v{vID}""" if RES == "mfma" else ""


def phase2(a):
    SH = "dst_sel:DWORD dst_unused:UNUSED_PAD src0_sel:DWORD src1_sel:WORD_1"
    t0, t1 = ACC, ACC + 1
    a("L_p2:")
    for g in range(NLW):
        a(f"s_cmp_lg_u32 {s(sWave)}, {g + 1}\ns_cbranch_scc1 L_nodma{g}\ns_setprio 3")
        load_groups(a, (g,), ACC)
        a(f"L_nodma{g}:")
    if E("PAD1"):
        a(f"""L_pad1:
s_sleep 2
s_memrealtime s[94:95]
s_waitcnt lgkmcnt(0)
s_sub_u32 s94, s94, s92
s_cmp_lt_u32 s94, {int(float(E("PAD1")) * 100)}
s_cbranch_scc1 L_pad1""")
    wait_count(a, "L_wi", F_INIT, 2)
    a(f"""
v_bfe_u32 {v(t0)}, {v(vL16)}, 6, 2            ; r
v_and_b32 {v(t1)}, 48, {v(vL16)}              ; 16c'
v_lshrrev_b32 {v(t1 + 1)}, 9, {v(vL16)}         ; g>>1
v_lshl_add_u32 {v(t0)}, {v(t1 + 1)}, 3, {v(t0)}   ; row = 8(g>>1) + r
v_lshl_add_u32 {v(vA[1])}, {v(t0)}, 6, {v(t1)}
v_mul_u32_u24 {v(t0)}, 192, {v(t0)}
v_add_u32 {v(vA[2])}, {v(t0)}, {v(t1)}
v_bfe_u32 {v(t0)}, {v(vL16)}, 8, 1            ; g&1
v_mul_u32_u24 {v(t1)}, {DZ}, {v(t0)}
v_add_u32 {v(vA[1])}, {v(vA[1])}, {v(t1)}
v_add_u32 {v(vA[2])}, {v(vA[2])}, {v(t1)}
{IDENT}
s_mov_b32 {s(cNB)}, {h2(-BETA)}
s_mov_b32 {s(cS)}, {h2(SC)}
s_add_u32 {s(cK)}, {s(sS)}, {f32(SC)}
s_mov_b32 {s(cLo)}, 0x00003f80
s_mov_b32 {s(cHi)}, 0x3f800000
s_mov_b32 {s(sTile)}, 0
s_mov_b32 {s(sRdy)}, 0
{chr(10).join(f"v_mov_b32 v{XR + i}, 0" for i in range(8)) if E("NOXL") else ""}
{prio(0)}
L_mtile:
""")
    stamp(a, 2)
    stamp_rt(a, 13)
    if E("XL128"):
        for tx in (poff if E("XL128") == "1" else poffn)(XR):
            a(tx)
        a(f"v_mov_b32 {v(vXoff)}, {v(XR)}\ns_mov_b32 s88, {s(sTB)}\ns_mov_b32 s89, {s(sTB + 1)}\ns_add_u32 s90, s88, {2 * ROWB}\ns_add_u32 s91, s89, {2 * ROWB}")
    st = Stream(a)
    zone_now = {1: 0, 2: 0}
    seen = [0]

    def slot(f):
        return WS + 4 * (FRAGS.index(f) % NWS)

    cold = Asm()

    def rd(f, hf):
        tp, n = f
        c, k = divmod(n, 6)
        zone, ad, _ = piece_addr(tp, c)
        base = slot(f)
        if zone != zone_now[tp]:
            zone_now[tp] = zone
            st(f"v_bfe_u32 {v(base)}, {v(vL16)}, 8, 1")
            st(f"v_mul_u32_u24 {v(base)}, {DZ - DZ1}, {v(base)}")
            st(f"v_subrev_u32 {v(base)}, {E1}, {v(base)}")
            st(f"v_{'sub' if zone else 'add'}_u32 {v(vA[tp])}, {v(vA[tp])}, {v(base)}")
        need = PIECES.index((tp, c)) + 1
        if need > seen[0]:
            if need > 4:
                need = min(need + 1, 24)
            seen[0] = need
            lb = f"L_rd{need}"
            a(f"s_cmp_lt_u32 {s(sRdy)}, {need}\ns_cbranch_scc1 {lb}_slow\n{lb}_go:")
            cold(f"{lb}_slow:\nv_mov_b32 {v(base)}, {F_RDY}")
            spin(cold, lb, f"v_cmp_le_u32 vcc, {need}, {v(base + 1)}", base, base + 1)
            cold(f"v_readfirstlane_b32 {s(sRdy)}, {v(base + 1)}\ns_branch {lb}_go")
            if need == 1:
                stamp(a, 3)
        off = ad - (E1 if zone else 0)
        if tp == 1:
            ht, ks = divmod(k, 3)
            o = off + 1024 * ks + 256 * hf + 8 * ht
        else:
            o = off + 768 * hf + 64 * (k // 2) + 8 * (k % 2)
        assert o < 65536
        st(f"ds_read_b64_tr_b16 {v(base + 2 * hf, 2)}, {v(vA[tp])} offset:{o}")

    def xreg(T, Q):
        return X + 8 * (4 * (T // 2) + Q) + 4 * (T % 2)

    def mf(f, Q):
        tp, n = f
        c, k = divmod(n, 6)
        if tp == 1:
            ks = n % 3
            d = ACC + 16 * ((n // 3) % 3) + 4 * Q
            return (f"v_mfma_f32_16x16x32_bf16 {v(d, 4)}, {v(slot(f), 4)}, "
                    f"{v(H + 16 * ks + 4 * Q, 4)}, {'0' if ks == 0 else v(d, 4)}")
        d = xreg(k, Q)
        return (f"v_mfma_f32_16x16x32_bf16 {v(d, 4)}, {v(slot(f), 4)}, "
                f"{v(G + 16 * (c % 2) + 4 * Q, 4)}, {'0' if c == 0 else v(d, 4)}")

    def look(u, i):
        a0 = ACC + 16 * (u % 3) + 2 * i
        if E("NOCF") and i < int(E("NOCF")):
            return [(4, f"v_lshrrev_b32 {v(a0)}, 2, {v(vL16)}"), (4, f"v_lshrrev_b32 {v(a0 + 1)}, 2, {v(vL16)}"),
                    (0, f"ds_read_u16_d16 {v(a0)}, {v(a0)} offset:{3072 + 256 * ((u + i) % 8)}"),
                    (0, f"ds_read_u16_d16_hi {v(a0 + 1)}, {v(a0 + 1)} offset:{3074 + 256 * ((u + 3 * i) % 8)}")]
        return [(4, f"v_lshlrev_b32_sdwa {v(a0)}, 1, {v(a0)} {SH}"),
                (4, f"v_lshlrev_b32_sdwa {v(a0 + 1)}, 1, {v(a0 + 1)} {SH}"),
                (0, f"ds_read_u16_d16 {v(a0)}, {v(a0)}"),
                (0, f"ds_read_u16_d16_hi {v(a0 + 1)}, {v(a0 + 1)}")]

    def greg(u, i):
        c, ht = divmod(u, 2)
        return G + 16 * (c % 2) + 4 * (i // 2) + 2 * ht + i % 2

    def nexp(u):
        return EXPK[u % len(EXPK)]

    def comb(u, i):
        a0 = ACC + 16 * (u % 3) + 2 * i
        return [(4, f"v_or_b32 {v(greg(u, i))}, {v(a0)}, {v(a0 + 1)}")]

    def expo(u):
        LO = "dst_sel:WORD_0 dst_unused:UNUSED_PRESERVE src0_sel:WORD_0"
        HI = "dst_sel:WORD_1 dst_unused:UNUSED_PRESERVE src0_sel:WORD_1"
        ch1, ch2 = [], []
        for i in range(8 - nexp(u), 8):
            b, t, r = v(ACC + 16 * (u % 3) + 2 * i), v(ACC + 16 * (u % 3) + 2 * i + 1), v(greg(u, i))
            ch1.append([(4, f"v_fma_mixlo_f16 {b}, {b}, {s(cK)}, 0"),
                        (4, f"v_fma_mixhi_f16 {b}, {t}, {s(cK)}, 0"),
                        (4, f"v_pk_fma_f16 {t}, {b}, {b}, {s(cNB)} neg_lo:[0,1,0] neg_hi:[0,1,0]"),
                        (4, f"v_pk_mul_f16 {t}, {t}, {b}"),
                        (8, f"v_exp_f16_sdwa {t}, {t} {LO}"),
                        (8, f"v_exp_f16_sdwa {t}, {t} {HI}"),
                        (4, f"v_pk_fma_f16 {t}, {t}, {s(cS)}, {s(cS)}")])
            ch2.append([(8, f"v_rcp_f16_sdwa {t}, {t} {LO}"),
                        (8, f"v_rcp_f16_sdwa {t}, {t} {HI}"),
                        (4, f"v_fma_mix_f32 {r}, {b}, {t}, 0 op_sel_hi:[1,1,0]"),
                        (4, f"v_fma_mix_f32 {t}, {b}, {t}, 0 op_sel:[1,1,0] op_sel_hi:[1,1,0]"),
                        (4, f"v_cvt_pk_bf16_f32 {r}, {r}, {t}")])
        return ch1, ch2

    def weave(chains):
        out = []
        n = max([len(c) for c in chains], default=0)
        for k in range(n):
            need_pad = sum(1 for c in chains if k < len(c)) == 1
            out += [c[k] + (need_pad,) for c in chains if k < len(c)]
        return out

    extra = {}

    def put(u, m, tx):
        extra.setdefault((u, m), []).append(tx)

    put(23, 0, "s_waitcnt vmcnt(0)")
    for tx in poff(XR):
        put(23, 0, tx)
    for g in range(0 if NOPARK else 12):
        ks = (1, 2, 0)[g // 4]
        put(23, g, f"buffer_load_dwordx4 {v(H + 16 * ks + 4 * (g % 4), 4)}, {paddr(g, XR)}{HLF}")

    for tx in poffn(XR):
        put(24, 2, tx)
    def rgroups(rho):
        oy, ln = divmod(rho, 3)
        return [4 * (p % 3) + 2 * oy + p // 3 for p in (2 * ln, 2 * ln + 1)]

    def xload(rho):
        if E("XL128"):
            return [f"buffer_load_dwordx4 {v(XR + 4 * e, 4)}, {v(vXoff)}, {s(sX, 4)}, {s(88 + (2 * rho + e) // 3)} offen offset:{128 * ((2 * rho + e) % 3)}{XFF}" for e in range(2)]
        return [f"buffer_load_dwordx4 {v(XR + 4 * e, 4)}, {v(vXoff)}, {s(sX, 4)}, {goff(g, sTB)}{XFF}"
                for e, g in enumerate(rgroups(rho)) if not NOX and not E("NOXL")]

    def xpf(oy, t):
        return [f"v_lshrrev_b32 {v(t)}, 8, {v(vL16)}",
                f"v_mul_u32_u24 {v(t)}, 112, {v(t)}",
                f"s_mov_b32 m0, {L_JUNK}",
                f"v_add_u32 {v(t)}, {v(t)}, {v(vXoff)}",
                f"buffer_load_dword {v(t)}, {s(sX, 4)}, {s(sTB + oy)} offen{XPFF} lds"]

    if XPF:
        for tx in xpf(0, XR):
            put(-1, 0, tx)
        if XPF == 2:
            for tx in xpf(1, XR):
                put(-1, 1, tx)
    for tx in xload(0):
        put(RU0 - 3 - (RES != "dot"), 22, tx)
    for rho in range(6 if RES == "plain" else 0):
        for e, g in enumerate(rgroups(rho)):
            u = RU0 - 1 + 3 * rho + e
            act = {f[1] % 6: 4 * i for i, f in enumerate(STEPS[u]) if f[0] == 2}
            tp, Q = divmod(g, 4)
            W = 8 // RPG
            starts = {}
            for tl in range(2):
                T = 2 * tp + tl
                m = 3
                while any(abs(m - x) < W for x in starts.values()) or (T in act and act[T] + Q - W - 1 < m < act[T] + Q + 4):
                    m += 1
                assert m + W <= 23, (u, T, m)
                starts[tl] = m
            prev = None
            for tl in sorted(starts, key=starts.get):
                ops = []
                for h in range(2):
                    P, d = XR + 4 * e + 2 * tl + h, xreg(2 * tp + tl, Q) + 2 * h
                    if prev is None:
                        ops += [f"v_dot2_f32_bf16 {v(d + 1)}, {v(P)}, {s(cHi)}, {v(d + 1)}", None]
                    else:
                        ops += [f"v_and_b32 {v(prev)}, 0xffff0000, {v(P)}", f"v_add_f32 {v(d + 1)}, {v(d + 1)}, {v(prev)}"]
                    ops += [f"v_lshlrev_b32 {v(P)}, 16, {v(P)}", f"v_add_f32 {v(d)}, {v(d)}, {v(P)}"]
                    ops[-3], ops[-2] = ops[-2], ops[-3]
                    prev = P
                for i, tx in enumerate(ops):
                    if tx:
                        put(u, starts[tl] + i // RPG, tx)
            extra[(u, min(starts.values()))].insert(0, f"s_waitcnt vmcnt({0 if rho == 5 and e else 1})")
            if rho < 5:
                put(u, max(starts.values()) + W - 1, xload(rho + 1)[e])
    for rho in range(6 if RES == "mfma" else 0):
        assert NWS == 4
        for e, g in enumerate(rgroups(rho)):
            u = RU0 - 1 + 3 * rho + e
            act = {f[1] % 6: 4 * i for i, f in enumerate(STEPS[u]) if f[0] == 2}
            tp, Q = divmod(g, 4)
            ms = []
            for tl in range(2):
                T = 2 * tp + tl
                m = 5
                while m in ms or m - 1 in ms or (T in act and act[T] + Q - 4 < m < act[T] + Q + 3):
                    m += 1
                ms.append(m)
                d = xreg(T, Q)
                put(u, m, f"v_mfma_f32_16x16x16_bf16 {v(d, 4)}, {v(vID, 2)}, {v(XR + 4 * e + 2 * tl, 2)}, {v(d, 4)}")
            extra[(u, min(ms))].insert(0, f"s_waitcnt vmcnt({0 if rho == 5 and e else 1})")
            if rho < 5:
                put(u, max(ms) + 1, xload(rho + 1)[e])
    for rho in range(6 if RES == "dot" else 0):
        u = RU0 + 3 * rho
        act = {f[1] % 6: 4 * i for i, f in enumerate(STEPS[u]) if f[0] == 2}
        used = []
        for e, g in enumerate(rgroups(rho)):
            tp, Q = divmod(g, 4)
            for tl in range(2):
                T = 2 * tp + tl
                m = 5
                while any(abs(m - x) < 2 for x in used) or (T in act and act[T] + Q - 4 < m < act[T] + Q + 5):
                    m += 1
                assert m < 21
                used.append(m)
                for r in range(4):
                    d = xreg(T, Q) + r
                    put(u, m + r // 2, "s_nop 0" if NOX or E("NOD") else f"v_dot2_f32_bf16 {v(d)}, {v(XR + 4 * e + 2 * tl + r // 2)}, "
                                       f"{s(cHi if r % 2 else cLo)}, {v(d)}")
        if not E("NOXW"):
            extra[(u, min(used))].insert(0, "s_waitcnt vmcnt(0)")
        if rho == 0 and XPF == 1:
            for tx in xpf(1, XR):
                put(u, max(used) + 1, tx)
        if rho < 5:
            for tx in xload(rho + 1):
                put(u, max(used) + 1, tx)

    def hook():
        a(f"s_cmp_lg_u32 {s(sMode)}, 0\ns_cbranch_scc1 L_park\nL_parked:")
        cold(f"L_park:\nv_mov_b32 {v(XR)}, {F_ISS}")
        spin(cold, "L_wi9", f"v_cmp_eq_u32 vcc, 9, {v(XR + 1)}", XR, XR + 1)
        park(cold, XR)
        cold(f"s_mov_b32 {s(sMode)}, 0\ns_nop 1\ns_branch L_parked")
        stamp(a, 1)

    pw, pg = [], []
    gap = [0]

    def emit(tx):
        i = Ins(tx)
        t = i.rd | i.wr
        while any(Ins(g).wr & t for _, g in pg):
            st(pg.pop(0)[1])
        while any({("v", slot(f) + r) for r in range(4)} & t for f, _ in pw):
            rd(*pw.pop(0))
        st(tx)

    for f in FRAGS[:NWS]:
        rd(f, 0)
        rd(f, 1)
    a(f"s_waitcnt vmcnt({13 if DIAG else 12})")
    for u in range(-1, 27):
        for k, pu in ((2, PU1), (3, PU2)):
            if u == pu and prio(k):
                a(f"s_cmp_lg_u32 {s(sTile)}, 0\ns_cbranch_scc1 L_pu{k}\nL_pb{k}:")
                cold(f"L_pu{k}:\n{prio(k)}\ns_branch L_pb{k}")
        base = []
        for i in range(8):
            if 0 <= u - 1 < 24 and i < 8 - nexp(u - 1):
                base += [t + (None,) for t in comb(u - 1, i)]
            if 0 <= u < 24 and i < 8 - nexp(u):
                lk = look(u, i)
                base += [lk[0] + (lk[2][1],), lk[1] + (lk[3][1],)]
        ex = weave((expo(u - 1)[1] if 0 <= u - 1 < 24 else []) + (expo(u)[0] if 0 <= u < 24 else []))
        V = []
        tb, te = sum(t[0] for t in base), sum(t[0] for t in ex)
        cb = ce = ib = ie = 0
        while ib < len(base) or ie < len(ex):
            if ie < len(ex) and (ib >= len(base) or ce * max(tb, 1) < cb * max(te, 1)):
                V.append(ex[ie][:2] + (None,))
                ce += ex[ie][0]
                ie += 1
            else:
                V.append(base[ib])
                cb += base[ib][0]
                ib += 1
        mfs = [(f, Q) for f in STEPS[u] for Q in range(4)]
        nm = len(mfs)
        lead = LEAD if 0 <= u < 4 else 0
        xc = [XCOST * sum(1 for t in extra.get((u, m), []) if "mfma" not in t) for m in range(nm)]
        tot = tb + te + sum(xc[lead:])
        nl = sum(1 for t in base if t[2]) + nm // 2
        k = cyc = 0
        for m, (f, Q) in enumerate(mfs):
            emit(mf(f, Q))
            if Q == 3 and FRAGS.index(f) + NWS < len(FRAGS):
                nf = FRAGS[FRAGS.index(f) + NWS]
                pw += [(nf, 0), (nf, 1)]
            quota = nl * (m + 1) // nm - nl * m // nm
            if len(pw) + len(pg) > BACKLOG:
                quota += 1
            for _ in range(max(quota, 1)):
                if pw:
                    rd(*pw.pop(0))
                elif pg and pg[0][0] <= gap[0]:
                    st(pg.pop(0)[1])
            for tx in extra.pop((u, m), []):
                emit(tx)
            if m >= lead:
                cyc += xc[m]
                last = m == nm - 1
                while k < len(V) and (last or cyc + V[k][0] / 2 <= tot * (m - lead + 1) / (nm - lead)):
                    emit(V[k][1])
                    if V[k][2]:
                        pg.append((gap[0] + 1, V[k][2]))
                    cyc += V[k][0]
                    k += 1
            if u >= 25:
                g = (f[1] - 66) * 4 + Q - 12
                if g >= 0 and (g // 4) % 2 == 0:
                    epi(st, 4 * (g // 8) + g % 4)
            gap[0] += 1
        if u == UH:
            hook()
    assert not extra and not st.out and not pw and not pg and zone_now == {1: 0, 2: 0}
    print("MLP nops", st.nops)
    stamp(a, 8)
    for oy in range(2):
        line_out(st, oy, 0, STF)
    for oy in range(2):
        epi(st, 8 + 2 * oy)
        epi(st, 9 + 2 * oy)
        line_out(st, oy, 1, STF)
        line_out(st, oy, 2, STF)
    if DIAG:
        stamp(a, 9)
        stamp_rt(a, 11)
        a(f"s_lshl_b32 s62, {s(sTile)}, 3\ns_xor_b32 s62, s62, 8\ns_add_u32 s62, s62, {s(sWave)}")
        stamp_flush(a, 14, 1, t0, t1)
    a(f"""
s_cmp_lg_u32 {s(sTile)}, 0
s_cbranch_scc1 {"L_pad" if E("PADT") else "L_end"}
s_mov_b32 {s(sTile)}, 1
s_mov_b32 {s(sTB)}, {s(sNB)}
s_mov_b32 {s(sTB + 1)}, {s(sNB + 1)}
s_mov_b32 {s(sNB)}, {BIG}
s_mov_b32 {s(sNB + 1)}, {BIG}
{prio(1)}
s_branch L_mtile
""")
    for ln in cold.lines:
        a(ln)
    a(f"""
{PAD}
L_end:
s_endpgm
""")


def epi(st, g):
    b = X + 8 * g
    for d in range(4):
        st(f"v_cvt_pk_bf16_f32 {v(b + d)}, {v(b + 2 * d)}, {v(b + 2 * d + 1)}")


def line_out(st, oy, ln, fl):
    ga, gb = [4 * (p % 3) + 2 * oy + p // 3 for p in (2 * ln, 2 * ln + 1)]
    A, B = X + 8 * ga, X + 8 * gb
    for d in range(4):
        st(f"v_mov_b32 {v(A + 4 + d)}, {v(A + d)}")
    for d in range(4):
        st(f"v_mov_b32_dpp {v(A + d)}, {v(B + d)} row_ror:8 row_mask:0xf bank_mask:0xc")
    for d in range(4):
        st(f"v_mov_b32_dpp {v(B + d)}, {v(A + 4 + d)} row_ror:8 row_mask:0xf bank_mask:0x3")
    for e, r in enumerate((A, B)):
        st(f"buffer_store_dwordx4 {v(r, 4)}, {v(XR + e)}, {s(sO, 4)}, {s(sTB + oy)} offen offset:{128 * ln}{fl}")


def descriptor(a, name, nv, ns):
    a(f"""
.p2align 6
.amdhsa_kernel {name}
  .amdhsa_next_free_vgpr {nv}
  .amdhsa_next_free_sgpr {ns}
  .amdhsa_accum_offset {(nv + 3) // 4 * 4}
  .amdhsa_group_segment_fixed_size 0
  .amdhsa_kernarg_size 64
  .amdhsa_user_sgpr_count 2
  .amdhsa_user_sgpr_kernarg_segment_ptr 1
  .amdhsa_system_sgpr_workgroup_id_x 1
  .amdhsa_float_denorm_mode_32 {E("DNM", "3")}
.end_amdhsa_kernel
""")


def main():
    here = os.path.dirname(os.path.abspath(__file__))
    ref = open(os.path.join(here, "..", NAME + ".s.ref")).read().split("\n")
    head = [l for l in ref if l.startswith(";") and "@launch" not in l]
    a = Asm()
    for l in head:
        a(l)
    a(f"; @launch grid=(256,1,1) block=(512,1,1) lds={LDS_BYTES}")
    a('.amdgcn_target "amdgcn-amd-amdhsa--gfx950"')
    a(".text")
    prologue(a)
    phase1(a)
    phase2(a)
    probs = check_hazards(a.lines)
    for p in probs:
        print("HAZARD:", p)
    a('.section .rodata,"a"')
    descriptor(a, NAME + "_kernel", 256, 100)
    out = sys.argv[1] if len(sys.argv) > 1 else os.path.join(here, "..", NAME + ".s")
    open(out, "w").write(a.text())
    print("wrote", out, "lines", len(a.lines), "hazards", len(probs), "lds", LDS_BYTES)


if __name__ == "__main__":
    main()
```

```python
import math
import struct
import sys
import os

import numpy as np

sys.path.insert(0, os.path.dirname(os.path.abspath(__file__)))
from asmlib import Asm, Ins, v, s, check_hazards

NAME = "standalone__modern_conv_block_replknet__vision"
E = os.environ.get
DIAG = E("DIAG", "0") == "1"
STF = E("STF", " sc1")
XLF, PKF, HLF, XFF = E("XLF", " sc1"), E("PKF", " sc1"), E("HLF", ""), E("XFF", " sc1")
EXPK = [int(c) for c in E("EXPK", "21")]
LEAD, XCOST, BACKLOG = int(E("LEAD", "2")), int(E("XCOST", "4")), int(E("BACKLOG", "4"))
PKN = E("PKN", "1") == "1"
PKS = E("PKS", "1") == "1"
PCV, PLN = int(E("PCV", "0")), int(E("PLN", "2"))
PM = [int(c) for c in E("PM", "110")]
STF2 = E("STF2")
DEFER = int(E("DEFER", "8"))
NPRE = 1
XPF, XPFF = int(E("XPF", "0")), E("XPFF", " sc1")
W0P = int(E("W0P", "0"))
RES, RPG = E("RES", "mfma"), int(E("RPG", "2"))
WCAP = int(E("WCAP", "14"))
FLIP, LBAR = int(E("FLIP", "1")), int(E("LBAR", "1"))
DYN = int(E("DYN", "1"))
SBAND = 12
TSC = 48
ILV = E("ILV", "0") == "1"
NLW = int(E("NLW", "1"))
WPF = int(E("WPF", "1"))
NOX, NOPARK, NOST = E("NOX"), E("NOPARK"), E("NOST")
UH = 2
RU0 = 7
PRA, PRB = int(E("PRA", "0")), int(E("PRB", "1"))
sStamp = 64


def f32(x):
    return "0x%08x" % struct.unpack("<I", struct.pack("<f", x))[0]


def h2(x):
    b = int(np.float16(x).view(np.uint16))
    return "0x%08x" % (b | (b << 16))


KAPPA = 2.0 * math.sqrt(2.0 / math.pi) * math.log2(math.e)
BETA = float(np.float16(KAPPA / (KAPPA * 0.044715) ** (1.0 / 3.0)))
SC = KAPPA / BETA
BIG = 0x40000000
NBIN = 28
SEXP = int(E("SEXP", "111"))

XBYTES = 512 * 512 * 96 * 2
ROWB = 512 * 192
WS_END = 256 * 8 * 12288
WS_STAMP = 0x2000000
TW = NBIN * 256
TABP, TABN = 0, 65536
E0 = TW
DZ = 65544
E1 = E0 + DZ + 19 * 3072
DZ1 = 5 * 3072 + 8
L_FLAG = E1 + DZ1 + 5 * 3072
L_JUNK = L_FLAG + 256
LDS_BYTES = L_FLAG + 512
assert L_FLAG % 16 == 0 and LDS_BYTES <= 163840 and E0 + 19 * 3072 <= 65536
OS = 584
RS = 7104
SS = 14336
RL = E0
RU = TABN + TW + 128
TL = RL + 3 * SS
TU = RU + 2 * SS + RS + 12 * OS
assert TL + 15360 <= 65536 and TU % 16 == 0 and TU + 15360 <= E1 and RL % 256 == 0 and RU % 256 == 128
R3L = (E1 + 255) // 256 * 256
R3U = R3L + 2 * RS
assert R3U % 256 == 128 and R3U + RS + 12 * OS <= L_FLAG
SLOTS = [int(c) for c in E("SLOTS", "120312012")]
assert SLOTS[6:] == [0, 1, 2] and len(set(SLOTS[:4])) == 4
PRED = [max([p for p in range(k) if SLOTS[p] == SLOTS[k]], default=k - 4) for k in range(9)]
LASTQ = [max(p for p in range(9) if SLOTS[p] == sl) for sl in (3, 0, 1, 2)]
F_STG = L_FLAG
F_DONE = L_FLAG + 40
F_TRDY = L_FLAG + 160
F_ISS = L_FLAG + 164
F_RDY = L_FLAG + 168
F_INIT = L_FLAG + 172
F_WRAW = L_FLAG + 176
F_WCNT = L_FLAG + 180
F_WMAX = L_FLAG + 184
WTMP = R3L if SLOTS[3] == 3 else RL + SLOTS[3] * SS


assert all(PRED[k] - (k - 4) in (0, 1) for k in range(9))


def kap(ch, q):
    return 32 * (q >> 4) + 16 * ch + (q & 15)


def coff(c):
    return (c // 8) * OS + (c % 8) * 72


STEPS = {u: [(tp, n) for i in range(3) for tp, n in ((1, 3 * (u + 1) + i), (2, 3 * (u - 3) + i)) if 0 <= n < 72]
         for u in range(-1, 27)}
FRAGS = [f for u in range(-1, 27) for f in STEPS[u]]
PIECES = []
for tp_, n_ in FRAGS:
    if (tp_, n_ // 6) not in PIECES:
        PIECES.append((tp_, n_ // 6))
assert len(PIECES) == 24 and len(FRAGS) == 144


def piece_addr(tp, c):
    i = PIECES.index((tp, c))
    if i < 5:
        return 1, E1 + 3072 * i, DZ1
    return 0, E0 + 3072 * (i - 5), DZ


SB = 48
TS = 192
DS = 212
TMP = 232
vL16, vT0, vT1 = 253, 254, 255
vFl, vTa, vCA, vLdA, vLdB, vSt, vCv, vK = 240, 241, 244, 247, 248, 249, 250, 251
H = 0
X = 48
G = 144
ACC = 176
WS = 224
NWS = int(E("NWS", "4"))
vID = 242
XR = 244
vXoff = 252
vA = {1: 254, 2: 255}

NE = 4
NSL = 5

sX, sO, sW = 4, 8, 12
sWave, sTile, sPair, sRdy = 16, 17, 18, 19
sSelLo, sSelHi = 20, 21
sX0, sY0 = 22, 23
sTB = 24
sA, sB, sC, sD = 26, 27, 28, 29
sR = 30
sNB = 36
sMode = 38
sRot = 39
sF = 34
sR2 = 35
sI1, sI2 = 40, 44
sDL, sDS = 48, 52
sEL, sER, sE1 = 80, 81, 82
sS = 98
sFix = 99
cNB, cS, cLo, cHi, cK = 84, 85, 86, 87, 83


def stamp(a, k):
    if DIAG:
        a(f"s_waitcnt lgkmcnt(0)\ns_memtime s[60:61]\ns_waitcnt lgkmcnt(0)\ns_mov_b32 {s(sStamp + k)}, s60")


def stamp_rt(a, k):
    if DIAG:
        a(f"s_waitcnt lgkmcnt(0)\ns_memrealtime s[60:61]\ns_waitcnt lgkmcnt(0)\ns_mov_b32 {s(sStamp + k)}, s60")


def stamp_flush(a, n, rec, vT0=vT0, vT1=vT1):
    if DIAG:
        a(f"s_mov_b32 {s(sStamp + 12)}, {s(sWave)}")
        a(f"v_mov_b32 {v(vT0)}, 0")
        for k in range(n):
            a(f"v_writelane_b32 {v(vT0)}, {s(sStamp + k)}, {k}")
        a(f"""s_lshl_b32 s60, s2, 4
s_add_u32 s60, s60, s62
s_lshl_b32 s60, s60, 7
s_add_u32 s60, s60, {WS_STAMP + 64 * rec}
v_lshrrev_b32 {v(vT1)}, 2, {v(vL16)}
s_mov_b32 exec_lo, 0xffff
s_mov_b32 exec_hi, 0
buffer_store_dword {v(vT0)}, {v(vT1)}, {s(sW, 4)}, s60 offen
s_mov_b64 exec, -1
s_nop 1""")


def srd(a, d, lo, nbytes):
    a(f"""s_mov_b32 {s(d)}, {s(lo)}
s_and_b32 {s(d + 1)}, {s(lo + 1)}, 0xffff
s_mov_b32 {s(d + 2)}, {nbytes}
s_mov_b32 {s(d + 3)}, 0x20000""")


def spin(a, label, cmp, t0=vT0, t1=vT1):
    a(f"""
s_mov_b32 {s(sD)}, 200000
{label}:
ds_read_b32 {v(t1)}, {v(t0)}
s_waitcnt lgkmcnt(0)
{cmp}
s_cmp_eq_u64 vcc, exec
s_cbranch_scc1 {label}_ok
s_sleep 2
s_sub_u32 {s(sD)}, {s(sD)}, 1
s_cmp_lg_u32 {s(sD)}, 0
s_cbranch_scc1 {label}
{label}_ok:
""")


def wait_flags(a, label, addr):
    a(f"v_add_u32 {v(vT0)}, {addr}, {v(vFl)}")
    spin(a, label, f"v_cmp_ne_u32 vcc, 0, {v(vT1)}")


def wait_count(a, label, addr, n, op="eq"):
    a(f"v_mov_b32 {v(vT0)}, {addr}")
    spin(a, label, f"v_cmp_{op}_u32 vcc, {n}, {v(vT1)}")


def count(a, addr):
    a(f"""
v_mov_b32 {v(vT0)}, {addr}
v_mov_b32 {v(vT1)}, 1
s_waitcnt lgkmcnt(0)
s_mov_b64 exec, 1
ds_add_u32 {v(vT0)}, {v(vT1)}
s_mov_b64 exec, -1
""")


def table(a, b, tag):
    a(f"""
s_add_u32 {s(sC)}, {s(sS)}, {1 << 23}
s_and_b32 {s(sA)}, {s(sWave)}, 1
s_lshl_b32 {s(sA)}, {s(sA)}, 6
v_lshrrev_b32 v{b + 1}, 4, {v(vL16)}
v_add_u32 v{b + 1}, {s(sA)}, v{b + 1}
v_lshlrev_b32 v{b + 2}, 2, v{b + 1}
v_add_u32 v{b + 3}, {TABN}, v{b + 2}
v_lshlrev_b32 v{b + 4}, 17, v{b + 1}              ; code 2i << 16
v_or_b32 v{b + 4}, 0x8000, v{b + 4}
v_cmp_gt_u32 vcc, 64, v{b + 1}
v_mov_b32 v{b + 5}, {s(sS)}
v_mov_b32 v{b + 6}, {s(sC)}
v_cndmask_b32 v{b + 5}, v{b + 5}, v{b + 6}, vcc
v_cndmask_b32 v{b + 6}, 0, v{b + 6}, vcc
v_add_u32 v{b + 4}, v{b + 4}, v{b + 5}
v_mov_b32 v{b + 5}, 0x1000000
v_mov_b32 v{b + 7}, 0x800000
v_cndmask_b32 v{b + 5}, v{b + 5}, v{b + 7}, vcc
s_mov_b32 {s(sA)}, {f32(KAPPA * 0.044715)}
v_mov_b32 v{b + 7}, {f32(KAPPA)}
s_mov_b32 {s(sB)}, {NBIN // 2}
L_tabl{tag}:
v_add_u32 v{b + 9}, 0x10000, v{b + 4}
v_sub_f32 v{b + 8}, v{b + 4}, v{b + 6}
v_sub_f32 v{b + 9}, v{b + 9}, v{b + 6}
v_mul_f32 v{b + 10}, v{b + 8}, v{b + 8}
v_mul_f32 v{b + 11}, v{b + 9}, v{b + 9}
v_fma_f32 v{b + 10}, v{b + 10}, {s(sA)}, v{b + 7}
v_fma_f32 v{b + 11}, v{b + 11}, {s(sA)}, v{b + 7}
v_mul_f32 v{b + 10}, v{b + 10}, v{b + 8}
v_mul_f32 v{b + 11}, v{b + 11}, v{b + 9}
v_exp_f32 v{b + 10}, -v{b + 10}
v_exp_f32 v{b + 11}, -v{b + 11}
s_nop 0
v_add_f32 v{b + 12}, 1.0, v{b + 10}
v_add_f32 v{b + 13}, 1.0, v{b + 11}
v_rcp_f32 v{b + 12}, v{b + 12}
v_rcp_f32 v{b + 13}, v{b + 13}
s_nop 0
v_mul_f32 v{b + 8}, v{b + 8}, v{b + 12}
v_mul_f32 v{b + 9}, v{b + 9}, v{b + 13}
v_mul_f32 v{b + 10}, -v{b + 8}, v{b + 10}
v_mul_f32 v{b + 11}, -v{b + 9}, v{b + 11}
v_cvt_pk_bf16_f32 v{b + 12}, v{b + 8}, v{b + 9}
v_cvt_pk_bf16_f32 v{b + 13}, v{b + 10}, v{b + 11}
ds_write_b32 v{b + 2}, v{b + 12}
ds_write_b32 v{b + 3}, v{b + 13}
v_add_u32 v{b + 4}, v{b + 4}, v{b + 5}
v_mov_b32 v{b + 5}, 0x1000000
v_mov_b32 v{b + 6}, 0
v_add_u32 v{b + 2}, 512, v{b + 2}
v_add_u32 v{b + 3}, 512, v{b + 3}
s_sub_u32 {s(sB)}, {s(sB)}, 1
s_cmp_lg_u32 {s(sB)}, 0
s_cbranch_scc1 L_tabl{tag}
v_mov_b32 v{b + 3}, {TABN}
ds_write_b16 v{b + 6}, v{b + 6}                   ; gelu(+-0) = 0
ds_write_b16 v{b + 3}, v{b + 6}
""")


def issue_loads(a):
    a(f"""
s_sub_u32 {s(sA)}, 8, {s(sPair)}
s_cmp_eq_u32 {s(sF)}, 0
s_cselect_b32 {s(sA)}, {s(sPair)}, {s(sA)}
s_lshl_b32 {s(sA)}, {s(sA)}, 2
s_add_u32 {s(sA)}, {s(sA)}, {s(sY0)}
s_lshl_b32 {s(sB)}, {s(sA)}, 9
s_add_u32 {s(sB)}, {s(sB)}, {s(sX0)}
s_mul_i32 {s(sB)}, {s(sB)}, 192
s_cmp_lt_u32 {s(sA)}, 2
s_cselect_b64 vcc, s[58:59], 0
v_mov_b32 {v(vLdB)}, {BIG}
s_sub_u32 {s(sC)}, {s(sB)}, {2 * ROWB}
v_add_u32 {v(vT1)}, {s(sC)}, {v(vLdA)}
v_cndmask_b32 {v(vLdB)}, {v(vT1)}, {v(vLdB)}, vcc
v_add_u32 {v(vT1)}, -384, {v(vLdB)}
""")
    for xq in range(9):
        for i in range(4):
            off = 768 * xq + 192 * i - 384
            if xq == 0 and i < 2:
                a(f"buffer_load_dwordx4 {v(SB + 4 * i, 4)}, {v(vT1)}, {s(sX, 4)}, {s(sEL)} offen offset:{192 * i}{XLF}")
                continue
            elif xq == 8 and i >= 2:
                so, im = sER, off - 3840
            elif off < 3840:
                so, im = "0", off
            else:
                so, im = sE1, off - 3840
            so = so if isinstance(so, str) else s(so)
            a(f"buffer_load_dwordx4 {v(SB + 16 * xq + 4 * i, 4)}, {v(vLdB)}, {s(sX, 4)}, {so} offen offset:{im}{XLF}")


CPF = E("CPF", "4")


def code_pf(a, tag, first, last, r=16):
    a(f"""
s_getpc_b64 s[96:97]
L_pc{tag}:
s_add_u32 s96, s96, {first}-L_pc{tag}
s_addc_u32 s97, s97, {"0" if tag in FWD else "-1"}
v_lshlrev_b32 v{r}, 3, {v(vL16)}
v_mov_b32 v{r + 3}, s97
""")
    for i in range(NPF[tag]):
        a(f"""
v_add_u32 v{r + 1}, {8192 * i}, v{r}
v_min_u32 v{r + 1}, {last}-{first}, v{r + 1}
v_add_co_u32 v{r + 4 + 2 * i}, vcc, s96, v{r + 1}
s_nop 1
v_addc_co_u32 v{r + 5 + 2 * i}, vcc, 0, v{r + 3}, vcc
global_load_dword v{r + 2}, v[{r + 4 + 2 * i}:{r + 5 + 2 * i}], off sc1
""")


FWD = {"a", "b"}
NPF = {"a": 3, "b": 5}


def dma_consts(a, r):
    a(f"""
v_lshrrev_b32 {v(r)}, 9, {v(vL16)}             ; l>>5
v_mul_u32_u24 {v(r + 1)}, 1536, {v(r)}
v_add_u32 {v(r + 1)}, {v(r + 1)}, {v(vL16)}
v_bfe_u32 {v(vT0)}, {v(vL16)}, 6, 3            ; (l>>2)&7
v_lshl_add_u32 {v(r)}, {v(r)}, 4, {v(vT0)}
v_mul_u32_u24 {v(r)}, 768, {v(r)}
v_and_b32 {v(vT0)}, 48, {v(vL16)}
v_add_u32 {v(r)}, {v(r)}, {v(vT0)}             ; w1
""")


def dma_piece(a, tp, c, r):
    _, ad, dz = piece_addr(tp, c)
    a(f"""
s_add_u32 {s(sA)}, {s(sRot)}, {c}
s_cmp_ge_u32 {s(sA)}, 12
s_cselect_b32 {s(sB)}, 12, 0
s_sub_u32 {s(sA)}, {s(sA)}, {s(sB)}
s_mul_i32 {s(sA)}, {s(sA)}, {64 if tp == 1 else 6144}
""")
    for par in range(2):
        a(f"s_mov_b32 m0, {ad + par * dz}")
        if tp == 1:
            for ks in range(3):
                a(f"s_add_u32 {s(sR + ks)}, {s(sA)}, {(32 * ks + 8 * par) * 768 - 1024 * ks}")
            for ks in range(3):
                a(f"buffer_load_dwordx4 {v(r)}, {s(sI1, 4)}, {s(sR + ks)} offen offset:{1024 * ks} lds")
        else:
            a(f"s_add_u32 {s(sR)}, {s(sA)}, {1536 * par}")
            a(f"s_add_u32 {s(sR + 1)}, {s(sA)}, {1536 * par + 1536}")
            a(f"buffer_load_dwordx4 {v(vL16)}, {s(sI2, 4)}, {s(sR)} offen lds")
            a(f"buffer_load_dwordx4 {v(r + 1)}, {s(sI2, 4)}, {s(sR)} offen offset:1024 lds")
            a(f"buffer_load_dwordx4 {v(vL16)}, {s(sI2, 4)}, {s(sR + 1)} offen offset:2048 lds")


XADJ = f"""v_lshrrev_b32 v3, 5, v0
v_mul_u32_u24 v3, {2 * ROWB}, v3
v_bfe_u32 v4, v0, 2, 3
v_mul_u32_u24 v4, 768, v4
v_add_u32 v3, v3, v4
v_and_b32 v4, 3, v0
v_lshl_add_u32 {v(vXoff)}, v4, 4, v3""" if E("XADJ") else ""


TOPPF = """; pull the kernel's code towards L2: one dword per 128-byte line, wave 1 takes the first 8 KB
s_getpc_b64 s[96:97]
L_pc0:
v_add_u32 v16, 448, v0
v_and_b32 v16, 511, v16
v_lshlrev_b32 v16, 7, v16
v_min_u32 v16, L_end-L_pc0, v16
v_mov_b32 v17, s97
v_add_co_u32 v16, vcc, s96, v16
s_nop 1
v_addc_co_u32 v17, vcc, 0, v17, vcc
global_load_dword v18, v[16:17], off sc1""" if CPF in ("3", "4") else ""


def prologue(a):
    k = NAME + "_kernel"
    a(f"""
.globl {k}
.p2align 8
.type {k},@function
{k}:
s_cmp_ge_u32 s2, 256
s_cbranch_scc1 L_end
s_load_dwordx8 s[64:71], s[0:1], 0
s_load_dwordx4 s[72:75], s[0:1], 32
{"s_load_dwordx2 s[76:77], s[0:1], 56" if DIAG else ""}
{"s_memrealtime s[92:93]" if E("PADT") or E("PAD1") else ""}
{TOPPF}
s_setprio 3
v_mov_b32 v14, v0                ; tid
v_lshrrev_b32 v1, 6, v0
v_and_b32 v0, 63, v0
v_mov_b32 v10, {BIG}
v_readfirstlane_b32 {s(sWave)}, v1
v_lshlrev_b32 v2, 2, v0
v_add_u32 v2, {L_FLAG}, v2
v_add_u32 v3, -10, v0
v_cmp_gt_u32 vcc, 10, v3
v_cmp_eq_u32 s[56:57], 36, v0
s_or_b64 vcc, vcc, s[56:57]
{f"v_cmp_eq_u32 s[56:57], {(F_ISS - L_FLAG) // 4}, v0" if LBAR else ""}
{"s_or_b64 vcc, vcc, s[56:57]" if LBAR else ""}
v_cndmask_b32 v3, 0, 1, vcc
v_lshlrev_b32 {v(vL16)}, 4, v0
v_min_u32 {v(vFl)}, 1, v0
ds_write_b32 v2, v3
v_lshlrev_b32 {v(vFl)}, 2, {v(vFl)}
s_and_b32 {s(sA)}, s2, 3
s_lshl_b32 {s(sA)}, {s(sA)}, 2
s_bfe_u32 {s(sB)}, s2, 0x20003
s_add_u32 {s(sA)}, {s(sA)}, {s(sB)}
s_lshl_b32 {s(sX0)}, {s(sA)}, 5
s_bfe_u32 {s(sA)}, s2, 0x10002
s_lshl_b32 {s(sA)}, {s(sA)}, 3
s_lshr_b32 {s(sB)}, s2, 5
s_add_u32 {s(sA)}, {s(sA)}, {s(sB)}
s_lshl_b32 {s(sY0)}, {s(sA)}, 5
s_and_b32 {s(sF)}, {s(sA)}, {FLIP}
s_mul_i32 {s(sR2)}, {s(sF)}, {2 * ROWB}
s_mul_i32 {s(sF)}, {s(sF)}, 3
; staging lane map: row = l/12, o = l%12 (lanes < 48)
v_mul_u32_u24 v12, 43, v0
v_lshrrev_b32 v12, 9, v12          ; row
v_mul_u32_u24 v13, 12, v12
v_sub_u32 v13, v0, v13             ; o
v_xor_b32 v5, {s(sF)}, v12
v_mul_u32_u24 v5, {ROWB}, v5
v_lshl_add_u32 v5, v13, 4, v5
v_cmp_gt_u32 vcc, 48, v0
v_cmp_gt_u32 s[58:59], 24, v0    ; rows 0,1
s_cmp_eq_u32 {s(sX0)}, 0
s_cselect_b32 {s(sEL)}, {BIG}, 0
v_cndmask_b32 {v(vLdA)}, v10, v5, vcc
s_mov_b32 {s(sE1)}, 3840
s_cmp_eq_u32 {s(sX0)}, 480
s_cselect_b32 {s(sER)}, {BIG}, {s(sE1)}
s_mov_b32 {s(sPair)}, {s(sWave)}
v_add_u32 v15, -256, v14             ; waves 4..7: 0..255
""")
    if CPF in ("1", "2"):
        a(f"s_cmp_lg_u32 {s(sWave)}, 7\ns_cbranch_scc1 L_nocpa")
        code_pf(a, "a", "L_pb", "L_mtile")
        a("L_nocpa:")
    a("s_waitcnt lgkmcnt(0)" + ("" if LBAR else "\ns_barrier"))
    srd(a, sX, 64, XBYTES)
    srd(a, sDL, 66, 9 * 96 * 2)
    srd(a, sDS, 68, 25 * 96 * 2)
    srd(a, sI1, 70, 96 * 384 * 2)
    srd(a, sI2, 72, 96 * 384 * 2)
    srd(a, sO, 74, XBYTES)
    if DIAG:
        srd(a, sW, 76, WS_STAMP + 0x100000)
    if E("PADG"):
        a("""s_load_dwordx2 s[88:89], s[0:1], 48
s_waitcnt lgkmcnt(0)
s_and_b32 s89, s89, 0xffff
s_mov_b32 s90, 256
s_mov_b32 s91, 0x20000
s_not_b32 s94, s92
v_mov_b32 v20, s94
v_mov_b32 v21, 0
s_cmp_lg_u32 s16, 7
s_cbranch_scc1 L_noat
s_mov_b64 exec, 1
buffer_atomic_umax v20, v21, s[88:91], 0 offen
s_mov_b64 exec, -1
L_noat:""")
    stamp(a, 0)
    stamp_rt(a, 10)
    a(f"""
s_cmp_lg_u32 {s(sWave)}, 0
s_cbranch_scc1 {"L_pb0" if LBAR else "L_pb"}
s_mov_b32 m0, {WTMP}
s_mov_b32 {s(sA)}, 4096
""")
    for i in range(4):
        a(f"buffer_load_dwordx4 {v(vL16)}, {s(sDS, 4)}, 0 offen offset:{1024 * i} lds")
    a(f"s_mov_b32 m0, {WTMP + 4096}\ns_nop 0\nbuffer_load_dwordx4 {v(vL16)}, {s(sDS, 4)}, {s(sA)} offen lds")
    a(f"s_mov_b32 m0, {WTMP + 5120}\ns_nop 0")
    for i in range(2):
        a(f"buffer_load_dwordx4 {v(vL16)}, {s(sDL, 4)}, 0 offen offset:{1024 * i} lds")
    stamp(a, 9)
    issue_loads(a)
    a(f"""
{"s_barrier" if LBAR else ""}
v_mov_b32 {v(vT0)}, {F_ISS}
v_mov_b32 {v(vT1)}, 1
{"" if LBAR else f"ds_write_b32 {v(vT0)}, {v(vT1)}"}
s_waitcnt vmcnt(36)
ds_write_b32 {v(vT0)}, {v(vT1)} offset:{F_WRAW - F_ISS}
""")
    stamp(a, 11)
    a(f"""
L_pb0:
L_pb:
s_mov_b32 {s(sS)}, {SEXP << 23}
s_mov_b32 {s(sSelLo)}, 0x05040100
s_mov_b32 {s(sSelHi)}, 0x07060302
s_lshr_b32 {s(sA)}, s2, 3
s_mul_i32 {s(sB)}, {s(sA)}, 43
s_lshr_b32 {s(sB)}, {s(sB)}, 9
s_mul_i32 {s(sB)}, {s(sB)}, 12
s_sub_u32 {s(sRot)}, {s(sA)}, {s(sB)}       ; (wg>>3) % 12
v_bfe_u32 v1, v0, 3, 1
v_lshrrev_b32 v2, 5, v0          ; ch'
v_bfe_u32 v3, v0, 4, 1           ; dyp
v_bfe_u32 v4, v0, 2, 1           ; oy
v_sub_u32 v3, v3, v4             ; dyp-oy
v_and_b32 v4, 3, v0
v_mul_u32_u24 v5, {TU - TL}, v1
v_lshl_add_u32 v5, v4, 4, v5
v_add_u32 v5, {TL}, v5
v_cmp_eq_u32 s[56:57], v1, v2
v_add_u32 v6, 0, v3
v_cmp_gt_u32 vcc, 5, v6
v_lshl_add_u32 v7, v6, 6, v5
s_and_b64 vcc, vcc, s[56:57]
v_cndmask_b32 {v(vTa)}, v10, v7, vcc
v_add_u32 v6, 2, v3
v_lshl_add_u32 v7, v6, 6, v5
v_cndmask_b32 {v(vTa + 1)}, v10, v7, s[56:57]
v_add_u32 v6, 4, v3
v_cmp_gt_u32 vcc, 5, v6
v_lshl_add_u32 v7, v6, 6, v5
s_and_b64 vcc, vcc, s[56:57]
v_cndmask_b32 {v(vTa + 2)}, v10, v7, vcc
v_mul_u32_u24 v2, {2 * OS}, v2
v_and_b32 v3, 7, v0
v_lshl_add_u32 {v(vCv)}, v3, 3, v2
v_mul_u32_u24 v3, 768, v3
v_mul_u32_u24 v4, {2 * ROWB}, v1
v_xor_b32 v4, {s(sR2)}, v4
v_add_u32 v3, v3, v4
v_lshrrev_b32 v4, 4, v0
v_lshl_add_u32 {v(vXoff)}, v4, 4, v3
{XADJ}
v_bfe_u32 v3, v0, 4, 1
v_mul_u32_u24 v3, {RS}, v3
v_add_u32 {v(vCv)}, {v(vCv)}, v3
v_cmp_eq_u32 s[56:57], 1, v1
v_and_b32 v5, 1, v12
v_mul_u32_u24 v5, {RS}, v5
v_mul_u32_u24 v6, {OS}, v13
v_add_u32 {v(vSt)}, v5, v6
s_sub_u32 {s(sA)}, 7, {s(sWave)}
s_cmp_eq_u32 {s(sF)}, 0
s_cselect_b32 {s(sA)}, {s(sWave)}, {s(sA)}
s_cselect_b32 {s(sB)}, 0, {ROWB}
s_cselect_b32 {s(sC)}, {ROWB}, 0
s_lshl_b32 {s(sA)}, {s(sA)}, 2
s_add_u32 {s(sA)}, {s(sA)}, {s(sY0)}
s_lshl_b32 {s(sA)}, {s(sA)}, 9
s_add_u32 {s(sA)}, {s(sA)}, {s(sX0)}
s_mul_i32 {s(sA)}, {s(sA)}, 192
s_add_u32 {s(sNB)}, {s(sA)}, {s(sB)}
s_add_u32 {s(sNB + 1)}, {s(sA)}, {s(sC)}
s_add_u32 {s(sTB)}, {s(sNB)}, 384
s_add_u32 {s(sTB + 1)}, {s(sNB + 1)}, 384
s_cmp_lt_u32 {s(sWave)}, {NPRE}
s_cbranch_scc1 L_perm
{"s_barrier" if LBAR else ""}
s_cmp_lt_u32 {s(sWave)}, 4
s_cbranch_scc1 L_xload
""")
    wait_count(a, "L_wraw", F_WRAW, 1)
    for r in range(2):
        b = 128 + 16 * r
        a(f"""
v_add_u32 v1, {256 * r}, v15         ; task
v_mul_u32_u24 v{b}, 683, v1
v_lshrrev_b32 v{b}, 16, v{b}         ; dy
v_mul_u32_u24 v{b + 1}, 96, v{b}
v_sub_u32 v{b + 1}, v1, v{b + 1}     ; c
v_mul_u32_u24 v2, 960, v{b}
v_lshl_add_u32 v2, v{b + 1}, 1, v2
v_add_u32 v2, {WTMP}, v2
v_add_u32 v1, -1, v{b}
v_mul_u32_u24 v3, 576, v1
v_lshl_add_u32 v3, v{b + 1}, 1, v3
v_add_u32 v3, {WTMP + 5120}, v3
v_cmp_gt_u32 vcc, 3, v1
s_nop 1
v_cndmask_b32 v3, v10, v3, vcc
""")
        for jx in range(5):
            a(f"ds_read_u16 v{b + 4 + jx}, v2 offset:{192 * jx}")
        for jx in range(3):
            a(f"ds_read_u16 v{b + 9 + jx}, v3 offset:{192 * jx}")
    a("s_waitcnt lgkmcnt(0)")
    for r in range(2):
        b = 128 + 16 * r
        w = b + 4
        o = 160 + 16 * r
        for jx in range(8):
            a(f"v_lshlrev_b32 v{w + jx}, 16, v{w + jx}")
        a(f"""
v_add_f32 v{w + 1}, v{w + 1}, v{w + 5}
v_add_f32 v{w + 2}, v{w + 2}, v{w + 6}
v_add_f32 v{w + 3}, v{w + 3}, v{w + 7}
v_mul_f32 v{w}, {f32(2.0 ** -TSC)}, v{w}
v_mul_f32 v{w + 1}, {f32(2.0 ** -TSC)}, v{w + 1}
v_mul_f32 v{w + 2}, {f32(2.0 ** -TSC)}, v{w + 2}
v_mul_f32 v{w + 3}, {f32(2.0 ** -TSC)}, v{w + 3}
v_mul_f32 v{w + 4}, {f32(2.0 ** -TSC)}, v{w + 4}
v_mov_b32 v1, 0
v_cvt_pk_bf16_f32 v{o}, v{w}, v{w + 1}
v_cvt_pk_bf16_f32 v{o + 1}, v{w + 2}, v{w + 3}
v_cvt_pk_bf16_f32 v{o + 2}, v{w + 4}, v1
v_mov_b32 v{o + 3}, 0
v_cvt_pk_bf16_f32 v{o + 4}, v1, v{w}
v_cvt_pk_bf16_f32 v{o + 5}, v{w + 1}, v{w + 2}
v_cvt_pk_bf16_f32 v{o + 6}, v{w + 3}, v{w + 4}
v_mov_b32 v{o + 7}, 0
v_mov_b32 v{o + 8}, 0
v_mov_b32 v{o + 9}, v{o}
v_mov_b32 v{o + 10}, v{o + 1}
v_mov_b32 v{o + 11}, v{o + 2}
v_mov_b32 v{o + 12}, 0
v_mov_b32 v{o + 13}, v{o + 4}
v_mov_b32 v{o + 14}, v{o + 5}
v_mov_b32 v{o + 15}, v{o + 6}
v_lshrrev_b32 v2, 5, v{b + 1}
v_and_b32 v3, 15, v{b + 1}
v_lshl_add_u32 v2, v2, 4, v3
v_mul_u32_u24 v2, 320, v2
v_bfe_u32 v3, v{b + 1}, 4, 1
v_mul_u32_u24 v3, {TU - TL}, v3
v_add_u32 v2, v2, v3
v_sub_u32 v3, 4, v{b}
s_cmp_eq_u32 {s(sF)}, 0
s_cselect_b64 vcc, -1, 0
v_cndmask_b32 v3, v3, v{b}, vcc
v_lshl_add_u32 v2, v3, 6, v2
v_add_u32 v2, {TL}, v2
v_cmp_gt_u32 vcc, 5, v{b}
s_nop 1
v_cndmask_b32 v2, v10, v2, vcc
ds_write_b128 v2, v[{o}:{o + 3}]
ds_write_b128 v2, v[{o + 4}:{o + 7}] offset:16
ds_write_b128 v2, v[{o + 8}:{o + 11}] offset:32
ds_write_b128 v2, v[{o + 12}:{o + 15}] offset:48
""")
    count(a, F_TRDY)
    a(f"s_cmp_lt_u32 {s(sWave)}, 6\ns_cbranch_scc1 L_xload")
    table(a, 0, "a")
    count(a, F_INIT)
    a("L_xload:")
    stamp(a, 13)
    wait_count(a, "L_wiss", F_ISS, s(sPair))
    stamp(a, 9)
    if CPF == "4":
        a(f"s_cmp_lg_u32 {s(sPair)}, 5\ns_cbranch_scc1 L_nocpb")
        NPF["b"] = 2
        code_pf(a, "b", "L_loader", "L_end", 20)
        a("L_nocpb:")
    if CPF == "2":
        a(f"s_cmp_eq_u32 {s(sPair)}, 8\ns_cbranch_scc1 L_nocpb\ns_bitcmp1_b32 {s(sPair)}, 0\ns_cbranch_scc1 L_nocpb")
        code_pf(a, "b", "L_wt", "L_end")
        a("L_nocpb:")
    issue_loads(a)
    a(f"""
s_add_u32 {s(sA)}, {s(sPair)}, 1
v_mov_b32 {v(vT1)}, {s(sA)}
ds_write_b32 {v(vT0)}, {v(vT1)}
""")
    stamp(a, 11)
    a("L_perm:")


def slot_of(a, dst, src):
    a(f"""
s_lshl_b32 {s(dst)}, {src}, 1
s_lshr_b32 {s(dst)}, {sum(x << (2 * i) for i, x in enumerate(SLOTS))}, {s(dst)}
s_and_b32 {s(dst)}, {s(dst)}, 3
s_cmp_eq_u32 {s(dst)}, 3
s_mul_i32 {s(dst)}, {s(dst)}, {SS}
s_cselect_b32 {s(dst + 1)}, {R3U - RU}, {s(dst)}
s_cselect_b32 {s(dst)}, {R3L - RL}, {s(dst)}
s_add_u32 {s(dst)}, {s(dst)}, {RL}
s_add_u32 {s(dst + 1)}, {s(dst + 1)}, {RU}
""")


def goff(g, base):
    tp, Q = divmod(g, 4)
    return f"{s(base + (Q >> 1))} offen offset:{192 * (Q & 1) + 64 * tp}"


def poff(t):
    return [f"v_lshrrev_b32 {v(t)}, 7, {v(vL16)}",
            f"v_mul_u32_u24 {v(t)}, 640, {v(t)}",
            f"v_add_u32 {v(t)}, {v(t)}, {v(vL16)}",
            f"v_add_u32 {v(t + 1)}, {2 * ROWB}, {v(t)}"]


def poffn(t):
    return [f"v_bfe_u32 {v(t)}, {v(vL16)}, 4, 3",
            f"v_mul_u32_u24 {v(t)}, 768, {v(t)}",
            f"v_bfe_u32 {v(t + 1)}, {v(vL16)}, 7, 1",
            f"v_lshl_add_u32 {v(t)}, {v(t + 1)}, 6, {v(t)}",
            f"v_lshrrev_b32 {v(t + 1)}, 8, {v(vL16)}",
            f"v_lshl_add_u32 {v(t)}, {v(t + 1)}, 4, {v(t)}",
            f"v_add_u32 {v(t)}, {s(sR2)}, {v(t)}",
            f"v_xor_b32 {v(t + 1)}, {2 * ROWB}, {v(t)}"]


def paddr(g, t):
    r, ln = divmod(g, 3)
    return f"{v(t + (r >> 1))}, {s(sO, 4)}, {s(sNB + (r & 1))} offen offset:{128 * ln}"


def park(a, t):
    for tx in poff(t):
        a(tx)
    for g in range(0 if NOPARK else 12):
        a(f"buffer_store_dwordx4 {v(X + 4 * g, 4)}, {paddr(g, t)}{PKF}")


def phase1(a):
    def oreg(rnd):
        return SB + (144 if rnd == 0 else 16 * (rnd - 1))

    def perms(rnd):
        a(f"s_waitcnt vmcnt({32 - 4 * rnd})")
        L = SB + 16 * rnd
        O = oreg(rnd)
        for d in range(4):
            a(f"v_perm_b32 {v(O + 4 * d)}, {v(L + 4 + d)}, {v(L + d)}, {s(sSelLo)}")
            a(f"v_perm_b32 {v(O + 4 * d + 1)}, {v(L + 12 + d)}, {v(L + 8 + d)}, {s(sSelLo)}")
            a(f"v_perm_b32 {v(O + 4 * d + 2)}, {v(L + 4 + d)}, {v(L + d)}, {s(sSelHi)}")
            a(f"v_perm_b32 {v(O + 4 * d + 3)}, {v(L + 12 + d)}, {v(L + 8 + d)}, {s(sSelHi)}")
            if ILV:
                writes(rnd, d)

    def writes(rnd, d):
        O = oreg(rnd)
        a(f"ds_write_b64 {v(vT0)}, {v(O + 4 * d, 2)} offset:{8 * rnd + 2 * d * 72}")
        a(f"ds_write_b64 {v(vT0)}, {v(O + 4 * d + 2, 2)} offset:{8 * rnd + (2 * d + 1) * 72}")

    if not ILV:
        a("s_mov_b32 exec_hi, 0x0000ffff")
        for rnd in range(9):
            perms(rnd)
        a("s_mov_b32 exec_hi, -1")
    stamp(a, 1)
    a(f"s_cmp_lg_u32 {s(sPair)}, 3\ns_cbranch_scc1 L_wt3_ok")
    wait_count(a, "L_wt3", F_TRDY, 4)
    a(f"""
s_lshr_b32 {s(sA)}, {sum((PRED[k] - (k - 4)) << k for k in range(9))}, {s(sPair)}
s_and_b32 {s(sA)}, {s(sA)}, 1
s_add_u32 {s(sA)}, {s(sA)}, {s(sPair)}
s_lshl_b32 {s(sA)}, {s(sA)}, 3
s_add_u32 {s(sA)}, {s(sA)}, {F_DONE + 4}
""")
    wait_flags(a, "L_wslot", s(sA))
    stamp(a, 2)
    slot_of(a, sR, s(sPair))
    a(f"""
v_add_u32 {v(vT0)}, {s(sR)}, {v(vSt)}
v_add_u32 {v(vT1)}, {s(sR + 1)}, {v(vSt)}
v_cndmask_b32 {v(vT0)}, {v(vT1)}, {v(vT0)}, s[58:59]
s_mov_b32 exec_hi, 0x0000ffff
""")
    for rnd in range(9):
        if ILV:
            perms(rnd)
        else:
            for d in range(4):
                writes(rnd, d)
    a(f"""
s_mov_b32 exec_hi, -1
s_lshl_b32 {s(sA)}, {s(sPair)}, 2
s_add_u32 {s(sA)}, {s(sA)}, {F_STG}
v_mov_b32 {v(vT0)}, {s(sA)}
v_mov_b32 {v(vT1)}, 1
s_waitcnt lgkmcnt(0)
ds_write_b32 {v(vT0)}, {v(vT1)}
s_cmp_eq_u32 {s(sPair)}, 8
s_cbranch_scc1 L_loader
""")
    stamp(a, 4)
    if W0P:
        a(f"s_cmp_lt_u32 {s(sWave)}, {W0P}\ns_cbranch_scc1 L_hp1")
    a(f"s_setprio {PCV}\nL_hp1:")
    a(f"s_add_u32 {s(sB)}, {s(sPair)}, 1")
    slot_of(a, sR + 2, s(sB))
    for z in range(4):
        a(f"v_add_u32 {v(TMP + z)}, {s(sR + z)}, {v(vCv)}")
    for z in range(3):
        a(f"v_cndmask_b32 {v(vCA + z)}, {v(TMP + z)}, {v(TMP + z + 1)}, s[56:57]")
    wait_count(a, "L_wt", F_TRDY, 4)
    stamp(a, 5)

    NST = 144

    def cread(i):
        z, q = divmod(i, 48)
        r = DS + 4 * (i % NSL)
        return (f"ds_read_b128 {v(TS + 4 * (i % NSL), 4)}, {v(vTa + z)} offset:{320 * q}\n"
                f"ds_read_b64 {v(r, 2)}, {v(vCA + z)} offset:{coff(kap(0, q))}\n"
                f"ds_read_b64 {v(r + 2, 2)}, {v(vCA + z)} offset:{coff(kap(0, q)) + 8}")

    def stats_pk(q):
        out = []
        for r in (0, 2):
            acc = 4 * q + r
            if q == 0:
                out.append(f"v_pk_add_f32 {v(TMP + r, 2)}, {v(acc, 2)}, {v(acc + 4, 2)}")
                out.append(f"v_pk_mul_f32 {v(TMP + 4 + r, 2)}, {v(acc, 2)}, {v(acc, 2)}")
            else:
                if q > 1:
                    out.append(f"v_pk_add_f32 {v(TMP + r, 2)}, {v(TMP + r, 2)}, {v(acc, 2)}")
                out.append(f"v_pk_fma_f32 {v(TMP + 4 + r, 2)}, {v(acc, 2)}, {v(acc, 2)}, {v(TMP + 4 + r, 2)}")
        return out

    def stats(q):
        out = []
        for r in range(4):
            acc = 4 * q + r
            if q == 0:
                out.append(f"v_mov_b32 {v(TMP + r)}, {v(acc)}")
                out.append(f"v_mul_f32 {v(TMP + 4 + r)}, {v(acc)}, {v(acc)}")
            else:
                out.append(f"v_add_f32 {v(TMP + r)}, {v(TMP + r)}, {v(acc)}")
                out.append(f"v_fmac_f32 {v(TMP + 4 + r)}, {v(acc)}, {v(acc)}")
        return out

    SLAG = 3
    for i in range(NE + 1):
        a(cread(i))
    for i in range(NST):
        z, q = divmod(i, 48)
        left = min(i + NE + 1, NST) - (i + 1)
        if i % 2 == 0:
            a(f"s_waitcnt lgkmcnt({3 * max(left - 1, 0)})")
        if i == 96:
            a(f"ds_write_b32 {v(vT0)}, {v(vT1)}")
        c = "0" if z == 0 else v(4 * q, 4)
        a(f"v_mfma_f32_16x16x32_bf16 {v(4 * q, 4)}, {v(TS + 4 * (i % NSL), 4)}, {v(DS + 4 * (i % NSL), 4)}, {c}")
        if i + NE + 1 < NST:
            if i == 97:
                a("s_waitcnt lgkmcnt(12)")
            if i == 43:
                wait_flags(a, "L_wrdy", s(sA))
                stamp(a, 3)
                a(f"""
s_lshl_b32 {s(sA)}, {s(sWave)}, 3
s_add_u32 {s(sA)}, {s(sA)}, {F_DONE + 40}
v_mov_b32 {v(vT0)}, {s(sA)}
v_mov_b32 {v(vT1)}, 1
""")
            a(cread(i + NE + 1))
        if i == NST - 2:
            a(f"ds_write_b32 {v(vT0)}, {v(vT1)} offset:4")
        if not PKS and i >= 96 + SLAG:
            for tx in stats(i - 96 - SLAG):
                a(tx)
    if W0P:
        a(f"s_cmp_lt_u32 {s(sWave)}, {W0P}\ns_cbranch_scc1 L_hp2")
    a(f"s_setprio {PLN}\nL_hp2:")
    if WPF >= 0:
        a(f"""
s_cmp_lg_u32 {s(sWave)}, {WPF}
s_cbranch_scc1 L_nopf
s_lshr_b32 {s(sA)}, s2, 3
s_mul_i32 {s(sA)}, {s(sA)}, 2304
v_lshlrev_b32 v230, 2, {v(vL16)}
buffer_load_dword v231, v230, {s(sI1, 4)}, {s(sA)} offen
buffer_load_dword v231, v230, {s(sI2, 4)}, {s(sA)} offen
L_nopf:
""")
    stamp(a, 8)
    if PKS:
        for q in range(48):
            for tx in (stats(q) if E("STP") else stats_pk(q)):
                a(tx)
    else:
        for q in range(48 - SLAG, 48):
            for tx in stats(q):
                a(tx)
    stamp(a, 6)
    s1, s2 = TMP, TMP + 4
    a(f"""
s_nop 1
v_permlane32_swap_b32 {v(s1)}, {v(s1 + 1)}
v_permlane32_swap_b32 {v(s1 + 2)}, {v(s1 + 3)}
v_permlane32_swap_b32 {v(s2)}, {v(s2 + 1)}
v_permlane32_swap_b32 {v(s2 + 2)}, {v(s2 + 3)}
""")
    for e in (0, 2):
        m, w_ = s1 + e, s2 + e
        a(f"""
v_add_f32 {v(m)}, {v(m)}, {v(m + 1)}
v_add_f32 {v(w_)}, {v(w_)}, {v(w_ + 1)}
v_mul_f32 {v(m)}, {f32(1.0 / 96)}, {v(m)}
v_mul_f32 {v(w_)}, {f32(1.0 / 96)}, {v(w_)}
v_fma_f32 {v(w_)}, -{v(m)}, {v(m)}, {v(w_)}
v_max_f32 {v(w_)}, 0, {v(w_)}
v_add_f32 {v(w_)}, {f32(1e-5 * 2.0 ** (-2 * TSC))}, {v(w_)}
v_rsq_f32 {v(w_)}, {v(w_)}
s_nop 0
v_mul_f32 {v(m)}, {v(m)}, {v(w_)}
v_mul_f32 {v(w_)}, {f32(2.0 ** -SEXP)}, {v(w_)}
v_mul_f32 {v(m)}, {f32(-2.0 ** -SEXP)}, {v(m)}
v_mov_b32 {v(w_ + 1)}, {v(w_)}
v_mov_b32 {v(m + 1)}, {v(m)}
""")
    a(f"""
s_nop 1
v_permlane32_swap_b32 {v(s1)}, {v(s1 + 1)}
v_permlane32_swap_b32 {v(s1 + 2)}, {v(s1 + 3)}
v_permlane32_swap_b32 {v(s2)}, {v(s2 + 1)}
v_permlane32_swap_b32 {v(s2 + 2)}, {v(s2 + 3)}
""")
    for ks in range(3):
        for q in range(16 * ks, 16 * ks + 16):
            if PKN:
                for r in (0, 2):
                    acc = 4 * q + r
                    a(f"v_pk_fma_f32 {v(acc, 2)}, {v(acc, 2)}, {v(s2 + r, 2)}, {v(s1 + r, 2)}")
            else:
                for r in range(4):
                    acc = 4 * q + r
                    a(f"v_fma_f32 {v(acc)}, {v(acc)}, {v(s2 + r)}, {v(s1 + r)}")
        ta = (192, X, X + 16)[ks]
        tb = 208 if ks == 0 else 16 * ks
        for r in range(4):
            base = ta if r < 2 else tb
            for sel in range(2):
                for d in range(4):
                    qp = 8 * ks + 4 * sel + d
                    a(f"v_cvt_pk_bf16_f32 {v(base + 8 * sel + 4 * (r & 1) + d)}, {v(8 * qp + r)}, {v(8 * qp + 4 + r)}")
        a("s_nop 0")
        for base in (ta, tb):
            for i in range(8):
                a(f"v_permlane16_swap_b32 {v(base + i)}, {v(base + 8 + i)}")
        if ks == 0:
            for i in range(16):
                a(f"v_mov_b32 {v(i)}, {v(208 + i)}")
        if ks == 1:
            for i in range(16):
                a(f"v_mov_b32 {v(X + 32 + i)}, {v(192 + i)}")
    stamp(a, 7)
    if DIAG:
        a(f"s_mov_b32 s62, {s(sWave)}")
    stamp_flush(a, 14, 0)
    a(f"""
s_mov_b32 {s(sPair)}, 8
s_mov_b32 {s(sMode)}, 1
s_sub_u32 {s(sA)}, {s(sWave)}, 1
s_cmp_lt_u32 {s(sA)}, {DEFER - 1}
s_cbranch_scc1 L_p2
s_mov_b32 {s(sMode)}, 0
""")
    park(a, TMP)
    a(f"""
s_cmp_lg_u32 {s(sWave)}, 0
s_cbranch_scc1 L_p2
s_setprio 3
s_branch L_xload
L_loader:
""")
    load_groups(a, tuple(range(NLW, 4)), 60)


GROUPS = [(0, 5), (5, 4), (9, 5), (14, 10)]


def load_groups(a, gs, r):
    scan = DYN and 3 in gs
    m, z, D = (r + 16, r + 17), r + 18, 96

    def scan_group(gi):
        n0, n = GROUPS[gi]
        st = Stream(a)
        regs = []
        for tp, c in PIECES[n0:n0 + n]:
            if tp == 1:
                zone, ad, dz = piece_addr(tp, c)
                for par in range(2):
                    for i in range(6):
                        ar, off = (z + 2, ad - E1 + par * dz) if zone else (z + par, ad)
                        regs.append((D + 2 * len(regs), f"{v(ar)} offset:{off + 512 * i}"))
        lag = 10
        for k in range(len(regs) + lag):
            if k < len(regs):
                st(f"ds_read_b64 {v(regs[k][0], 2)}, {regs[k][1]}")
            if k >= lag:
                for e in range(2):
                    x = v(regs[k - lag][0] + e)
                    st(f"v_pk_maximum3_f16 {v(m[e])}, {v(m[e])}, {x}, {x} neg_lo:[0,0,1] neg_hi:[0,0,1]")

    dma_consts(a, r)
    if scan:
        a(f"""
v_mov_b32 {v(m[0])}, 0
v_mov_b32 {v(m[1])}, 0
v_lshrrev_b32 {v(z)}, 1, {v(vL16)}
v_add_u32 {v(z + 1)}, {DZ}, {v(z)}
v_add_u32 {v(z + 2)}, {E1}, {v(z)}
""")
    for gi in gs:
        n0, n = GROUPS[gi]
        wait_flags(a, f"L_wg{gi}", F_DONE + 4 + 8 * (LASTQ[gi] + 4))
        for tp, c in PIECES[n0:n0 + n]:
            dma_piece(a, tp, c, r)
        if gi == gs[0] and gi:
            wait_count(a, f"L_wo{gi}", F_RDY, n0)
        if scan:
            for gj in (range(gi) if gi == gs[0] else [gi - 1]):
                scan_group(gj)
        a(f"v_mov_b32 {v(vT0)}, {F_RDY}")
        for i in range(n):
            a(f"v_mov_b32 {v(r + 4 + i)}, {n0 + i + 1}")
            a(f"s_waitcnt vmcnt({6 * (n - 1 - i)})")
            a(f"ds_write_b32 {v(vT0)}, {v(r + 4 + i)}")
    if scan:
        a("s_waitcnt lgkmcnt(0)")
        scan_group(3)
        a(f"""
v_and_b32 {v(m[0])}, 0x7fff7fff, {v(m[0])}
v_and_b32 {v(m[1])}, 0x7fff7fff, {v(m[1])}
v_pk_max_u16 {v(m[0])}, {v(m[0])}, {v(m[1])}
s_nop 0
v_lshrrev_b32 {v(m[1])}, 16, {v(m[0])}
v_and_b32 {v(m[0])}, 0xffff, {v(m[0])}
v_max_u32 {v(m[0])}, {v(m[0])}, {v(m[1])}
ds_max_u32 {v(vT0)}, {v(m[0])} offset:{F_WMAX - F_RDY}
ds_read_b32 {v(vT1)}, {v(vT0)} offset:{F_WMAX - F_RDY}
s_waitcnt lgkmcnt(0)
v_readfirstlane_b32 {s(sA)}, {v(vT1)}
s_lshr_b32 {s(sA)}, {s(sA)}, 7
s_max_u32 {s(sA)}, {s(sA)}, {NBIN - 8 + 1}
s_min_u32 {s(sA)}, {s(sA)}, {NBIN - 8 + 120}
s_sub_u32 {s(sA)}, {s(sA)}, {NBIN - 8}
s_sub_u32 {s(sB)}, {SEXP}, {s(sA)}
s_cmp_le_u32 {s(sB)}, {SBAND}
s_cselect_b32 {s(sA)}, {SEXP}, {s(sA)}
s_lshl_b32 {s(sA)}, {s(sA)}, 8
v_mov_b32 {v(vT1)}, {s(sA)}
ds_write_b32 {v(vT0)}, {v(vT1)}
""")


class Stream:
    def __init__(self, a):
        self.a = a
        self.out = []
        self.nops = 0

    def __call__(self, tx):
        for ln in tx.split("\n"):
            i = Ins(ln)
            if i.states == 0:
                self.a(ln)
                continue
            touch = (i.rd | i.wr) if i.kind != "lds" else set(i.rd)
            need = -1
            for k, d in enumerate(self.out):
                if d & touch:
                    need = k
            if need >= 0:
                n = min(len(self.out) - 1 - need, 14)
                n = min(n, WCAP)
                self.a(f"s_waitcnt lgkmcnt({n})")
                self.out = self.out[len(self.out) - n:] if n else []
            tail = self.a.lines[-40:]
            pad = 0
            while check_hazards(tail + ([f"s_nop {pad - 1}"] if pad else []) + [ln], only_last=True):
                pad += 1
            if pad:
                self.a(f"s_nop {pad - 1}")
                self.nops += 1
            self.a(ln)
            if i.kind == "lds":
                self.out.append(set(i.wr))


PO, PY = E("PO", "1100"), E("PY", "1100")
PU1, PU2 = int(E("PU1", "12")), int(E("PU2", "20"))


PADG = """s_cmp_lg_u32 s16, 7
s_cbranch_scc1 L_end
v_mov_b32 v20, 0
v_mov_b32 v21, 0
s_mov_b64 exec, 1
buffer_atomic_or v20, v21, s[88:91], 0 offen sc0
s_waitcnt vmcnt(0)
v_readfirstlane_b32 s92, v20
s_not_b32 s92, s92""" if E("PADG") else ""
PAD = f"""L_pad:
{PADG}
L_pad2:
s_sleep 4
s_memrealtime s[94:95]
s_waitcnt lgkmcnt(0)
s_sub_u32 s94, s94, s92
s_cmp_lt_u32 s94, {int(float(E("PADT", "0")) * 100)}
s_cbranch_scc1 L_pad2""" if E("PADT") else ""


def prio(k):
    if k and PO[k] == PO[k - 1] and PY[k] == PY[k - 1]:
        return ""
    if PO[k] == PY[k]:
        return f"s_setprio {PO[k]}"
    return f"""s_setprio {PO[k]}
s_cmp_lt_u32 {s(sWave)}, 4
s_cbranch_scc1 L_pr{k}
s_setprio {PY[k]}
L_pr{k}:"""


IDENT = f"""v_lshrrev_b32 v{ACC}, 8, {v(vL16)}
v_bfe_u32 v{ACC + 1}, {v(vL16)}, 6, 2
v_cmp_eq_u32 vcc, v{ACC}, v{ACC + 1}
v_and_b32 v{ACC}, 16, {v(vL16)}
v_mov_b32 v{ACC + 1}, 0x3f80
v_lshlrev_b32 v{ACC}, v{ACC}, v{ACC + 1}
v_cndmask_b32 v{ACC}, 0, v{ACC}, vcc
v_and_b32 v{ACC + 1}, 32, {v(vL16)}
v_cmp_eq_u32 vcc, 0, v{ACC + 1}
s_nop 1
v_cndmask_b32 v{vID}, 0, v{ACC}, vcc
v_sub_u32 v{vID + 1}, v{ACC}, v{vID}""" if RES == "mfma" else ""


def phase2(a):
    SH = "dst_sel:DWORD dst_unused:UNUSED_PAD src0_sel:DWORD src1_sel:WORD_1"
    t0, t1 = ACC, ACC + 1
    a("L_p2:")
    for g in range(NLW):
        a(f"s_cmp_lg_u32 {s(sWave)}, {g + 1}\ns_cbranch_scc1 L_nodma{g}\ns_setprio 3")
        load_groups(a, (g,), ACC)
        a(f"L_nodma{g}:")
    if E("PAD1"):
        a(f"""L_pad1:
s_sleep 2
s_memrealtime s[94:95]
s_waitcnt lgkmcnt(0)
s_sub_u32 s94, s94, s92
s_cmp_lt_u32 s94, {int(float(E("PAD1")) * 100)}
s_cbranch_scc1 L_pad1""")
    wait_count(a, "L_wi", F_INIT, 2)
    a(f"""
v_bfe_u32 {v(t0)}, {v(vL16)}, 6, 2            ; r
v_and_b32 {v(t1)}, 48, {v(vL16)}              ; 16c'
v_lshrrev_b32 {v(t1 + 1)}, 9, {v(vL16)}         ; g>>1
v_lshl_add_u32 {v(t0)}, {v(t1 + 1)}, 3, {v(t0)}   ; row = 8(g>>1) + r
v_lshl_add_u32 {v(vA[1])}, {v(t0)}, 6, {v(t1)}
v_mul_u32_u24 {v(t0)}, 192, {v(t0)}
v_add_u32 {v(vA[2])}, {v(t0)}, {v(t1)}
v_bfe_u32 {v(t0)}, {v(vL16)}, 8, 1            ; g&1
v_mul_u32_u24 {v(t1)}, {DZ}, {v(t0)}
v_add_u32 {v(vA[1])}, {v(vA[1])}, {v(t1)}
v_add_u32 {v(vA[2])}, {v(vA[2])}, {v(t1)}
{IDENT}
s_mov_b32 {s(cNB)}, {h2(-BETA)}
s_mov_b32 {s(cS)}, {h2(SC)}
s_add_u32 {s(cK)}, {s(sS)}, {f32(SC)}
s_mov_b32 {s(cLo)}, 0x00003f80
s_mov_b32 {s(cHi)}, 0x3f800000
s_mov_b32 {s(sTile)}, 0
s_mov_b32 {s(sRdy)}, 0
s_mov_b32 {s(sFix)}, 0
{chr(10).join(f"v_mov_b32 v{XR + i}, 0" for i in range(8)) if E("NOXL") else ""}
{prio(0)}
L_mtile:
""")
    stamp(a, 2)
    stamp_rt(a, 13)
    if E("XL128"):
        for tx in (poff if E("XL128") == "1" else poffn)(XR):
            a(tx)
        a(f"v_mov_b32 {v(vXoff)}, {v(XR)}\ns_mov_b32 s88, {s(sTB)}\ns_mov_b32 s89, {s(sTB + 1)}\ns_add_u32 s90, s88, {2 * ROWB}\ns_add_u32 s91, s89, {2 * ROWB}")
    st = Stream(a)
    zone_now = {1: 0, 2: 0}
    seen = [0]

    def slot(f):
        return WS + 4 * (FRAGS.index(f) % NWS)

    cold = Asm()

    def rd(f, hf):
        tp, n = f
        c, k = divmod(n, 6)
        zone, ad, _ = piece_addr(tp, c)
        base = slot(f)
        if zone != zone_now[tp]:
            zone_now[tp] = zone
            st(f"v_bfe_u32 {v(base)}, {v(vL16)}, 8, 1")
            st(f"v_mul_u32_u24 {v(base)}, {DZ - DZ1}, {v(base)}")
            st(f"v_subrev_u32 {v(base)}, {E1}, {v(base)}")
            st(f"v_{'sub' if zone else 'add'}_u32 {v(vA[tp])}, {v(vA[tp])}, {v(base)}")
        need = PIECES.index((tp, c)) + 1
        if need > seen[0]:
            if need > 4:
                need = min(need + 1, 24)
            seen[0] = need
            if need == 24 and DYN:
                need = 25
            lb = f"L_rd{need}"
            a(f"s_cmp_lt_u32 {s(sRdy)}, {need}\ns_cbranch_scc1 {lb}_slow\n{lb}_go:")
            cold(f"{lb}_slow:\nv_mov_b32 {v(base)}, {F_RDY}")
            spin(cold, lb, f"v_cmp_le_u32 vcc, {need}, {v(base + 1)}", base, base + 1)
            cold(f"v_readfirstlane_b32 {s(sRdy)}, {v(base + 1)}")
            if need < 25:
                cold(f"s_min_u32 {s(sRdy)}, {s(sRdy)}, 24\ns_branch {lb}_go")
            else:
                assert zone_now == {1: 0, 2: 0}
                cold(f"""
s_cmp_lt_u32 {s(sRdy)}, 256
s_cbranch_scc1 {lb}_go
s_lshl_b32 {s(sS)}, {s(sRdy)}, 15
s_cmp_eq_u32 {s(sS)}, {SEXP << 23}
s_cbranch_scc1 {lb}_go
s_waitcnt vmcnt(0) lgkmcnt(0)
s_nop 7
s_barrier
s_cmp_lt_u32 {s(sWave)}, 6
s_cbranch_scc1 L_notab
""")
                table(cold, X, "b")
                cold(f"""
L_notab:
s_add_u32 {s(cK)}, {s(sS)}, {f32(SC)}
s_sub_u32 {s(sFix)}, {(127 + SEXP) << 23}, {s(sS)}
s_waitcnt lgkmcnt(0)
s_barrier
s_branch L_mtile
""")
            if need == 1:
                stamp(a, 3)
        off = ad - (E1 if zone else 0)
        if tp == 1:
            ht, ks = divmod(k, 3)
            o = off + 1024 * ks + 256 * hf + 8 * ht
        else:
            o = off + 768 * hf + 64 * (k // 2) + 8 * (k % 2)
        assert o < 65536
        st(f"ds_read_b64_tr_b16 {v(base + 2 * hf, 2)}, {v(vA[tp])} offset:{o}")

    def xreg(T, Q):
        return X + 8 * (4 * (T // 2) + Q) + 4 * (T % 2)

    def mf(f, Q):
        tp, n = f
        c, k = divmod(n, 6)
        if tp == 1:
            ks = n % 3
            d = ACC + 16 * ((n // 3) % 3) + 4 * Q
            return (f"v_mfma_f32_16x16x32_bf16 {v(d, 4)}, {v(slot(f), 4)}, "
                    f"{v(H + 16 * ks + 4 * Q, 4)}, {'0' if ks == 0 else v(d, 4)}")
        d = xreg(k, Q)
        return (f"v_mfma_f32_16x16x32_bf16 {v(d, 4)}, {v(slot(f), 4)}, "
                f"{v(G + 16 * (c % 2) + 4 * Q, 4)}, {'0' if c == 0 else v(d, 4)}")

    def look(u, i):
        a0 = ACC + 16 * (u % 3) + 2 * i
        if E("NOCF") and i < int(E("NOCF")):
            return [(4, f"v_lshrrev_b32 {v(a0)}, 2, {v(vL16)}"), (4, f"v_lshrrev_b32 {v(a0 + 1)}, 2, {v(vL16)}"),
                    (0, f"ds_read_u16_d16 {v(a0)}, {v(a0)} offset:{3072 + 256 * ((u + i) % 8)}"),
                    (0, f"ds_read_u16_d16_hi {v(a0 + 1)}, {v(a0 + 1)} offset:{3074 + 256 * ((u + 3 * i) % 8)}")]
        return [(4, f"v_lshlrev_b32_sdwa {v(a0)}, 1, {v(a0)} {SH}"),
                (4, f"v_lshlrev_b32_sdwa {v(a0 + 1)}, 1, {v(a0 + 1)} {SH}"),
                (0, f"ds_read_u16_d16 {v(a0)}, {v(a0)}"),
                (0, f"ds_read_u16_d16_hi {v(a0 + 1)}, {v(a0 + 1)}")]

    def greg(u, i):
        c, ht = divmod(u, 2)
        return G + 16 * (c % 2) + 4 * (i // 2) + 2 * ht + i % 2

    def nexp(u):
        return EXPK[u % len(EXPK)]

    def comb(u, i):
        a0 = ACC + 16 * (u % 3) + 2 * i
        return [(4, f"v_or_b32 {v(greg(u, i))}, {v(a0)}, {v(a0 + 1)}")]

    def expo(u):
        LO = "dst_sel:WORD_0 dst_unused:UNUSED_PRESERVE src0_sel:WORD_0"
        HI = "dst_sel:WORD_1 dst_unused:UNUSED_PRESERVE src0_sel:WORD_1"
        ch1, ch2 = [], []
        for i in range(8 - nexp(u), 8):
            b, t, r = v(ACC + 16 * (u % 3) + 2 * i), v(ACC + 16 * (u % 3) + 2 * i + 1), v(greg(u, i))
            ch1.append([(4, f"v_fma_mixlo_f16 {b}, {b}, {s(cK)}, 0"),
                        (4, f"v_fma_mixhi_f16 {b}, {t}, {s(cK)}, 0"),
                        (4, f"v_pk_fma_f16 {t}, {b}, {b}, {s(cNB)} neg_lo:[0,1,0] neg_hi:[0,1,0]"),
                        (4, f"v_pk_mul_f16 {t}, {t}, {b}"),
                        (8, f"v_exp_f16_sdwa {t}, {t} {LO}"),
                        (8, f"v_exp_f16_sdwa {t}, {t} {HI}"),
                        (4, f"v_pk_fma_f16 {t}, {t}, {s(cS)}, {s(cS)}")])
            ch2.append([(8, f"v_rcp_f16_sdwa {t}, {t} {LO}"),
                        (8, f"v_rcp_f16_sdwa {t}, {t} {HI}"),
                        (4, f"v_fma_mix_f32 {r}, {b}, {t}, 0 op_sel_hi:[1,1,0]"),
                        (4, f"v_fma_mix_f32 {t}, {b}, {t}, 0 op_sel:[1,1,0] op_sel_hi:[1,1,0]"),
                        (4, f"v_cvt_pk_bf16_f32 {r}, {r}, {t}")])
        return ch1, ch2

    def weave(chains):
        out = []
        n = max([len(c) for c in chains], default=0)
        for k in range(n):
            need_pad = sum(1 for c in chains if k < len(c)) == 1
            out += [c[k] + (need_pad,) for c in chains if k < len(c)]
        return out

    extra = {}

    def put(u, m, tx):
        extra.setdefault((u, m), []).append(tx)

    put(23, 0, "s_waitcnt vmcnt(0)")
    for tx in poff(XR):
        put(23, 0, tx)
    for g in range(0 if NOPARK else 12):
        ks = (1, 2, 0)[g // 4]
        put(23, g, f"buffer_load_dwordx4 {v(H + 16 * ks + 4 * (g % 4), 4)}, {paddr(g, XR)}{HLF}")

    for tx in poffn(XR):
        put(24, 2, tx)
    def rgroups(rho):
        oy, ln = divmod(rho, 3)
        return [4 * (p % 3) + 2 * oy + p // 3 for p in (2 * ln, 2 * ln + 1)]

    def xload(rho):
        if E("XL128"):
            return [f"buffer_load_dwordx4 {v(XR + 4 * e, 4)}, {v(vXoff)}, {s(sX, 4)}, {s(88 + (2 * rho + e) // 3)} offen offset:{128 * ((2 * rho + e) % 3)}{XFF}" for e in range(2)]
        return [f"buffer_load_dwordx4 {v(XR + 4 * e, 4)}, {v(vXoff)}, {s(sX, 4)}, {goff(g, sTB)}{XFF}"
                for e, g in enumerate(rgroups(rho)) if not NOX and not E("NOXL")]

    def xpf(oy, t):
        return [f"v_lshrrev_b32 {v(t)}, 8, {v(vL16)}",
                f"v_mul_u32_u24 {v(t)}, 112, {v(t)}",
                f"s_mov_b32 m0, {L_JUNK}",
                f"v_add_u32 {v(t)}, {v(t)}, {v(vXoff)}",
                f"buffer_load_dword {v(t)}, {s(sX, 4)}, {s(sTB + oy)} offen{XPFF} lds"]

    if XPF:
        for tx in xpf(0, XR):
            put(-1, 0, tx)
        if XPF == 2:
            for tx in xpf(1, XR):
                put(-1, 1, tx)
    for tx in xload(0):
        put(RU0 - 3 - (RES != "dot"), 22, tx)
    for rho in range(6 if RES == "plain" else 0):
        for e, g in enumerate(rgroups(rho)):
            u = RU0 - 1 + 3 * rho + e
            act = {f[1] % 6: 4 * i for i, f in enumerate(STEPS[u]) if f[0] == 2}
            tp, Q = divmod(g, 4)
            W = 8 // RPG
            starts = {}
            for tl in range(2):
                T = 2 * tp + tl
                m = 3
                while any(abs(m - x) < W for x in starts.values()) or (T in act and act[T] + Q - W - 1 < m < act[T] + Q + 4):
                    m += 1
                assert m + W <= 23, (u, T, m)
                starts[tl] = m
            prev = None
            for tl in sorted(starts, key=starts.get):
                ops = []
                for h in range(2):
                    P, d = XR + 4 * e + 2 * tl + h, xreg(2 * tp + tl, Q) + 2 * h
                    if prev is None:
                        ops += [f"v_dot2_f32_bf16 {v(d + 1)}, {v(P)}, {s(cHi)}, {v(d + 1)}", None]
                    else:
                        ops += [f"v_and_b32 {v(prev)}, 0xffff0000, {v(P)}", f"v_add_f32 {v(d + 1)}, {v(d + 1)}, {v(prev)}"]
                    ops += [f"v_lshlrev_b32 {v(P)}, 16, {v(P)}", f"v_add_f32 {v(d)}, {v(d)}, {v(P)}"]
                    ops[-3], ops[-2] = ops[-2], ops[-3]
                    prev = P
                for i, tx in enumerate(ops):
                    if tx:
                        put(u, starts[tl] + i // RPG, tx)
            extra[(u, min(starts.values()))].insert(0, f"s_waitcnt vmcnt({0 if rho == 5 and e else 1})")
            if rho < 5:
                put(u, max(starts.values()) + W - 1, xload(rho + 1)[e])
    for rho in range(6 if RES == "mfma" else 0):
        assert NWS == 4
        for e, g in enumerate(rgroups(rho)):
            u = RU0 - 1 + 3 * rho + e
            act = {f[1] % 6: 4 * i for i, f in enumerate(STEPS[u]) if f[0] == 2}
            tp, Q = divmod(g, 4)
            ms = []
            for tl in range(2):
                T = 2 * tp + tl
                m = 5
                while m in ms or m - 1 in ms or (T in act and act[T] + Q - 4 < m < act[T] + Q + 3):
                    m += 1
                ms.append(m)
                d = xreg(T, Q)
                put(u, m, f"v_mfma_f32_16x16x16_bf16 {v(d, 4)}, {v(vID, 2)}, {v(XR + 4 * e + 2 * tl, 2)}, {v(d, 4)}")
            extra[(u, min(ms))].insert(0, f"s_waitcnt vmcnt({0 if rho == 5 and e else 1})")
            if rho < 5:
                put(u, max(ms) + 1, xload(rho + 1)[e])
    for rho in range(6 if RES == "dot" else 0):
        u = RU0 + 3 * rho
        act = {f[1] % 6: 4 * i for i, f in enumerate(STEPS[u]) if f[0] == 2}
        used = []
        for e, g in enumerate(rgroups(rho)):
            tp, Q = divmod(g, 4)
            for tl in range(2):
                T = 2 * tp + tl
                m = 5
                while any(abs(m - x) < 2 for x in used) or (T in act and act[T] + Q - 4 < m < act[T] + Q + 5):
                    m += 1
                assert m < 21
                used.append(m)
                for r in range(4):
                    d = xreg(T, Q) + r
                    put(u, m + r // 2, "s_nop 0" if NOX or E("NOD") else f"v_dot2_f32_bf16 {v(d)}, {v(XR + 4 * e + 2 * tl + r // 2)}, "
                                       f"{s(cHi if r % 2 else cLo)}, {v(d)}")
        if not E("NOXW"):
            extra[(u, min(used))].insert(0, "s_waitcnt vmcnt(0)")
        if rho == 0 and XPF == 1:
            for tx in xpf(1, XR):
                put(u, max(used) + 1, tx)
        if rho < 5:
            for tx in xload(rho + 1):
                put(u, max(used) + 1, tx)

    def hook():
        a(f"s_cmp_lg_u32 {s(sMode)}, 0\ns_cbranch_scc1 L_park\nL_parked:")
        cold(f"L_park:\nv_mov_b32 {v(XR)}, {F_ISS}")
        spin(cold, "L_wi9", f"v_cmp_eq_u32 vcc, 9, {v(XR + 1)}", XR, XR + 1)
        park(cold, XR)
        cold(f"s_mov_b32 {s(sMode)}, 0\ns_nop 1\ns_branch L_parked")
        stamp(a, 1)

    pw, pg = [], []
    gap = [0]

    def emit(tx):
        i = Ins(tx)
        t = i.rd | i.wr
        while any(Ins(g).wr & t for _, g in pg):
            st(pg.pop(0)[1])
        while any({("v", slot(f) + r) for r in range(4)} & t for f, _ in pw):
            rd(*pw.pop(0))
        st(tx)

    for f in FRAGS[:NWS]:
        rd(f, 0)
        rd(f, 1)
    a(f"s_waitcnt vmcnt({13 if DIAG else 12})")
    if DYN:
        a(f"s_cmp_lg_u32 {s(sFix)}, 0\ns_cbranch_scc1 L_fix\nL_fixed:")
        cold("L_fix:")
        for i in range(48):
            cold(f"""v_lshlrev_b32 {v(ACC)}, 16, {v(H + i)}
v_and_b32 {v(ACC + 1)}, 0xffff0000, {v(H + i)}
v_mul_f32 {v(ACC)}, {s(sFix)}, {v(ACC)}
v_mul_f32 {v(ACC + 1)}, {s(sFix)}, {v(ACC + 1)}
v_cvt_pk_bf16_f32 {v(H + i)}, {v(ACC)}, {v(ACC + 1)}""")
        cold("s_nop 1\ns_branch L_fixed")
    for u in range(-1, 27):
        for k, pu in ((2, PU1), (3, PU2)):
            if u == pu and prio(k):
                a(f"s_cmp_lg_u32 {s(sTile)}, 0\ns_cbranch_scc1 L_pu{k}\nL_pb{k}:")
                cold(f"L_pu{k}:\n{prio(k)}\ns_branch L_pb{k}")
        base = []
        for i in range(8):
            if 0 <= u - 1 < 24 and i < 8 - nexp(u - 1):
                base += [t + (None,) for t in comb(u - 1, i)]
            if 0 <= u < 24 and i < 8 - nexp(u):
                lk = look(u, i)
                base += [lk[0] + (lk[2][1],), lk[1] + (lk[3][1],)]
        ex = weave((expo(u - 1)[1] if 0 <= u - 1 < 24 else []) + (expo(u)[0] if 0 <= u < 24 else []))
        V = []
        tb, te = sum(t[0] for t in base), sum(t[0] for t in ex)
        cb = ce = ib = ie = 0
        while ib < len(base) or ie < len(ex):
            if ie < len(ex) and (ib >= len(base) or ce * max(tb, 1) < cb * max(te, 1)):
                V.append(ex[ie][:2] + (None,))
                ce += ex[ie][0]
                ie += 1
            else:
                V.append(base[ib])
                cb += base[ib][0]
                ib += 1
        mfs = [(f, Q) for f in STEPS[u] for Q in range(4)]
        nm = len(mfs)
        lead = LEAD if 0 <= u < 4 else 0
        xc = [XCOST * sum(1 for t in extra.get((u, m), []) if "mfma" not in t) for m in range(nm)]
        tot = tb + te + sum(xc[lead:])
        nl = sum(1 for t in base if t[2]) + nm // 2
        k = cyc = 0
        for m, (f, Q) in enumerate(mfs):
            emit(mf(f, Q))
            if Q == 3 and FRAGS.index(f) + NWS < len(FRAGS):
                nf = FRAGS[FRAGS.index(f) + NWS]
                pw += [(nf, 0), (nf, 1)]
            quota = nl * (m + 1) // nm - nl * m // nm
            if len(pw) + len(pg) > BACKLOG:
                quota += 1
            for _ in range(max(quota, 1)):
                if pw:
                    rd(*pw.pop(0))
                elif pg and pg[0][0] <= gap[0]:
                    st(pg.pop(0)[1])
            for tx in extra.pop((u, m), []):
                emit(tx)
            if m >= lead:
                cyc += xc[m]
                last = m == nm - 1
                while k < len(V) and (last or cyc + V[k][0] / 2 <= tot * (m - lead + 1) / (nm - lead)):
                    emit(V[k][1])
                    if V[k][2]:
                        pg.append((gap[0] + 1, V[k][2]))
                    cyc += V[k][0]
                    k += 1
            if u >= 25:
                g = (f[1] - 66) * 4 + Q - 12
                if g >= 0 and (g // 4) % 2 == 0:
                    epi(st, 4 * (g // 8) + g % 4)
            gap[0] += 1
        if u == UH:
            hook()
    assert not extra and not st.out and not pw and not pg and zone_now == {1: 0, 2: 0}
    print("MLP nops", st.nops)
    stamp(a, 8)
    for oy in range(2):
        line_out(st, oy, 0, STF)
    for oy in range(2):
        epi(st, 8 + 2 * oy)
        epi(st, 9 + 2 * oy)
        line_out(st, oy, 1, STF)
        line_out(st, oy, 2, STF)
    if DIAG:
        stamp(a, 9)
        stamp_rt(a, 11)
        a(f"s_lshl_b32 s62, {s(sTile)}, 3\ns_xor_b32 s62, s62, 8\ns_add_u32 s62, s62, {s(sWave)}")
        stamp_flush(a, 14, 1, t0, t1)
    a(f"""
s_cmp_lg_u32 {s(sTile)}, 0
s_cbranch_scc1 {"L_pad" if E("PADT") else "L_end"}
s_mov_b32 {s(sTile)}, 1
s_mov_b32 {s(sTB)}, {s(sNB)}
s_mov_b32 {s(sTB + 1)}, {s(sNB + 1)}
s_mov_b32 {s(sNB)}, {BIG}
s_mov_b32 {s(sNB + 1)}, {BIG}
{prio(1)}
s_branch L_mtile
""")
    for ln in cold.lines:
        a(ln)
    a(f"""
{PAD}
L_end:
s_endpgm
""")


def epi(st, g):
    b = X + 8 * g
    for d in range(4):
        st(f"v_cvt_pk_bf16_f32 {v(b + d)}, {v(b + 2 * d)}, {v(b + 2 * d + 1)}")


def line_out(st, oy, ln, fl):
    ga, gb = [4 * (p % 3) + 2 * oy + p // 3 for p in (2 * ln, 2 * ln + 1)]
    A, B = X + 8 * ga, X + 8 * gb
    for d in range(4):
        st(f"v_mov_b32 {v(A + 4 + d)}, {v(A + d)}")
    for d in range(4):
        st(f"v_mov_b32_dpp {v(A + d)}, {v(B + d)} row_ror:8 row_mask:0xf bank_mask:0xc")
    for d in range(4):
        st(f"v_mov_b32_dpp {v(B + d)}, {v(A + 4 + d)} row_ror:8 row_mask:0xf bank_mask:0x3")
    for e, r in enumerate((A, B)):
        st(f"buffer_store_dwordx4 {v(r, 4)}, {v(XR + e)}, {s(sO, 4)}, {s(sTB + oy)} offen offset:{128 * ln}{fl}")


def descriptor(a, name, nv, ns):
    a(f"""
.p2align 6
.amdhsa_kernel {name}
  .amdhsa_next_free_vgpr {nv}
  .amdhsa_next_free_sgpr {ns}
  .amdhsa_accum_offset {(nv + 3) // 4 * 4}
  .amdhsa_group_segment_fixed_size 0
  .amdhsa_kernarg_size 64
  .amdhsa_user_sgpr_count 2
  .amdhsa_user_sgpr_kernarg_segment_ptr 1
  .amdhsa_system_sgpr_workgroup_id_x 1
  .amdhsa_float_denorm_mode_32 {E("DNM", "3")}
.end_amdhsa_kernel
""")


DOC = """
; ---------------------------------------------------------------------------------------------------------------
; ---------------------------------------------------------------------------------------------------------------
"""


def main():
    here = os.path.dirname(os.path.abspath(__file__))
    ref = open(os.path.join(here, "..", NAME + ".s.ref")).read().split("\n")
    head = [l for l in ref if l.startswith(";") and "@launch" not in l]
    a = Asm()
    for l in head:
        a(l)
    a(f"; @launch grid=(256,1,1) block=(512,1,1) lds={LDS_BYTES}")
    a('.amdgcn_target "amdgcn-amd-amdhsa--gfx950"')
    a(".text")
    a(DOC)
    prologue(a)
    phase1(a)
    phase2(a)
    probs = check_hazards(a.lines)
    for p in probs:
        print("HAZARD:", p)
    a('.section .rodata,"a"')
    descriptor(a, NAME + "_kernel", 256, 100)
    out = sys.argv[1] if len(sys.argv) > 1 else os.path.join(here, "..", NAME + ".s")
    open(out, "w").write(a.text())
    print("wrote", out, "lines", len(a.lines), "hazards", len(probs), "lds", LDS_BYTES)


if __name__ == "__main__":
    main()
```

```python
import math
import struct
import sys
import os

import numpy as np

sys.path.insert(0, os.path.dirname(os.path.abspath(__file__)))
from asmlib import Asm, Ins, v, s, check_hazards

NAME = "standalone__modern_conv_block_replknet__vision"
E = os.environ.get
DIAG = E("DIAG", "0") == "1"
STF = E("STF", " sc1")
XLF, PKF, HLF, XFF = E("XLF", " sc1"), E("PKF", " sc1"), E("HLF", ""), E("XFF", " sc1")
EXPK = [int(c) for c in E("EXPK", "21")]
LEAD, XCOST, BACKLOG = int(E("LEAD", "2")), int(E("XCOST", "4")), int(E("BACKLOG", "4"))
PKN = E("PKN", "1") == "1"
PKS = E("PKS", "1") == "1"
PCV, PLN = int(E("PCV", "0")), int(E("PLN", "2"))
PM = [int(c) for c in E("PM", "110")]
STF2 = E("STF2")
DEFER = int(E("DEFER", "8"))
NPRE = 1
XPF, XPFF = int(E("XPF", "0")), E("XPFF", " sc1")
W0P = int(E("W0P", "0"))
RES, RPG = E("RES", "mfma"), int(E("RPG", "2"))
WCAP = int(E("WCAP", "14"))
FLIP, LBAR = int(E("FLIP", "1")), int(E("LBAR", "1"))
DYN = int(E("DYN", "1"))
SBAND = 12
TSC = 48
OWN = int(E("OWN", "0"))
CW = int(E("CW", "2"))
ILV = E("ILV", "0") == "1"
NLW = int(E("NLW", "1"))
WPF = int(E("WPF", "1"))
NOX, NOPARK, NOST = E("NOX"), E("NOPARK"), E("NOST")
UH = 2
RU0 = 7
PRA, PRB = int(E("PRA", "0")), int(E("PRB", "1"))
sStamp = 64


def f32(x):
    return "0x%08x" % struct.unpack("<I", struct.pack("<f", x))[0]


def h2(x):
    b = int(np.float16(x).view(np.uint16))
    return "0x%08x" % (b | (b << 16))


KAPPA = 2.0 * math.sqrt(2.0 / math.pi) * math.log2(math.e)
BETA = float(np.float16(KAPPA / (KAPPA * 0.044715) ** (1.0 / 3.0)))
SC = KAPPA / BETA
BIG = 0x40000000
NBIN = 28
SEXP = int(E("SEXP", "111"))

XBYTES = 512 * 512 * 96 * 2
ROWB = 512 * 192
WS_END = 256 * 8 * 12288
WS_STAMP = 0x2000000
TW = NBIN * 256
TABP, TABN = 0, 65536
E0 = TW
DZ = 65544
E1 = E0 + DZ + 19 * 3072
DZ1 = 5 * 3072 + 8
L_FLAG = E1 + DZ1 + 5 * 3072
L_JUNK = L_FLAG + 256
LDS_BYTES = L_FLAG + 512
assert L_FLAG % 16 == 0 and LDS_BYTES <= 163840 and E0 + 19 * 3072 <= 65536
OS = 584
RS = 7104
SS = 14336
RL = E0
R2 = int(E("R2", "0"))
RU = TABN + TW + (64 if R2 else 128)
TL = RL + 3 * SS
TU = RU + 2 * SS + RS + 12 * OS
assert TL + 15360 <= 65536 and TU % 16 == 0 and TU + 15360 <= E1 and RL % 256 == 0
R3L = (E1 + 255) // 256 * 256
R3U = R3L + 2 * RS - (64 if R2 else 0)
assert R3U % 128 == RU % 128 and R3U >= R3L + RS + 12 * OS and R3U + RS + 12 * OS <= L_FLAG
SLOTS = [int(c) for c in E("SLOTS", "120312012")]
assert SLOTS[6:] == [0, 1, 2] and len(set(SLOTS[:4])) == 4
PRED = [max([p for p in range(k) if SLOTS[p] == SLOTS[k]], default=k - 4) for k in range(9)]
LASTQ = [max(p for p in range(9) if SLOTS[p] == sl) for sl in (3, 0, 1, 2)]
F_STG = L_FLAG
F_DONE = L_FLAG + 40
F_TRDY = L_FLAG + 160
F_ISS = L_FLAG + 164
F_RDY = L_FLAG + 168
F_INIT = L_FLAG + 172
F_WRAW = L_FLAG + 176
F_WCNT = L_FLAG + 180
F_WMAX = L_FLAG + 184
WTMP = R3L if SLOTS[3] == 3 else RL + SLOTS[3] * SS


assert all(PRED[k] - (k - 4) in (0, 1) for k in range(9))


def kap(ch, q):
    return 32 * (q >> 4) + 16 * ch + (q & 15)


def coff(c):
    return (c // 8) * OS + (c % 8) * 72


STEPS = {u: [(tp, n) for i in range(3) for tp, n in ((1, 3 * (u + 1) + i), (2, 3 * (u - 3) + i)) if 0 <= n < 72]
         for u in range(-1, 27)}
FRAGS = [f for u in range(-1, 27) for f in STEPS[u]]
PIECES = []
for tp_, n_ in FRAGS:
    if (tp_, n_ // 6) not in PIECES:
        PIECES.append((tp_, n_ // 6))
assert len(PIECES) == 24 and len(FRAGS) == 144


def piece_addr(tp, c):
    i = PIECES.index((tp, c))
    if i < 5:
        return 1, E1 + 3072 * i, DZ1
    return 0, E0 + 3072 * (i - 5), DZ


SB = 48
TS = 192
DS = 212
TMP = 232
vL16, vT0, vT1 = 253, 254, 255
vFl, vTa, vCA, vLdA, vLdB, vSt, vCv, vK = 240, 241, 244, 247, 248, 249, 250, 251
H = 0
X = 48
G = 144
ACC = 176
WS = 224
NWS = int(E("NWS", "4"))
vID = 242
XR = 244
vXoff = 252
vA = {1: 254, 2: 255}

NE = 4
NSL = 5

sX, sO, sW = 4, 8, 12
sWave, sTile, sPair, sRdy = 16, 17, 18, 19
sSelLo, sSelHi = 20, 21
sX0, sY0 = 22, 23
sTB = 24
sA, sB, sC, sD = 26, 27, 28, 29
sR = 30
sNB = 36
sMode = 38
sRot = 39
sF = 34
sR2 = 35
sI1, sI2 = 40, 44
sDL, sDS = 48, 52
sEL, sER, sE1 = 80, 81, 82
sS = 98
sFix = 99
cNB, cS, cLo, cHi, cK = 84, 85, 86, 87, 83


def stamp(a, k):
    if DIAG:
        a(f"s_waitcnt lgkmcnt(0)\ns_memtime s[60:61]\ns_waitcnt lgkmcnt(0)\ns_mov_b32 {s(sStamp + k)}, s60")


def stamp_rt(a, k):
    if DIAG:
        a(f"s_waitcnt lgkmcnt(0)\ns_memrealtime s[60:61]\ns_waitcnt lgkmcnt(0)\ns_mov_b32 {s(sStamp + k)}, s60")


def stamp_flush(a, n, rec, vT0=vT0, vT1=vT1):
    if DIAG:
        a(f"s_mov_b32 {s(sStamp + 12)}, {s(sWave)}")
        a(f"v_mov_b32 {v(vT0)}, 0")
        for k in range(n):
            a(f"v_writelane_b32 {v(vT0)}, {s(sStamp + k)}, {k}")
        a(f"""s_lshl_b32 s60, s2, 4
s_add_u32 s60, s60, s62
s_lshl_b32 s60, s60, 7
s_add_u32 s60, s60, {WS_STAMP + 64 * rec}
v_lshrrev_b32 {v(vT1)}, 2, {v(vL16)}
s_mov_b32 exec_lo, 0xffff
s_mov_b32 exec_hi, 0
buffer_store_dword {v(vT0)}, {v(vT1)}, {s(sW, 4)}, s60 offen
s_mov_b64 exec, -1
s_nop 1""")


def srd(a, d, lo, nbytes):
    a(f"""s_mov_b32 {s(d)}, {s(lo)}
s_and_b32 {s(d + 1)}, {s(lo + 1)}, 0xffff
s_mov_b32 {s(d + 2)}, {nbytes}
s_mov_b32 {s(d + 3)}, 0x20000""")


def spin(a, label, cmp, t0=vT0, t1=vT1):
    a(f"""
s_mov_b32 {s(sD)}, 200000
{label}:
ds_read_b32 {v(t1)}, {v(t0)}
s_waitcnt lgkmcnt(0)
{cmp}
s_cmp_eq_u64 vcc, exec
s_cbranch_scc1 {label}_ok
s_sleep 2
s_sub_u32 {s(sD)}, {s(sD)}, 1
s_cmp_lg_u32 {s(sD)}, 0
s_cbranch_scc1 {label}
{label}_ok:
""")


def wait_flags(a, label, addr):
    a(f"v_add_u32 {v(vT0)}, {addr}, {v(vFl)}")
    spin(a, label, f"v_cmp_ne_u32 vcc, 0, {v(vT1)}")


def wait_count(a, label, addr, n, op="eq"):
    a(f"v_mov_b32 {v(vT0)}, {addr}")
    spin(a, label, f"v_cmp_{op}_u32 vcc, {n}, {v(vT1)}")


def count(a, addr):
    a(f"""
v_mov_b32 {v(vT0)}, {addr}
v_mov_b32 {v(vT1)}, 1
s_waitcnt lgkmcnt(0)
s_mov_b64 exec, 1
ds_add_u32 {v(vT0)}, {v(vT1)}
s_mov_b64 exec, -1
""")


def table(a, b, tag):
    a(f"""
s_add_u32 {s(sC)}, {s(sS)}, {1 << 23}
s_and_b32 {s(sA)}, {s(sWave)}, 1
s_lshl_b32 {s(sA)}, {s(sA)}, 6
v_lshrrev_b32 v{b + 1}, 4, {v(vL16)}
v_add_u32 v{b + 1}, {s(sA)}, v{b + 1}
v_lshlrev_b32 v{b + 2}, 2, v{b + 1}
v_add_u32 v{b + 3}, {TABN}, v{b + 2}
v_lshlrev_b32 v{b + 4}, 17, v{b + 1}              ; code 2i << 16
v_or_b32 v{b + 4}, 0x8000, v{b + 4}
v_cmp_gt_u32 vcc, 64, v{b + 1}
v_mov_b32 v{b + 5}, {s(sS)}
v_mov_b32 v{b + 6}, {s(sC)}
v_cndmask_b32 v{b + 5}, v{b + 5}, v{b + 6}, vcc
v_cndmask_b32 v{b + 6}, 0, v{b + 6}, vcc
v_add_u32 v{b + 4}, v{b + 4}, v{b + 5}
v_mov_b32 v{b + 5}, 0x1000000
v_mov_b32 v{b + 7}, 0x800000
v_cndmask_b32 v{b + 5}, v{b + 5}, v{b + 7}, vcc
s_mov_b32 {s(sA)}, {f32(KAPPA * 0.044715)}
v_mov_b32 v{b + 7}, {f32(KAPPA)}
s_mov_b32 {s(sB)}, {NBIN // 2}
L_tabl{tag}:
v_add_u32 v{b + 9}, 0x10000, v{b + 4}
v_sub_f32 v{b + 8}, v{b + 4}, v{b + 6}
v_sub_f32 v{b + 9}, v{b + 9}, v{b + 6}
v_mul_f32 v{b + 10}, v{b + 8}, v{b + 8}
v_mul_f32 v{b + 11}, v{b + 9}, v{b + 9}
v_fma_f32 v{b + 10}, v{b + 10}, {s(sA)}, v{b + 7}
v_fma_f32 v{b + 11}, v{b + 11}, {s(sA)}, v{b + 7}
v_mul_f32 v{b + 10}, v{b + 10}, v{b + 8}
v_mul_f32 v{b + 11}, v{b + 11}, v{b + 9}
v_exp_f32 v{b + 10}, -v{b + 10}
v_exp_f32 v{b + 11}, -v{b + 11}
s_nop 0
v_add_f32 v{b + 12}, 1.0, v{b + 10}
v_add_f32 v{b + 13}, 1.0, v{b + 11}
v_rcp_f32 v{b + 12}, v{b + 12}
v_rcp_f32 v{b + 13}, v{b + 13}
s_nop 0
v_mul_f32 v{b + 8}, v{b + 8}, v{b + 12}
v_mul_f32 v{b + 9}, v{b + 9}, v{b + 13}
v_mul_f32 v{b + 10}, -v{b + 8}, v{b + 10}
v_mul_f32 v{b + 11}, -v{b + 9}, v{b + 11}
v_cvt_pk_bf16_f32 v{b + 12}, v{b + 8}, v{b + 9}
v_cvt_pk_bf16_f32 v{b + 13}, v{b + 10}, v{b + 11}
ds_write_b32 v{b + 2}, v{b + 12}
ds_write_b32 v{b + 3}, v{b + 13}
v_add_u32 v{b + 4}, v{b + 4}, v{b + 5}
v_mov_b32 v{b + 5}, 0x1000000
v_mov_b32 v{b + 6}, 0
v_add_u32 v{b + 2}, 512, v{b + 2}
v_add_u32 v{b + 3}, 512, v{b + 3}
s_sub_u32 {s(sB)}, {s(sB)}, 1
s_cmp_lg_u32 {s(sB)}, 0
s_cbranch_scc1 L_tabl{tag}
v_mov_b32 v{b + 3}, {TABN}
ds_write_b16 v{b + 6}, v{b + 6}                   ; gelu(+-0) = 0
ds_write_b16 v{b + 3}, v{b + 6}
""")


def issue_loads(a):
    a(f"""
s_sub_u32 {s(sA)}, 8, {s(sPair)}
s_cmp_eq_u32 {s(sF)}, 0
s_cselect_b32 {s(sA)}, {s(sPair)}, {s(sA)}
s_lshl_b32 {s(sA)}, {s(sA)}, 2
s_add_u32 {s(sA)}, {s(sA)}, {s(sY0)}
s_lshl_b32 {s(sB)}, {s(sA)}, 9
s_add_u32 {s(sB)}, {s(sB)}, {s(sX0)}
s_mul_i32 {s(sB)}, {s(sB)}, 192
s_cmp_lt_u32 {s(sA)}, 2
s_cselect_b64 vcc, s[58:59], 0
v_mov_b32 {v(vLdB)}, {BIG}
s_sub_u32 {s(sC)}, {s(sB)}, {2 * ROWB}
v_add_u32 {v(vT1)}, {s(sC)}, {v(vLdA)}
v_cndmask_b32 {v(vLdB)}, {v(vT1)}, {v(vLdB)}, vcc
v_add_u32 {v(vT1)}, -384, {v(vLdB)}
""")
    for xq in range(9):
        for i in range(4):
            off = 768 * xq + 192 * i - 384
            if xq == 0 and i < 2:
                a(f"buffer_load_dwordx4 {v(SB + 4 * i, 4)}, {v(vT1)}, {s(sX, 4)}, {s(sEL)} offen offset:{192 * i}{XLF}")
                continue
            elif xq == 8 and i >= 2:
                so, im = sER, off - 3840
            elif off < 3840:
                so, im = "0", off
            else:
                so, im = sE1, off - 3840
            so = so if isinstance(so, str) else s(so)
            a(f"buffer_load_dwordx4 {v(SB + 16 * xq + 4 * i, 4)}, {v(vLdB)}, {s(sX, 4)}, {so} offen offset:{im}{XLF}")


CPF = E("CPF", "4")


def code_pf(a, tag, first, last, r=16):
    a(f"""
s_getpc_b64 s[96:97]
L_pc{tag}:
s_add_u32 s96, s96, {first}-L_pc{tag}
s_addc_u32 s97, s97, {"0" if tag in FWD else "-1"}
v_lshlrev_b32 v{r}, 3, {v(vL16)}
v_mov_b32 v{r + 3}, s97
""")
    for i in range(NPF[tag]):
        a(f"""
v_add_u32 v{r + 1}, {8192 * i}, v{r}
v_min_u32 v{r + 1}, {last}-{first}, v{r + 1}
v_add_co_u32 v{r + 4 + 2 * i}, vcc, s96, v{r + 1}
s_nop 1
v_addc_co_u32 v{r + 5 + 2 * i}, vcc, 0, v{r + 3}, vcc
global_load_dword v{r + 2}, v[{r + 4 + 2 * i}:{r + 5 + 2 * i}], off sc1
""")


FWD = {"a", "b"}
NPF = {"a": 3, "b": 5}


def dma_consts(a, r):
    a(f"""
v_lshrrev_b32 {v(r)}, 9, {v(vL16)}             ; l>>5
v_mul_u32_u24 {v(r + 1)}, 1536, {v(r)}
v_add_u32 {v(r + 1)}, {v(r + 1)}, {v(vL16)}
v_bfe_u32 {v(vT0)}, {v(vL16)}, 6, 3            ; (l>>2)&7
v_lshl_add_u32 {v(r)}, {v(r)}, 4, {v(vT0)}
v_mul_u32_u24 {v(r)}, 768, {v(r)}
v_and_b32 {v(vT0)}, 48, {v(vL16)}
v_add_u32 {v(r)}, {v(r)}, {v(vT0)}             ; w1
""")


def dma_piece(a, tp, c, r):
    _, ad, dz = piece_addr(tp, c)
    a(f"""
s_add_u32 {s(sA)}, {s(sRot)}, {c}
s_cmp_ge_u32 {s(sA)}, 12
s_cselect_b32 {s(sB)}, 12, 0
s_sub_u32 {s(sA)}, {s(sA)}, {s(sB)}
s_mul_i32 {s(sA)}, {s(sA)}, {64 if tp == 1 else 6144}
""")
    for par in range(2):
        a(f"s_mov_b32 m0, {ad + par * dz}")
        if tp == 1:
            for ks in range(3):
                a(f"s_add_u32 {s(sR + ks)}, {s(sA)}, {(32 * ks + 8 * par) * 768 - 1024 * ks}")
            for ks in range(3):
                a(f"buffer_load_dwordx4 {v(r)}, {s(sI1, 4)}, {s(sR + ks)} offen offset:{1024 * ks} lds")
        else:
            a(f"s_add_u32 {s(sR)}, {s(sA)}, {1536 * par}")
            a(f"s_add_u32 {s(sR + 1)}, {s(sA)}, {1536 * par + 1536}")
            a(f"buffer_load_dwordx4 {v(vL16)}, {s(sI2, 4)}, {s(sR)} offen lds")
            a(f"buffer_load_dwordx4 {v(r + 1)}, {s(sI2, 4)}, {s(sR)} offen offset:1024 lds")
            a(f"buffer_load_dwordx4 {v(vL16)}, {s(sI2, 4)}, {s(sR + 1)} offen offset:2048 lds")


XADJ = f"""v_lshrrev_b32 v3, 5, v0
v_mul_u32_u24 v3, {2 * ROWB}, v3
v_bfe_u32 v4, v0, 2, 3
v_mul_u32_u24 v4, 768, v4
v_add_u32 v3, v3, v4
v_and_b32 v4, 3, v0
v_lshl_add_u32 {v(vXoff)}, v4, 4, v3""" if E("XADJ") else ""


TOPPF = """; pull the kernel's code towards L2: one dword per 128-byte line, wave 1 takes the first 8 KB
s_getpc_b64 s[96:97]
L_pc0:
v_add_u32 v16, 448, v0
v_and_b32 v16, 511, v16
v_lshlrev_b32 v16, 7, v16
v_min_u32 v16, L_end-L_pc0, v16
v_mov_b32 v17, s97
v_add_co_u32 v16, vcc, s96, v16
s_nop 1
v_addc_co_u32 v17, vcc, 0, v17, vcc
global_load_dword v18, v[16:17], off sc1""" if CPF in ("3", "4") else ""


NLM = int(E("NLM", "1"))
EXH = "0x00ff00ff" if NLM else "0x0000ffff"
LANEMAP = """; staging lane map (conflict-free LDS writes): l<32: row = l>>3, o = l&7 ; else row = 2*bit4 + bit2, o = 8 + (l&3)
v_bfe_u32 v12, v0, 3, 2
v_and_b32 v13, 7, v0
v_bfe_u32 v4, v0, 4, 1
v_bfe_u32 v5, v0, 2, 1
v_lshl_add_u32 v4, v4, 1, v5
v_and_or_b32 v5, v0, 3, 8
v_cmp_gt_u32 vcc, 32, v0
s_nop 1
v_cndmask_b32 v12, v4, v12, vcc    ; row
v_cndmask_b32 v13, v5, v13, vcc    ; o""" if NLM else """; staging lane map: row = l/12, o = l%12 (lanes < 48)
v_mul_u32_u24 v12, 43, v0
v_lshrrev_b32 v12, 9, v12          ; row
v_mul_u32_u24 v13, 12, v12
v_sub_u32 v13, v0, v13             ; o"""


def prologue(a):
    k = NAME + "_kernel"
    a(f"""
.globl {k}
.p2align 8
.type {k},@function
{k}:
s_cmp_ge_u32 s2, 256
s_cbranch_scc1 L_end
s_load_dwordx8 s[64:71], s[0:1], 0
s_load_dwordx4 s[72:75], s[0:1], 32
{"s_load_dwordx2 s[76:77], s[0:1], 56" if DIAG else ""}
{"s_memrealtime s[92:93]" if E("PADT") or E("PAD1") else ""}
{TOPPF}
s_setprio 3
v_mov_b32 v14, v0                ; tid
v_lshrrev_b32 v1, 6, v0
v_and_b32 v0, 63, v0
v_mov_b32 v10, {BIG}
v_readfirstlane_b32 {s(sWave)}, v1
v_lshlrev_b32 v2, 2, v0
v_add_u32 v2, {L_FLAG}, v2
v_add_u32 v3, -10, v0
v_cmp_gt_u32 vcc, 10, v3
v_cmp_eq_u32 s[56:57], 36, v0
s_or_b64 vcc, vcc, s[56:57]
{f"v_cmp_eq_u32 s[56:57], {(F_ISS - L_FLAG) // 4}, v0" if LBAR else ""}
{"s_or_b64 vcc, vcc, s[56:57]" if LBAR else ""}
v_cndmask_b32 v3, 0, 1, vcc
v_lshlrev_b32 {v(vL16)}, 4, v0
v_min_u32 {v(vFl)}, 1, v0
ds_write_b32 v2, v3
v_lshlrev_b32 {v(vFl)}, 2, {v(vFl)}
s_and_b32 {s(sA)}, s2, 3
s_lshl_b32 {s(sA)}, {s(sA)}, 2
s_bfe_u32 {s(sB)}, s2, 0x20003
s_add_u32 {s(sA)}, {s(sA)}, {s(sB)}
s_lshl_b32 {s(sX0)}, {s(sA)}, 5
s_bfe_u32 {s(sA)}, s2, 0x10002
s_lshl_b32 {s(sA)}, {s(sA)}, 3
s_lshr_b32 {s(sB)}, s2, 5
s_add_u32 {s(sA)}, {s(sA)}, {s(sB)}
s_lshl_b32 {s(sY0)}, {s(sA)}, 5
s_and_b32 {s(sF)}, {s(sA)}, {FLIP}
s_mul_i32 {s(sR2)}, {s(sF)}, {2 * ROWB}
s_mul_i32 {s(sF)}, {s(sF)}, 3
{LANEMAP}
v_xor_b32 v5, {s(sF)}, v12
v_mul_u32_u24 v5, {ROWB}, v5
v_lshl_add_u32 v5, v13, 4, v5
s_mov_b32 vcc_lo, -1
s_mov_b32 vcc_hi, {EXH}
v_cmp_gt_u32 s[58:59], 2, v12    ; rows 0,1
s_cmp_eq_u32 {s(sX0)}, 0
s_cselect_b32 {s(sEL)}, {BIG}, 0
v_cndmask_b32 {v(vLdA)}, v10, v5, vcc
s_mov_b32 {s(sE1)}, 3840
s_cmp_eq_u32 {s(sX0)}, 480
s_cselect_b32 {s(sER)}, {BIG}, {s(sE1)}
s_add_u32 {s(sPair)}, {s(sWave)}, {OWN}
s_and_b32 {s(sPair)}, {s(sPair)}, 7
v_add_u32 v15, {64 * OWN - 256}, v14
""")
    if CPF in ("1", "2"):
        a(f"s_cmp_lg_u32 {s(sWave)}, 7\ns_cbranch_scc1 L_nocpa")
        code_pf(a, "a", "L_pb", "L_mtile")
        a("L_nocpa:")
    a("s_waitcnt lgkmcnt(0)" + ("" if LBAR else "\ns_barrier"))
    srd(a, sX, 64, XBYTES)
    srd(a, sDL, 66, 9 * 96 * 2)
    srd(a, sDS, 68, 25 * 96 * 2)
    srd(a, sI1, 70, 96 * 384 * 2)
    srd(a, sI2, 72, 96 * 384 * 2)
    srd(a, sO, 74, XBYTES)
    if DIAG:
        srd(a, sW, 76, WS_STAMP + 0x100000)
    if E("PADG"):
        a("""s_load_dwordx2 s[88:89], s[0:1], 48
s_waitcnt lgkmcnt(0)
s_and_b32 s89, s89, 0xffff
s_mov_b32 s90, 256
s_mov_b32 s91, 0x20000
s_not_b32 s94, s92
v_mov_b32 v20, s94
v_mov_b32 v21, 0
s_cmp_lg_u32 s16, 7
s_cbranch_scc1 L_noat
s_mov_b64 exec, 1
buffer_atomic_umax v20, v21, s[88:91], 0 offen
s_mov_b64 exec, -1
L_noat:""")
    stamp(a, 0)
    stamp_rt(a, 10)
    a(f"""
s_cmp_lg_u32 {s(sPair)}, 0
s_cbranch_scc1 {"L_pb0" if LBAR else "L_pb"}
s_mov_b32 m0, {WTMP}
s_mov_b32 {s(sA)}, 4096
""")
    for i in range(4):
        a(f"buffer_load_dwordx4 {v(vL16)}, {s(sDS, 4)}, 0 offen offset:{1024 * i} lds")
    a(f"s_mov_b32 m0, {WTMP + 4096}\ns_nop 0\nbuffer_load_dwordx4 {v(vL16)}, {s(sDS, 4)}, {s(sA)} offen lds")
    a(f"s_mov_b32 m0, {WTMP + 5120}\ns_nop 0")
    for i in range(2):
        a(f"buffer_load_dwordx4 {v(vL16)}, {s(sDL, 4)}, 0 offen offset:{1024 * i} lds")
    stamp(a, 9)
    issue_loads(a)
    a(f"""
{"s_barrier" if LBAR else ""}
v_mov_b32 {v(vT0)}, {F_ISS}
v_mov_b32 {v(vT1)}, 1
{"" if LBAR else f"ds_write_b32 {v(vT0)}, {v(vT1)}"}
s_waitcnt vmcnt(36)
ds_write_b32 {v(vT0)}, {v(vT1)} offset:{F_WRAW - F_ISS}
""")
    stamp(a, 11)
    a(f"""
L_pb0:
L_pb:
s_mov_b32 {s(sS)}, {SEXP << 23}
s_mov_b32 {s(sSelLo)}, 0x05040100
s_mov_b32 {s(sSelHi)}, 0x07060302
s_lshr_b32 {s(sA)}, s2, 3
s_mul_i32 {s(sB)}, {s(sA)}, 43
s_lshr_b32 {s(sB)}, {s(sB)}, 9
s_mul_i32 {s(sB)}, {s(sB)}, 12
s_sub_u32 {s(sRot)}, {s(sA)}, {s(sB)}       ; (wg>>3) % 12
v_bfe_u32 v1, v0, 3, 1
v_lshrrev_b32 v2, 5, v0          ; ch'
v_bfe_u32 v3, v0, 4, 1           ; dyp
v_bfe_u32 v4, v0, 2, 1           ; oy
v_sub_u32 v3, v3, v4             ; dyp-oy
v_and_b32 v4, 3, v0
v_mul_u32_u24 v5, {TU - TL}, v1
v_lshl_add_u32 v5, v4, 4, v5
v_add_u32 v5, {TL}, v5
v_cmp_eq_u32 s[56:57], v1, v2
v_add_u32 v6, 0, v3
v_cmp_gt_u32 vcc, 5, v6
v_lshl_add_u32 v7, v6, 6, v5
s_and_b64 vcc, vcc, s[56:57]
v_cndmask_b32 {v(vTa)}, v10, v7, vcc
v_add_u32 v6, 2, v3
v_lshl_add_u32 v7, v6, 6, v5
v_cndmask_b32 {v(vTa + 1)}, v10, v7, s[56:57]
v_add_u32 v6, 4, v3
v_cmp_gt_u32 vcc, 5, v6
v_lshl_add_u32 v7, v6, 6, v5
s_and_b64 vcc, vcc, s[56:57]
v_cndmask_b32 {v(vTa + 2)}, v10, v7, vcc
v_mul_u32_u24 v2, {2 * OS}, v2
v_and_b32 v3, 7, v0
v_lshl_add_u32 {v(vCv)}, v3, 3, v2
v_mul_u32_u24 v3, 768, v3
v_mul_u32_u24 v4, {2 * ROWB}, v1
v_xor_b32 v4, {s(sR2)}, v4
v_add_u32 v3, v3, v4
v_lshrrev_b32 v4, 4, v0
v_lshl_add_u32 {v(vXoff)}, v4, 4, v3
{XADJ}
v_bfe_u32 v3, v0, 4, 1
v_mul_u32_u24 v3, {RS}, v3
v_add_u32 {v(vCv)}, {v(vCv)}, v3
v_cmp_eq_u32 s[56:57], 1, v1
v_and_b32 v5, 1, v12
v_mul_u32_u24 v5, {RS}, v5
v_mul_u32_u24 v6, {OS}, v13
v_add_u32 {v(vSt)}, v5, v6
s_sub_u32 {s(sA)}, 7, {s(sWave)}
s_cmp_eq_u32 {s(sF)}, 0
s_cselect_b32 {s(sA)}, {s(sWave)}, {s(sA)}
s_cselect_b32 {s(sB)}, 0, {ROWB}
s_cselect_b32 {s(sC)}, {ROWB}, 0
s_lshl_b32 {s(sA)}, {s(sA)}, 2
s_add_u32 {s(sA)}, {s(sA)}, {s(sY0)}
s_lshl_b32 {s(sA)}, {s(sA)}, 9
s_add_u32 {s(sA)}, {s(sA)}, {s(sX0)}
s_mul_i32 {s(sA)}, {s(sA)}, 192
s_add_u32 {s(sNB)}, {s(sA)}, {s(sB)}
s_add_u32 {s(sNB + 1)}, {s(sA)}, {s(sC)}
s_add_u32 {s(sTB)}, {s(sNB)}, 384
s_add_u32 {s(sTB + 1)}, {s(sNB + 1)}, 384
s_cmp_lt_u32 {s(sPair)}, {NPRE}
s_cbranch_scc1 L_perm
{"s_barrier" if LBAR else ""}
s_cmp_lt_u32 {s(sPair)}, 4
s_cbranch_scc1 L_xload
""")
    wait_count(a, "L_wraw", F_WRAW, 1)
    for r in range(2):
        b = 128 + 16 * r
        a(f"""
v_add_u32 v1, {256 * r}, v15         ; task
v_mul_u32_u24 v{b}, 683, v1
v_lshrrev_b32 v{b}, 16, v{b}         ; dy
v_mul_u32_u24 v{b + 1}, 96, v{b}
v_sub_u32 v{b + 1}, v1, v{b + 1}     ; c
v_mul_u32_u24 v2, 960, v{b}
v_lshl_add_u32 v2, v{b + 1}, 1, v2
v_add_u32 v2, {WTMP}, v2
v_add_u32 v1, -1, v{b}
v_mul_u32_u24 v3, 576, v1
v_lshl_add_u32 v3, v{b + 1}, 1, v3
v_add_u32 v3, {WTMP + 5120}, v3
v_cmp_gt_u32 vcc, 3, v1
s_nop 1
v_cndmask_b32 v3, v10, v3, vcc
""")
        for jx in range(5):
            a(f"ds_read_u16 v{b + 4 + jx}, v2 offset:{192 * jx}")
        for jx in range(3):
            a(f"ds_read_u16 v{b + 9 + jx}, v3 offset:{192 * jx}")
    a("s_waitcnt lgkmcnt(0)")
    for r in range(2):
        b = 128 + 16 * r
        w = b + 4
        o = 160 + 16 * r
        for jx in range(8):
            a(f"v_lshlrev_b32 v{w + jx}, 16, v{w + jx}")
        a(f"""
v_add_f32 v{w + 1}, v{w + 1}, v{w + 5}
v_add_f32 v{w + 2}, v{w + 2}, v{w + 6}
v_add_f32 v{w + 3}, v{w + 3}, v{w + 7}
v_mul_f32 v{w}, {f32(2.0 ** -TSC)}, v{w}
v_mul_f32 v{w + 1}, {f32(2.0 ** -TSC)}, v{w + 1}
v_mul_f32 v{w + 2}, {f32(2.0 ** -TSC)}, v{w + 2}
v_mul_f32 v{w + 3}, {f32(2.0 ** -TSC)}, v{w + 3}
v_mul_f32 v{w + 4}, {f32(2.0 ** -TSC)}, v{w + 4}
v_mov_b32 v1, 0
v_cvt_pk_bf16_f32 v{o}, v{w}, v{w + 1}
v_cvt_pk_bf16_f32 v{o + 1}, v{w + 2}, v{w + 3}
v_cvt_pk_bf16_f32 v{o + 2}, v{w + 4}, v1
v_mov_b32 v{o + 3}, 0
v_cvt_pk_bf16_f32 v{o + 4}, v1, v{w}
v_cvt_pk_bf16_f32 v{o + 5}, v{w + 1}, v{w + 2}
v_cvt_pk_bf16_f32 v{o + 6}, v{w + 3}, v{w + 4}
v_mov_b32 v{o + 7}, 0
v_mov_b32 v{o + 8}, 0
v_mov_b32 v{o + 9}, v{o}
v_mov_b32 v{o + 10}, v{o + 1}
v_mov_b32 v{o + 11}, v{o + 2}
v_mov_b32 v{o + 12}, 0
v_mov_b32 v{o + 13}, v{o + 4}
v_mov_b32 v{o + 14}, v{o + 5}
v_mov_b32 v{o + 15}, v{o + 6}
v_lshrrev_b32 v2, 5, v{b + 1}
v_and_b32 v3, 15, v{b + 1}
v_lshl_add_u32 v2, v2, 4, v3
v_mul_u32_u24 v2, 320, v2
v_bfe_u32 v3, v{b + 1}, 4, 1
v_mul_u32_u24 v3, {TU - TL}, v3
v_add_u32 v2, v2, v3
v_sub_u32 v3, 4, v{b}
s_cmp_eq_u32 {s(sF)}, 0
s_cselect_b64 vcc, -1, 0
v_cndmask_b32 v3, v3, v{b}, vcc
v_lshl_add_u32 v2, v3, 6, v2
v_add_u32 v2, {TL}, v2
v_cmp_gt_u32 vcc, 5, v{b}
s_nop 1
v_cndmask_b32 v2, v10, v2, vcc
ds_write_b128 v2, v[{o}:{o + 3}]
ds_write_b128 v2, v[{o + 4}:{o + 7}] offset:16
ds_write_b128 v2, v[{o + 8}:{o + 11}] offset:32
ds_write_b128 v2, v[{o + 12}:{o + 15}] offset:48
""")
    count(a, F_TRDY)
    a(f"s_cmp_lt_u32 {s(sPair)}, 6\ns_cbranch_scc1 L_xload")
    table(a, 0, "a")
    count(a, F_INIT)
    a("L_xload:")
    stamp(a, 13)
    wait_count(a, "L_wiss", F_ISS, s(sPair))
    stamp(a, 9)
    if CPF == "4":
        a(f"s_cmp_lg_u32 {s(sPair)}, 5\ns_cbranch_scc1 L_nocpb")
        NPF["b"] = 2
        code_pf(a, "b", "L_loader", "L_end", 20)
        a("L_nocpb:")
    if CPF == "2":
        a(f"s_cmp_eq_u32 {s(sPair)}, 8\ns_cbranch_scc1 L_nocpb\ns_bitcmp1_b32 {s(sPair)}, 0\ns_cbranch_scc1 L_nocpb")
        code_pf(a, "b", "L_wt", "L_end")
        a("L_nocpb:")
    issue_loads(a)
    a(f"""
s_add_u32 {s(sA)}, {s(sPair)}, 1
v_mov_b32 {v(vT1)}, {s(sA)}
ds_write_b32 {v(vT0)}, {v(vT1)}
""")
    stamp(a, 11)
    a("L_perm:")


def slot_of(a, dst, src):
    a(f"""
s_lshl_b32 {s(dst)}, {src}, 1
s_lshr_b32 {s(dst)}, {sum(x << (2 * i) for i, x in enumerate(SLOTS))}, {s(dst)}
s_and_b32 {s(dst)}, {s(dst)}, 3
s_cmp_eq_u32 {s(dst)}, 3
s_mul_i32 {s(dst)}, {s(dst)}, {SS}
s_cselect_b32 {s(dst + 1)}, {R3U - RU}, {s(dst)}
s_cselect_b32 {s(dst)}, {R3L - RL}, {s(dst)}
s_add_u32 {s(dst)}, {s(dst)}, {RL}
s_add_u32 {s(dst + 1)}, {s(dst + 1)}, {RU}
""")


def goff(g, base):
    tp, Q = divmod(g, 4)
    return f"{s(base + (Q >> 1))} offen offset:{192 * (Q & 1) + 64 * tp}"


def poff(t):
    return [f"v_lshrrev_b32 {v(t)}, 7, {v(vL16)}",
            f"v_mul_u32_u24 {v(t)}, 640, {v(t)}",
            f"v_add_u32 {v(t)}, {v(t)}, {v(vL16)}",
            f"v_add_u32 {v(t + 1)}, {2 * ROWB}, {v(t)}"]


def poffn(t):
    return [f"v_bfe_u32 {v(t)}, {v(vL16)}, 4, 3",
            f"v_mul_u32_u24 {v(t)}, 768, {v(t)}",
            f"v_bfe_u32 {v(t + 1)}, {v(vL16)}, 7, 1",
            f"v_lshl_add_u32 {v(t)}, {v(t + 1)}, 6, {v(t)}",
            f"v_lshrrev_b32 {v(t + 1)}, 8, {v(vL16)}",
            f"v_lshl_add_u32 {v(t)}, {v(t + 1)}, 4, {v(t)}",
            f"v_add_u32 {v(t)}, {s(sR2)}, {v(t)}",
            f"v_xor_b32 {v(t + 1)}, {2 * ROWB}, {v(t)}"]


def paddr(g, t):
    r, ln = divmod(g, 3)
    return f"{v(t + (r >> 1))}, {s(sO, 4)}, {s(sNB + (r & 1))} offen offset:{128 * ln}"


def park(a, t):
    for tx in poff(t):
        a(tx)
    for g in range(0 if NOPARK else 12):
        a(f"buffer_store_dwordx4 {v(X + 4 * g, 4)}, {paddr(g, t)}{PKF}")


def phase1(a):
    def oreg(rnd):
        return SB + (144 if rnd == 0 else 16 * (rnd - 1))

    def perms(rnd):
        a(f"s_waitcnt vmcnt({32 - 4 * rnd})")
        L = SB + 16 * rnd
        O = oreg(rnd)
        for d in range(4):
            a(f"v_perm_b32 {v(O + 4 * d)}, {v(L + 4 + d)}, {v(L + d)}, {s(sSelLo)}")
            a(f"v_perm_b32 {v(O + 4 * d + 1)}, {v(L + 12 + d)}, {v(L + 8 + d)}, {s(sSelLo)}")
            a(f"v_perm_b32 {v(O + 4 * d + 2)}, {v(L + 4 + d)}, {v(L + d)}, {s(sSelHi)}")
            a(f"v_perm_b32 {v(O + 4 * d + 3)}, {v(L + 12 + d)}, {v(L + 8 + d)}, {s(sSelHi)}")
            if ILV:
                writes(rnd, d)

    def writes(rnd, d):
        O = oreg(rnd)
        a(f"ds_write_b64 {v(vT0)}, {v(O + 4 * d, 2)} offset:{8 * rnd + 2 * d * 72}")
        a(f"ds_write_b64 {v(vT0)}, {v(O + 4 * d + 2, 2)} offset:{8 * rnd + (2 * d + 1) * 72}")

    if not ILV:
        a(f"s_mov_b32 exec_hi, {EXH}")
        for rnd in range(9):
            perms(rnd)
        a("s_mov_b32 exec_hi, -1")
    stamp(a, 1)
    a(f"s_cmp_lg_u32 {s(sPair)}, 3\ns_cbranch_scc1 L_wt3_ok")
    wait_count(a, "L_wt3", F_TRDY, 4)
    a(f"""
s_lshr_b32 {s(sA)}, {sum((PRED[k] - (k - 4)) << k for k in range(9))}, {s(sPair)}
s_and_b32 {s(sA)}, {s(sA)}, 1
s_add_u32 {s(sA)}, {s(sA)}, {s(sPair)}
s_lshl_b32 {s(sA)}, {s(sA)}, 3
s_add_u32 {s(sA)}, {s(sA)}, {F_DONE + 4}
""")
    wait_flags(a, "L_wslot", s(sA))
    stamp(a, 2)
    slot_of(a, sR, s(sPair))
    a(f"""
v_add_u32 {v(vT0)}, {s(sR)}, {v(vSt)}
v_add_u32 {v(vT1)}, {s(sR + 1)}, {v(vSt)}
v_cndmask_b32 {v(vT0)}, {v(vT1)}, {v(vT0)}, s[58:59]
s_mov_b32 exec_hi, {EXH}
""")
    for rnd in range(9):
        if ILV:
            perms(rnd)
        else:
            for d in range(4):
                writes(rnd, d)
    a(f"""
s_mov_b32 exec_hi, -1
s_lshl_b32 {s(sA)}, {s(sPair)}, 2
s_add_u32 {s(sA)}, {s(sA)}, {F_STG}
v_mov_b32 {v(vT0)}, {s(sA)}
v_mov_b32 {v(vT1)}, 1
s_waitcnt lgkmcnt(0)
ds_write_b32 {v(vT0)}, {v(vT1)}
""")
    if OWN:
        a(f"s_cmp_eq_u32 {s(sPair)}, 0\ns_cselect_b32 {s(sPair)}, 8, {s(sPair)}\ns_cbranch_scc1 L_xload")
    else:
        a(f"s_cmp_eq_u32 {s(sPair)}, 8\ns_cbranch_scc1 L_loader")
    stamp(a, 4)
    if W0P:
        a(f"s_cmp_lt_u32 {s(sWave)}, {W0P}\ns_cbranch_scc1 L_hp1")
    a(f"s_setprio {PCV}\nL_hp1:")
    if OWN:
        a(f"s_mov_b32 {s(sR + 2)}, {s(sR)}\ns_mov_b32 {s(sR + 3)}, {s(sR + 1)}\ns_sub_u32 {s(sA)}, {s(sA)}, 4")
        slot_of(a, sR, s(sWave))
    else:
        a(f"s_add_u32 {s(sB)}, {s(sPair)}, 1")
        slot_of(a, sR + 2, s(sB))
    for z in range(4):
        a(f"v_add_u32 {v(TMP + z)}, {s(sR + z)}, {v(vCv)}")
    for z in range(3):
        a(f"v_cndmask_b32 {v(vCA + z)}, {v(TMP + z)}, {v(TMP + z + 1)}, s[56:57]")
    wait_count(a, "L_wt", F_TRDY, 4)
    stamp(a, 5)

    def other_quad():
        wait_flags(a, "L_wrdy", s(sA))
        stamp(a, 3)
        a(f"""
s_lshl_b32 {s(sA)}, {s(sWave)}, 3
s_add_u32 {s(sA)}, {s(sA)}, {F_DONE + 40}
v_mov_b32 {v(vT0)}, {s(sA)}
v_mov_b32 {v(vT1)}, 1
""")

    if OWN:
        other_quad()
    NST = 144

    def cread(i):
        z, q = divmod(i, 48)
        r = DS + 4 * (i % NSL)
        if R2:
            o = (coff(kap(0, q)) - 4 * OS * (q // 16)) // 8
            pre = f"v_add_u32 {v(vCA + z)}, {4 * OS}, {v(vCA + z)}\n" if q in (16, 32) else ""
            return (pre + f"ds_read_b128 {v(TS + 4 * (i % NSL), 4)}, {v(vTa + z)} offset:{320 * q}\n"
                    f"ds_read2_b64 {v(r, 4)}, {v(vCA + z)} offset0:{o} offset1:{o + 1}")
        CX = E("CX")
        if CX == "1" and i >= NSL:
            dm = "\n".join(f"v_mov_b32 {v(TMP + k)}, {v(vL16)}" for k in range(3 - (i % 3 == 0)))
            t = f"ds_read_b128 {v(TS + 4 * (i % NSL), 4)}, {v(vTa + z)} offset:{320 * q}\n"
            if i % 3:
                t += (f"ds_read_b64 {v(r, 2)}, {v(vCA + z)} offset:{coff(kap(0, q))}\n"
                      f"ds_read_b64 {v(r + 2, 2)}, {v(vCA + z)} offset:{coff(kap(0, q)) + 8}\n")
            return t + dm
        if CX == "2" and i >= NSL:
            return (f"ds_read_b128 {v(TS + 4 * (i % NSL), 4)}, {v(vTa + z)} offset:{320 * q}\n"
                    f"ds_read_b64 {v(r, 2)}, {v(vCA + z)} offset:{coff(kap(0, q))}")
        return (f"ds_read_b128 {v(TS + 4 * (i % NSL), 4)}, {v(vTa + z)} offset:{320 * q}\n"
                f"ds_read_b64 {v(r, 2)}, {v(vCA + z)} offset:{coff(kap(0, q))}\n"
                f"ds_read_b64 {v(r + 2, 2)}, {v(vCA + z)} offset:{coff(kap(0, q)) + 8}")

    def stats_pk(q):
        out = []
        for r in (0, 2):
            acc = 4 * q + r
            if q == 0:
                out.append(f"v_pk_add_f32 {v(TMP + r, 2)}, {v(acc, 2)}, {v(acc + 4, 2)}")
                out.append(f"v_pk_mul_f32 {v(TMP + 4 + r, 2)}, {v(acc, 2)}, {v(acc, 2)}")
            else:
                if q > 1 and not E("LX"):
                    out.append(f"v_pk_add_f32 {v(TMP + r, 2)}, {v(TMP + r, 2)}, {v(acc, 2)}")
                out.append(f"v_pk_fma_f32 {v(TMP + 4 + r, 2)}, {v(acc, 2)}, {v(acc, 2)}, {v(TMP + 4 + r, 2)}")
        return out

    def stats(q):
        out = []
        for r in range(4):
            acc = 4 * q + r
            if q == 0:
                out.append(f"v_mov_b32 {v(TMP + r)}, {v(acc)}")
                out.append(f"v_mul_f32 {v(TMP + 4 + r)}, {v(acc)}, {v(acc)}")
            else:
                out.append(f"v_add_f32 {v(TMP + r)}, {v(TMP + r)}, {v(acc)}")
                out.append(f"v_fmac_f32 {v(TMP + 4 + r)}, {v(acc)}, {v(acc)}")
        return out

    SLAG = 3
    for i in range(NE + 1):
        a(cread(i))
    for i in range(NST):
        z, q = divmod(i, 48)
        left = min(i + NE + 1, NST) - (i + 1)
        if CW == 1:
            a(f"s_waitcnt lgkmcnt({0 if i == NST - 2 else (3 - R2) * left - (i in (97,98,99,100))*0})")
        elif i % 2 == 0:
            a(f"s_waitcnt lgkmcnt({(3 - R2) * max(left - 1, 0)})")
        if i == 96:
            a(f"ds_write_b32 {v(vT0)}, {v(vT1)}")
        c = "0" if z == 0 else v(4 * q, 4)
        a(f"v_mfma_f32_16x16x32_bf16 {v(4 * q, 4)}, {v(TS + 4 * (i % NSL), 4)}, {v(DS + 4 * (i % NSL), 4)}, {c}")
        if i + NE + 1 < NST:
            if i == (96 if CW == 1 else 97) and not R2:
                a("s_waitcnt lgkmcnt(12)")
            if i == 43 and not OWN:
                other_quad()
            a(cread(i + NE + 1))
        if i == NST - 2:
            a(f"ds_write_b32 {v(vT0)}, {v(vT1)} offset:4")
        if not PKS and i >= 96 + SLAG:
            for tx in stats(i - 96 - SLAG):
                a(tx)
    if W0P:
        a(f"s_cmp_lt_u32 {s(sWave)}, {W0P}\ns_cbranch_scc1 L_hp2")
    a(f"s_setprio {PLN}\nL_hp2:")
    if WPF >= 0:
        a(f"""
s_cmp_lg_u32 {s(sWave)}, {WPF}
s_cbranch_scc1 L_nopf
s_lshr_b32 {s(sA)}, s2, 3
s_mul_i32 {s(sA)}, {s(sA)}, 2304
v_lshlrev_b32 v230, 2, {v(vL16)}
buffer_load_dword v231, v230, {s(sI1, 4)}, {s(sA)} offen
buffer_load_dword v231, v230, {s(sI2, 4)}, {s(sA)} offen
L_nopf:
""")
    stamp(a, 8)
    if PKS:
        for q in range(48):
            for tx in (stats(q) if E("STP") else stats_pk(q)):
                a(tx)
    else:
        for q in range(48 - SLAG, 48):
            for tx in stats(q):
                a(tx)
    stamp(a, 6)
    s1, s2 = TMP, TMP + 4
    a(f"""
s_nop 1
v_permlane32_swap_b32 {v(s1)}, {v(s1 + 1)}
v_permlane32_swap_b32 {v(s1 + 2)}, {v(s1 + 3)}
v_permlane32_swap_b32 {v(s2)}, {v(s2 + 1)}
v_permlane32_swap_b32 {v(s2 + 2)}, {v(s2 + 3)}
""")
    for e in (0, 2):
        m, w_ = s1 + e, s2 + e
        a(f"""
v_add_f32 {v(m)}, {v(m)}, {v(m + 1)}
v_add_f32 {v(w_)}, {v(w_)}, {v(w_ + 1)}
v_mul_f32 {v(m)}, {f32(1.0 / 96)}, {v(m)}
v_mul_f32 {v(w_)}, {f32(1.0 / 96)}, {v(w_)}
v_fma_f32 {v(w_)}, -{v(m)}, {v(m)}, {v(w_)}
v_max_f32 {v(w_)}, 0, {v(w_)}
v_add_f32 {v(w_)}, {f32(1e-5 * 2.0 ** (-2 * TSC))}, {v(w_)}
v_rsq_f32 {v(w_)}, {v(w_)}
s_nop 0
v_mul_f32 {v(m)}, {v(m)}, {v(w_)}
v_mul_f32 {v(w_)}, {f32(2.0 ** -SEXP)}, {v(w_)}
v_mul_f32 {v(m)}, {f32(-2.0 ** -SEXP)}, {v(m)}
v_mov_b32 {v(w_ + 1)}, {v(w_)}
v_mov_b32 {v(m + 1)}, {v(m)}
""")
    a(f"""
s_nop 1
v_permlane32_swap_b32 {v(s1)}, {v(s1 + 1)}
v_permlane32_swap_b32 {v(s1 + 2)}, {v(s1 + 3)}
v_permlane32_swap_b32 {v(s2)}, {v(s2 + 1)}
v_permlane32_swap_b32 {v(s2 + 2)}, {v(s2 + 3)}
""")
    for ks in range(3):
        for q in range(16 * ks, 16 * ks + 16):
            if PKN:
                for r in (0, 2):
                    acc = 4 * q + r
                    a(f"v_pk_fma_f32 {v(acc, 2)}, {v(acc, 2)}, {v(s2 + r, 2)}, {v(s1 + r, 2)}")
            else:
                for r in range(4):
                    acc = 4 * q + r
                    a(f"v_fma_f32 {v(acc)}, {v(acc)}, {v(s2 + r)}, {v(s1 + r)}")
        ta = (192, X, X + 16)[ks]
        tb = 208 if ks == 0 else 16 * ks
        for r in range(4):
            base = ta if r < 2 else tb
            for sel in range(2):
                for d in range(4):
                    qp = 8 * ks + 4 * sel + d
                    a(f"v_cvt_pk_bf16_f32 {v(base + 8 * sel + 4 * (r & 1) + d)}, {v(8 * qp + r)}, {v(8 * qp + 4 + r)}")
        a("s_nop 0")
        for base in (ta, tb):
            for i in range(8):
                a(f"v_permlane16_swap_b32 {v(base + i)}, {v(base + 8 + i)}")
        if ks == 0:
            for i in range(16):
                a(f"v_mov_b32 {v(i)}, {v(208 + i)}")
        if ks == 1:
            for i in range(16):
                a(f"v_mov_b32 {v(X + 32 + i)}, {v(192 + i)}")
    stamp(a, 7)
    if DIAG:
        a(f"s_mov_b32 s62, {s(sWave)}")
    stamp_flush(a, 14, 0)
    if OWN:
        a(f"""
s_mov_b32 {s(sMode)}, 1
s_cmp_lg_u32 {s(sWave)}, 0
s_cbranch_scc1 L_p2
s_setprio 3
L_loader:
""")
        load_groups(a, tuple(range(NLW, 4)), 200)
        return
    a(f"""
s_mov_b32 {s(sPair)}, 8
s_mov_b32 {s(sMode)}, 1
s_sub_u32 {s(sA)}, {s(sWave)}, 1
s_cmp_lt_u32 {s(sA)}, {DEFER - 1}
s_cbranch_scc1 L_p2
s_mov_b32 {s(sMode)}, 0
""")
    park(a, TMP)
    a(f"""
s_cmp_lg_u32 {s(sWave)}, 0
s_cbranch_scc1 L_p2
s_setprio 3
s_branch L_xload
L_loader:
""")
    load_groups(a, tuple(range(NLW, 4)), 60)


GROUPS = [(0, 5), (5, 4), (9, 5), (14, 10)]


def load_groups(a, gs, r):
    scan = DYN and 3 in gs
    m, z, D = (r + 16, r + 17), r + 18, 96

    def scan_group(gi):
        n0, n = GROUPS[gi]
        st = Stream(a)
        regs = []
        for tp, c in PIECES[n0:n0 + n]:
            if tp == 1:
                zone, ad, dz = piece_addr(tp, c)
                for par in range(2):
                    for i in range(6):
                        ar, off = (z + 2, ad - E1 + par * dz) if zone else (z + par, ad)
                        regs.append((D + 2 * len(regs), f"{v(ar)} offset:{off + 512 * i}"))
        lag = 10
        for k in range(len(regs) + lag):
            if k < len(regs):
                st(f"ds_read_b64 {v(regs[k][0], 2)}, {regs[k][1]}")
            if k >= lag:
                for e in range(2):
                    x = v(regs[k - lag][0] + e)
                    st(f"v_pk_maximum3_f16 {v(m[e])}, {v(m[e])}, {x}, {x} neg_lo:[0,0,1] neg_hi:[0,0,1]")

    dma_consts(a, r)
    if scan:
        a(f"""
v_mov_b32 {v(m[0])}, 0
v_mov_b32 {v(m[1])}, 0
v_lshrrev_b32 {v(z)}, 1, {v(vL16)}
v_add_u32 {v(z + 1)}, {DZ}, {v(z)}
v_add_u32 {v(z + 2)}, {E1}, {v(z)}
""")
    for gi in gs:
        n0, n = GROUPS[gi]
        wait_flags(a, f"L_wg{gi}", F_DONE + 4 + 8 * (LASTQ[gi] + 4))
        for tp, c in PIECES[n0:n0 + n]:
            dma_piece(a, tp, c, r)
        if gi == gs[0] and gi:
            wait_count(a, f"L_wo{gi}", F_RDY, n0)
        if scan:
            for gj in (range(gi) if gi == gs[0] else [gi - 1]):
                scan_group(gj)
        a(f"v_mov_b32 {v(vT0)}, {F_RDY}")
        for i in range(n):
            a(f"v_mov_b32 {v(r + 4 + i)}, {n0 + i + 1}")
            a(f"s_waitcnt vmcnt({6 * (n - 1 - i)})")
            a(f"ds_write_b32 {v(vT0)}, {v(r + 4 + i)}")
    if scan:
        a("s_waitcnt lgkmcnt(0)")
        scan_group(3)
        a(f"""
v_and_b32 {v(m[0])}, 0x7fff7fff, {v(m[0])}
v_and_b32 {v(m[1])}, 0x7fff7fff, {v(m[1])}
v_pk_max_u16 {v(m[0])}, {v(m[0])}, {v(m[1])}
s_nop 0
v_lshrrev_b32 {v(m[1])}, 16, {v(m[0])}
v_and_b32 {v(m[0])}, 0xffff, {v(m[0])}
v_max_u32 {v(m[0])}, {v(m[0])}, {v(m[1])}
ds_max_u32 {v(vT0)}, {v(m[0])} offset:{F_WMAX - F_RDY}
ds_read_b32 {v(vT1)}, {v(vT0)} offset:{F_WMAX - F_RDY}
s_waitcnt lgkmcnt(0)
v_readfirstlane_b32 {s(sA)}, {v(vT1)}
s_lshr_b32 {s(sA)}, {s(sA)}, 7
s_max_u32 {s(sA)}, {s(sA)}, {NBIN - 8 + 1}
s_min_u32 {s(sA)}, {s(sA)}, {NBIN - 8 + 120}
s_sub_u32 {s(sA)}, {s(sA)}, {NBIN - 8}
s_sub_u32 {s(sB)}, {SEXP}, {s(sA)}
s_cmp_le_u32 {s(sB)}, {SBAND}
s_cselect_b32 {s(sA)}, {SEXP}, {s(sA)}
s_lshl_b32 {s(sA)}, {s(sA)}, 8
v_mov_b32 {v(vT1)}, {s(sA)}
ds_write_b32 {v(vT0)}, {v(vT1)}
""")


class Stream:
    def __init__(self, a):
        self.a = a
        self.out = []
        self.nops = 0

    def __call__(self, tx):
        for ln in tx.split("\n"):
            i = Ins(ln)
            if i.states == 0:
                self.a(ln)
                continue
            touch = (i.rd | i.wr) if i.kind != "lds" else set(i.rd)
            need = -1
            for k, d in enumerate(self.out):
                if d & touch:
                    need = k
            if need >= 0:
                n = min(len(self.out) - 1 - need, 14)
                n = min(n, WCAP)
                self.a(f"s_waitcnt lgkmcnt({n})")
                self.out = self.out[len(self.out) - n:] if n else []
            tail = self.a.lines[-40:]
            pad = 0
            while check_hazards(tail + ([f"s_nop {pad - 1}"] if pad else []) + [ln], only_last=True):
                pad += 1
            if pad:
                self.a(f"s_nop {pad - 1}")
                self.nops += 1
            self.a(ln)
            if i.kind == "lds":
                self.out.append(set(i.wr))


PO, PY = E("PO", "1100"), E("PY", "1100")
PU1, PU2 = int(E("PU1", "12")), int(E("PU2", "20"))


PADG = """s_cmp_lg_u32 s16, 7
s_cbranch_scc1 L_end
v_mov_b32 v20, 0
v_mov_b32 v21, 0
s_mov_b64 exec, 1
buffer_atomic_or v20, v21, s[88:91], 0 offen sc0
s_waitcnt vmcnt(0)
v_readfirstlane_b32 s92, v20
s_not_b32 s92, s92""" if E("PADG") else ""
PAD = f"""L_pad:
{PADG}
L_pad2:
s_sleep 4
s_memrealtime s[94:95]
s_waitcnt lgkmcnt(0)
s_sub_u32 s94, s94, s92
s_cmp_lt_u32 s94, {int(float(E("PADT", "0")) * 100)}
s_cbranch_scc1 L_pad2""" if E("PADT") else ""


def prio(k):
    if k and PO[k] == PO[k - 1] and PY[k] == PY[k - 1]:
        return ""
    if PO[k] == PY[k]:
        return f"s_setprio {PO[k]}"
    return f"""s_setprio {PO[k]}
s_cmp_lt_u32 {s(sWave)}, 4
s_cbranch_scc1 L_pr{k}
s_setprio {PY[k]}
L_pr{k}:"""


IDENT = f"""v_lshrrev_b32 v{ACC}, 8, {v(vL16)}
v_bfe_u32 v{ACC + 1}, {v(vL16)}, 6, 2
v_cmp_eq_u32 vcc, v{ACC}, v{ACC + 1}
v_and_b32 v{ACC}, 16, {v(vL16)}
v_mov_b32 v{ACC + 1}, 0x3f80
v_lshlrev_b32 v{ACC}, v{ACC}, v{ACC + 1}
v_cndmask_b32 v{ACC}, 0, v{ACC}, vcc
v_and_b32 v{ACC + 1}, 32, {v(vL16)}
v_cmp_eq_u32 vcc, 0, v{ACC + 1}
s_nop 1
v_cndmask_b32 v{vID}, 0, v{ACC}, vcc
v_sub_u32 v{vID + 1}, v{ACC}, v{vID}""" if RES == "mfma" else ""


def phase2(a):
    SH = "dst_sel:DWORD dst_unused:UNUSED_PAD src0_sel:DWORD src1_sel:WORD_1"
    t0, t1 = ACC, ACC + 1
    a("L_p2:")
    for g in range(NLW):
        a(f"s_cmp_lg_u32 {s(sWave)}, {g + 1}\ns_cbranch_scc1 L_nodma{g}\ns_setprio 3")
        load_groups(a, (g,), ACC)
        a(f"L_nodma{g}:")
    if E("PAD1"):
        a(f"""L_pad1:
s_sleep 2
s_memrealtime s[94:95]
s_waitcnt lgkmcnt(0)
s_sub_u32 s94, s94, s92
s_cmp_lt_u32 s94, {int(float(E("PAD1")) * 100)}
s_cbranch_scc1 L_pad1""")
    wait_count(a, "L_wi", F_INIT, 2)
    a(f"""
v_bfe_u32 {v(t0)}, {v(vL16)}, 6, 2            ; r
v_and_b32 {v(t1)}, 48, {v(vL16)}              ; 16c'
v_lshrrev_b32 {v(t1 + 1)}, 9, {v(vL16)}         ; g>>1
v_lshl_add_u32 {v(t0)}, {v(t1 + 1)}, 3, {v(t0)}   ; row = 8(g>>1) + r
v_lshl_add_u32 {v(vA[1])}, {v(t0)}, 6, {v(t1)}
v_mul_u32_u24 {v(t0)}, 192, {v(t0)}
v_add_u32 {v(vA[2])}, {v(t0)}, {v(t1)}
v_bfe_u32 {v(t0)}, {v(vL16)}, 8, 1            ; g&1
v_mul_u32_u24 {v(t1)}, {DZ}, {v(t0)}
v_add_u32 {v(vA[1])}, {v(vA[1])}, {v(t1)}
v_add_u32 {v(vA[2])}, {v(vA[2])}, {v(t1)}
{IDENT}
s_mov_b32 {s(cNB)}, {h2(-BETA)}
s_mov_b32 {s(cS)}, {h2(SC)}
s_add_u32 {s(cK)}, {s(sS)}, {f32(SC)}
s_mov_b32 {s(cLo)}, 0x00003f80
s_mov_b32 {s(cHi)}, 0x3f800000
s_mov_b32 {s(sTile)}, 0
s_mov_b32 {s(sRdy)}, 0
s_mov_b32 {s(sFix)}, 0
{chr(10).join(f"v_mov_b32 v{XR + i}, 0" for i in range(8)) if E("NOXL") else ""}
{prio(0)}
L_mtile:
""")
    stamp(a, 2)
    stamp_rt(a, 13)
    if E("XL128"):
        for tx in (poff if E("XL128") == "1" else poffn)(XR):
            a(tx)
        a(f"v_mov_b32 {v(vXoff)}, {v(XR)}\ns_mov_b32 s88, {s(sTB)}\ns_mov_b32 s89, {s(sTB + 1)}\ns_add_u32 s90, s88, {2 * ROWB}\ns_add_u32 s91, s89, {2 * ROWB}")
    st = Stream(a)
    zone_now = {1: 0, 2: 0}
    seen = [0]

    def slot(f):
        return WS + 4 * (FRAGS.index(f) % NWS)

    cold = Asm()

    def rd(f, hf):
        tp, n = f
        c, k = divmod(n, 6)
        zone, ad, _ = piece_addr(tp, c)
        base = slot(f)
        if zone != zone_now[tp]:
            zone_now[tp] = zone
            st(f"v_bfe_u32 {v(base)}, {v(vL16)}, 8, 1")
            st(f"v_mul_u32_u24 {v(base)}, {DZ - DZ1}, {v(base)}")
            st(f"v_subrev_u32 {v(base)}, {E1}, {v(base)}")
            st(f"v_{'sub' if zone else 'add'}_u32 {v(vA[tp])}, {v(vA[tp])}, {v(base)}")
        need = PIECES.index((tp, c)) + 1
        if need > seen[0]:
            if need > 4:
                need = min(need + 1, 24)
            seen[0] = need
            if need == 24 and DYN:
                need = 25
            lb = f"L_rd{need}"
            a(f"s_cmp_lt_u32 {s(sRdy)}, {need}\ns_cbranch_scc1 {lb}_slow\n{lb}_go:")
            cold(f"{lb}_slow:\nv_mov_b32 {v(base)}, {F_RDY}")
            spin(cold, lb, f"v_cmp_le_u32 vcc, {need}, {v(base + 1)}", base, base + 1)
            cold(f"v_readfirstlane_b32 {s(sRdy)}, {v(base + 1)}")
            if need < 25:
                cold(f"s_min_u32 {s(sRdy)}, {s(sRdy)}, 24\ns_branch {lb}_go")
            else:
                assert zone_now == {1: 0, 2: 0}
                cold(f"""
s_cmp_lt_u32 {s(sRdy)}, 256
s_cbranch_scc1 {lb}_go
s_lshl_b32 {s(sS)}, {s(sRdy)}, 15
s_cmp_eq_u32 {s(sS)}, {SEXP << 23}
s_cbranch_scc1 {lb}_go
s_waitcnt vmcnt(0) lgkmcnt(0)
s_nop 7
s_barrier
s_cmp_lt_u32 {s(sWave)}, 6
s_cbranch_scc1 L_notab
""")
                table(cold, X, "b")
                cold(f"""
L_notab:
s_add_u32 {s(cK)}, {s(sS)}, {f32(SC)}
s_sub_u32 {s(sFix)}, {(127 + SEXP) << 23}, {s(sS)}
s_waitcnt lgkmcnt(0)
s_barrier
s_branch L_mtile
""")
            if need == 1:
                stamp(a, 3)
        off = ad - (E1 if zone else 0)
        if tp == 1:
            ht, ks = divmod(k, 3)
            o = off + 1024 * ks + 256 * hf + 8 * ht
        else:
            o = off + 768 * hf + 64 * (k // 2) + 8 * (k % 2)
        assert o < 65536
        if E("BX"):
            if hf == 0:
                st(f"ds_read_b128 {v(base, 4)}, {v(vL16)} offset:{E0 + 3072 * (2 * (c % 8) + 2 - tp) + 1024 * (k % 3)}")
            return
        st(f"ds_read_b64_tr_b16 {v(base + 2 * hf, 2)}, {v(vA[tp])} offset:{o}")

    def xreg(T, Q):
        return X + 8 * (4 * (T // 2) + Q) + 4 * (T % 2)

    def mf(f, Q):
        tp, n = f
        c, k = divmod(n, 6)
        if tp == 1:
            ks = n % 3
            d = ACC + 16 * ((n // 3) % 3) + 4 * Q
            return (f"v_mfma_f32_16x16x32_bf16 {v(d, 4)}, {v(slot(f), 4)}, "
                    f"{v(H + 16 * ks + 4 * Q, 4)}, {'0' if ks == 0 else v(d, 4)}")
        d = xreg(k, Q)
        return (f"v_mfma_f32_16x16x32_bf16 {v(d, 4)}, {v(slot(f), 4)}, "
                f"{v(G + 16 * (c % 2) + 4 * Q, 4)}, {'0' if c == 0 else v(d, 4)}")

    def look(u, i):
        a0 = ACC + 16 * (u % 3) + 2 * i
        if E("NOCF") and i < int(E("NOCF")):
            return [(4, f"v_lshrrev_b32 {v(a0)}, 2, {v(vL16)}"), (4, f"v_lshrrev_b32 {v(a0 + 1)}, 2, {v(vL16)}"),
                    (0, f"ds_read_u16_d16 {v(a0)}, {v(a0)} offset:{3072 + 256 * ((u + i) % 8)}"),
                    (0, f"ds_read_u16_d16_hi {v(a0 + 1)}, {v(a0 + 1)} offset:{3074 + 256 * ((u + 3 * i) % 8)}")]
        return [(4, f"v_lshlrev_b32_sdwa {v(a0)}, 1, {v(a0)} {SH}"),
                (4, f"v_lshlrev_b32_sdwa {v(a0 + 1)}, 1, {v(a0 + 1)} {SH}"),
                (0, f"ds_read_u16_d16 {v(a0)}, {v(a0)}"),
                (0, f"ds_read_u16_d16_hi {v(a0 + 1)}, {v(a0 + 1)}")]

    def greg(u, i):
        c, ht = divmod(u, 2)
        return G + 16 * (c % 2) + 4 * (i // 2) + 2 * ht + i % 2

    def nexp(u):
        return EXPK[u % len(EXPK)]

    def comb(u, i):
        a0 = ACC + 16 * (u % 3) + 2 * i
        return [(4, f"v_or_b32 {v(greg(u, i))}, {v(a0)}, {v(a0 + 1)}")]

    def expo(u):
        LO = "dst_sel:WORD_0 dst_unused:UNUSED_PRESERVE src0_sel:WORD_0"
        HI = "dst_sel:WORD_1 dst_unused:UNUSED_PRESERVE src0_sel:WORD_1"
        ch1, ch2 = [], []
        for i in range(8 - nexp(u), 8):
            b, t, r = v(ACC + 16 * (u % 3) + 2 * i), v(ACC + 16 * (u % 3) + 2 * i + 1), v(greg(u, i))
            ch1.append([(4, f"v_fma_mixlo_f16 {b}, {b}, {s(cK)}, 0"),
                        (4, f"v_fma_mixhi_f16 {b}, {t}, {s(cK)}, 0"),
                        (4, f"v_pk_fma_f16 {t}, {b}, {b}, {s(cNB)} neg_lo:[0,1,0] neg_hi:[0,1,0]"),
                        (4, f"v_pk_mul_f16 {t}, {t}, {b}"),
                        (8, f"v_exp_f16_sdwa {t}, {t} {LO}"),
                        (8, f"v_exp_f16_sdwa {t}, {t} {HI}"),
                        (4, f"v_pk_fma_f16 {t}, {t}, {s(cS)}, {s(cS)}")])
            ch2.append([(8, f"v_rcp_f16_sdwa {t}, {t} {LO}"),
                        (8, f"v_rcp_f16_sdwa {t}, {t} {HI}"),
                        (4, f"v_fma_mix_f32 {r}, {b}, {t}, 0 op_sel_hi:[1,1,0]"),
                        (4, f"v_fma_mix_f32 {t}, {b}, {t}, 0 op_sel:[1,1,0] op_sel_hi:[1,1,0]"),
                        (4, f"v_cvt_pk_bf16_f32 {r}, {r}, {t}")])
        return ch1, ch2

    def weave(chains):
        out = []
        n = max([len(c) for c in chains], default=0)
        for k in range(n):
            need_pad = sum(1 for c in chains if k < len(c)) == 1
            out += [c[k] + (need_pad,) for c in chains if k < len(c)]
        return out

    extra = {}

    def put(u, m, tx):
        extra.setdefault((u, m), []).append(tx)

    put(23, 0, "s_waitcnt vmcnt(0)")
    for tx in poff(XR):
        put(23, 0, tx)
    for g in range(0 if NOPARK else 12):
        ks = (1, 2, 0)[g // 4]
        put(23, g, f"buffer_load_dwordx4 {v(H + 16 * ks + 4 * (g % 4), 4)}, {paddr(g, XR)}{HLF}")

    for tx in poffn(XR):
        put(24, 2, tx)
    def rgroups(rho):
        oy, ln = divmod(rho, 3)
        return [4 * (p % 3) + 2 * oy + p // 3 for p in (2 * ln, 2 * ln + 1)]

    def xload(rho):
        if E("XL128"):
            return [f"buffer_load_dwordx4 {v(XR + 4 * e, 4)}, {v(vXoff)}, {s(sX, 4)}, {s(88 + (2 * rho + e) // 3)} offen offset:{128 * ((2 * rho + e) % 3)}{XFF}" for e in range(2)]
        return [f"buffer_load_dwordx4 {v(XR + 4 * e, 4)}, {v(vXoff)}, {s(sX, 4)}, {goff(g, sTB)}{XFF}"
                for e, g in enumerate(rgroups(rho)) if not NOX and not E("NOXL")]

    def xpf(oy, t):
        return [f"v_lshrrev_b32 {v(t)}, 8, {v(vL16)}",
                f"v_mul_u32_u24 {v(t)}, 112, {v(t)}",
                f"s_mov_b32 m0, {L_JUNK}",
                f"v_add_u32 {v(t)}, {v(t)}, {v(vXoff)}",
                f"buffer_load_dword {v(t)}, {s(sX, 4)}, {s(sTB + oy)} offen{XPFF} lds"]

    if XPF:
        for tx in xpf(0, XR):
            put(-1, 0, tx)
        if XPF == 2:
            for tx in xpf(1, XR):
                put(-1, 1, tx)
    for tx in xload(0):
        put(RU0 - 3 - (RES != "dot"), 22, tx)
    for rho in range(6 if RES == "plain" else 0):
        for e, g in enumerate(rgroups(rho)):
            u = RU0 - 1 + 3 * rho + e
            act = {f[1] % 6: 4 * i for i, f in enumerate(STEPS[u]) if f[0] == 2}
            tp, Q = divmod(g, 4)
            W = 8 // RPG
            starts = {}
            for tl in range(2):
                T = 2 * tp + tl
                m = 3
                while any(abs(m - x) < W for x in starts.values()) or (T in act and act[T] + Q - W - 1 < m < act[T] + Q + 4):
                    m += 1
                assert m + W <= 23, (u, T, m)
                starts[tl] = m
            prev = None
            for tl in sorted(starts, key=starts.get):
                ops = []
                for h in range(2):
                    P, d = XR + 4 * e + 2 * tl + h, xreg(2 * tp + tl, Q) + 2 * h
                    if prev is None:
                        ops += [f"v_dot2_f32_bf16 {v(d + 1)}, {v(P)}, {s(cHi)}, {v(d + 1)}", None]
                    else:
                        ops += [f"v_and_b32 {v(prev)}, 0xffff0000, {v(P)}", f"v_add_f32 {v(d + 1)}, {v(d + 1)}, {v(prev)}"]
                    ops += [f"v_lshlrev_b32 {v(P)}, 16, {v(P)}", f"v_add_f32 {v(d)}, {v(d)}, {v(P)}"]
                    ops[-3], ops[-2] = ops[-2], ops[-3]
                    prev = P
                for i, tx in enumerate(ops):
                    if tx:
                        put(u, starts[tl] + i // RPG, tx)
            extra[(u, min(starts.values()))].insert(0, f"s_waitcnt vmcnt({0 if rho == 5 and e else 1})")
            if rho < 5:
                put(u, max(starts.values()) + W - 1, xload(rho + 1)[e])
    for rho in range(6 if RES == "mfma" else 0):
        assert NWS == 4
        for e, g in enumerate(rgroups(rho)):
            u = RU0 - 1 + 3 * rho + e
            act = {f[1] % 6: 4 * i for i, f in enumerate(STEPS[u]) if f[0] == 2}
            tp, Q = divmod(g, 4)
            ms = []
            for tl in range(2):
                T = 2 * tp + tl
                m = 5
                while m in ms or m - 1 in ms or (T in act and act[T] + Q - 4 < m < act[T] + Q + 3):
                    m += 1
                ms.append(m)
                d = xreg(T, Q)
                put(u, m, f"v_mfma_f32_16x16x16_bf16 {v(d, 4)}, {v(vID, 2)}, {v(XR + 4 * e + 2 * tl, 2)}, {v(d, 4)}")
            extra[(u, min(ms))].insert(0, f"s_waitcnt vmcnt({0 if rho == 5 and e else 1})")
            if rho < 5:
                put(u, max(ms) + 1, xload(rho + 1)[e])
    for rho in range(6 if RES == "dot" else 0):
        u = RU0 + 3 * rho
        act = {f[1] % 6: 4 * i for i, f in enumerate(STEPS[u]) if f[0] == 2}
        used = []
        for e, g in enumerate(rgroups(rho)):
            tp, Q = divmod(g, 4)
            for tl in range(2):
                T = 2 * tp + tl
                m = 5
                while any(abs(m - x) < 2 for x in used) or (T in act and act[T] + Q - 4 < m < act[T] + Q + 5):
                    m += 1
                assert m < 21
                used.append(m)
                for r in range(4):
                    d = xreg(T, Q) + r
                    put(u, m + r // 2, "s_nop 0" if NOX or E("NOD") else f"v_dot2_f32_bf16 {v(d)}, {v(XR + 4 * e + 2 * tl + r // 2)}, "
                                       f"{s(cHi if r % 2 else cLo)}, {v(d)}")
        if not E("NOXW"):
            extra[(u, min(used))].insert(0, "s_waitcnt vmcnt(0)")
        if rho == 0 and XPF == 1:
            for tx in xpf(1, XR):
                put(u, max(used) + 1, tx)
        if rho < 5:
            for tx in xload(rho + 1):
                put(u, max(used) + 1, tx)

    def hook():
        a(f"s_cmp_lg_u32 {s(sMode)}, 0\ns_cbranch_scc1 L_park\nL_parked:")
        cold(f"L_park:\nv_mov_b32 {v(XR)}, {F_ISS}")
        spin(cold, "L_wi9", f"v_cmp_eq_u32 vcc, 9, {v(XR + 1)}", XR, XR + 1)
        park(cold, XR)
        cold(f"s_mov_b32 {s(sMode)}, 0\ns_nop 1\ns_branch L_parked")
        stamp(a, 1)

    pw, pg = [], []
    gap = [0]

    def emit(tx):
        i = Ins(tx)
        t = i.rd | i.wr
        while any(Ins(g).wr & t for _, g in pg):
            st(pg.pop(0)[1])
        while any({("v", slot(f) + r) for r in range(4)} & t for f, _ in pw):
            rd(*pw.pop(0))
        st(tx)

    for f in FRAGS[:NWS]:
        rd(f, 0)
        rd(f, 1)
    a(f"s_waitcnt vmcnt({13 if DIAG else 12})")
    if DYN:
        a(f"s_cmp_lg_u32 {s(sFix)}, 0\ns_cbranch_scc1 L_fix\nL_fixed:")
        cold("L_fix:")
        for i in range(48):
            cold(f"""v_lshlrev_b32 {v(ACC)}, 16, {v(H + i)}
v_and_b32 {v(ACC + 1)}, 0xffff0000, {v(H + i)}
v_mul_f32 {v(ACC)}, {s(sFix)}, {v(ACC)}
v_mul_f32 {v(ACC + 1)}, {s(sFix)}, {v(ACC + 1)}
v_cvt_pk_bf16_f32 {v(H + i)}, {v(ACC)}, {v(ACC + 1)}""")
        cold("s_nop 1\ns_branch L_fixed")
    for u in range(-1, 27):
        for k, pu in ((2, PU1), (3, PU2)):
            if u == pu and prio(k):
                a(f"s_cmp_lg_u32 {s(sTile)}, 0\ns_cbranch_scc1 L_pu{k}\nL_pb{k}:")
                cold(f"L_pu{k}:\n{prio(k)}\ns_branch L_pb{k}")
        base = []
        for i in range(8):
            if 0 <= u - 1 < 24 and i < 8 - nexp(u - 1):
                base += [t + (None,) for t in comb(u - 1, i)]
            if 0 <= u < 24 and i < 8 - nexp(u):
                lk = look(u, i)
                base += [lk[0] + (lk[2][1],), lk[1] + (lk[3][1],)]
        ex = weave((expo(u - 1)[1] if 0 <= u - 1 < 24 else []) + (expo(u)[0] if 0 <= u < 24 else []))
        V = []
        tb, te = sum(t[0] for t in base), sum(t[0] for t in ex)
        cb = ce = ib = ie = 0
        while ib < len(base) or ie < len(ex):
            if ie < len(ex) and (ib >= len(base) or ce * max(tb, 1) < cb * max(te, 1)):
                V.append(ex[ie][:2] + (None,))
                ce += ex[ie][0]
                ie += 1
            else:
                V.append(base[ib])
                cb += base[ib][0]
                ib += 1
        mfs = [(f, Q) for f in STEPS[u] for Q in range(4)]
        nm = len(mfs)
        lead = LEAD if 0 <= u < 4 else 0
        xc = [XCOST * sum(1 for t in extra.get((u, m), []) if "mfma" not in t) for m in range(nm)]
        tot = tb + te + sum(xc[lead:])
        nl = sum(1 for t in base if t[2]) + nm // (4 if E("BX") else 2)
        k = cyc = 0
        for m, (f, Q) in enumerate(mfs):
            emit(mf(f, Q))
            if Q == 3 and FRAGS.index(f) + NWS < len(FRAGS):
                nf = FRAGS[FRAGS.index(f) + NWS]
                pw += [(nf, 0)] if E("BX") else [(nf, 0), (nf, 1)]
            quota = nl * (m + 1) // nm - nl * m // nm
            if len(pw) + len(pg) > BACKLOG:
                quota += 1
            for _ in range(max(quota, 1)):
                if pw:
                    rd(*pw.pop(0))
                elif pg and pg[0][0] <= gap[0]:
                    st(pg.pop(0)[1])
            for tx in extra.pop((u, m), []):
                emit(tx)
            if m >= lead:
                cyc += xc[m]
                last = m == nm - 1
                while k < len(V) and (last or cyc + V[k][0] / 2 <= tot * (m - lead + 1) / (nm - lead)):
                    emit(V[k][1])
                    if V[k][2]:
                        pg.append((gap[0] + 1, V[k][2]))
                    cyc += V[k][0]
                    k += 1
            if u >= 25:
                g = (f[1] - 66) * 4 + Q - 12
                if g >= 0 and (g // 4) % 2 == 0:
                    epi(st, 4 * (g // 8) + g % 4)
            gap[0] += 1
        if u == UH:
            hook()
    assert not extra and not st.out and not pw and not pg and zone_now == {1: 0, 2: 0}
    print("MLP nops", st.nops)
    stamp(a, 8)
    for oy in range(2):
        line_out(st, oy, 0, STF)
    for oy in range(2):
        epi(st, 8 + 2 * oy)
        epi(st, 9 + 2 * oy)
        line_out(st, oy, 1, STF)
        line_out(st, oy, 2, STF)
    if DIAG:
        stamp(a, 9)
        stamp_rt(a, 11)
        a(f"s_lshl_b32 s62, {s(sTile)}, 3\ns_xor_b32 s62, s62, 8\ns_add_u32 s62, s62, {s(sWave)}")
        stamp_flush(a, 14, 1, t0, t1)
    a(f"""
s_cmp_lg_u32 {s(sTile)}, 0
s_cbranch_scc1 {"L_pad" if E("PADT") else "L_end"}
s_mov_b32 {s(sTile)}, 1
s_mov_b32 {s(sTB)}, {s(sNB)}
s_mov_b32 {s(sTB + 1)}, {s(sNB + 1)}
s_mov_b32 {s(sNB)}, {BIG}
s_mov_b32 {s(sNB + 1)}, {BIG}
{prio(1)}
s_branch L_mtile
""")
    for ln in cold.lines:
        a(ln)
    a(f"""
{PAD}
L_end:
s_endpgm
""")


def epi(st, g):
    b = X + 8 * g
    for d in range(4):
        st(f"v_cvt_pk_bf16_f32 {v(b + d)}, {v(b + 2 * d)}, {v(b + 2 * d + 1)}")


def line_out(st, oy, ln, fl):
    ga, gb = [4 * (p % 3) + 2 * oy + p // 3 for p in (2 * ln, 2 * ln + 1)]
    A, B = X + 8 * ga, X + 8 * gb
    for d in range(4):
        st(f"v_mov_b32 {v(A + 4 + d)}, {v(A + d)}")
    for d in range(4):
        st(f"v_mov_b32_dpp {v(A + d)}, {v(B + d)} row_ror:8 row_mask:0xf bank_mask:0xc")
    for d in range(4):
        st(f"v_mov_b32_dpp {v(B + d)}, {v(A + 4 + d)} row_ror:8 row_mask:0xf bank_mask:0x3")
    for e, r in enumerate((A, B)):
        st(f"buffer_store_dwordx4 {v(r, 4)}, {v(XR + e)}, {s(sO, 4)}, {s(sTB + oy)} offen offset:{128 * ln}{fl}")


def descriptor(a, name, nv, ns):
    a(f"""
.p2align 6
.amdhsa_kernel {name}
  .amdhsa_next_free_vgpr {nv}
  .amdhsa_next_free_sgpr {ns}
  .amdhsa_accum_offset {(nv + 3) // 4 * 4}
  .amdhsa_group_segment_fixed_size 0
  .amdhsa_kernarg_size 64
  .amdhsa_user_sgpr_count 2
  .amdhsa_user_sgpr_kernarg_segment_ptr 1
  .amdhsa_system_sgpr_workgroup_id_x 1
  .amdhsa_float_denorm_mode_32 {E("DNM", "3")}
.end_amdhsa_kernel
""")


DOC = """
; ---------------------------------------------------------------------------------------------------------------
; ---------------------------------------------------------------------------------------------------------------
"""


def main():
    here = os.path.dirname(os.path.abspath(__file__))
    ref = open(os.path.join(here, "..", NAME + ".s.ref")).read().split("\n")
    head = [l for l in ref if l.startswith(";") and "@launch" not in l]
    a = Asm()
    for l in head:
        a(l)
    a(f"; @launch grid=(256,1,1) block=(512,1,1) lds={LDS_BYTES}")
    a('.amdgcn_target "amdgcn-amd-amdhsa--gfx950"')
    a(".text")
    a(DOC)
    prologue(a)
    phase1(a)
    phase2(a)
    probs = check_hazards(a.lines)
    for p in probs:
        print("HAZARD:", p)
    a('.section .rodata,"a"')
    descriptor(a, NAME + "_kernel", 256, 100)
    out = sys.argv[1] if len(sys.argv) > 1 else os.path.join(here, "..", NAME + ".s")
    open(out, "w").write(a.text())
    print("wrote", out, "lines", len(a.lines), "hazards", len(probs), "lds", LDS_BYTES)


if __name__ == "__main__":
    main()
```

```python
import math
import struct
import sys
import os

import numpy as np

sys.path.insert(0, os.path.dirname(os.path.abspath(__file__)))
from asmlib import Asm, Ins, v, s, check_hazards

NAME = "standalone__modern_conv_block_replknet__vision"
E = os.environ.get
DIAG = E("DIAG", "0") == "1"
STF = E("STF", " sc1")
AL8, PW = int(E("AL8", "3")), int(E("PW", "0"))
SLEEP = int(E("SLEEP", "2"))
ALN = E("ALN", "")
XLF, PKF, HLF, XFF = E("XLF", " sc1"), E("PKF", " sc1"), E("HLF", ""), E("XFF", " sc1")
EXPK = [int(c) for c in E("EXPK", "21")]
LEAD, XCOST, BACKLOG = int(E("LEAD", "2")), int(E("XCOST", "4")), int(E("BACKLOG", "4"))
PKN = E("PKN", "1") == "1"
PKS = E("PKS", "1") == "1"
PCV, PLN = int(E("PCV", "0")), int(E("PLN", "2"))
PM = [int(c) for c in E("PM", "110")]
STF2 = E("STF2")
DEFER = int(E("DEFER", "8"))
NPRE = 1
XPF, XPFF = int(E("XPF", "0")), E("XPFF", " sc1")
W0P = int(E("W0P", "0"))
RES, RPG = E("RES", "mfma"), int(E("RPG", "2"))
WCAP = int(E("WCAP", "7"))
FLIP, LBAR = int(E("FLIP", "1")), int(E("LBAR", "1"))
DYN = int(E("DYN", "1"))
SBAND = 12
TSC = 48
OWN = int(E("OWN", "0"))
CW = int(E("CW", "2"))
SWP = int(E("SWP", "0"))
ILV = E("ILV", "0") == "1"
NLW = int(E("NLW", "1"))
WPF = int(E("WPF", "1"))
NOX, NOPARK, NOST = E("NOX"), E("NOPARK"), E("NOST")
UH = 2
RU0 = 7
PRA, PRB = int(E("PRA", "0")), int(E("PRB", "1"))
sStamp = 64


def f32(x):
    return "0x%08x" % struct.unpack("<I", struct.pack("<f", x))[0]


def h2(x):
    b = int(np.float16(x).view(np.uint16))
    return "0x%08x" % (b | (b << 16))


KAPPA = 2.0 * math.sqrt(2.0 / math.pi) * math.log2(math.e)
BETA = float(np.float16(KAPPA / (KAPPA * 0.044715) ** (1.0 / 3.0)))
SC = KAPPA / BETA
BIG = 0x40000000
NBIN = 28
SEXP = int(E("SEXP", "111"))

XBYTES = 512 * 512 * 96 * 2
ROWB = 512 * 192
WS_END = 256 * 8 * 12288
WS_STAMP = 0x2000000
TW = NBIN * 256
TABP, TABN = 0, 65536
E0 = TW
DZ = 65544
E1 = E0 + DZ + 19 * 3072
DZ1 = 5 * 3072 + 8
L_FLAG = E1 + DZ1 + 5 * 3072
L_JUNK = L_FLAG + 256
LDS_BYTES = L_FLAG + 512
assert L_FLAG % 16 == 0 and LDS_BYTES <= 163840 and E0 + 19 * 3072 <= 65536
OS = 584
RS = 7104
SS = 14336
RL = E0
R2 = int(E("R2", "0"))
RU = TABN + TW + (64 if R2 else 128)
TL = RL + 3 * SS
TU = RU + 2 * SS + RS + 12 * OS
assert TL + 15360 <= 65536 and TU % 16 == 0 and TU + 15360 <= E1 and RL % 256 == 0
R3L = (E1 + 255) // 256 * 256
R3U = R3L + 2 * RS - (64 if R2 else 0)
assert R3U % 128 == RU % 128 and R3U >= R3L + RS + 12 * OS and R3U + RS + 12 * OS <= L_FLAG
SLOTS = [int(c) for c in E("SLOTS", "120312012")]
assert SLOTS[6:] == [0, 1, 2] and len(set(SLOTS[:4])) == 4
PRED = [max([p for p in range(k) if SLOTS[p] == SLOTS[k]], default=k - 4) for k in range(9)]
LASTQ = [max(p for p in range(9) if SLOTS[p] == sl) for sl in (3, 0, 1, 2)]
F_STG = L_FLAG
F_DONE = L_FLAG + 40
F_TRDY = L_FLAG + 160
F_ISS = L_FLAG + 164
F_RDY = L_FLAG + 168
F_INIT = L_FLAG + 172
F_WRAW = L_FLAG + 176
F_WCNT = L_FLAG + 180
F_WMAX = L_FLAG + 184
WTMP = R3L if SLOTS[3] == 3 else RL + SLOTS[3] * SS


assert all(PRED[k] - (k - 4) in (0, 1) for k in range(9))


def kap(ch, q):
    return 32 * (q >> 4) + 16 * ch + (q & 15)


def coff(c):
    return (c // 8) * OS + (c % 8) * 72


STEPS = {u: [(tp, n) for i in range(3) for tp, n in ((1, 3 * (u + 1) + i), (2, 3 * (u - 3) + i)) if 0 <= n < 72]
         for u in range(-1, 27)}
FRAGS = [f for u in range(-1, 27) for f in STEPS[u]]
PIECES = []
for tp_, n_ in FRAGS:
    if (tp_, n_ // 6) not in PIECES:
        PIECES.append((tp_, n_ // 6))
assert len(PIECES) == 24 and len(FRAGS) == 144


def piece_addr(tp, c):
    i = PIECES.index((tp, c))
    if i < 5:
        return 1, E1 + 3072 * i, DZ1
    return 0, E0 + 3072 * (i - 5), DZ


SB = 48
TS = 192
DS = 212
TMP = 232
vL16, vT0, vT1 = 253, 254, 255
vFl, vTa, vCA, vLdA, vLdB, vSt, vCv, vK = 240, 241, 244, 247, 248, 249, 250, 251
H = 0
X = 48
G = 144
ACC = 176
WS = 224
NWS = int(E("NWS", "4"))
vID = 242
XR = 244
vXoff = 252
vA = {1: 254, 2: 255}

NE = 4
NSL = 5

sX, sO, sW = 4, 8, 12
sWave, sTile, sPair, sRdy = 16, 17, 18, 19
sSelLo, sSelHi = 20, 21
sX0, sY0 = 22, 23
sTB = 24
sA, sB, sC, sD = 26, 27, 28, 29
sR = 30
sNB = 36
sMode = 38
sRot = 39
sF = 34
sR2 = 35
sI1, sI2 = 40, 44
sDL, sDS = 48, 52
sEL, sER, sE1 = 80, 81, 82
sS = 98
sFix = 99
cNB, cS, cLo, cHi, cK = 84, 85, 86, 87, 83


def stamp(a, k):
    if DIAG:
        a(f"s_waitcnt lgkmcnt(0)\ns_memtime s[60:61]\ns_waitcnt lgkmcnt(0)\ns_mov_b32 {s(sStamp + k)}, s60")


def stamp_rt(a, k):
    if DIAG:
        a(f"s_waitcnt lgkmcnt(0)\ns_memrealtime s[60:61]\ns_waitcnt lgkmcnt(0)\ns_mov_b32 {s(sStamp + k)}, s60")


def stamp_flush(a, n, rec, vT0=vT0, vT1=vT1):
    if DIAG:
        a(f"s_mov_b32 {s(sStamp + 12)}, {s(sWave)}")
        a(f"v_mov_b32 {v(vT0)}, 0")
        for k in range(n):
            a(f"v_writelane_b32 {v(vT0)}, {s(sStamp + k)}, {k}")
        a(f"""s_lshl_b32 s60, s2, 4
s_add_u32 s60, s60, s62
s_lshl_b32 s60, s60, 7
s_add_u32 s60, s60, {WS_STAMP + 64 * rec}
v_lshrrev_b32 {v(vT1)}, 2, {v(vL16)}
s_mov_b32 exec_lo, 0xffff
s_mov_b32 exec_hi, 0
buffer_store_dword {v(vT0)}, {v(vT1)}, {s(sW, 4)}, s60 offen
s_mov_b64 exec, -1
s_nop 1""")


def srd(a, d, lo, nbytes):
    a(f"""s_mov_b32 {s(d)}, {s(lo)}
s_and_b32 {s(d + 1)}, {s(lo + 1)}, 0xffff
s_mov_b32 {s(d + 2)}, {nbytes}
s_mov_b32 {s(d + 3)}, 0x20000""")


def spin(a, label, cmp, t0=vT0, t1=vT1):
    a(f"""
s_mov_b32 {s(sD)}, 200000
{label}:
ds_read_b32 {v(t1)}, {v(t0)}
s_waitcnt lgkmcnt(0)
{cmp}
s_cmp_eq_u64 vcc, exec
s_cbranch_scc1 {label}_ok
s_sleep {SLEEP}
s_sub_u32 {s(sD)}, {s(sD)}, 1
s_cmp_lg_u32 {s(sD)}, 0
s_cbranch_scc1 {label}
{label}_ok:
""")


def wait_flags(a, label, addr):
    a(f"v_add_u32 {v(vT0)}, {addr}, {v(vFl)}")
    spin(a, label, f"v_cmp_ne_u32 vcc, 0, {v(vT1)}")


def wait_count(a, label, addr, n, op="eq"):
    a(f"v_mov_b32 {v(vT0)}, {addr}")
    spin(a, label, f"v_cmp_{op}_u32 vcc, {n}, {v(vT1)}")


def count(a, addr):
    a(f"""
v_mov_b32 {v(vT0)}, {addr}
v_mov_b32 {v(vT1)}, 1
s_waitcnt lgkmcnt(0)
s_mov_b64 exec, 1
ds_add_u32 {v(vT0)}, {v(vT1)}
s_mov_b64 exec, -1
""")


def table(a, b, tag):
    a(f"""
s_add_u32 {s(sC)}, {s(sS)}, {1 << 23}
s_and_b32 {s(sA)}, {s(sWave)}, 1
s_lshl_b32 {s(sA)}, {s(sA)}, 6
v_lshrrev_b32 v{b + 1}, 4, {v(vL16)}
v_add_u32 v{b + 1}, {s(sA)}, v{b + 1}
v_lshlrev_b32 v{b + 2}, 2, v{b + 1}
v_add_u32 v{b + 3}, {TABN}, v{b + 2}
v_lshlrev_b32 v{b + 4}, 17, v{b + 1}              ; code 2i << 16
v_or_b32 v{b + 4}, 0x8000, v{b + 4}
v_cmp_gt_u32 vcc, 64, v{b + 1}
v_mov_b32 v{b + 5}, {s(sS)}
v_mov_b32 v{b + 6}, {s(sC)}
v_cndmask_b32 v{b + 5}, v{b + 5}, v{b + 6}, vcc
v_cndmask_b32 v{b + 6}, 0, v{b + 6}, vcc
v_add_u32 v{b + 4}, v{b + 4}, v{b + 5}
v_mov_b32 v{b + 5}, 0x1000000
v_mov_b32 v{b + 7}, 0x800000
v_cndmask_b32 v{b + 5}, v{b + 5}, v{b + 7}, vcc
s_mov_b32 {s(sA)}, {f32(KAPPA * 0.044715)}
v_mov_b32 v{b + 7}, {f32(KAPPA)}
s_mov_b32 {s(sB)}, {NBIN // 2}
L_tabl{tag}:
v_add_u32 v{b + 9}, 0x10000, v{b + 4}
v_sub_f32 v{b + 8}, v{b + 4}, v{b + 6}
v_sub_f32 v{b + 9}, v{b + 9}, v{b + 6}
v_mul_f32 v{b + 10}, v{b + 8}, v{b + 8}
v_mul_f32 v{b + 11}, v{b + 9}, v{b + 9}
v_fma_f32 v{b + 10}, v{b + 10}, {s(sA)}, v{b + 7}
v_fma_f32 v{b + 11}, v{b + 11}, {s(sA)}, v{b + 7}
v_mul_f32 v{b + 10}, v{b + 10}, v{b + 8}
v_mul_f32 v{b + 11}, v{b + 11}, v{b + 9}
v_exp_f32 v{b + 10}, -v{b + 10}
v_exp_f32 v{b + 11}, -v{b + 11}
s_nop 0
v_add_f32 v{b + 12}, 1.0, v{b + 10}
v_add_f32 v{b + 13}, 1.0, v{b + 11}
v_rcp_f32 v{b + 12}, v{b + 12}
v_rcp_f32 v{b + 13}, v{b + 13}
s_nop 0
v_mul_f32 v{b + 8}, v{b + 8}, v{b + 12}
v_mul_f32 v{b + 9}, v{b + 9}, v{b + 13}
v_mul_f32 v{b + 10}, -v{b + 8}, v{b + 10}
v_mul_f32 v{b + 11}, -v{b + 9}, v{b + 11}
v_cvt_pk_bf16_f32 v{b + 12}, v{b + 8}, v{b + 9}
v_cvt_pk_bf16_f32 v{b + 13}, v{b + 10}, v{b + 11}
ds_write_b32 v{b + 2}, v{b + 12}
ds_write_b32 v{b + 3}, v{b + 13}
v_add_u32 v{b + 4}, v{b + 4}, v{b + 5}
v_mov_b32 v{b + 5}, 0x1000000
v_mov_b32 v{b + 6}, 0
v_add_u32 v{b + 2}, 512, v{b + 2}
v_add_u32 v{b + 3}, 512, v{b + 3}
s_sub_u32 {s(sB)}, {s(sB)}, 1
s_cmp_lg_u32 {s(sB)}, 0
s_cbranch_scc1 L_tabl{tag}
v_mov_b32 v{b + 3}, {TABN}
ds_write_b16 v{b + 6}, v{b + 6}                   ; gelu(+-0) = 0
ds_write_b16 v{b + 3}, v{b + 6}
""")


def issue_loads(a):
    a(f"""
s_sub_u32 {s(sA)}, 8, {s(sPair)}
s_cmp_eq_u32 {s(sF)}, 0
s_cselect_b32 {s(sA)}, {s(sPair)}, {s(sA)}
s_lshl_b32 {s(sA)}, {s(sA)}, 2
s_add_u32 {s(sA)}, {s(sA)}, {s(sY0)}
s_lshl_b32 {s(sB)}, {s(sA)}, 9
s_add_u32 {s(sB)}, {s(sB)}, {s(sX0)}
s_mul_i32 {s(sB)}, {s(sB)}, 192
s_cmp_lt_u32 {s(sA)}, 2
s_cselect_b64 vcc, s[58:59], 0
v_mov_b32 {v(vLdB)}, {BIG}
s_sub_u32 {s(sC)}, {s(sB)}, {2 * ROWB}
v_add_u32 {v(vT1)}, {s(sC)}, {v(vLdA)}
v_cndmask_b32 {v(vLdB)}, {v(vT1)}, {v(vLdB)}, vcc
v_add_u32 {v(vT1)}, -384, {v(vLdB)}
""")
    for xq in range(9):
        for i in range(4):
            off = 768 * xq + 192 * i - 384
            if xq == 0 and i < 2:
                a(f"buffer_load_dwordx4 {v(SB + 4 * i, 4)}, {v(vT1)}, {s(sX, 4)}, {s(sEL)} offen offset:{192 * i}{XLF}")
                continue
            elif xq == 8 and i >= 2:
                so, im = sER, off - 3840
            elif off < 3840:
                so, im = "0", off
            else:
                so, im = sE1, off - 3840
            so = so if isinstance(so, str) else s(so)
            a(f"buffer_load_dwordx4 {v(SB + 16 * xq + 4 * i, 4)}, {v(vLdB)}, {s(sX, 4)}, {so} offen offset:{im}{XLF}")


CPF = E("CPF", "4")


def code_pf(a, tag, first, last, r=16):
    a(f"""
s_getpc_b64 s[96:97]
L_pc{tag}:
s_add_u32 s96, s96, {first}-L_pc{tag}
s_addc_u32 s97, s97, {"0" if tag in FWD else "-1"}
v_lshlrev_b32 v{r}, 3, {v(vL16)}
v_mov_b32 v{r + 3}, s97
""")
    for i in range(NPF[tag]):
        a(f"""
v_add_u32 v{r + 1}, {8192 * i}, v{r}
v_min_u32 v{r + 1}, {last}-{first}, v{r + 1}
v_add_co_u32 v{r + 4 + 2 * i}, vcc, s96, v{r + 1}
s_nop 1
v_addc_co_u32 v{r + 5 + 2 * i}, vcc, 0, v{r + 3}, vcc
global_load_dword v{r + 2}, v[{r + 4 + 2 * i}:{r + 5 + 2 * i}], off sc1
""")


FWD = {"a", "b"}
NPF = {"a": 3, "b": 5}


def dma_consts(a, r):
    a(f"""
v_lshrrev_b32 {v(r)}, 9, {v(vL16)}             ; l>>5
v_mul_u32_u24 {v(r + 1)}, 1536, {v(r)}
v_add_u32 {v(r + 1)}, {v(r + 1)}, {v(vL16)}
v_bfe_u32 {v(vT0)}, {v(vL16)}, 6, 3            ; (l>>2)&7
v_lshl_add_u32 {v(r)}, {v(r)}, 4, {v(vT0)}
v_mul_u32_u24 {v(r)}, 768, {v(r)}
v_and_b32 {v(vT0)}, 48, {v(vL16)}
v_add_u32 {v(r)}, {v(r)}, {v(vT0)}             ; w1
""")


def dma_piece(a, tp, c, r):
    _, ad, dz = piece_addr(tp, c)
    a(f"""
s_add_u32 {s(sA)}, {s(sRot)}, {c}
s_cmp_ge_u32 {s(sA)}, 12
s_cselect_b32 {s(sB)}, 12, 0
s_sub_u32 {s(sA)}, {s(sA)}, {s(sB)}
s_mul_i32 {s(sA)}, {s(sA)}, {64 if tp == 1 else 6144}
""")
    for par in range(2):
        a(f"s_mov_b32 m0, {ad + par * dz}")
        if tp == 1:
            for ks in range(3):
                a(f"s_add_u32 {s(sR + ks)}, {s(sA)}, {(32 * ks + 8 * par) * 768 - 1024 * ks}")
            for ks in range(3):
                a(f"buffer_load_dwordx4 {v(r)}, {s(sI1, 4)}, {s(sR + ks)} offen offset:{1024 * ks} lds")
        else:
            a(f"s_add_u32 {s(sR)}, {s(sA)}, {1536 * par}")
            a(f"s_add_u32 {s(sR + 1)}, {s(sA)}, {1536 * par + 1536}")
            a(f"buffer_load_dwordx4 {v(vL16)}, {s(sI2, 4)}, {s(sR)} offen lds")
            a(f"buffer_load_dwordx4 {v(r + 1)}, {s(sI2, 4)}, {s(sR)} offen offset:1024 lds")
            a(f"buffer_load_dwordx4 {v(vL16)}, {s(sI2, 4)}, {s(sR + 1)} offen offset:2048 lds")


XADJ = f"""v_lshrrev_b32 v3, 5, v0
v_mul_u32_u24 v3, {2 * ROWB}, v3
v_bfe_u32 v4, v0, 2, 3
v_mul_u32_u24 v4, 768, v4
v_add_u32 v3, v3, v4
v_and_b32 v4, 3, v0
v_lshl_add_u32 {v(vXoff)}, v4, 4, v3""" if E("XADJ") else ""


TOPPF = """; pull the kernel's code towards L2: one dword per 128-byte line, wave 1 takes the first 8 KB
s_getpc_b64 s[96:97]
L_pc0:
v_add_u32 v16, 448, v0
v_and_b32 v16, 511, v16
v_lshlrev_b32 v16, 7, v16
v_min_u32 v16, L_end-L_pc0, v16
v_mov_b32 v17, s97
v_add_co_u32 v16, vcc, s96, v16
s_nop 1
v_addc_co_u32 v17, vcc, 0, v17, vcc
global_load_dword v18, v[16:17], off sc1""" if CPF in ("3", "4") else ""


NLM = int(E("NLM", "1"))
EXH = "0x00ff00ff" if NLM else "0x0000ffff"
LANEMAP = """; staging lane map (conflict-free LDS writes): l<32: row = l>>3, o = l&7 ; else row = 2*bit4 + bit2, o = 8 + (l&3)
v_bfe_u32 v12, v0, 3, 2
v_and_b32 v13, 7, v0
v_bfe_u32 v4, v0, 4, 1
v_bfe_u32 v5, v0, 2, 1
v_lshl_add_u32 v4, v4, 1, v5
v_and_or_b32 v5, v0, 3, 8
v_cmp_gt_u32 vcc, 32, v0
s_nop 1
v_cndmask_b32 v12, v4, v12, vcc    ; row
v_cndmask_b32 v13, v5, v13, vcc    ; o""" if NLM else """; staging lane map: row = l/12, o = l%12 (lanes < 48)
v_mul_u32_u24 v12, 43, v0
v_lshrrev_b32 v12, 9, v12          ; row
v_mul_u32_u24 v13, 12, v12
v_sub_u32 v13, v0, v13             ; o"""


def prologue(a):
    k = NAME + "_kernel"
    a(f"""
.globl {k}
.p2align 8
.type {k},@function
{k}:
s_cmp_ge_u32 s2, 256
s_cbranch_scc1 L_end
s_load_dwordx8 s[64:71], s[0:1], 0
s_load_dwordx4 s[72:75], s[0:1], 32
{"s_load_dwordx2 s[76:77], s[0:1], 56" if DIAG else ""}
{"s_memrealtime s[92:93]" if E("PADT") or E("PAD1") else ""}
{TOPPF}
s_setprio 3
v_mov_b32 v14, v0                ; tid
v_lshrrev_b32 v1, 6, v0
v_and_b32 v0, 63, v0
v_mov_b32 v10, {BIG}
v_readfirstlane_b32 {s(sWave)}, v1
; flags init (every wave writes the same values): dw10..19 = 1, dw36 = 1
v_lshlrev_b32 v2, 2, v0
v_add_u32 v2, {L_FLAG}, v2
v_add_u32 v3, -10, v0
v_cmp_gt_u32 vcc, 10, v3
v_cmp_eq_u32 s[56:57], 36, v0
s_or_b64 vcc, vcc, s[56:57]
{f"v_cmp_eq_u32 s[56:57], {(F_ISS - L_FLAG) // 4}, v0" if LBAR else ""}
{"s_or_b64 vcc, vcc, s[56:57]" if LBAR else ""}
v_cndmask_b32 v3, 0, 1, vcc
v_lshlrev_b32 {v(vL16)}, 4, v0
v_min_u32 {v(vFl)}, 1, v0
ds_write_b32 v2, v3
v_lshlrev_b32 {v(vFl)}, 2, {v(vFl)}
s_and_b32 {s(sA)}, s2, 3
s_lshl_b32 {s(sA)}, {s(sA)}, 2
s_bfe_u32 {s(sB)}, s2, 0x20003
s_add_u32 {s(sA)}, {s(sA)}, {s(sB)}
s_lshl_b32 {s(sX0)}, {s(sA)}, 5
s_bfe_u32 {s(sA)}, s2, 0x10002
s_lshl_b32 {s(sA)}, {s(sA)}, 3
s_lshr_b32 {s(sB)}, s2, 5
s_add_u32 {s(sA)}, {s(sA)}, {s(sB)}
s_lshl_b32 {s(sY0)}, {s(sA)}, 5
s_and_b32 {s(sF)}, {s(sA)}, {FLIP}
s_mul_i32 {s(sR2)}, {s(sF)}, {2 * ROWB}
s_mul_i32 {s(sF)}, {s(sF)}, 3
{LANEMAP}
v_xor_b32 v5, {s(sF)}, v12
v_mul_u32_u24 v5, {ROWB}, v5
v_lshl_add_u32 v5, v13, 4, v5
s_mov_b32 vcc_lo, -1
s_mov_b32 vcc_hi, {EXH}
v_cmp_gt_u32 s[58:59], 2, v12    ; rows 0,1
s_cmp_eq_u32 {s(sX0)}, 0
s_cselect_b32 {s(sEL)}, {BIG}, 0
v_cndmask_b32 {v(vLdA)}, v10, v5, vcc
s_mov_b32 {s(sE1)}, 3840
s_cmp_eq_u32 {s(sX0)}, 480
s_cselect_b32 {s(sER)}, {BIG}, {s(sE1)}
s_add_u32 {s(sPair)}, {s(sWave)}, {OWN}
s_and_b32 {s(sPair)}, {s(sPair)}, 7
v_add_u32 v15, {64 * OWN - 256}, v14
""")
    if CPF in ("1", "2"):
        a(f"s_cmp_lg_u32 {s(sWave)}, 7\ns_cbranch_scc1 L_nocpa")
        code_pf(a, "a", "L_pb", "L_mtile")
        a("L_nocpa:")
    a("s_waitcnt lgkmcnt(0)" + ("" if LBAR else "\ns_barrier"))
    srd(a, sX, 64, XBYTES)
    srd(a, sDL, 66, 9 * 96 * 2)
    srd(a, sDS, 68, 25 * 96 * 2)
    srd(a, sI1, 70, 96 * 384 * 2)
    srd(a, sI2, 72, 96 * 384 * 2)
    srd(a, sO, 74, XBYTES)
    if DIAG:
        srd(a, sW, 76, WS_STAMP + 0x100000)
    if E("PADG"):
        a("""s_load_dwordx2 s[88:89], s[0:1], 48
s_waitcnt lgkmcnt(0)
s_and_b32 s89, s89, 0xffff
s_mov_b32 s90, 256
s_mov_b32 s91, 0x20000
s_not_b32 s94, s92
v_mov_b32 v20, s94
v_mov_b32 v21, 0
s_cmp_lg_u32 s16, 7
s_cbranch_scc1 L_noat
s_mov_b64 exec, 1
buffer_atomic_umax v20, v21, s[88:91], 0 offen
s_mov_b64 exec, -1
L_noat:""")
    stamp(a, 0)
    stamp_rt(a, 10)
    a(f"""
s_cmp_lg_u32 {s(sPair)}, 0
s_cbranch_scc1 {"L_pb0" if LBAR else "L_pb"}
s_mov_b32 m0, {WTMP}
s_mov_b32 {s(sA)}, 4096
""")
    for i in range(4):
        a(f"buffer_load_dwordx4 {v(vL16)}, {s(sDS, 4)}, 0 offen offset:{1024 * i} lds")
    a(f"s_mov_b32 m0, {WTMP + 4096}\ns_nop 0\nbuffer_load_dwordx4 {v(vL16)}, {s(sDS, 4)}, {s(sA)} offen lds")
    a(f"s_mov_b32 m0, {WTMP + 5120}\ns_nop 0")
    for i in range(2):
        a(f"buffer_load_dwordx4 {v(vL16)}, {s(sDL, 4)}, 0 offen offset:{1024 * i} lds")
    stamp(a, 9)
    issue_loads(a)
    a(f"""
{"s_barrier" if LBAR else ""}
v_mov_b32 {v(vT0)}, {F_ISS}
v_mov_b32 {v(vT1)}, 1
{"" if LBAR else f"ds_write_b32 {v(vT0)}, {v(vT1)}"}
s_waitcnt vmcnt(36)
ds_write_b32 {v(vT0)}, {v(vT1)} offset:{F_WRAW - F_ISS}
""")
    stamp(a, 11)
    a(f"""
L_pb0:
L_pb:
s_mov_b32 {s(sS)}, {SEXP << 23}
s_mov_b32 {s(sSelLo)}, 0x05040100
s_mov_b32 {s(sSelHi)}, 0x07060302
s_lshr_b32 {s(sA)}, s2, 3
s_mul_i32 {s(sB)}, {s(sA)}, 43
s_lshr_b32 {s(sB)}, {s(sB)}, 9
s_mul_i32 {s(sB)}, {s(sB)}, 12
s_sub_u32 {s(sRot)}, {s(sA)}, {s(sB)}       ; (wg>>3) % 12
v_bfe_u32 v1, v0, 3, 1
v_lshrrev_b32 v2, 5, v0          ; ch'
v_bfe_u32 v3, v0, 4, 1           ; dyp
v_bfe_u32 v4, v0, 2, 1           ; oy
v_sub_u32 v3, v3, v4             ; dyp-oy
v_and_b32 v4, 3, v0
v_mul_u32_u24 v5, {TU - TL}, v1
v_lshl_add_u32 v5, v4, 4, v5
v_add_u32 v5, {TL}, v5
v_cmp_eq_u32 s[56:57], v1, v2
v_add_u32 v6, 0, v3
v_cmp_gt_u32 vcc, 5, v6
v_lshl_add_u32 v7, v6, 6, v5
s_and_b64 vcc, vcc, s[56:57]
v_cndmask_b32 {v(vTa)}, v10, v7, vcc
v_add_u32 v6, 2, v3
v_lshl_add_u32 v7, v6, 6, v5
v_cndmask_b32 {v(vTa + 1)}, v10, v7, s[56:57]
v_add_u32 v6, 4, v3
v_cmp_gt_u32 vcc, 5, v6
v_lshl_add_u32 v7, v6, 6, v5
s_and_b64 vcc, vcc, s[56:57]
v_cndmask_b32 {v(vTa + 2)}, v10, v7, vcc
v_mul_u32_u24 v2, {2 * OS}, v2
v_and_b32 v3, 7, v0
v_lshl_add_u32 {v(vCv)}, v3, 3, v2
v_mul_u32_u24 v3, 768, v3
v_mul_u32_u24 v4, {2 * ROWB}, v1
v_xor_b32 v4, {s(sR2)}, v4
v_add_u32 v3, v3, v4
v_lshrrev_b32 v4, 4, v0
v_lshl_add_u32 {v(vXoff)}, v4, 4, v3
{XADJ}
v_bfe_u32 v3, v0, 4, 1
v_mul_u32_u24 v3, {RS}, v3
v_add_u32 {v(vCv)}, {v(vCv)}, v3
v_cmp_eq_u32 s[56:57], 1, v1
v_and_b32 v5, 1, v12
v_mul_u32_u24 v5, {RS}, v5
v_mul_u32_u24 v6, {OS}, v13
v_add_u32 {v(vSt)}, v5, v6
s_sub_u32 {s(sA)}, 7, {s(sWave)}
s_cmp_eq_u32 {s(sF)}, 0
s_cselect_b32 {s(sA)}, {s(sWave)}, {s(sA)}
s_cselect_b32 {s(sB)}, 0, {ROWB}
s_cselect_b32 {s(sC)}, {ROWB}, 0
s_lshl_b32 {s(sA)}, {s(sA)}, 2
s_add_u32 {s(sA)}, {s(sA)}, {s(sY0)}
s_lshl_b32 {s(sA)}, {s(sA)}, 9
s_add_u32 {s(sA)}, {s(sA)}, {s(sX0)}
s_mul_i32 {s(sA)}, {s(sA)}, 192
s_add_u32 {s(sNB)}, {s(sA)}, {s(sB)}
s_add_u32 {s(sNB + 1)}, {s(sA)}, {s(sC)}
s_add_u32 {s(sTB)}, {s(sNB)}, 384
s_add_u32 {s(sTB + 1)}, {s(sNB + 1)}, 384
s_cmp_lt_u32 {s(sPair)}, {NPRE}
s_cbranch_scc1 L_perm
{"s_barrier" if LBAR else ""}
s_cmp_lt_u32 {s(sPair)}, 4
s_cbranch_scc1 L_xload
""")
    wait_count(a, "L_wraw", F_WRAW, 1)
    for r in range(2):
        b = 128 + 16 * r
        a(f"""
v_add_u32 v1, {256 * r}, v15         ; task
v_mul_u32_u24 v{b}, 683, v1
v_lshrrev_b32 v{b}, 16, v{b}         ; dy
v_mul_u32_u24 v{b + 1}, 96, v{b}
v_sub_u32 v{b + 1}, v1, v{b + 1}     ; c
v_mul_u32_u24 v2, 960, v{b}
v_lshl_add_u32 v2, v{b + 1}, 1, v2
v_add_u32 v2, {WTMP}, v2
v_add_u32 v1, -1, v{b}
v_mul_u32_u24 v3, 576, v1
v_lshl_add_u32 v3, v{b + 1}, 1, v3
v_add_u32 v3, {WTMP + 5120}, v3
v_cmp_gt_u32 vcc, 3, v1
s_nop 1
v_cndmask_b32 v3, v10, v3, vcc
""")
        for jx in range(5):
            a(f"ds_read_u16 v{b + 4 + jx}, v2 offset:{192 * jx}")
        for jx in range(3):
            a(f"ds_read_u16 v{b + 9 + jx}, v3 offset:{192 * jx}")
    a("s_waitcnt lgkmcnt(0)")
    for r in range(2):
        b = 128 + 16 * r
        w = b + 4
        o = 160 + 16 * r
        for jx in range(8):
            a(f"v_lshlrev_b32 v{w + jx}, 16, v{w + jx}")
        a(f"""
v_add_f32 v{w + 1}, v{w + 1}, v{w + 5}
v_add_f32 v{w + 2}, v{w + 2}, v{w + 6}
v_add_f32 v{w + 3}, v{w + 3}, v{w + 7}
v_mul_f32 v{w}, {f32(2.0 ** -TSC)}, v{w}
v_mul_f32 v{w + 1}, {f32(2.0 ** -TSC)}, v{w + 1}
v_mul_f32 v{w + 2}, {f32(2.0 ** -TSC)}, v{w + 2}
v_mul_f32 v{w + 3}, {f32(2.0 ** -TSC)}, v{w + 3}
v_mul_f32 v{w + 4}, {f32(2.0 ** -TSC)}, v{w + 4}
v_mov_b32 v1, 0
v_cvt_pk_bf16_f32 v{o}, v{w}, v{w + 1}
v_cvt_pk_bf16_f32 v{o + 1}, v{w + 2}, v{w + 3}
v_cvt_pk_bf16_f32 v{o + 2}, v{w + 4}, v1
v_mov_b32 v{o + 3}, 0
v_cvt_pk_bf16_f32 v{o + 4}, v1, v{w}
v_cvt_pk_bf16_f32 v{o + 5}, v{w + 1}, v{w + 2}
v_cvt_pk_bf16_f32 v{o + 6}, v{w + 3}, v{w + 4}
v_mov_b32 v{o + 7}, 0
v_mov_b32 v{o + 8}, 0
v_mov_b32 v{o + 9}, v{o}
v_mov_b32 v{o + 10}, v{o + 1}
v_mov_b32 v{o + 11}, v{o + 2}
v_mov_b32 v{o + 12}, 0
v_mov_b32 v{o + 13}, v{o + 4}
v_mov_b32 v{o + 14}, v{o + 5}
v_mov_b32 v{o + 15}, v{o + 6}
v_lshrrev_b32 v2, 5, v{b + 1}
v_and_b32 v3, 15, v{b + 1}
v_lshl_add_u32 v2, v2, 4, v3
v_mul_u32_u24 v2, 320, v2
v_bfe_u32 v3, v{b + 1}, 4, 1
v_mul_u32_u24 v3, {TU - TL}, v3
v_add_u32 v2, v2, v3
v_sub_u32 v3, 4, v{b}
s_cmp_eq_u32 {s(sF)}, 0
s_cselect_b64 vcc, -1, 0
v_cndmask_b32 v3, v3, v{b}, vcc
v_lshl_add_u32 v2, v3, 6, v2
v_add_u32 v2, {TL}, v2
v_cmp_gt_u32 vcc, 5, v{b}
s_nop 1
v_cndmask_b32 v2, v10, v2, vcc
ds_write_b128 v2, v[{o}:{o + 3}]
ds_write_b128 v2, v[{o + 4}:{o + 7}] offset:16
ds_write_b128 v2, v[{o + 8}:{o + 11}] offset:32
ds_write_b128 v2, v[{o + 12}:{o + 15}] offset:48
""")
    count(a, F_TRDY)
    a(f"s_cmp_lt_u32 {s(sPair)}, 6\ns_cbranch_scc1 L_xload")
    table(a, 0, "a")
    count(a, F_INIT)
    a("L_xload:")
    stamp(a, 13)
    wait_count(a, "L_wiss", F_ISS, s(sPair))
    stamp(a, 9)
    if CPF == "4":
        a(f"s_cmp_lg_u32 {s(sPair)}, 5\ns_cbranch_scc1 L_nocpb")
        NPF["b"] = 2
        code_pf(a, "b", "L_loader", "L_end", 20)
        a("L_nocpb:")
    if CPF == "2":
        a(f"s_cmp_eq_u32 {s(sPair)}, 8\ns_cbranch_scc1 L_nocpb\ns_bitcmp1_b32 {s(sPair)}, 0\ns_cbranch_scc1 L_nocpb")
        code_pf(a, "b", "L_wt", "L_end")
        a("L_nocpb:")
    issue_loads(a)
    a(f"""
s_add_u32 {s(sA)}, {s(sPair)}, 1
v_mov_b32 {v(vT1)}, {s(sA)}
ds_write_b32 {v(vT0)}, {v(vT1)}
""")
    stamp(a, 11)
    a("L_perm:")


def slot_of(a, dst, src):
    a(f"""
s_lshl_b32 {s(dst)}, {src}, 1
s_lshr_b32 {s(dst)}, {sum(x << (2 * i) for i, x in enumerate(SLOTS))}, {s(dst)}
s_and_b32 {s(dst)}, {s(dst)}, 3
s_cmp_eq_u32 {s(dst)}, 3
s_mul_i32 {s(dst)}, {s(dst)}, {SS}
s_cselect_b32 {s(dst + 1)}, {R3U - RU}, {s(dst)}
s_cselect_b32 {s(dst)}, {R3L - RL}, {s(dst)}
s_add_u32 {s(dst)}, {s(dst)}, {RL}
s_add_u32 {s(dst + 1)}, {s(dst + 1)}, {RU}
""")


def goff(g, base):
    tp, Q = divmod(g, 4)
    return f"{s(base + (Q >> 1))} offen offset:{192 * (Q & 1) + 64 * tp}"


def poff(t):
    return [f"v_lshrrev_b32 {v(t)}, 7, {v(vL16)}",
            f"v_mul_u32_u24 {v(t)}, 640, {v(t)}",
            f"v_add_u32 {v(t)}, {v(t)}, {v(vL16)}",
            f"v_add_u32 {v(t + 1)}, {2 * ROWB}, {v(t)}"]


def poffn(t):
    return [f"v_bfe_u32 {v(t)}, {v(vL16)}, 4, 3",
            f"v_mul_u32_u24 {v(t)}, 768, {v(t)}",
            f"v_bfe_u32 {v(t + 1)}, {v(vL16)}, 7, 1",
            f"v_lshl_add_u32 {v(t)}, {v(t + 1)}, 6, {v(t)}",
            f"v_lshrrev_b32 {v(t + 1)}, 8, {v(vL16)}",
            f"v_lshl_add_u32 {v(t)}, {v(t + 1)}, 4, {v(t)}",
            f"v_add_u32 {v(t)}, {s(sR2)}, {v(t)}",
            f"v_xor_b32 {v(t + 1)}, {2 * ROWB + 64 * SWP}, {v(t)}"]


def paddr(g, t):
    r, ln = divmod(g, 3)
    return f"{v(t + (r >> 1))}, {s(sO, 4)}, {s(sNB + (r & 1))} offen offset:{128 * ln}"


def park(a, t):
    for tx in poff(t):
        a(tx)
    for g in range(0 if NOPARK else 12):
        a(f"buffer_store_dwordx4 {v(X + 4 * g, 4)}, {paddr(g, t)}{PKF}")


def phase1(a):
    def oreg(rnd):
        return SB + (144 if rnd == 0 else 16 * (rnd - 1))

    def perms(rnd):
        a(f"s_waitcnt vmcnt({32 - 4 * rnd})")
        L = SB + 16 * rnd
        O = oreg(rnd)
        for d in range(4):
            a(f"v_perm_b32 {v(O + 4 * d)}, {v(L + 4 + d)}, {v(L + d)}, {s(sSelLo)}")
            a(f"v_perm_b32 {v(O + 4 * d + 1)}, {v(L + 12 + d)}, {v(L + 8 + d)}, {s(sSelLo)}")
            a(f"v_perm_b32 {v(O + 4 * d + 2)}, {v(L + 4 + d)}, {v(L + d)}, {s(sSelHi)}")
            a(f"v_perm_b32 {v(O + 4 * d + 3)}, {v(L + 12 + d)}, {v(L + 8 + d)}, {s(sSelHi)}")
            if ILV:
                writes(rnd, d)

    def writes(rnd, d):
        O = oreg(rnd)
        a(f"ds_write_b64 {v(vT0)}, {v(O + 4 * d, 2)} offset:{8 * rnd + 2 * d * 72}")
        a(f"ds_write_b64 {v(vT0)}, {v(O + 4 * d + 2, 2)} offset:{8 * rnd + (2 * d + 1) * 72}")

    if not ILV:
        a(f"s_mov_b32 exec_hi, {EXH}")
        for rnd in range(9):
            perms(rnd)
        a("s_mov_b32 exec_hi, -1")
    stamp(a, 1)
    a(f"s_cmp_lg_u32 {s(sPair)}, 3\ns_cbranch_scc1 L_wt3_ok")
    wait_count(a, "L_wt3", F_TRDY, 4)
    a(f"""
s_lshr_b32 {s(sA)}, {sum((PRED[k] - (k - 4)) << k for k in range(9))}, {s(sPair)}
s_and_b32 {s(sA)}, {s(sA)}, 1
s_add_u32 {s(sA)}, {s(sA)}, {s(sPair)}
s_lshl_b32 {s(sA)}, {s(sA)}, 3
s_add_u32 {s(sA)}, {s(sA)}, {F_DONE + 4}
""")
    wait_flags(a, "L_wslot", s(sA))
    stamp(a, 2)
    slot_of(a, sR, s(sPair))
    a(f"""
v_add_u32 {v(vT0)}, {s(sR)}, {v(vSt)}
v_add_u32 {v(vT1)}, {s(sR + 1)}, {v(vSt)}
v_cndmask_b32 {v(vT0)}, {v(vT1)}, {v(vT0)}, s[58:59]
s_mov_b32 exec_hi, {EXH}
""")
    for rnd in range(9):
        if ILV:
            perms(rnd)
        else:
            for d in range(4):
                writes(rnd, d)
    a(f"""
s_mov_b32 exec_hi, -1
s_lshl_b32 {s(sA)}, {s(sPair)}, 2
s_add_u32 {s(sA)}, {s(sA)}, {F_STG}
v_mov_b32 {v(vT0)}, {s(sA)}
v_mov_b32 {v(vT1)}, 1
s_waitcnt lgkmcnt(0)
ds_write_b32 {v(vT0)}, {v(vT1)}
""")
    if OWN:
        a(f"s_cmp_eq_u32 {s(sPair)}, 0\ns_cselect_b32 {s(sPair)}, 8, {s(sPair)}\ns_cbranch_scc1 L_xload")
    else:
        a(f"s_cmp_eq_u32 {s(sPair)}, 8\ns_cbranch_scc1 L_loader")
    stamp(a, 4)
    if W0P:
        a(f"s_cmp_lt_u32 {s(sWave)}, {W0P}\ns_cbranch_scc1 L_hp1")
    a(f"s_setprio {PCV}\nL_hp1:")
    if OWN:
        a(f"s_mov_b32 {s(sR + 2)}, {s(sR)}\ns_mov_b32 {s(sR + 3)}, {s(sR + 1)}\ns_sub_u32 {s(sA)}, {s(sA)}, 4")
        slot_of(a, sR, s(sWave))
    else:
        a(f"s_add_u32 {s(sB)}, {s(sPair)}, 1")
        slot_of(a, sR + 2, s(sB))
    for z in range(4):
        a(f"v_add_u32 {v(TMP + z)}, {s(sR + z)}, {v(vCv)}")
    for z in range(3):
        a(f"v_cndmask_b32 {v(vCA + z)}, {v(TMP + z)}, {v(TMP + z + 1)}, s[56:57]")
    wait_count(a, "L_wt", F_TRDY, 4)
    stamp(a, 5)

    def other_quad():
        wait_flags(a, "L_wrdy", s(sA))
        stamp(a, 3)
        a(f"""
s_lshl_b32 {s(sA)}, {s(sWave)}, 3
s_add_u32 {s(sA)}, {s(sA)}, {F_DONE + 40}
v_mov_b32 {v(vT0)}, {s(sA)}
v_mov_b32 {v(vT1)}, 1
""")

    if OWN:
        other_quad()
    NST = 144

    def cread(i):
        z, q = divmod(i, 48)
        r = DS + 4 * (i % NSL)
        if R2:
            o = (coff(kap(0, q)) - 4 * OS * (q // 16)) // 8
            pre = f"v_add_u32 {v(vCA + z)}, {4 * OS}, {v(vCA + z)}\n" if q in (16, 32) else ""
            return (pre + f"ds_read_b128 {v(TS + 4 * (i % NSL), 4)}, {v(vTa + z)} offset:{320 * q}\n"
                    f"ds_read2_b64 {v(r, 4)}, {v(vCA + z)} offset0:{o} offset1:{o + 1}")
        CX = E("CX")
        if CX == "1" and i >= NSL:
            dm = "\n".join(f"v_mov_b32 {v(TMP + k)}, {v(vL16)}" for k in range(3 - (i % 3 == 0)))
            t = f"ds_read_b128 {v(TS + 4 * (i % NSL), 4)}, {v(vTa + z)} offset:{320 * q}\n"
            if i % 3:
                t += (f"ds_read_b64 {v(r, 2)}, {v(vCA + z)} offset:{coff(kap(0, q))}\n"
                      f"ds_read_b64 {v(r + 2, 2)}, {v(vCA + z)} offset:{coff(kap(0, q)) + 8}\n")
            return t + dm
        if CX == "2" and i >= NSL:
            return (f"ds_read_b128 {v(TS + 4 * (i % NSL), 4)}, {v(vTa + z)} offset:{320 * q}\n"
                    f"ds_read_b64 {v(r, 2)}, {v(vCA + z)} offset:{coff(kap(0, q))}")
        return (f"ds_read_b128 {v(TS + 4 * (i % NSL), 4)}, {v(vTa + z)} offset:{320 * q}\n"
                f"ds_read_b64 {v(r, 2)}, {v(vCA + z)} offset:{coff(kap(0, q))}\n"
                f"ds_read_b64 {v(r + 2, 2)}, {v(vCA + z)} offset:{coff(kap(0, q)) + 8}")

    def stats_pk(q):
        out = []
        for r in (0, 2):
            acc = 4 * q + r
            if q == 0:
                out.append(f"v_pk_add_f32 {v(TMP + r, 2)}, {v(acc, 2)}, {v(acc + 4, 2)}")
                out.append(f"v_pk_mul_f32 {v(TMP + 4 + r, 2)}, {v(acc, 2)}, {v(acc, 2)}")
            else:
                if q > 1 and not E("LX"):
                    out.append(f"v_pk_add_f32 {v(TMP + r, 2)}, {v(TMP + r, 2)}, {v(acc, 2)}")
                out.append(f"v_pk_fma_f32 {v(TMP + 4 + r, 2)}, {v(acc, 2)}, {v(acc, 2)}, {v(TMP + 4 + r, 2)}")
        return out

    def stats(q):
        out = []
        for r in range(4):
            acc = 4 * q + r
            if q == 0:
                out.append(f"v_mov_b32 {v(TMP + r)}, {v(acc)}")
                out.append(f"v_mul_f32 {v(TMP + 4 + r)}, {v(acc)}, {v(acc)}")
            else:
                out.append(f"v_add_f32 {v(TMP + r)}, {v(TMP + r)}, {v(acc)}")
                out.append(f"v_fmac_f32 {v(TMP + 4 + r)}, {v(acc)}, {v(acc)}")
        return out

    SLAG = 3
    for i in range(NE + 1):
        a(cread(i))
    for i in range(NST):
        z, q = divmod(i, 48)
        left = min(i + NE + 1, NST) - (i + 1)
        if CW == 1:
            a(f"s_waitcnt lgkmcnt({0 if i == NST - 2 else (3 - R2) * left - (i in (97,98,99,100))*0})")
        elif i % 2 == 0:
            a(f"s_waitcnt lgkmcnt({(3 - R2) * max(left - 1, 0)})")
        if i == 96:
            a(f"ds_write_b32 {v(vT0)}, {v(vT1)}")
        c = "0" if z == 0 else v(4 * q, 4)
        a(f"v_mfma_f32_16x16x32_bf16 {v(4 * q, 4)}, {v(TS + 4 * (i % NSL), 4)}, {v(DS + 4 * (i % NSL), 4)}, {c}")
        if i + NE + 1 < NST:
            if i == (96 if CW == 1 else 97) and not R2:
                a("s_waitcnt lgkmcnt(12)")
            if i == 43 and not OWN:
                other_quad()
            a(cread(i + NE + 1))
        if i == NST - 2:
            a(f"ds_write_b32 {v(vT0)}, {v(vT1)} offset:4")
        if not PKS and i >= 96 + SLAG:
            for tx in stats(i - 96 - SLAG):
                a(tx)
    if W0P:
        a(f"s_cmp_lt_u32 {s(sWave)}, {W0P}\ns_cbranch_scc1 L_hp2")
    a(f"s_setprio {PLN}\nL_hp2:")
    if WPF >= 0:
        a(f"""
s_cmp_lg_u32 {s(sWave)}, {WPF}
s_cbranch_scc1 L_nopf
s_lshr_b32 {s(sA)}, s2, 3
s_mul_i32 {s(sA)}, {s(sA)}, 2304
v_lshlrev_b32 v230, 2, {v(vL16)}
buffer_load_dword v231, v230, {s(sI1, 4)}, {s(sA)} offen
buffer_load_dword v231, v230, {s(sI2, 4)}, {s(sA)} offen
L_nopf:
""")
    stamp(a, 8)
    if PKS:
        for q in range(48):
            for tx in (stats(q) if E("STP") else stats_pk(q)):
                a(tx)
    else:
        for q in range(48 - SLAG, 48):
            for tx in stats(q):
                a(tx)
    stamp(a, 6)
    s1, s2 = TMP, TMP + 4
    a(f"""
s_nop 1
v_permlane32_swap_b32 {v(s1)}, {v(s1 + 1)}
v_permlane32_swap_b32 {v(s1 + 2)}, {v(s1 + 3)}
v_permlane32_swap_b32 {v(s2)}, {v(s2 + 1)}
v_permlane32_swap_b32 {v(s2 + 2)}, {v(s2 + 3)}
""")
    for e in (0, 2):
        m, w_ = s1 + e, s2 + e
        a(f"""
v_add_f32 {v(m)}, {v(m)}, {v(m + 1)}
v_add_f32 {v(w_)}, {v(w_)}, {v(w_ + 1)}
v_mul_f32 {v(m)}, {f32(1.0 / 96)}, {v(m)}
v_mul_f32 {v(w_)}, {f32(1.0 / 96)}, {v(w_)}
v_fma_f32 {v(w_)}, -{v(m)}, {v(m)}, {v(w_)}
v_max_f32 {v(w_)}, 0, {v(w_)}
v_add_f32 {v(w_)}, {f32(1e-5 * 2.0 ** (-2 * TSC))}, {v(w_)}
v_rsq_f32 {v(w_)}, {v(w_)}
s_nop 0
v_mul_f32 {v(m)}, {v(m)}, {v(w_)}
v_mul_f32 {v(w_)}, {f32(2.0 ** -SEXP)}, {v(w_)}
v_mul_f32 {v(m)}, {f32(-2.0 ** -SEXP)}, {v(m)}
v_mov_b32 {v(w_ + 1)}, {v(w_)}
v_mov_b32 {v(m + 1)}, {v(m)}
""")
    a(f"""
s_nop 1
v_permlane32_swap_b32 {v(s1)}, {v(s1 + 1)}
v_permlane32_swap_b32 {v(s1 + 2)}, {v(s1 + 3)}
v_permlane32_swap_b32 {v(s2)}, {v(s2 + 1)}
v_permlane32_swap_b32 {v(s2 + 2)}, {v(s2 + 3)}
""")
    for ks in range(3):
        for q in range(16 * ks, 16 * ks + 16):
            if PKN:
                for r in (0, 2):
                    acc = 4 * q + r
                    a(f"v_pk_fma_f32 {v(acc, 2)}, {v(acc, 2)}, {v(s2 + r, 2)}, {v(s1 + r, 2)}")
            else:
                for r in range(4):
                    acc = 4 * q + r
                    a(f"v_fma_f32 {v(acc)}, {v(acc)}, {v(s2 + r)}, {v(s1 + r)}")
        ta = (192, X, X + 16)[ks]
        tb = 208 if ks == 0 else 16 * ks
        for r in range(4):
            base = ta if r < 2 else tb
            for sel in range(2):
                for d in range(4):
                    qp = 8 * ks + 4 * sel + d
                    a(f"v_cvt_pk_bf16_f32 {v(base + 8 * sel + 4 * (r & 1) + d)}, {v(8 * qp + r)}, {v(8 * qp + 4 + r)}")
        a("s_nop 0")
        for base in (ta, tb):
            for i in range(8):
                a(f"v_permlane16_swap_b32 {v(base + i)}, {v(base + 8 + i)}")
        if ks == 0:
            for i in range(16):
                a(f"v_mov_b32 {v(i)}, {v(208 + i)}")
        if ks == 1:
            for i in range(16):
                a(f"v_mov_b32 {v(X + 32 + i)}, {v(192 + i)}")
    stamp(a, 7)
    if DIAG:
        a(f"s_mov_b32 s62, {s(sWave)}")
    stamp_flush(a, 14, 0)
    if OWN:
        a(f"""
s_mov_b32 {s(sMode)}, 1
s_cmp_lg_u32 {s(sWave)}, 0
s_cbranch_scc1 L_p2
s_setprio 3
L_loader:
""")
        load_groups(a, tuple(range(NLW, 4)), 200)
        return
    a(f"""
s_mov_b32 {s(sPair)}, 8
s_mov_b32 {s(sMode)}, 1
s_sub_u32 {s(sA)}, {s(sWave)}, 1
s_cmp_lt_u32 {s(sA)}, {DEFER - 1}
s_cbranch_scc1 L_p2
s_mov_b32 {s(sMode)}, 0
""")
    park(a, TMP)
    a(f"""
s_cmp_lg_u32 {s(sWave)}, 0
s_cbranch_scc1 L_p2
s_setprio 3
s_branch L_xload
L_loader:
""")
    load_groups(a, tuple(range(NLW, 4)), 60)


GROUPS = [(0, 5), (5, 4), (9, 5), (14, 10)]


def load_groups(a, gs, r):
    scan = DYN and 3 in gs
    m, z, D = (r + 16, r + 17), r + 18, 96

    def scan_group(gi):
        n0, n = GROUPS[gi]
        st = Stream(a)
        regs = []
        for tp, c in PIECES[n0:n0 + n]:
            if tp == 1:
                zone, ad, dz = piece_addr(tp, c)
                for par in range(2):
                    for i in range(6):
                        ar, off = (z + 2, ad - E1 + par * dz) if zone else (z + par, ad)
                        regs.append((D + 2 * len(regs), f"{v(ar)} offset:{off + 512 * i}"))
        lag = 10
        for k in range(len(regs) + lag):
            if k < len(regs):
                st(f"ds_read_b64 {v(regs[k][0], 2)}, {regs[k][1]}")
            if k >= lag:
                for e in range(2):
                    x = v(regs[k - lag][0] + e)
                    st(f"v_pk_maximum3_f16 {v(m[e])}, {v(m[e])}, {x}, {x} neg_lo:[0,0,1] neg_hi:[0,0,1]")

    dma_consts(a, r)
    if scan:
        a(f"""
v_mov_b32 {v(m[0])}, 0
v_mov_b32 {v(m[1])}, 0
v_lshrrev_b32 {v(z)}, 1, {v(vL16)}
v_add_u32 {v(z + 1)}, {DZ}, {v(z)}
v_add_u32 {v(z + 2)}, {E1}, {v(z)}
""")
    for gi in gs:
        n0, n = GROUPS[gi]
        wait_flags(a, f"L_wg{gi}", F_DONE + 4 + 8 * (LASTQ[gi] + 4))
        for tp, c in PIECES[n0:n0 + n]:
            dma_piece(a, tp, c, r)
        if gi == gs[0] and gi:
            wait_count(a, f"L_wo{gi}", F_RDY, n0)
        if scan:
            for gj in (range(gi) if gi == gs[0] else [gi - 1]):
                scan_group(gj)
        a(f"v_mov_b32 {v(vT0)}, {F_RDY}")
        for i in range(n):
            a(f"v_mov_b32 {v(r + 4 + i)}, {n0 + i + 1}")
            a(f"s_waitcnt vmcnt({6 * (n - 1 - i)})")
            a(f"ds_write_b32 {v(vT0)}, {v(r + 4 + i)}")
    if scan:
        a("s_waitcnt lgkmcnt(0)")
        scan_group(3)
        a(f"""
v_and_b32 {v(m[0])}, 0x7fff7fff, {v(m[0])}
v_and_b32 {v(m[1])}, 0x7fff7fff, {v(m[1])}
v_pk_max_u16 {v(m[0])}, {v(m[0])}, {v(m[1])}
s_nop 0
v_lshrrev_b32 {v(m[1])}, 16, {v(m[0])}
v_and_b32 {v(m[0])}, 0xffff, {v(m[0])}
v_max_u32 {v(m[0])}, {v(m[0])}, {v(m[1])}
ds_max_u32 {v(vT0)}, {v(m[0])} offset:{F_WMAX - F_RDY}
ds_read_b32 {v(vT1)}, {v(vT0)} offset:{F_WMAX - F_RDY}
s_waitcnt lgkmcnt(0)
v_readfirstlane_b32 {s(sA)}, {v(vT1)}
s_lshr_b32 {s(sA)}, {s(sA)}, 7
s_max_u32 {s(sA)}, {s(sA)}, {NBIN - 8 + 1}
s_min_u32 {s(sA)}, {s(sA)}, {NBIN - 8 + 120}
s_sub_u32 {s(sA)}, {s(sA)}, {NBIN - 8}
s_sub_u32 {s(sB)}, {SEXP}, {s(sA)}
s_cmp_le_u32 {s(sB)}, {SBAND}
s_cselect_b32 {s(sA)}, {SEXP}, {s(sA)}
s_lshl_b32 {s(sA)}, {s(sA)}, 8
v_mov_b32 {v(vT1)}, {s(sA)}
ds_write_b32 {v(vT0)}, {v(vT1)}
""")


class Stream:
    def __init__(self, a):
        self.a = a
        self.out = []
        self.nops = 0

    def __call__(self, tx):
        for ln in tx.split("\n"):
            i = Ins(ln)
            if i.states == 0:
                self.a(ln)
                continue
            touch = (i.rd | i.wr) if i.kind != "lds" else set(i.rd)
            need = -1
            for k, d in enumerate(self.out):
                if d & touch:
                    need = k
            if need >= 0:
                n = min(len(self.out) - 1 - need, 14)
                n = min(n, WCAP)
                self.a(f"s_waitcnt lgkmcnt({n})")
                if AL8 == 1:
                    self.a("s_nop 0")
                self.out = self.out[len(self.out) - n:] if n else []
            tail = self.a.lines[-40:]
            pad = 0
            while check_hazards(tail + ([f"s_nop {pad - 1}"] if pad else []) + [ln], only_last=True):
                pad += 1
            if pad:
                self.a(f"s_nop {pad - 1}")
                self.nops += 1
            self.a(ln)
            if i.kind == "lds":
                self.out.append(set(i.wr))


PO, PY = E("PO", "1100"), E("PY", "1100")
PU1, PU2 = int(E("PU1", "12")), int(E("PU2", "20"))


PADG = """s_cmp_lg_u32 s16, 7
s_cbranch_scc1 L_end
v_mov_b32 v20, 0
v_mov_b32 v21, 0
s_mov_b64 exec, 1
buffer_atomic_or v20, v21, s[88:91], 0 offen sc0
s_waitcnt vmcnt(0)
v_readfirstlane_b32 s92, v20
s_not_b32 s92, s92""" if E("PADG") else ""
PAD = f"""L_pad:
{PADG}
L_pad2:
s_sleep 4
s_memrealtime s[94:95]
s_waitcnt lgkmcnt(0)
s_sub_u32 s94, s94, s92
s_cmp_lt_u32 s94, {int(float(E("PADT", "0")) * 100)}
s_cbranch_scc1 L_pad2""" if E("PADT") else ""


def prio(k):
    if k and PO[k] == PO[k - 1] and PY[k] == PY[k - 1]:
        return ""
    if PO[k] == PY[k]:
        return f"s_setprio {PO[k]}"
    return f"""s_setprio {PO[k]}
s_cmp_lt_u32 {s(sWave)}, 4
s_cbranch_scc1 L_pr{k}
s_setprio {PY[k]}
L_pr{k}:"""


IDENT = f"""v_lshrrev_b32 v{ACC}, 8, {v(vL16)}
v_bfe_u32 v{ACC + 1}, {v(vL16)}, 6, 2
v_cmp_eq_u32 vcc, v{ACC}, v{ACC + 1}
v_and_b32 v{ACC}, 16, {v(vL16)}
v_mov_b32 v{ACC + 1}, 0x3f80
v_lshlrev_b32 v{ACC}, v{ACC}, v{ACC + 1}
v_cndmask_b32 v{ACC}, 0, v{ACC}, vcc
v_and_b32 v{ACC + 1}, 32, {v(vL16)}
v_cmp_eq_u32 vcc, 0, v{ACC + 1}
s_nop 1
v_cndmask_b32 v{vID}, 0, v{ACC}, vcc
v_sub_u32 v{vID + 1}, v{ACC}, v{vID}""" if RES == "mfma" else ""


def phase2(a):
    SH = "dst_sel:DWORD dst_unused:UNUSED_PAD src0_sel:DWORD src1_sel:WORD_1"
    t0, t1 = ACC, ACC + 1
    a("L_p2:")
    for g in range(NLW):
        a(f"s_cmp_lg_u32 {s(sWave)}, {g + 1}\ns_cbranch_scc1 L_nodma{g}\ns_setprio 3")
        load_groups(a, (g,), ACC)
        a(f"L_nodma{g}:")
    if E("PAD1"):
        a(f"""L_pad1:
s_sleep 2
s_memrealtime s[94:95]
s_waitcnt lgkmcnt(0)
s_sub_u32 s94, s94, s92
s_cmp_lt_u32 s94, {int(float(E("PAD1")) * 100)}
s_cbranch_scc1 L_pad1""")
    wait_count(a, "L_wi", F_INIT, 2)
    a(f"""
v_bfe_u32 {v(t0)}, {v(vL16)}, 6, 2            ; r
v_and_b32 {v(t1)}, 48, {v(vL16)}              ; 16c'
v_lshrrev_b32 {v(t1 + 1)}, 9, {v(vL16)}         ; g>>1
v_lshl_add_u32 {v(t0)}, {v(t1 + 1)}, 3, {v(t0)}   ; row = 8(g>>1) + r
v_lshl_add_u32 {v(vA[1])}, {v(t0)}, 6, {v(t1)}
v_mul_u32_u24 {v(t0)}, 192, {v(t0)}
v_add_u32 {v(vA[2])}, {v(t0)}, {v(t1)}
v_bfe_u32 {v(t0)}, {v(vL16)}, 8, 1            ; g&1
v_mul_u32_u24 {v(t1)}, {DZ}, {v(t0)}
v_add_u32 {v(vA[1])}, {v(vA[1])}, {v(t1)}
v_add_u32 {v(vA[2])}, {v(vA[2])}, {v(t1)}
{IDENT}
s_mov_b32 {s(cNB)}, {h2(-BETA)}
s_mov_b32 {s(cS)}, {h2(SC)}
s_add_u32 {s(cK)}, {s(sS)}, {f32(SC)}
s_mov_b32 {s(cLo)}, 0x00003f80
s_mov_b32 {s(cHi)}, 0x3f800000
s_mov_b32 {s(sTile)}, 0
s_mov_b32 {s(sRdy)}, 0
s_mov_b32 {s(sFix)}, 0
s_mov_b32 s90, 0xff00ff00
s_mov_b32 s91, 0xff00ff00
{chr(10).join(f"v_mov_b32 v{XR + i}, 0" for i in range(8)) if E("NOXL") else ""}
{prio(0)}
{ALN.replace('|', chr(10))}
L_mtile:
""")
    stamp(a, 2)
    stamp_rt(a, 13)
    if E("XL128"):
        for tx in (poff if E("XL128") == "1" else poffn)(XR):
            a(tx)
        a(f"v_mov_b32 {v(vXoff)}, {v(XR)}\ns_mov_b32 s88, {s(sTB)}\ns_mov_b32 s89, {s(sTB + 1)}\ns_add_u32 s90, s88, {2 * ROWB}\ns_add_u32 s91, s89, {2 * ROWB}")
    st = Stream(a)
    zone_now = {1: 0, 2: 0}
    seen = [0]

    def slot(f):
        return WS + 4 * (FRAGS.index(f) % NWS)

    cold = Asm()

    def rd(f, hf):
        tp, n = f
        c, k = divmod(n, 6)
        zone, ad, _ = piece_addr(tp, c)
        base = slot(f)
        if zone != zone_now[tp]:
            zone_now[tp] = zone
            st(f"v_bfe_u32 {v(base)}, {v(vL16)}, 8, 1")
            st(f"v_mul_u32_u24 {v(base)}, {DZ - DZ1}, {v(base)}")
            st(f"v_subrev_u32 {v(base)}, {E1}, {v(base)}")
            st(f"v_{'sub' if zone else 'add'}_u32 {v(vA[tp])}, {v(vA[tp])}, {v(base)}")
        need = PIECES.index((tp, c)) + 1
        if need > seen[0]:
            if need > 4:
                need = min(need + 1, 24)
            seen[0] = need
            if need == 24 and DYN:
                need = 25
            lb = f"L_rd{need}"
            a(f"s_cmp_lt_u32 {s(sRdy)}, {need}\ns_cbranch_scc1 {lb}_slow\n{lb}_go:")
            cold(f"{lb}_slow:\nv_mov_b32 {v(base)}, {F_RDY}")
            spin(cold, lb, f"v_cmp_le_u32 vcc, {need}, {v(base + 1)}", base, base + 1)
            cold(f"v_readfirstlane_b32 {s(sRdy)}, {v(base + 1)}")
            if need < 25:
                cold(f"s_min_u32 {s(sRdy)}, {s(sRdy)}, 24\ns_branch {lb}_go")
            else:
                assert zone_now == {1: 0, 2: 0}
                cold(f"""
s_cmp_lt_u32 {s(sRdy)}, 256
s_cbranch_scc1 {lb}_go
s_lshl_b32 {s(sS)}, {s(sRdy)}, 15
s_cmp_eq_u32 {s(sS)}, {SEXP << 23}
s_cbranch_scc1 {lb}_go
s_waitcnt vmcnt(0) lgkmcnt(0)
s_nop 7
s_barrier
s_cmp_lt_u32 {s(sWave)}, 6
s_cbranch_scc1 L_notab
""")
                table(cold, X, "b")
                cold(f"""
L_notab:
s_add_u32 {s(cK)}, {s(sS)}, {f32(SC)}
s_sub_u32 {s(sFix)}, {(127 + SEXP) << 23}, {s(sS)}
s_waitcnt lgkmcnt(0)
s_barrier
s_branch L_mtile
""")
            if need == 1:
                stamp(a, 3)
        off = ad - (E1 if zone else 0)
        if tp == 1:
            ht, ks = divmod(k, 3)
            o = off + 1024 * ks + 256 * hf + 8 * ht
        else:
            o = off + 768 * hf + 64 * (k // 2) + 8 * (k % 2)
        assert o < 65536
        if E("BX"):
            if hf == 0:
                st(f"ds_read_b128 {v(base, 4)}, {v(vL16)} offset:{E0 + 3072 * (2 * (c % 8) + 2 - tp) + 1024 * (k % 3)}")
            return
        st(f"ds_read_b64_tr_b16 {v(base + 2 * hf, 2)}, {v(vA[tp])} offset:{o}")

    def xreg(T, Q):
        return X + 8 * (4 * (T // 2) + Q) + 4 * (T % 2)

    def mf(f, Q):
        tp, n = f
        c, k = divmod(n, 6)
        if tp == 1:
            ks = n % 3
            d = ACC + 16 * ((n // 3) % 3) + 4 * Q
            return (f"v_mfma_f32_16x16x32_bf16 {v(d, 4)}, {v(slot(f), 4)}, "
                    f"{v(H + 16 * ks + 4 * Q, 4)}, {'0' if ks == 0 else v(d, 4)}")
        d = xreg(k, Q)
        return (f"v_mfma_f32_16x16x32_bf16 {v(d, 4)}, {v(slot(f), 4)}, "
                f"{v(G + 16 * (c % 2) + 4 * Q, 4)}, {'0' if c == 0 else v(d, 4)}")

    def look(u, i):
        a0 = ACC + 16 * (u % 3) + 2 * i
        if E("NOCF") and i < int(E("NOCF")):
            return [(4, f"v_lshrrev_b32 {v(a0)}, 2, {v(vL16)}"), (4, f"v_lshrrev_b32 {v(a0 + 1)}, 2, {v(vL16)}"),
                    (0, f"ds_read_u16_d16 {v(a0)}, {v(a0)} offset:{3072 + 256 * ((u + i) % 8)}"),
                    (0, f"ds_read_u16_d16_hi {v(a0 + 1)}, {v(a0 + 1)} offset:{3074 + 256 * ((u + 3 * i) % 8)}")]
        return [(4, f"v_lshlrev_b32_sdwa {v(a0)}, 1, {v(a0)} {SH}"),
                (4, f"v_lshlrev_b32_sdwa {v(a0 + 1)}, 1, {v(a0 + 1)} {SH}"),
                (0, f"ds_read_u16_d16 {v(a0)}, {v(a0)}"),
                (0, f"ds_read_u16_d16_hi {v(a0 + 1)}, {v(a0 + 1)}")]

    def greg(u, i):
        c, ht = divmod(u, 2)
        return G + 16 * (c % 2) + 4 * (i // 2) + 2 * ht + i % 2

    def nexp(u):
        return EXPK[u % len(EXPK)]

    def comb(u, i):
        a0 = ACC + 16 * (u % 3) + 2 * i
        return [(4, f"v_or_b32{'_e64' if AL8 == 1 else ''} {v(greg(u, i))}, {v(a0)}, {v(a0 + 1)}")]

    def expo(u):
        LO = "dst_sel:WORD_0 dst_unused:UNUSED_PRESERVE src0_sel:WORD_0"
        HI = "dst_sel:WORD_1 dst_unused:UNUSED_PRESERVE src0_sel:WORD_1"
        ch1, ch2 = [], []
        for i in range(8 - nexp(u), 8):
            b, t, r = v(ACC + 16 * (u % 3) + 2 * i), v(ACC + 16 * (u % 3) + 2 * i + 1), v(greg(u, i))
            ch1.append([(4, f"v_fma_mixlo_f16 {b}, {b}, {s(cK)}, 0"),
                        (4, f"v_fma_mixhi_f16 {b}, {t}, {s(cK)}, 0"),
                        (4, f"v_pk_fma_f16 {t}, {b}, {b}, {s(cNB)} neg_lo:[0,1,0] neg_hi:[0,1,0]"),
                        (4, f"v_pk_mul_f16 {t}, {t}, {b}"),
                        (8, f"v_exp_f16_sdwa {t}, {t} {LO}"),
                        (8, f"v_exp_f16_sdwa {t}, {t} {HI}"),
                        (4, f"v_pk_fma_f16 {t}, {t}, {s(cS)}, {s(cS)}")])
            ch2.append([(8, f"v_rcp_f16_sdwa {t}, {t} {LO}"),
                        (8, f"v_rcp_f16_sdwa {t}, {t} {HI}"),
                        (4, f"v_fma_mix_f32 {r}, {b}, {t}, 0 op_sel_hi:[1,1,0]"),
                        (4, f"v_fma_mix_f32 {t}, {b}, {t}, 0 op_sel:[1,1,0] op_sel_hi:[1,1,0]"),
                        (4, f"v_cvt_pk_bf16_f32 {r}, {r}, {t}")])
        return ch1, ch2

    def weave(chains):
        out = []
        n = max([len(c) for c in chains], default=0)
        for k in range(n):
            need_pad = sum(1 for c in chains if k < len(c)) == 1
            out += [c[k] + (need_pad,) for c in chains if k < len(c)]
        return out

    extra = {}

    def put(u, m, tx):
        extra.setdefault((u, m), []).append(tx)

    put(23, 0, "s_waitcnt vmcnt(0)")
    for tx in poff(XR):
        put(23, 0, tx)
    for g in range(0 if NOPARK else 12):
        ks = (1, 2, 0)[g // 4]
        put(23, g, f"buffer_load_dwordx4 {v(H + 16 * ks + 4 * (g % 4), 4)}, {paddr(g, XR)}{HLF}")

    for tx in poffn(XR):
        put(24, 2, tx)
    def rgroups(rho):
        oy, ln = divmod(rho, 3)
        return [4 * (p % 3) + 2 * oy + p // 3 for p in (2 * ln, 2 * ln + 1)]

    def xload(rho):
        if E("XL128"):
            return [f"buffer_load_dwordx4 {v(XR + 4 * e, 4)}, {v(vXoff)}, {s(sX, 4)}, {s(88 + (2 * rho + e) // 3)} offen offset:{128 * ((2 * rho + e) % 3)}{XFF}" for e in range(2)]
        return [f"buffer_load_dwordx4 {v(XR + 4 * e, 4)}, {v(vXoff)}, {s(sX, 4)}, {goff(g, sTB)}{XFF}"
                for e, g in enumerate(rgroups(rho)) if not NOX and not E("NOXL")]

    def xpf(oy, t):
        return [f"v_lshrrev_b32 {v(t)}, 8, {v(vL16)}",
                f"v_mul_u32_u24 {v(t)}, 112, {v(t)}",
                f"s_mov_b32 m0, {L_JUNK}",
                f"v_add_u32 {v(t)}, {v(t)}, {v(vXoff)}",
                f"buffer_load_dword {v(t)}, {s(sX, 4)}, {s(sTB + oy)} offen{XPFF} lds"]

    if XPF:
        for tx in xpf(0, XR):
            put(-1, 0, tx)
        if XPF == 2:
            for tx in xpf(1, XR):
                put(-1, 1, tx)
    for tx in xload(0):
        put(RU0 - 3 - (RES != "dot"), 22, tx)
    for rho in range(6 if RES == "plain" else 0):
        for e, g in enumerate(rgroups(rho)):
            u = RU0 - 1 + 3 * rho + e
            act = {f[1] % 6: 4 * i for i, f in enumerate(STEPS[u]) if f[0] == 2}
            tp, Q = divmod(g, 4)
            W = 8 // RPG
            starts = {}
            for tl in range(2):
                T = 2 * tp + tl
                m = 3
                while any(abs(m - x) < W for x in starts.values()) or (T in act and act[T] + Q - W - 1 < m < act[T] + Q + 4):
                    m += 1
                assert m + W <= 23, (u, T, m)
                starts[tl] = m
            prev = None
            for tl in sorted(starts, key=starts.get):
                ops = []
                for h in range(2):
                    P, d = XR + 4 * e + 2 * tl + h, xreg(2 * tp + tl, Q) + 2 * h
                    if prev is None:
                        ops += [f"v_dot2_f32_bf16 {v(d + 1)}, {v(P)}, {s(cHi)}, {v(d + 1)}", None]
                    else:
                        ops += [f"v_and_b32 {v(prev)}, 0xffff0000, {v(P)}", f"v_add_f32 {v(d + 1)}, {v(d + 1)}, {v(prev)}"]
                    ops += [f"v_lshlrev_b32 {v(P)}, 16, {v(P)}", f"v_add_f32 {v(d)}, {v(d)}, {v(P)}"]
                    ops[-3], ops[-2] = ops[-2], ops[-3]
                    prev = P
                for i, tx in enumerate(ops):
                    if tx:
                        put(u, starts[tl] + i // RPG, tx)
            extra[(u, min(starts.values()))].insert(0, f"s_waitcnt vmcnt({0 if rho == 5 and e else 1})")
            if rho < 5:
                put(u, max(starts.values()) + W - 1, xload(rho + 1)[e])
    for rho in range(6 if RES == "mfma" else 0):
        assert NWS == 4
        for e, g in enumerate(rgroups(rho)):
            u = RU0 - 1 + 3 * rho + e
            act = {f[1] % 6: 4 * i for i, f in enumerate(STEPS[u]) if f[0] == 2}
            tp, Q = divmod(g, 4)
            ms = []
            for tl in range(2):
                T = 2 * tp + tl
                m = 5
                while m in ms or m - 1 in ms or (T in act and act[T] + Q - 4 < m < act[T] + Q + 3):
                    m += 1
                ms.append(m)
                d = xreg(T, Q)
                put(u, m, f"v_mfma_f32_16x16x16_bf16 {v(d, 4)}, {v(vID, 2)}, {v(XR + 4 * e + 2 * tl, 2)}, {v(d, 4)}")
            extra[(u, min(ms))].insert(0, f"s_waitcnt vmcnt({0 if rho == 5 and e else 1})" + ("\ns_nop 0" if AL8 == 1 else ""))
            if rho < 5:
                put(u, max(ms) + 1, xload(rho + 1)[e])
    for rho in range(6 if RES == "dot" else 0):
        u = RU0 + 3 * rho
        act = {f[1] % 6: 4 * i for i, f in enumerate(STEPS[u]) if f[0] == 2}
        used = []
        for e, g in enumerate(rgroups(rho)):
            tp, Q = divmod(g, 4)
            for tl in range(2):
                T = 2 * tp + tl
                m = 5
                while any(abs(m - x) < 2 for x in used) or (T in act and act[T] + Q - 4 < m < act[T] + Q + 5):
                    m += 1
                assert m < 21
                used.append(m)
                for r in range(4):
                    d = xreg(T, Q) + r
                    put(u, m + r // 2, "s_nop 0" if NOX or E("NOD") else f"v_dot2_f32_bf16 {v(d)}, {v(XR + 4 * e + 2 * tl + r // 2)}, "
                                       f"{s(cHi if r % 2 else cLo)}, {v(d)}")
        if not E("NOXW"):
            extra[(u, min(used))].insert(0, "s_waitcnt vmcnt(0)")
        if rho == 0 and XPF == 1:
            for tx in xpf(1, XR):
                put(u, max(used) + 1, tx)
        if rho < 5:
            for tx in xload(rho + 1):
                put(u, max(used) + 1, tx)

    def hook():
        a(f"s_cmp_lg_u32 {s(sMode)}, 0\ns_cbranch_scc1 L_park\nL_parked:")
        cold(f"L_park:\nv_mov_b32 {v(XR)}, {F_ISS}")
        spin(cold, "L_wi9", f"v_cmp_eq_u32 vcc, 9, {v(XR + 1)}", XR, XR + 1)
        park(cold, XR)
        cold(f"s_mov_b32 {s(sMode)}, 0\ns_nop 1\ns_branch L_parked")
        stamp(a, 1)

    pw, pg = [], []
    gap = [0]

    def emit(tx):
        i = Ins(tx)
        t = i.rd | i.wr
        while any(Ins(g).wr & t for _, g in pg):
            st(pg.pop(0)[1])
        while any({("v", slot(f) + r) for r in range(4)} & t for f, _ in pw):
            rd(*pw.pop(0))
        st(tx)

    for f in FRAGS[:NWS]:
        rd(f, 0)
        rd(f, 1)
    a(f"s_waitcnt vmcnt({13 if DIAG else 12})")
    if DYN:
        a(f"s_cmp_lg_u32 {s(sFix)}, 0\ns_cbranch_scc1 L_fix\nL_fixed:")
        cold("L_fix:")
        for i in range(48):
            cold(f"""v_lshlrev_b32 {v(ACC)}, 16, {v(H + i)}
v_and_b32 {v(ACC + 1)}, 0xffff0000, {v(H + i)}
v_mul_f32 {v(ACC)}, {s(sFix)}, {v(ACC)}
v_mul_f32 {v(ACC + 1)}, {s(sFix)}, {v(ACC + 1)}
v_cvt_pk_bf16_f32 {v(H + i)}, {v(ACC)}, {v(ACC + 1)}""")
        cold("s_nop 1\ns_branch L_fixed")
    for u in range(-1, 27):
        for k, pu in ((2, PU1), (3, PU2)):
            if u == pu and prio(k):
                a(f"s_cmp_lg_u32 {s(sTile)}, 0\ns_cbranch_scc1 L_pu{k}\nL_pb{k}:")
                cold(f"L_pu{k}:\n{prio(k)}\ns_branch L_pb{k}")
        base = []
        for i in range(8):
            if 0 <= u - 1 < 24 and i < 8 - nexp(u - 1):
                base += [t + (None,) for t in comb(u - 1, i)]
            if 0 <= u < 24 and i < 8 - nexp(u):
                lk = look(u, i)
                base += [lk[0] + (lk[2][1],), lk[1] + (lk[3][1],)]
        ex = weave((expo(u - 1)[1] if 0 <= u - 1 < 24 else []) + (expo(u)[0] if 0 <= u < 24 else []))
        V = []
        tb, te = sum(t[0] for t in base), sum(t[0] for t in ex)
        cb = ce = ib = ie = 0
        while ib < len(base) or ie < len(ex):
            if ie < len(ex) and (ib >= len(base) or ce * max(tb, 1) < cb * max(te, 1)):
                V.append(ex[ie][:2] + (None,))
                ce += ex[ie][0]
                ie += 1
            else:
                V.append(base[ib])
                cb += base[ib][0]
                ib += 1
        mfs = [(f, Q) for f in STEPS[u] for Q in range(4)]
        nm = len(mfs)
        lead = LEAD if 0 <= u < 4 else 0
        xc = [XCOST * sum(1 for t in extra.get((u, m), []) if "mfma" not in t) for m in range(nm)]
        tot = tb + te + sum(xc[lead:])
        nl = sum(1 for t in base if t[2]) + nm // (4 if E("BX") else 2)
        k = cyc = 0
        for m, (f, Q) in enumerate(mfs):
            emit(mf(f, Q))
            if Q == 3 and FRAGS.index(f) + NWS < len(FRAGS):
                nf = FRAGS[FRAGS.index(f) + NWS]
                pw += [(nf, 0)] if E("BX") else [(nf, 0), (nf, 1)]
            quota = nl * (m + 1) // nm - nl * m // nm
            if len(pw) + len(pg) > BACKLOG:
                quota += 1
            for _ in range(max(quota, 1)):
                if pw:
                    rd(*pw.pop(0))
                elif pg and pg[0][0] <= gap[0]:
                    st(pg.pop(0)[1])
            for tx in extra.pop((u, m), []):
                emit(tx)
            if m >= lead:
                cyc += xc[m]
                last = m == nm - 1
                while k < len(V) and (last or cyc + V[k][0] / 2 <= tot * (m - lead + 1) / (nm - lead)):
                    emit(V[k][1])
                    if V[k][2]:
                        pg.append((gap[0] + 1, V[k][2]))
                    cyc += V[k][0]
                    k += 1
            if u >= 25:
                g = (f[1] - 66) * 4 + Q - 12
                if g >= 0 and (g // 4) % 2 == 0:
                    epi(st, 4 * (g // 8) + g % 4)
            gap[0] += 1
        if u == UH:
            hook()
    assert not extra and not st.out and not pw and not pg and zone_now == {1: 0, 2: 0}
    print("MLP nops", st.nops)
    stamp(a, 8)
    for oy in range(2):
        line_out(st, oy, 0, STF)
    for oy in range(2):
        epi(st, 8 + 2 * oy)
        epi(st, 9 + 2 * oy)
        line_out(st, oy, 1, STF)
        line_out(st, oy, 2, STF)
    if DIAG:
        stamp(a, 9)
        stamp_rt(a, 11)
        a(f"s_lshl_b32 s62, {s(sTile)}, 3\ns_xor_b32 s62, s62, 8\ns_add_u32 s62, s62, {s(sWave)}")
        stamp_flush(a, 14, 1, t0, t1)
    a(f"""
s_cmp_lg_u32 {s(sTile)}, 0
s_cbranch_scc1 {"L_pad" if E("PADT") else "L_end"}
s_mov_b32 {s(sTile)}, 1
s_mov_b32 {s(sTB)}, {s(sNB)}
s_mov_b32 {s(sTB + 1)}, {s(sNB + 1)}
s_mov_b32 {s(sNB)}, {BIG}
s_mov_b32 {s(sNB + 1)}, {BIG}
{prio(1)}
s_branch L_mtile
""")
    for ln in cold.lines:
        a(ln)
    a(f"""
{PAD}
L_end:
s_endpgm
""")


def epi(st, g):
    b = X + 8 * g
    for d in range(4):
        st(f"v_cvt_pk_bf16_f32 {v(b + d)}, {v(b + 2 * d)}, {v(b + 2 * d + 1)}")


def line_out(st, oy, ln, fl):
    ga, gb = [4 * (p % 3) + 2 * oy + p // 3 for p in (2 * ln, 2 * ln + 1)]
    A, B = X + 8 * ga, X + 8 * gb
    if SWP:
        for d in range(4):
            st(f"v_mov_b32_dpp {v(B + d)}, {v(B + d)} row_ror:8 row_mask:0xf bank_mask:0xf")
        st("s_mov_b64 exec, s[90:91]")
        for d in range(4):
            st(f"v_swap_b32 {v(A + d)}, {v(B + d)}")
        st("s_mov_b64 exec, -1")
        for e, r in enumerate((A, B)):
            st(f"buffer_store_dwordx4 {v(r, 4)}, {v(XR + e)}, {s(sO, 4)}, {s(sTB + oy)} offen offset:{128 * ln}{fl}")
        return
    for d in range(4):
        st(f"v_mov_b32 {v(A + 4 + d)}, {v(A + d)}")
    for d in range(4):
        st(f"v_mov_b32_dpp {v(A + d)}, {v(B + d)} row_ror:8 row_mask:0xf bank_mask:0xc")
    for d in range(4):
        st(f"v_mov_b32_dpp {v(B + d)}, {v(A + 4 + d)} row_ror:8 row_mask:0xf bank_mask:0x3")
    for e, r in enumerate((A, B)):
        st(f"buffer_store_dwordx4 {v(r, 4)}, {v(XR + e)}, {s(sO, 4)}, {s(sTB + oy)} offen offset:{128 * ln}{fl}")


def descriptor(a, name, nv, ns):
    a(f"""
.p2align 6
.amdhsa_kernel {name}
  .amdhsa_next_free_vgpr {nv}
  .amdhsa_next_free_sgpr {ns}
  .amdhsa_accum_offset {(nv + 3) // 4 * 4}
  .amdhsa_group_segment_fixed_size 0
  .amdhsa_kernarg_size 64
  .amdhsa_user_sgpr_count 2
  .amdhsa_user_sgpr_kernarg_segment_ptr 1
  .amdhsa_system_sgpr_workgroup_id_x 1
  .amdhsa_float_denorm_mode_32 {E("DNM", "3")}
.end_amdhsa_kernel
""")


DOC = """
; ---------------------------------------------------------------------------------------------------------------
;   code, 28 binades incl. gradual underflow); the others evaluate a/(1+exp(-2u)) directly.  h carries a power of
; ---------------------------------------------------------------------------------------------------------------
"""


def pair_waits(lines, reach):
    import re
    L = list(lines)
    lo = L.index("L_mtile:")
    hi = max(i for i, l in enumerate(L) if "v_mfma" in l)
    moved = 0
    for i in range(lo, hi):
        m = re.match(r"s_waitcnt lgkmcnt\((\d+)\)$", L[i].strip())
        if not m or L[i + 1].startswith("v_or_b32") or L[i - 1].startswith("v_or_b32"):
            continue
        n, j = int(m.group(1)), i - 1
        while i - j <= reach and Ins(L[j]).kind in ("valu", "mfma", "lds") and not L[j].startswith("v_or_b32"):
            n -= Ins(L[j]).kind == "lds"
            j -= 1
        if L[j].startswith("v_or_b32") and not L[j - 1].startswith("s_") and n >= 2:
            T = L[:j + 1] + [f"s_waitcnt lgkmcnt({n})"] + L[j + 1:i] + L[i + 1:]
            if not check_hazards(T[i - 30:i + 30]):
                L = T
                moved += 1
    print("waits moved", moved)
    return L


def align8(lines):
    import re
    import subprocess
    import tempfile
    with tempfile.TemporaryDirectory() as d:
        t = Asm()
        t.lines = lines
        open(d + "/t.s", "w").write(t.text())
        subprocess.run(["clang", "-x", "assembler", "-target", "amdgcn-amd-amdhsa", "-mcpu=gfx950",
                        "-c", d + "/t.s", "-o", d + "/t.o"], check=True)
        dis = subprocess.run(["llvm-objdump", "-d", d + "/t.o"], capture_output=True, text=True).stdout
    sizes = [8 if m.group(1) else 4 for m in re.finditer(r"// [0-9A-F]+: [0-9A-F]{8}( [0-9A-F]{8})?", dis)]
    idx = [i for i, l in enumerate(lines) if Ins(l).states]
    assert len(idx) == len(sizes), (len(idx), len(sizes))
    WIDE = ("v_or_b32", "v_mov_b32", "v_add_f32", "v_mul_f32", "v_sub_f32", "v_add_u32", "v_sub_u32", "v_and_b32",
            "v_lshlrev_b32", "v_lshrrev_b32", "v_xor_b32", "v_max_f32", "v_mul_u32_u24")
    out = list(lines)
    odd = False
    nw = npad = 0
    for k, i in enumerate(idx):
        if sizes[k] == 4:
            if not odd and k + 1 < len(idx) and sizes[k + 1] == 8:
                mn = Ins(lines[i]).mn
                if mn in WIDE:
                    out[i] = lines[i].replace(mn, mn + "_e64", 1)
                    nw += 1
                elif mn == "s_nop" and Ins(lines[i]).states > 1:
                    out[i] = f"s_nop {Ins(lines[i]).states - 2}\ns_nop 0"
                elif mn == "s_getpc_b64" or AL8 == 3:
                    odd = True
                else:
                    out[i] = lines[i] + "\ns_nop 0"
                    npad += 1
            else:
                odd = not odd
    print("align8: widened", nw, "padded", npad)
    return [x for l in out for x in l.split("\n")]


def main():
    here = os.path.dirname(os.path.abspath(__file__))
    ref = open(os.path.join(here, "..", NAME + ".s.ref")).read().split("\n")
    head = [l for l in ref if l.startswith(";") and "@launch" not in l]
    a = Asm()
    for l in head:
        a(l)
    a(f"; @launch grid=(256,1,1) block=(512,1,1) lds={LDS_BYTES}")
    a('.amdgcn_target "amdgcn-amd-amdhsa--gfx950"')
    a(".text")
    a(DOC)
    prologue(a)
    phase1(a)
    phase2(a)
    if PW:
        a.lines = pair_waits(a.lines, PW)
    if AL8 >= 2:
        a.lines = align8(a.lines)
    probs = check_hazards(a.lines)
    for p in probs:
        print("HAZARD:", p)
    a('.section .rodata,"a"')
    descriptor(a, NAME + "_kernel", 256, 100)
    out = sys.argv[1] if len(sys.argv) > 1 else os.path.join(here, "..", NAME + ".s")
    open(out, "w").write(a.text())
    print("wrote", out, "lines", len(a.lines), "hazards", len(probs), "lds", LDS_BYTES)


if __name__ == "__main__":
    main()
```
